```python
import torch

def _softmax(x, axis=-1):
    return torch.softmax(x, dim=axis)
def _gelu(x):
    return torch.nn.functional.gelu(x, approximate="tanh")
def _silu(x):
    return torch.nn.functional.silu(x)
def _sigmoid(x):
    return torch.sigmoid(x)
def _layernorm(x, axis=-1, eps=1e-5):
    m = x.mean(dim=axis, keepdim=True)
    v = x.var(dim=axis, keepdim=True, unbiased=False)
    return (x - m) / torch.sqrt(v + eps)
def _scatter_add(tgt, idx, src, axis=0):
    return tgt.clone().index_add_(axis, idx, src)
def _segment_sum(src, seg, n):
    out = torch.zeros((n,) + src.shape[1:], dtype=src.dtype)
    return out.index_add_(0, seg, src)
def _pad(x, pw):
    flat = tuple(v for pair in reversed(pw) for v in pair)
    return torch.nn.functional.pad(x, flat)

kernel_name = 'gated_mix__softmax_full_mha__ssm_conv_s4d__prompt'

def setup_inputs():

    _w = (lambda a: (lambda t: t.to(torch.bfloat16) if t.is_floating_point() else t)(torch.as_tensor(a)))
    def _A_setup():
        B, S, D = 1, 2048, 512
        return {
            "x": _w((lambda *s: torch.randn(*s, dtype=torch.bfloat16) * 0.05)(B, S, D)),
            "wqkv": _w((lambda *s: torch.randn(*s, dtype=torch.bfloat16) * 0.8)(D, 3 * D)),
            "wo": _w((lambda *s: torch.randn(*s, dtype=torch.bfloat16) * 0.05)(D, D)),
        }
    _A_in = _A_setup()

    def _B_setup():
        Bsz, L, D, N = 1, 2048, 512, 128
        return {
            "u": _w((lambda *s: torch.randn(*s, dtype=torch.bfloat16) * 0.05)(Bsz, L, D)),
            "log_A_real": _w((lambda *s: torch.randn(*s, dtype=torch.bfloat16) * 6.4)(D, N) * 0.5),
            "A_imag": _w((lambda *s: torch.randn(*s, dtype=torch.bfloat16) * 0.1)(D, N) * 3.14),
            "C_real": _w((lambda *s: torch.randn(*s, dtype=torch.bfloat16) * 0.4)(D, N) / N ** 0.5),
            "C_imag": _w((lambda *s: torch.randn(*s, dtype=torch.bfloat16) * 0.4)(D, N) / N ** 0.5),
            "log_dt": _w((lambda *s: torch.randn(*s, dtype=torch.bfloat16) * 0.1)(D) * 0.5 - 4.0),
            "D_skip": _w((lambda *s: torch.randn(*s, dtype=torch.bfloat16) * 0.1)(D)),
        }
    _B_in = _B_setup()

    return {
        "A_x": _A_in["x"],
        "A_wqkv": _A_in["wqkv"],
        "A_wo": _A_in["wo"],
        "B_u": _B_in["u"],
        "B_log_A_real": _B_in["log_A_real"],
        "B_A_imag": _B_in["A_imag"],
        "B_C_real": _B_in["C_real"],
        "B_C_imag": _B_in["C_imag"],
        "B_log_dt": _B_in["log_dt"],
        "B_D_skip": _B_in["D_skip"],
        "gate_w": _w((lambda *s: torch.randn(*s, dtype=torch.bfloat16) * 0.05)(512) * 16.0),
    }

def reference(A_x, A_wqkv, A_wo, B_u, B_log_A_real, B_A_imag, B_C_real, B_C_imag, B_log_dt, B_D_skip, gate_w):
    def _A_ref(x, wqkv, wo):
        B, S, D = x.shape
        H = 32; Dh = D // H
        qkv = (lambda x, *d: x.permute(*d))((x @ wqkv).reshape(B, S, 3, H, Dh), 2, 0, 3, 1, 4)
        q, k, v = qkv[0], qkv[1], qkv[2]
        scale = Dh ** -0.5
        scores = torch.einsum("bhqd,bhkd->bhqk", q, k) * scale
        p = _softmax(scores, axis=-1)
        o = torch.einsum("bhqk,bhkd->bhqd", p, v)
        return (lambda x, *d: x.permute(*d))(o, 0, 2, 1, 3).reshape(B, S, D) @ wo

    def _B_ref(u, log_A_real, A_imag, C_real, C_imag, log_dt, D_skip):
        L = u.shape[1]
        dt = torch.exp(log_dt)
        A = -torch.exp(log_A_real) + 1j * A_imag
        C = (C_real + 1j * C_imag) * dt[:, None]
        pos = (lambda x, dt: x.to(dt))(torch.arange(L), log_dt.dtype)
        P = torch.exp((A * dt[:, None])[:, :, None] * pos[None, None, :])
        K = 2.0 * torch.einsum("dn,dnl->dl", C, P).real
        L2 = 2 * L
        u_t = (lambda x, *d: x.permute(*d))(u, 0, 2, 1)
        Kf = (lambda x, *a, **k: torch.fft.rfft(x.float(), *a, **k))(K, L2)
        Uf = (lambda x, *a, **k: torch.fft.rfft(x.float(), *a, **k))(u_t, L2)
        y = (lambda x, *a, **k: torch.fft.irfft(x, *a, **k).to(torch.bfloat16))(Uf * Kf[None, :, :], L2)[:, :, :L]
        y = (lambda x, *d: x.permute(*d))(y, 0, 2, 1)
        return y + u * D_skip[None, None, :]

    x = A_x
    g = _sigmoid((x * gate_w).sum(-1, keepdims=True))
    a = _A_ref(x, A_wqkv, A_wo)
    b = _B_ref(x, B_log_A_real, B_A_imag, B_C_real, B_C_imag, B_log_dt, B_D_skip)
    return g * a + (1 - g) * b
```

```python
import re

TRANS = ("v_exp_f32", "v_log_f32", "v_rcp_f32", "v_rsq_f32", "v_sqrt_f32", "v_sin_f32", "v_cos_f32", "v_exp_f16", "v_rcp_iflag_f32")
REG = re.compile(r"(?<![\w.])([vsa])(?:(\d+)|\[(\d+):(\d+)\])")

def regs_of(tok):
    out = set()
    for m in REG.finditer(tok):
        k = m.group(1)
        if m.group(2) is not None:
            out.add((k, int(m.group(2))))
        else:
            out.update((k, i) for i in range(int(m.group(3)), int(m.group(4)) + 1))
    for nm in ("vcc", "exec", "m0"):
        if re.search(r"(?<![\w])" + nm + r"(_lo|_hi)?(?![\w])", tok):
            out.add((nm, 0))
    return out

class Ins:
    def __init__(self, text):
        self.text = text
        t = text.split(";")[0].strip()
        self.op = t.split()[0]
        rest = t[len(self.op):].strip()
        ops = [o.strip() for o in re.split(r",(?![^\[]*\])", rest)] if rest else []
        self.ops = ops
        op = self.op
        self.mfma = op.startswith("v_mfma") or op.startswith("v_smfmac")
        self.valu = op.startswith("v_") and not self.mfma
        self.salu = op.startswith("s_")
        self.ds = op.startswith("ds_")
        self.vmem = op.startswith(("buffer_", "global_"))
        self.trans = op.replace("_e32", "").replace("_e64", "") in TRANS
        self.dpp = "row_" in t or "quad_perm" in t or "wave_" in t or "row_bcast" in t
        self.wr, self.rd = set(), set()
        self.srcC = set()
        self.states = 1
        if op == "s_nop":
            self.states = int(ops[0], 0) + 1
        if self.mfma:
            self.wr = regs_of(ops[0])
            self.ab = regs_of(ops[1]) | regs_of(ops[2])
            if op.startswith("v_smfmac"):
                self.srcC = set(self.wr); self.ab |= regs_of(ops[3].split()[0])
            else:
                self.srcC = regs_of(ops[3].split()[0])
            self.rd = self.ab | self.srcC
            self.passes = 8 if "32x32" in op else 4
        elif self.valu:
            nd = 1
            if op.startswith(("v_add_co", "v_sub_co", "v_addc_co", "v_subb_co", "v_div_scale", "v_mad_u64")): nd = 2
            if op.startswith(("v_permlane32_swap", "v_permlane16_swap", "v_swap")):
                self.wr = regs_of(ops[0]) | regs_of(ops[1]); self.rd = set(self.wr)
            else:
                for o in ops[:nd]: self.wr |= regs_of(o)
                for o in ops[nd:]: self.rd |= regs_of(o)
            if op.startswith(("v_fmac", "v_pk_fmac", "v_dot2c", "v_writelane")) or self.dpp: self.rd |= self.wr
            if op.startswith("v_cmpx"): self.wr.add(("exec", 0))
            if op.startswith("v_cndmask") and len(ops) == 3: self.rd.add(("vcc", 0))
        elif self.ds:
            if op.startswith(("ds_read", "ds_bpermute", "ds_permute", "ds_swizzle")) or "_rtn" in op:
                self.wr = regs_of(ops[0])
                for o in ops[1:]: self.rd |= regs_of(o)
            else:
                for o in ops: self.rd |= regs_of(o)
        elif self.vmem:
            is_lds = re.search(r"\blds\b", t) or "_lds_" in op
            is_load = "_load" in op and not is_lds
            ret_atomic = "atomic" in op and " sc0" in t
            if op.startswith("buffer_"):
                if is_load: self.wr = regs_of(ops[0]); src = ops[1:]
                else: src = ops
                if ret_atomic: self.wr = regs_of(ops[0])
                self.data = regs_of(ops[0]) if ("store" in op or "atomic" in op) else set()
            else:
                if is_load or ret_atomic: self.wr = regs_of(ops[0]); src = ops[1:]
                else: src = ops
                self.data = regs_of(ops[1]) if "store" in op else set()
            for o in src: self.rd |= regs_of(o)
            if is_lds: self.rd.add(("m0", 0))
            self.is_lds = bool(is_lds)
            self.wide_store = "store" in op and ("x3" in op or "x4" in op)
        elif self.salu:
            if op.startswith(("s_cmp", "s_cbranch", "s_branch", "s_waitcnt", "s_barrier", "s_nop", "s_setprio", "s_sleep", "s_endpgm", "s_bitcmp")):
                for o in ops: self.rd |= regs_of(o)
            elif ops:
                self.wr = regs_of(ops[0])
                for o in ops[1:]: self.rd |= regs_of(o)
                if "saveexec" in op: self.wr.add(("exec", 0))

def need(p, c):
    n = 0
    vw = {r for r in p.wr if r[0] in "va"}
    sw = {r for r in p.wr if r[0] in ("s", "vcc")}
    if p.valu:
        if c.mfma and vw & c.rd: n = max(n, 2)
        if c.valu and p.trans and not c.trans and vw & (c.rd | c.wr): n = max(n, 1)
        if c.valu and p.trans and c.trans and vw & c.rd: n = max(n, 1)
        if (c.ds or c.vmem) and p.trans and vw & c.rd: n = max(n, 1)
        if c.valu and c.dpp and vw & c.rd: n = max(n, 2)
        if c.op.startswith(("v_readlane", "v_readfirstlane")) and vw & c.rd: n = max(n, 1)
        if c.op.startswith("v_permlane") and vw & c.rd: n = max(n, 2)
        if sw:
            if c.vmem and sw & c.rd: n = max(n, 5)
            if c.valu and sw & c.rd: n = max(n, 4 if c.op.startswith(("v_readlane", "v_writelane")) else 2)
            if c.salu and sw & c.rd: n = max(n, 2)
        if ("exec", 0) in p.wr:
            if c.mfma or c.op.startswith(("v_readlane", "v_readfirstlane", "v_writelane", "v_permlane")): n = max(n, 4)
            if c.valu and c.dpp: n = max(n, 5)
    if p.salu and ("m0", 0) in p.wr and c.vmem and getattr(c, "is_lds", False): n = max(n, 1)
    if p.vmem and getattr(p, "wide_store", False) and p.data & c.wr:
        n = max(n, 2 if (c.valu or c.mfma) else 1)
    if p.mfma:
        big = {4: 8, 8: 12}[p.passes]
        if c.mfma:
            if p.wr & c.ab: n = max(n, big)
            if p.wr & c.srcC and not (p.wr == c.srcC and p.passes == c.passes): n = max(n, big - 2)
            if p.wr & c.wr and not (p.wr & c.srcC) : n = max(n, 0)
        elif (c.valu or c.ds or c.vmem) and p.wr & (c.rd | c.wr): n = max(n, big)
        if c.valu and p.srcC & c.wr: n = max(n, {4: 3, 8: 7}[p.passes])
    return n

class Asm:
    def __init__(self):
        self.lines = []
        self.win = []
        self.nops = 0
    def raw(self, s):
        self.lines.append(s)
    def label(self, name, flush=True):
        self.lines.append(name + ":")
    def reset(self):
        self.win = []
    def __call__(self, text):
        for ln in text.split("\n"):
            ln = ln.strip()
            if not ln: continue
            if ln.startswith(";") or ln.endswith(":") or ln.startswith("."):
                self.lines.append(ln if ln.endswith(":") or ln.startswith(".") else "    " + ln); continue
            c = Ins(ln)
            dist = 0; pad = 0
            for p in reversed(self.win):
                pad = max(pad, need(p, c) - dist)
                dist += p.states
                if dist > 20: break
            while pad > 0:
                k = min(pad, 16)
                nop = Ins(f"s_nop {k-1}")
                self.lines.append(f"    s_nop {k-1}"); self.win.append(nop); self.nops += 1
                pad -= k
            self.lines.append("    " + ln)
            self.win.append(c)
            self.win = self.win[-24:]
    def text(self):
        return "\n".join(self.lines) + "\n"
```

```python
import sys
from asmlib import Asm

NAME = "gated_mix__softmax_full_mha__ssm_conv_s4d__prompt"
QF, KV, XT, BT, OF, WOF, GW, RD = 0x000000, 0x200000, 0x600000, 0x800000, 0xA00000, 0xC00000, 0xC80000, 0x1000000
WS_BYTES = 0x2000000
LDS_BYTES = 163840
XR, WR = 0, 24576
KX = 98304
KXS = 4160
UB, US, UD = 110464, 4640, 9280
TB, TBS = 129024, 8704
RB, RE, RDS = 129024, 4160, 16640
OS = 131072
LOG2E = 0x3FB8AA3B
INV2PI = 0x3E22F983
QSCALE = 0x3EB8AA3B

S_X, S_W, S_WO, S_LOGA, S_AIM, S_CR, S_CI = "s[4:5]", "s[6:7]", "s[8:9]", "s[12:13]", "s[14:15]", "s[16:17]", "s[18:19]"
S_LDT, S_DSK, S_GWT, S_OUT, S_DBG, S_WS = "s[20:21]", "s[22:23]", "s[24:25]", "s[26:27]", "s[28:29]", "s[30:31]"
R_X, R_W, R_WS = "s[32:35]", "s[36:39]", "s[40:43]"
SX, SJ, SW = "s48", "s49", "s50"

def vr(b, n=1):
    return f"v{b}" if n == 1 else f"v[{b}:{b+n-1}]"

class VM:
    def __init__(self): self.q = []
    def add(self, tag, n=1): self.q += [tag] * n
    def wait(self, a, tag):
        idx = max(i for i, t in enumerate(self.q) if t == tag)
        n = len(self.q) - 1 - idx
        a(f"s_waitcnt vmcnt({n})"); self.q = self.q[idx + 1:]

def prologue(a, end):
    a(f"""
    s_cmp_ge_u32 s2, 256
    s_cbranch_scc1 {end}
    s_load_dwordx16 s[4:19], s[0:1], 0
    s_load_dwordx8 s[20:27], s[0:1], 64
    s_load_dwordx4 s[28:31], s[0:1], 96
    v_lshrrev_b32 v1, 6, v0
    v_and_b32 v0, 63, v0
    v_readfirstlane_b32 {SW}, v1
    s_and_b32 {SX}, s2, 7
    s_lshr_b32 {SJ}, s2, 3
    s_mov_b32 s34, 0x200000
    s_mov_b32 s35, 0x20000
    s_mov_b32 s38, 0x180000
    s_mov_b32 s39, 0x20000
    s_mov_b32 s42, {WS_BYTES}
    s_mov_b32 s43, 0x20000
    s_waitcnt lgkmcnt(0)
    s_mov_b32 s32, s4
    s_mov_b32 s33, s5
    s_mov_b32 s36, s6
    s_mov_b32 s37, s7
    s_mov_b32 s40, s30
    s_mov_b32 s41, s31
    """)

def p1_gemm(a, st_mod=""):
    ACC = (16, 32, 48); SET = (64, 80)
    a(f"""
    s_lshl_b32 s52, {SJ}, 6
    s_lshl_b32 s53, {SX}, 3
    s_add_u32 s52, s52, s53
    s_lshl_b32 s53, {SW}, 1
    s_add_u32 s52, s52, s53
    v_lshlrev_b32 v1, 4, v0
    s_lshl_b32 s53, s52, 10
    v_add_u32 v2, s53, v1
    global_load_dwordx4 v[96:99], v2, {S_X}
    global_load_dwordx4 v[100:103], v2, {S_X} offset:1024
    global_load_dwordx4 v[104:107], v1, {S_GWT}
    s_lshl_b32 s54, {SX}, 5
    s_add_u32 s54, s54, {SJ}
    s_lshr_b32 s55, s54, 3
    s_and_b32 s56, s54, 7
    s_lshl_b32 s56, s56, 1
    s_and_b32 s57, {SW}, 1
    s_add_u32 s56, s56, s57
    s_lshl_b32 s57, s56, 15
    s_lshl_b32 s58, s55, 5
    s_add_u32 s57, s57, s58
    v_lshrrev_b32 v3, 5, v0
    v_lshlrev_b32 v3, 14, v3
    v_bfe_u32 v4, v0, 4, 1
    v_lshl_add_u32 v3, v4, 12, v3
    v_and_b32 v4, 15, v0
    v_lshl_add_u32 v3, v4, 1, v3
    v_add_u32 v3, s57, v3
    v_add_u32 v4, 0x2000, v3
    """)
    for j in range(8):
        a(f"global_load_short_d16{'_hi' if j & 1 else ''} v{108+j}, v{3 + (j >> 2)}, {S_WO} offset:{1024*(j&3)}")
    a(f"""
    s_lshl_b32 s55, s55, 4
    s_add_u32 s55, s55, s56
    s_lshl_b32 s55, s55, 10
    s_add_u32 s55, s55, {WOF}
    s_and_b32 s58, {SW}, 1
    s_lshr_b32 s59, {SW}, 1
    v_and_b32 v1, 31, v0
    s_lshl_b32 s60, s58, 12
    v_lshlrev_b32 v2, 7, v1
    v_add_u32 v2, s60, v2
    v_bfe_u32 v1, v0, 1, 3
    v_lshrrev_b32 v3, 5, v0
    v_xor_b32 v1, v1, v3
    """)
    for ks in range(4):
        a(f"v_xor_b32 v3, {2*ks}, v1\nv_lshl_add_u32 v{4+ks}, v3, 4, v2")
    a(f"""
    v_lshrrev_b32 v1, 5, v0
    v_lshlrev_b32 v1, 10, v1
    v_bfe_u32 v2, v0, 2, 2
    v_lshl_add_u32 v1, v2, 7, v1
    v_bfe_u32 v2, v0, 3, 1
    v_xor_b32 v2, s59, v2
    v_lshl_add_u32 v1, v2, 6, v1
    v_bfe_u32 v2, v0, 4, 1
    v_lshl_add_u32 v1, v2, 5, v1
    v_and_b32 v2, 3, v0
    v_lshl_add_u32 v1, v2, 3, v1
    v_add_u32 v8, {WR}, v1
    v_add_u32 v9, {WR + 49152}, v1
    """)
    def reads(t, ks, s):
        slot = t % 3
        a(f"ds_read_b128 {vr(s,4)}, v{4+ks} offset:{XR + slot*8192}")
        for ty in range(3):
            for ri in range(2):
                off = ty * 8192 + ks * 2048 + ri * 512
                base, o = (9, off) if slot == 2 else (8, off + slot * 24576)
                a(f"ds_read_b64_tr_b16 {vr(s+4+4*ty+2*ri,2)}, v{base} offset:{o}")
    def mm(s, first):
        c = lambda i: "0" if first else vr(ACC[i], 16)
        a(f"v_mfma_f32_32x32x16_bf16 {vr(ACC[0],16)}, {vr(s+4,4)}, {vr(s,4)}, {c(0)}")
        a(f"v_mfma_f32_32x32x16_bf16 {vr(ACC[1],16)}, {vr(s+8,4)}, {vr(s,4)}, {c(1)}")
        a(f"v_mfma_f32_32x32x16_bf16 {vr(ACC[2],16)}, {vr(s,4)}, {vr(s+12,4)}, {c(2)}")
    for t in range(8):
        a("s_barrier")
        reads(t, 0, SET[0])
        if t: mm(SET[1], False)
        for ks in range(3):
            reads(t, ks + 1, SET[(ks + 1) & 1])
            a("s_waitcnt lgkmcnt(7)")
            mm(SET[ks & 1], t == 0 and ks == 0)
        a("s_waitcnt lgkmcnt(0)")
    mm(SET[1], False)
    a(f"""
    s_lshl_b32 s60, {SX}, 2
    s_lshl_b32 s61, s59, 1
    s_add_u32 s60, s60, s61
    s_lshl_b32 s60, s60, 6
    s_lshl_b32 s61, {SJ}, 1
    s_add_u32 s61, s61, s58
    s_add_u32 s60, s60, s61
    s_lshl_b32 s61, s60, 10
    s_add_u32 s61, s61, {QF}
    s_add_u32 s62, s61, 0x10000
    s_lshl_b32 s63, s60, 11
    s_add_u32 s63, s63, {KV}
    s_add_u32 s64, s63, 0x20000
    s_mov_b32 s65, {QSCALE}
    v_lshlrev_b32 v1, 4, v0
    v_and_b32 v2, 0x33, v0
    v_bfe_u32 v3, v0, 2, 1
    v_lshl_or_b32 v2, v3, 3, v2
    v_bfe_u32 v3, v0, 3, 1
    v_lshl_or_b32 v2, v3, 2, v2
    v_lshlrev_b32 v2, 4, v2
    v_and_b32 v3, 15, v0
    v_lshlrev_b32 v3, 4, v3
    v_lshrrev_b32 v4, 5, v0
    v_lshl_add_u32 v3, v4, 8, v3
    v_bfe_u32 v4, v0, 4, 1
    v_lshl_add_u32 v3, v4, 17, v3
    """)
    for r in range(16): a(f"v_mul_f32 v{16+r}, s65, v{16+r}")
    for r in range(8): a(f"v_cvt_pk_bf16_f32 v{64+r}, v{16+2*r}, v{17+2*r}")
    a(f"buffer_store_dwordx4 v[64:67], v1, {R_WS}, s61 offen {st_mod}")
    a(f"buffer_store_dwordx4 v[68:71], v1, {R_WS}, s62 offen {st_mod}")
    for r in range(8): a(f"v_cvt_pk_bf16_f32 v{72+r}, v{32+2*r}, v{33+2*r}")
    a(f"buffer_store_dwordx4 v[72:75], v2, {R_WS}, s63 offen {st_mod}")
    a(f"buffer_store_dwordx4 v[76:79], v2, {R_WS}, s64 offen {st_mod}")
    for r in range(8): a(f"v_cvt_pk_bf16_f32 v{80+r}, v{48+2*r}, v{49+2*r}")
    a(f"buffer_store_dwordx4 v[80:83], v3, {R_WS}, s63 offen offset:1024 {st_mod}")
    a(f"buffer_store_dwordx4 v[84:87], v3, {R_WS}, s63 offen offset:1536 {st_mod}")

def p1_side(a, st_mod=""):
    a("s_waitcnt vmcnt(6)")
    for j in range(4): a(f"v_or_b32 v{116+j}, v{108+2*j}, v{109+2*j}")
    a(f"v_lshlrev_b32 v1, 4, v0\nbuffer_store_dwordx4 v[116:119], v1, {R_WS}, s55 offen {st_mod}")
    a("s_mov_b32 s66, 0xffff0000")
    for k in range(4):
        a(f"v_lshlrev_b32 v{16+2*k}, 16, v{104+k}\nv_and_b32 v{17+2*k}, s66, v{104+k}")
    for r in range(2):
        for k in range(4):
            x = 96 + 4 * r + k
            a(f"""
            v_lshlrev_b32 v26, 16, v{x}
            v_and_b32 v27, s66, v{x}
            v_mul_f32 v26, v26, v{16+2*k}
            v_mul_f32 v27, v27, v{17+2*k}
            v_cvt_pk_bf16_f32 v26, v26, v27
            v_and_b32 v27, s66, v26
            v_lshlrev_b32 v26, 16, v26
            """)
            if k == 0: a(f"v_add_f32 v{24+r}, v26, v27")
            else: a(f"v_add_f32 v{24+r}, v{24+r}, v26\nv_add_f32 v{24+r}, v{24+r}, v27")
    for d in ("row_shr:1 row_mask:0xf bank_mask:0xf bound_ctrl:0", "row_shr:2 row_mask:0xf bank_mask:0xf bound_ctrl:0",
              "row_shr:4 row_mask:0xf bank_mask:0xf bound_ctrl:0", "row_shr:8 row_mask:0xf bank_mask:0xf bound_ctrl:0",
              "row_bcast:15 row_mask:0xa bank_mask:0xf", "row_bcast:31 row_mask:0xc bank_mask:0xf"):
        for r in range(2): a(f"v_add_f32_dpp v{24+r}, v{24+r}, v{24+r} {d}")
    a(f"""
    v_cvt_pk_bf16_f32 v26, v24, v25
    s_mov_b32 s67, {LOG2E}
    v_lshlrev_b32 v24, 16, v26
    v_and_b32 v25, s66, v26
    v_mul_f32 v24, s67, v24
    v_mul_f32 v25, s67, v25
    v_exp_f32 v24, -v24
    v_exp_f32 v25, -v25
    v_add_f32 v24, 1.0, v24
    v_add_f32 v25, 1.0, v25
    v_rcp_f32 v24, v24
    v_rcp_f32 v25, v25
    s_lshl_b32 s52, s52, 2
    s_add_u32 s52, s52, {GW}
    v_cvt_pk_bf16_f32 v26, v24, v25
    v_mov_b32 v1, 0
    v_lshlrev_b32 v24, 16, v26
    v_and_b32 v25, s66, v26
    s_mov_b32 exec_lo, 0
    s_mov_b32 exec_hi, 0x80000000
    buffer_store_dwordx2 v[24:25], v1, {R_WS}, s52 offen {st_mod}
    s_mov_b64 exec, -1
    """)

def cmul(a, d, x, w, t):
    a(f"v_pk_mul_f32 {vr(t,2)}, {vr(x,2)}, {vr(w,2)} op_sel:[0,0] op_sel_hi:[1,0]")
    a(f"v_pk_fma_f32 {vr(d,2)}, {vr(x,2)}, {vr(w,2)}, {vr(t,2)} op_sel:[1,1,0] op_sel_hi:[0,1,1] neg_lo:[1,0,0]")

def p1_aux(a, st_mod=""):
    vm = VM()
    a(f"""
    s_and_b32 s51, {SW}, 3
    s_lshr_b32 s52, s51, 1
    s_and_b32 s53, s51, 1
    s_lshl_b32 s54, {SX}, 6
    s_lshl_b32 s55, {SJ}, 1
    s_add_u32 s54, s54, s55
    s_add_u32 s54, s54, s52
    s_lshl_b32 s55, s54, 8
    s_lshl_b32 s56, s53, 7
    s_add_u32 s55, s55, s56
    v_lshlrev_b32 v1, 1, v0
    v_add_u32 v1, s55, v1
    s_lshl_b32 s56, s54, 1
    v_mov_b32 v2, s56
    global_load_short_d16_hi v10, v1, {S_LOGA}
    global_load_short_d16_hi v11, v1, {S_AIM}
    global_load_short_d16_hi v12, v1, {S_CR}
    global_load_short_d16_hi v13, v1, {S_CI}
    global_load_short_d16_hi v14, v2, {S_LDT}
    global_load_short_d16_hi v15, v2, {S_DSK}
    v_lshrrev_b32 v1, 3, v0
    v_lshrrev_b32 v2, 4, v0
    s_lshl_b32 s56, s53, 2
    v_add_u32 v3, s56, v2
    v_and_b32 v5, 7, v0
    v_xor_b32 v3, v3, v5
    v_lshlrev_b32 v3, 4, v3
    v_lshl_add_u32 v4, v1, 10, v3
    v_and_b32 v2, 1, v2
    v_lshlrev_b32 v2, 2, v2
    v_xor_b32 v2, v2, v5
    v_lshlrev_b32 v2, 4, v2
    v_mov_b32 v3, 0xc00
    v_mad_u32_u24 v5, v1, v3, v2
    s_lshl_b32 s57, {SJ}, 16
    s_lshl_b32 s58, s51, 13
    s_add_u32 s57, s57, s58
    s_mul_i32 s58, s51, {16*3072}
    s_lshl_b32 s59, {SX}, 7
    s_add_u32 s58, s58, s59
    s_lshl_b32 s60, s51, 10
    s_lshl_b32 s61, s51, 11
    """)
    vm.add("par", 6)
    def dma(t):
        slot = t % 3
        a(f"""
        s_add_u32 s62, {SX}, {t}
        s_and_b32 s62, s62, 7
        s_lshl_b32 s63, s62, 7
        s_add_u32 s63, s63, s57
        s_mul_i32 s62, s62, {64*3072}
        s_add_u32 s62, s62, s58
        """)
        for i in range(2):
            a(f"s_add_u32 m0, s60, {XR + slot*8192 + i*4096}")
            if i: a("s_add_u32 s63, s63, 0x8000")
            a(f"buffer_load_dwordx4 v4, {R_X}, s63 offen lds")
        for ty in range(3):
            for i in range(2):
                a(f"s_add_u32 m0, s61, {WR + slot*24576 + ty*8192 + i*1024}")
                a(f"s_add_u32 s64, s62, {ty*1024 + i*8*3072}")
                a(f"buffer_load_dwordx4 v5, {R_W}, s64 offen lds")
        vm.add(f"s{t}", 8)
    for t in range(3): dma(t)
    a(f"""
    s_mul_i32 s65, s51, {TBS}
    s_add_u32 s65, s65, {TB}
    v_lshlrev_b32 v6, 2, v0
    v_add_u32 v6, s65, v6
    v_and_b32 v1, 31, v0
    v_lshrrev_b32 v2, 5, v0
    v_lshlrev_b32 v2, 4, v2
    v_add_u32 v2, s65, v2
    v_mov_b32 v3, 272
    v_mad_u32_u24 v7, v1, v3, v2
    v_bfe_u32 v8, v0, 3, 1
    v_and_b32 v9, 3, v0
    v_lshl_add_u32 v8, v8, 2, v9
    v_cvt_f32_u32 v8, v8
    v_bfe_u32 v9, v0, 4, 1
    v_bfe_u32 v16, v0, 2, 1
    v_lshl_add_u32 v9, v9, 1, v16
    v_min_u32 v16, 2, v9
    v_sub_u32 v16, 0, v16
    v_ldexp_f32 v16, v8, v16
    v_rndne_f32 v16, v16
    v_cvt_u32_f32 v16, v16
    v_lshlrev_b32 v17, 3, v9
    s_mov_b32 s66, 0x100d0800
    v_lshrrev_b32 v17, v17, s66
    v_and_b32 v17, 0xff, v17
    v_add_u32 v16, v16, v17
    v_mul_f32 v8, 0.125, v8
    v_rndne_f32 v8, v8
    v_cvt_u32_f32 v8, v8
    v_lshl_add_u32 v8, v9, 1, v8
    v_add_u32 v8, 19, v8
    s_cmp_eq_u32 s53, 0
    s_cselect_b64 vcc, -1, 0
    s_cselect_b32 s70, 0, 0xaaaaaaaa
    s_mov_b32 s71, s70
    v_cndmask_b32 v9, v8, v16, vcc
    v_cndmask_b32 v8, v16, v8, vcc
    v_mad_u32_u24 v9, v9, v3, v2
    v_mad_u32_u24 v8, v8, v3, v2
    v_mov_b32 v16, 0
    v_mov_b32 v17, 0
    v_mov_b32 v18, 0
    v_mov_b32 v19, 0
    v_min_u32 v1, 32, v0
    s_mul_i32 s66, s51, {US}
    s_add_u32 s66, s66, {UB}
    v_lshl_add_u32 v1, v1, 4, s66
    ds_write_b128 v1, v[16:19]
    s_mul_i32 s67, s52, {KXS}
    s_add_u32 s67, s67, {KX}
    v_mov_b32 v1, s67
    ds_write_b128 v1, v[16:19]
    """)
    vm.wait(a, "par")
    a(f"""
    s_mov_b32 s66, {LOG2E}
    s_mov_b32 s68, 0xffff0000
    s_mov_b32 s69, {INV2PI}
    v_mul_f32 v14, s66, v14
    v_mul_f32 v10, s66, v10
    v_exp_f32 v14, v14
    v_exp_f32 v10, v10
    s_mov_b32 s72, 0x41000000
    s_mov_b32 s73, 0x43800000
    v_cvt_pk_bf16_f32 v1, v14, v10
    v_lshlrev_b32 v14, 16, v1
    v_and_b32 v10, s68, v1
    v_mul_f32 v10, v10, v14
    v_mul_f32 v11, v11, v14
    v_mul_f32 v26, v12, v14
    v_mul_f32 v27, v13, v14
    v_mul_f32 v10, s66, v10
    v_mul_f32 v11, s69, v11
    v_add_f32 v26, v26, v26
    v_add_f32 v27, v27, v27
    """)
    for d, sc in ((20, None), (22, "s72"), (24, "s73")):
        if sc: a(f"v_mul_f32 v1, {sc}, v10\nv_mul_f32 v2, {sc}, v11\nv_exp_f32 v1, -v1\nv_fract_f32 v2, v2")
        else: a("v_exp_f32 v1, -v10\nv_fract_f32 v2, v11")
        a(f"v_cos_f32 v{d}, v2\nv_sin_f32 v{d+1}, v2\nv_mul_f32 v{d}, v1, v{d}\nv_mul_f32 v{d+1}, v1, v{d+1}")
    def lrow(b):
        cur = 28 + 2 * (b & 1)
        if b == 0:
            a("v_mov_b32 v3, 0x3f80\nds_write_b32 v6, v3")
            return
        if b == 1: a(f"v_mov_b32 v{cur}, v22\nv_mov_b32 v{cur+1}, v23")
        else: cmul(a, cur, 28 + 2 * ((b - 1) & 1), 22, 32)
        a(f"v_cvt_pk_bf16_f32 v{34 + (b & 1)}, v{cur}, v{cur+1}\nds_write_b32 v6, v{34 + (b & 1)} offset:{272*b}")
    for b in range(0, 6): lrow(b)
    vm.wait(a, "s0"); a("s_barrier")
    a(f"""
    v_lshrrev_b32 v1, 4, v0
    v_bfe_u32 v2, v0, 2, 2
    v_lshl_add_u32 v2, v1, 3, v2
    v_bfe_u32 v3, v0, 1, 1
    s_lshl_b32 s66, s51, 1
    v_add_u32 v3, s66, v3
    v_bfe_u32 v36, v2, 1, 3
    v_xor_b32 v36, v36, v3
    v_and_b32 v37, 1, v0
    v_lshlrev_b32 v37, 3, v37
    v_lshl_add_u32 v37, v2, 7, v37
    v_xor_b32 v38, 2, v36
    v_lshl_add_u32 v36, v36, 4, v37
    v_lshl_add_u32 v37, v38, 4, v37
    ds_read_b64_tr_b16 v[40:41], v36 offset:{XR}
    ds_read_b64_tr_b16 v[42:43], v37 offset:{XR + 512}
    ds_read_b64_tr_b16 v[44:45], v36 offset:{XR + 4096}
    ds_read_b64_tr_b16 v[46:47], v37 offset:{XR + 4096 + 512}
    v_bfe_u32 v2, v0, 1, 3
    v_lshlrev_b32 v2, 13, v2
    v_and_b32 v3, 1, v0
    v_lshl_add_u32 v2, v3, 6, v2
    v_lshl_add_u32 v2, v1, 4, v2
    s_lshl_b32 s66, {SX}, 18
    s_lshl_b32 s69, s51, 16
    s_add_u32 s66, s66, s69
    s_lshl_b32 s69, {SJ}, 8
    s_add_u32 s66, s66, s69
    s_add_u32 s66, s66, {XT}
    s_waitcnt lgkmcnt(0)
    buffer_store_dwordx4 v[40:43], v2, {R_WS}, s66 offen {st_mod}
    buffer_store_dwordx4 v[44:47], v2, {R_WS}, s66 offen offset:128 {st_mod}
    """)
    vm.add("xt", 2)
    for b in range(6, 20): lrow(b)
    vm.wait(a, "s1"); a("s_barrier")
    dma(3)
    for b in range(20, 32): lrow(b)
    LF, HK, HS, AK, AS = 64, 96, 128, 160, 176
    a("s_waitcnt lgkmcnt(0)")
    for ks in range(8): a(f"ds_read_b128 {vr(LF+4*ks,4)}, v7 offset:{32*ks}")
    vm.wait(a, "s2"); a("s_waitcnt lgkmcnt(0)\ns_barrier")
    dma(4)
    def hw(reg, row):
        t = 34 + (row & 1)
        a(f"v_cvt_pk_bf16_f32 v{t}, v{reg}, -v{reg+1}\nds_write_b32 v6, v{t} offset:{272*row}")
    H = lambda p: 40 + 2 * p
    a(f"v_mov_b32 v{H(0)}, v26\nv_mov_b32 v{H(0)+1}, v27")
    hw(H(0), 0)
    for p in range(1, 9):
        cmul(a, H(p), H(p - 1), 20, 32)
        if p < 8: hw(H(p), p)
    row = 8
    for grp in ((0, 2, 4, 6, 8), (0, 4, 8)):
        for p in grp:
            cmul(a, H(p), H(p), 24, 32); hw(H(p), row); row += 1
    vm.wait(a, "s3"); a("s_barrier")
    dma(5)
    for grp in ((0, 4, 8), (0, 8), (0, 8), (0, 8), (0, 8)):
        for p in grp:
            cmul(a, H(p), H(p), 24, 32); hw(H(p), row); row += 1
    assert row == 27
    a("s_waitcnt lgkmcnt(0)")
    for ks in range(8): a(f"ds_read_b128 {vr(HS+4*ks,4)}, v8 offset:{32*ks}")
    for ks in range(7): a(f"ds_read_b128 {vr(HK+4*ks,4)}, v9 offset:{32*ks}")
    a("s_waitcnt lgkmcnt(7)")
    a(f"ds_read_b128 {vr(HK+28,4)}, v9 offset:{32*7}")
    for ks in range(8):
        a(f"v_mfma_f32_32x32x16_bf16 {vr(AS,16)}, {vr(HS+4*ks,4)}, {vr(LF+4*ks,4)}, {'0' if ks == 0 else vr(AS,16)}")
    a("s_waitcnt lgkmcnt(0)")
    for ks in range(8):
        a(f"v_mfma_f32_32x32x16_bf16 {vr(AK,16)}, {vr(HK+4*ks,4)}, {vr(LF+4*ks,4)}, {'0' if ks == 0 else vr(AK,16)}")
    a(f"v_lshlrev_b32 v1, 4, v0\nv_add_u32 v2, s65, v1\ns_xor_b32 s66, s51, 1\ns_mul_i32 s66, s66, {TBS}\ns_add_u32 s66, s66, {TB}\nv_add_u32 v3, s66, v1")
    for i in range(4): a(f"ds_write_b128 v2, {vr(AS+4*i,4)} offset:{1024*i}")
    vm.wait(a, "s4"); a("s_waitcnt lgkmcnt(0)\ns_barrier")
    for i in range(4): a(f"ds_read_b128 {vr(AS+4*i,4)}, v3 offset:{1024*i}")
    dma(6)
    a(f"""
    s_lshl_b32 s66, s53, 11
    s_add_u32 s66, s66, s67
    v_lshrrev_b32 v2, 5, v0
    v_and_b32 v3, 31, v0
    v_lshlrev_b32 v3, 4, v3
    v_lshl_add_u32 v2, v2, 9, v3
    v_add_u32 v2, s66, v2
    s_waitcnt lgkmcnt(0)
    """)
    for i in range(16): a(f"v_add_f32 v{AK+i}, v{AK+i}, v{AS+i}")
    for rg in range(2): a(f"v_cndmask_b32 v{AK+8*rg+4}, v{AK+8*rg+4}, v{AK+8*rg+5}, s[70:71]")
    for i in range(8): a(f"v_cvt_pk_bf16_f32 v{40+i}, v{AK+2*i}, v{AK+2*i+1}")
    for rg in range(2): a(f"ds_write_b128 v2, {vr(40+4*rg,4)} offset:{16 + 1024*rg}")
    vm.wait(a, "s5"); a("s_waitcnt lgkmcnt(0)\ns_barrier")
    a(f"""
    v_add_u32 v2, s66, v1
    ds_read_b64 v[40:41], v2 offset:8
    ds_read_b128 v[42:45], v2 offset:16
    ds_read_b64 v[46:47], v2 offset:{1024+8}
    ds_read_b128 v[48:51], v2 offset:{1024+16}
    """)
    dma(7)
    a(f"""
    s_mul_i32 s66, s52, {RDS}
    s_add_u32 s66, s66, {RB}
    v_bfe_u32 v2, v0, 2, 2
    v_mov_b32 v3, {RE}
    v_mul_u32_u24 v2, v2, v3
    v_and_b32 v3, 3, v0
    v_min_u32 v3, 2, v3
    v_lshl_add_u32 v2, v3, 4, v2
    v_add_u32 v2, s66, v2
    ds_write_b128 v2, v[16:19] offset:4096
    s_lshl_b32 s69, s53, 11
    s_sub_u32 s66, s66, s69
    s_add_u32 s66, s66, {255*16 - 1024}
    v_sub_u32 v2, s66, v1
    s_mov_b32 s69, 0xffff
    s_waitcnt lgkmcnt(1)
    """)
    def expand(q):
        w = lambda i: 40 + 6 * q + 2 + i
        for e in range(4):
            o = 64 + 4 * e
            for i in range(4):
                hi = 3 - i - (0 if e >= 2 else 1)
                if e & 1: a(f"v_alignbit_b32 v{o+i}, v{w(hi)}, v{w(hi)}, 16")
                else: a(f"v_bfi_b32 v{o+i}, s69, v{w(hi)}, v{w(hi-1)}")
            a(f"ds_write_b128 v2, {vr(o,4)} offset:{e*RE + 1024*(1-q)}")
    expand(0)
    vm.wait(a, "s6"); a("s_barrier")
    expand(1)
    vm.wait(a, "s7"); a("s_barrier")
    return vm

def u_load(a, ld_mod=""):
    a(f"""
    s_lshl_b32 s66, {SX}, 18
    s_lshl_b32 s69, {SJ}, 13
    s_add_u32 s66, s66, s69
    s_lshl_b32 s69, s51, 11
    s_add_u32 s66, s66, s69
    s_add_u32 s66, s66, {XT}
    v_lshlrev_b32 v1, 4, v0
    buffer_load_dwordx4 v[40:43], v1, {R_WS}, s66 offen {ld_mod}
    buffer_load_dwordx4 v[44:47], v1, {R_WS}, s66 offen offset:1024 {ld_mod}
    v_lshrrev_b32 v2, 3, v0
    v_lshlrev_b32 v2, 6, v2
    v_and_b32 v3, 3, v0
    v_lshl_add_u32 v2, v3, 4, v2
    v_bfe_u32 v3, v0, 2, 1
    v_mul_u32_u24 v3, {UD}, v3
    s_lshl_b32 s69, s51, 10
    s_add_u32 s69, s69, {UB + 512}
    v_add3_u32 v2, v2, v3, s69
    """)

def u_store(a):
    for q in range(2):
        a(f"ds_write_b128 v2, {vr(40+4*q,4)} offset:{512*q}")
        a(f"ds_write_b64 v2, {vr(40+4*q,2)} offset:{512*q + US + 8}")
        a(f"ds_write_b64 v2, {vr(42+4*q,2)} offset:{512*q + US + 16}")

def conv(a, tag, st_mod=""):
    a(f"""
    s_mul_i32 s66, s52, {RDS}
    s_add_u32 s66, s66, {RB + 4128 - 64*7 - 512*7}
    v_and_b32 v1, 3, v0
    v_mul_u32_u24 v1, {RE}, v1
    v_lshrrev_b32 v2, 4, v0
    v_bfe_u32 v3, v0, 2, 2
    v_add_u32 v3, v3, v2
    v_lshlrev_b32 v3, 4, v3
    v_sub_u32 v1, v1, v3
    v_add_u32 v4, s66, v1
    s_mul_i32 s66, s52, {UD}
    s_add_u32 s69, s66, {UB + US + 512 + 48 - 64*7}
    v_bfe_u32 v1, v0, 1, 3
    v_lshlrev_b32 v1, 6, v1
    v_lshlrev_b32 v3, 4, v2
    v_sub_u32 v5, v1, v3
    v_add_u32 v1, v1, v3
    v_and_b32 v3, 1, v0
    v_lshl_add_u32 v7, v3, 3, v1
    v_mul_u32_u24 v3, {US}, v3
    v_sub_u32 v5, v5, v3
    v_add_u32 v5, s69, v5
    s_add_u32 s66, s66, {UB + 512}
    v_add_u32 v6, s66, v7
    s_lshl_b32 s66, s54, 12
    s_add_u32 s66, s66, {BT}
    s_cmp_eq_u32 s53, 0
    s_cbranch_scc0 L_{tag}_set1
    """)
    ACC = 16; FA = (64, 128); FB = (96, 160)
    for sidx, cs in enumerate(((0, 3, 4, 7), (1, 2, 5, 6))):
        if sidx: a.reset(); a(f"L_{tag}_set1:")
        n = max(cs) + 1
        def rd_list(rho):
            s = rho & 1; l = []
            for i in range(n):
                l.append(f"ds_read_b128 {vr(FA[s]+4*i,4)}, v4 offset:{512*(7-i) + 64*(7-rho)}")
                l.append(f"ds_read_b128 {vr(FB[s]+4*i,4)}, v5 offset:{512*i + 64*(7-rho)}")
            return l
        for r in rd_list(0)[:15]: a(r)
        pend = rd_list(0)[15:]
        for rho in range(8):
            s = rho & 1
            if pend:
                a("s_waitcnt lgkmcnt(8)")
                for r in pend: a(r)
            a("s_waitcnt lgkmcnt(0)")
            nxt = rd_list(rho + 1) if rho < 7 else []
            pend = nxt[15:]; nxt = nxt[:15]
            seen = set()
            mms = [(ci, sg, c - sg) for sg in range(n) for ci, c in enumerate(cs) if c >= sg]
            for k, (ci, sg, dl) in enumerate(mms):
                c0 = "0" if (rho == 0 and ci not in seen) else vr(ACC + 4 * ci, 4)
                seen.add(ci)
                a(f"v_mfma_f32_16x16x32_bf16 {vr(ACC+4*ci,4)}, {vr(FA[s]+4*sg,4)}, {vr(FB[s]+4*dl,4)}, {c0}")
                if k < len(nxt): a(nxt[k])
        for ci, c in enumerate(cs): a(f"ds_read_b64 {vr(40+2*ci,2)}, v6 offset:{512*c}")
        a("s_mov_b32 s68, 0xffff0000\ns_waitcnt lgkmcnt(0)")
        for ci, c in enumerate(cs):
            for k in range(2):
                a(f"""
                v_lshlrev_b32 v48, 16, v{40+2*ci+k}
                v_and_b32 v49, s68, v{40+2*ci+k}
                v_fmac_f32 v{ACC+4*ci+2*k}, v48, v15
                v_fmac_f32 v{ACC+4*ci+2*k+1}, v49, v15
                v_cvt_pk_bf16_f32 v{50+2*ci+k}, v{ACC+4*ci+2*k}, v{ACC+4*ci+2*k+1}
                """)
            a(f"buffer_store_dwordx2 {vr(50+2*ci,2)}, v7, {R_WS}, s66 offen offset:{512*c} {st_mod}")
        if sidx == 0: a(f"s_branch L_{tag}_done")
    a.reset(); a(f"L_{tag}_done:")

AQ, AKS, AV1, AV2, AS_, AO = 4, (8, 12), (16, 24), (20, 28), (32, 48), 64

def att_setup(a):
    a(f"""
    s_lshr_b32 s74, {SJ}, 3
    s_lshl_b32 s75, {SX}, 2
    s_add_u32 s74, s74, s75
    s_and_b32 s75, {SJ}, 7
    s_lshl_b32 s76, s75, 3
    s_add_u32 s76, s76, {SW}
    s_lshl_b32 s77, s74, 6
    s_add_u32 s77, s77, s76
    s_lshl_b32 s77, s77, 10
    s_add_u32 s77, s77, {QF}
    s_lshl_b32 s78, s74, 17
    s_lshl_b32 s79, {SW}, 10
    s_add_u32 s78, s78, s79
    s_add_u32 s78, s78, {KV}
    v_lshlrev_b32 v1, 4, v0
    """)

def att_dma(a, rounds, ld_mod=""):
    for r in rounds:
        a(f"s_add_u32 m0, s79, {8192*r}\ns_add_u32 s80, s78, {8192*r}\nbuffer_load_dwordx4 v1, {R_WS}, s80 offen {ld_mod} lds")

def att_regs(a):
    a(f"""
    v_lshrrev_b32 v2, 5, v0
    v_lshlrev_b32 v2, 8, v2
    v_and_b32 v3, 15, v0
    v_lshl_add_u32 v2, v3, 4, v2
    v_add_u32 v2, 1024, v2
    v_add_u32 v80, 0x10000, v1
    v_add_u32 v81, 0x10000, v2
    v_mov_b32 v3, 0xdddddddd
    s_mov_b32 s82, 0xffff
    s_mov_b32 s83, 0xffff
    """)
    for r in range(16, 32): a(f"v_mov_b32 v{r}, 0x3f803f80")
    for r in range(16): a(f"v_mov_b32 v{AO+r}, 0")

def att_main(a, hooks, prios):
    def rdk(t):
        b, o = (1, 2048 * t) if t < 32 else (80, 2048 * (t - 32))
        a(f"ds_read_b128 {vr(AKS[t&1],4)}, v{b} offset:{o}")
    def rdv(t):
        b, o = (2, 2048 * t) if t < 31 else (81, 2048 * (t - 32)) if t >= 32 else (2, None)
        if o is None:
            b, o = 2, 2048 * t
        a("s_mov_b64 exec, s[82:83]")
        a(f"ds_read_b128 {vr(AV1[t&1],4)}, v{b} offset:{o}")
        a(f"ds_read_b128 {vr(AV2[t&1],4)}, v{b} offset:{o+512}")
        a("s_mov_b64 exec, -1")
    rdk(0); rdk(1); rdv(0)
    a("s_waitcnt lgkmcnt(3)")
    a(f"v_mfma_f32_32x32x16_bf16 {vr(AS_[0],16)}, {vr(AKS[0],4)}, {vr(AQ,4)}, 0")
    for t in range(64):
        c, n = AS_[t & 1], AS_[(t + 1) & 1]
        ex = lambda i0, i1: [a(f"v_exp_f32 v{c+i}, v{c+i}") for i in range(i0, i1)]
        if t in prios: a(f"s_setprio {prios[t]}")
        ex(0, 2)
        if t: a(f"v_smfmac_f32_32x32x32_bf16 {vr(AO,16)}, {vr(AV2[(t-1)&1],4)}, {vr(n+8,8)}, v3")
        if t in hooks: hooks[t]()
        k = 0
        if t + 1 < 64: rdv(t + 1); k += 2
        if t + 2 < 64: rdk(t + 2); k += 1
        ex(2, 5)
        a(f"s_waitcnt lgkmcnt({k})")
        if t + 1 < 64: a(f"v_mfma_f32_32x32x16_bf16 {vr(n,16)}, {vr(AKS[(t+1)&1],4)}, {vr(AQ,4)}, 0")
        ex(5, 10)
        a(f"v_smfmac_f32_32x32x32_bf16 {vr(AO,16)}, {vr(AV1[t&1],4)}, {vr(c,8)}, v3")
        ex(10, 16)
    a(f"v_smfmac_f32_32x32x32_bf16 {vr(AO,16)}, {vr(AV2[1],4)}, {vr(AS_[1]+8,8)}, v3")

def att_finish(a, tag, st_mod=""):
    S = AS_[0]; NM = AS_[1]
    a(f"""
    s_lshl_b32 s80, s76, 5
    s_add_u32 s80, s80, s74
    s_lshl_b32 s80, s80, 10
    s_add_u32 s80, s80, {OF}
    s_mov_b32 s84, 0x2b800000
    s_mov_b32 s85, 0x5d800000
    v_fma_f32 v8, v{AO}, 0, v{AO+8}
    """)
    for r in range(1, 8): a(f"v_fma_f32 v8, v{AO+r}, 0, v8")
    a(f"""
    v_cmp_nge_f32 vcc, v8, s84
    v_cmp_nle_f32 s[86:87], v8, s85
    s_or_b64 vcc, vcc, s[86:87]
    s_cbranch_vccnz L_{tag}_slow
    L_{tag}_norm:
    v_rcp_f32 v8, v{AO+8}
    """)
    for r in range(8): a(f"v_mul_f32 v{AO+r}, v8, v{AO+r}")
    for r in range(4): a(f"v_cvt_pk_bf16_f32 v{12+r}, v{AO+2*r}, v{AO+2*r+1}")
    a(f"buffer_store_dwordx4 v[12:15], v1, {R_WS}, s80 offen {st_mod}")

def att_slow(a, tag):
    S = AS_[0]; NM = AS_[1]
    a.reset()
    a(f"""
    L_{tag}_slow:
    v_mov_b32 v82, v1
    v_mov_b32 v84, 0xff800000
    s_mov_b32 s84, 64
    L_{tag}_slow1:
    ds_read_b128 {vr(AKS[0],4)}, v82
    v_add_u32 v82, 2048, v82
    s_waitcnt lgkmcnt(0)
    v_mfma_f32_32x32x16_bf16 {vr(S,16)}, {vr(AKS[0],4)}, {vr(AQ,4)}, 0
    """)
    for r in range(8): a(f"v_max3_f32 v84, v{S+2*r}, v{S+2*r+1}, v84")
    a(f"""
    s_sub_u32 s84, s84, 1
    s_cmp_lg_u32 s84, 0
    s_cbranch_scc1 L_{tag}_slow1
    v_mov_b32 v85, v84
    v_permlane32_swap_b32 v84, v85
    v_max_f32 v84, v84, v85
    """)
    for r in range(16): a(f"v_sub_f32 v{NM+r}, 0, v84\nv_mov_b32 v{AO+r}, 0")
    a(f"""
    v_mov_b32 v82, v1
    v_mov_b32 v83, v2
    s_mov_b32 s84, 64
    L_{tag}_slow2:
    ds_read_b128 {vr(AKS[0],4)}, v82
    s_mov_b64 exec, s[82:83]
    ds_read_b128 {vr(AV1[0],4)}, v83
    ds_read_b128 {vr(AV2[0],4)}, v83 offset:512
    s_mov_b64 exec, -1
    v_add_u32 v82, 2048, v82
    v_add_u32 v83, 2048, v83
    s_waitcnt lgkmcnt(0)
    v_mfma_f32_32x32x16_bf16 {vr(S,16)}, {vr(AKS[0],4)}, {vr(AQ,4)}, {vr(NM,16)}
    """)
    for r in range(16): a(f"v_exp_f32 v{S+r}, v{S+r}")
    a(f"""
    v_smfmac_f32_32x32x32_bf16 {vr(AO,16)}, {vr(AV1[0],4)}, {vr(S,8)}, v3
    v_smfmac_f32_32x32x32_bf16 {vr(AO,16)}, {vr(AV2[0],4)}, {vr(S+8,8)}, v3
    s_sub_u32 s84, s84, 1
    s_cmp_lg_u32 s84, 0
    s_cbranch_scc1 L_{tag}_slow2
    s_nop 15
    s_branch L_{tag}_norm
    """)

PW, PB, PG = 96, 160, 168

def out_side_loads(a, ld_mod=""):
    a(f"""
    s_lshl_b32 s88, s75, 3
    s_lshr_b32 s89, s74, 2
    s_add_u32 s88, s88, s89
    s_and_b32 s89, s74, 3
    s_lshl_b32 s89, s89, 3
    s_add_u32 s89, s89, {SW}
    s_lshl_b32 s90, s89, 14
    s_add_u32 s90, s90, {WOF}
    """)
    for ks in range(16):
        if ks and ks % 4 == 0: a("s_add_u32 s90, s90, 4096")
        a(f"buffer_load_dwordx4 {vr(PW+4*ks,4)}, v1, {R_WS}, s90 offen offset:{1024*(ks%4)} {ld_mod}")
    a(f"""
    v_lshrrev_b32 v86, 4, v0
    v_and_b32 v87, 15, v0
    v_lshlrev_b32 v88, 14, v86
    v_lshl_add_u32 v88, v87, 1, v88
    s_lshl_b32 s90, s89, 16
    s_lshl_b32 s91, s88, 6
    s_add_u32 s90, s90, s91
    s_add_u32 s90, s90, {BT}
    """)
    for i in range(4):
        if i: a("s_add_u32 s90, s90, 4096")
        for nt in range(2): a(f"buffer_load_short_d16_hi v{PB+4*nt+i}, v88, {R_WS}, s90 offen offset:{32*nt} {ld_mod}")
    a(f"""
    v_lshlrev_b32 v88, 2, v87
    s_lshl_b32 s90, s88, 7
    s_add_u32 s90, s90, {GW}
    buffer_load_dword v{PG}, v88, {R_WS}, s90 offen {ld_mod}
    buffer_load_dword v{PG+1}, v88, {R_WS}, s90 offen offset:64 {ld_mod}
    """)

def out_side_math(a):
    a(f"""
    s_mov_b32 s68, 0xffff0000
    v_sub_f32 v88, 1.0, v{PG}
    v_sub_f32 v89, 1.0, v{PG+1}
    v_cvt_pk_bf16_f32 v89, v88, v89
    v_lshlrev_b32 v88, 16, v89
    v_and_b32 v89, s68, v89
    """)
    for nt in range(2):
        for i in range(4): a(f"v_mul_f32 v{PB+4*nt+i}, v{88+nt}, v{PB+4*nt+i}")
        for i in range(0, 4, 2):
            r = PB + 4 * nt + i
            a(f"v_cvt_pk_bf16_f32 v{r+1}, v{r}, v{r+1}\nv_lshlrev_b32 v{r}, 16, v{r+1}\nv_and_b32 v{r+1}, s68, v{r+1}")

def out_o_load(a, ld_mod=""):
    a(f"""
    s_lshl_b32 s90, s88, 15
    s_lshl_b32 s91, {SW}, 12
    s_add_u32 s90, s90, s91
    s_add_u32 s90, s90, {OF}
    """)
    for i in range(4): a(f"buffer_load_dwordx4 {vr(32+4*i,4)}, v1, {R_WS}, s90 offen offset:{1024*i} {ld_mod}")

def out_o_stage(a):
    a(f"s_add_u32 s91, s91, {OS}\nv_add_u32 v2, s91, v1")
    for i in range(4): a(f"ds_write_b128 v2, {vr(32+4*i,4)} offset:{1024*i}")

def out_gemm(a):
    a(f"""
    v_lshlrev_b32 v2, 9, v86
    v_lshl_add_u32 v2, v87, 4, v2
    v_add_u32 v2, {OS}, v2
    v_lshlrev_b32 v3, 10, v87
    v_lshl_add_u32 v3, v86, 3, v3
    s_lshl_b32 s90, s88, 15
    s_lshl_b32 s91, s89, 5
    s_add_u32 s90, s90, s91
    v_add_u32 v3, s90, v3
    v_add_u32 v4, 0x4000, v3
    s_waitcnt lgkmcnt(0)
    s_barrier
    """)
    NB = 12; FB = 16
    rd = lambda i: a(f"ds_read_b128 {vr(FB+4*(i%NB),4)}, v2 offset:{2048*(i>>1) + 256*(i&1)}")
    for i in range(NB): rd(i)
    for i in range(32):
        left = min(NB - 1, 31 - i)
        a(f"s_waitcnt lgkmcnt({left})")
        acc = 8 + 4 * (i & 1)
        a(f"v_mfma_f32_16x16x32_bf16 {vr(acc,4)}, {vr(PW+4*(i>>1),4)}, {vr(FB+4*(i%NB),4)}, {'0' if i < 2 else vr(acc,4)}")
        if i + NB < 32: rd(i + NB)
    for nt in range(2):
        for i in range(4): a(f"v_fma_f32 v{8+4*nt+i}, v{8+4*nt+i}, v{PG+nt}, v{PB+4*nt+i}")
        a(f"v_cvt_pk_bf16_f32 v{16+2*nt}, v{8+4*nt}, v{9+4*nt}\nv_cvt_pk_bf16_f32 v{17+2*nt}, v{10+4*nt}, v{11+4*nt}")
        a(f"global_store_dwordx2 v{3+nt}, {vr(16+2*nt,2)}, {S_OUT}")

def kernel_head(a, name):
    a.reset()
    a.raw(f".globl {name}\n.p2align 8\n.type {name},@function\n{name}:")

def descriptor(name, vgpr):
    return f""".p2align 6
.amdhsa_kernel {name}
  .amdhsa_next_free_vgpr {vgpr}
  .amdhsa_next_free_sgpr 102
  .amdhsa_accum_offset {vgpr}
  .amdhsa_group_segment_fixed_size 0
  .amdhsa_kernarg_size 112
  .amdhsa_user_sgpr_count 2
  .amdhsa_user_sgpr_kernarg_segment_ptr 1
  .amdhsa_system_sgpr_workgroup_id_x 1
.end_amdhsa_kernel
"""

def header():
    ref = open(f"cdna_kernels/{NAME}.s.ref").read().split("\n")
    return "\n".join(l for l in ref[:15]) + "\n"

PRIOS = {0: 3, 38: 2, 54: 1, 61: 0}

def aux_ids(a):
    a(f"""
    s_and_b32 s51, {SW}, 3
    s_lshr_b32 s52, s51, 1
    s_and_b32 s53, s51, 1
    s_lshl_b32 s54, {SX}, 6
    s_lshl_b32 s55, {SJ}, 1
    s_add_u32 s54, s54, s55
    s_add_u32 s54, s54, s52
    """)

def build_multi(extra_empty=0):
    a = Asm()
    ks = ["proj_kernel", "conv_kernel", "attn_kernel", "outp_kernel"]
    launches = "".join(f"; @launch kernel={k} grid=(256,1,1) block=(512,1,1) lds={LDS_BYTES}\n" for k in ks)
    launches += "".join("; @launch kernel=empty_kernel grid=(256,1,1) block=(512,1,1) lds=0\n" for _ in range(extra_empty))
    a.raw(header() + launches + '.amdgcn_target "amdgcn-amd-amdhsa--gfx950"\n.text')
    kernel_head(a, ks[0]); prologue(a, "L_k1_end")
    a(f"s_cmp_ge_u32 {SW}, 4\ns_cbranch_scc1 L_k1_aux")
    p1_gemm(a); p1_side(a); a("s_barrier\ns_endpgm")
    a.reset(); a("L_k1_aux:")
    p1_aux(a)
    a(f"""
    s_waitcnt lgkmcnt(0)
    s_barrier
    s_lshl_b32 s66, {SX}, 5
    s_add_u32 s66, s66, {SJ}
    s_mul_i32 s66, s66, 36864
    s_lshl_b32 s69, s51, 13
    s_add_u32 s66, s66, s69
    s_add_u32 s66, s66, {RD}
    s_add_u32 s69, s69, {RB}
    v_lshlrev_b32 v1, 4, v0
    v_add_u32 v2, s69, v1
    """)
    for i in range(9):
        a(f"ds_read_b128 {vr(64+4*i,4)}, v2 offset:{1024*i}")
    a("s_waitcnt lgkmcnt(0)")
    for i in range(9):
        a(f"buffer_store_dwordx4 {vr(64+4*i,4)}, v1, {R_WS}, s66 offen\ns_add_u32 s66, s66, 1024")
    a("L_k1_end:\ns_endpgm")
    kernel_head(a, ks[1]); prologue(a, "L_k2_end")
    a(f"s_cmp_lt_u32 {SW}, 4\ns_cbranch_scc1 L_k2_end")
    aux_ids(a)
    a(f"""
    s_lshl_b32 s56, s54, 1
    v_mov_b32 v2, s56
    global_load_short_d16_hi v15, v2, {S_DSK}
    v_mov_b32 v16, 0
    v_mov_b32 v17, 0
    v_mov_b32 v18, 0
    v_mov_b32 v19, 0
    v_min_u32 v1, 32, v0
    s_mul_i32 s66, s51, {US}
    s_add_u32 s66, s66, {UB}
    v_lshl_add_u32 v1, v1, 4, s66
    ds_write_b128 v1, v[16:19]
    s_lshl_b32 s66, {SX}, 5
    s_add_u32 s66, s66, {SJ}
    s_mul_i32 s66, s66, 36864
    s_lshl_b32 s69, s51, 13
    s_add_u32 s66, s66, s69
    s_add_u32 s66, s66, {RD}
    s_add_u32 s69, s69, {RB}
    v_lshlrev_b32 v1, 4, v0
    """)
    for i in range(9):
        a(f"s_add_u32 m0, s69, {1024*i}\ns_add_u32 s70, s66, {1024*i}\nbuffer_load_dwordx4 v1, {R_WS}, s70 offen lds")
    a("s_waitcnt lgkmcnt(0)\ns_barrier")
    u_load(a); a("s_waitcnt vmcnt(0)"); u_store(a)
    a("s_waitcnt lgkmcnt(0)\ns_barrier")
    conv(a, "k2c")
    a("L_k2_end:\ns_endpgm")
    kernel_head(a, ks[2]); prologue(a, "L_k3_end")
    att_setup(a)
    a(f"buffer_load_dwordx4 {vr(AQ,4)}, v1, {R_WS}, s77 offen")
    att_dma(a, range(16)); att_regs(a)
    a("s_waitcnt vmcnt(15)\ns_barrier")
    att_main(a, {2: lambda: a("s_waitcnt vmcnt(12)\ns_barrier"), 14: lambda: a("s_waitcnt vmcnt(0)\ns_barrier")}, PRIOS)
    att_finish(a, "k3")
    a("L_k3_end:\ns_endpgm")
    att_slow(a, "k3")
    kernel_head(a, ks[3]); prologue(a, "L_k4_end")
    att_setup(a)
    a(f"s_lshl_b32 s88, s75, 3\ns_lshr_b32 s89, s74, 2\ns_add_u32 s88, s88, s89")
    out_o_load(a); out_side_loads(a)
    a(f"s_lshl_b32 s91, {SW}, 12\ns_waitcnt vmcnt(26)"); out_o_stage(a)
    a("s_waitcnt vmcnt(0)"); out_side_math(a)
    out_gemm(a)
    a("L_k4_end:\ns_endpgm")
    if extra_empty:
        kernel_head(a, "empty_kernel"); a("s_endpgm")
    a.raw('.section .rodata,"a"')
    for k in ks: a.raw(descriptor(k, 192))
    if extra_empty: a.raw(descriptor("empty_kernel", 8))
    return a.text()

if __name__ == "__main__":
    mode = sys.argv[1] if len(sys.argv) > 1 else "multi"
    out = sys.argv[2] if len(sys.argv) > 2 else f"cdna_kernels/{NAME}.s"
    txt = build_multi(int(sys.argv[3]) if len(sys.argv) > 3 else 0)
    open(out, "w").write(txt)
    print("wrote", out, len(txt), "bytes")
```

```python
import sys
from asmlib import Asm

NAME = "gated_mix__softmax_full_mha__ssm_conv_s4d__prompt"
QF, KV, XT, BT, OF, WOF, GW, RD = 0x000000, 0x200000, 0x600000, 0x800000, 0xA00000, 0xC00000, 0xC80000, 0x1000000
WS_BYTES = 0x2000000
LDS_BYTES = 163840
XR, WR = 0, 24576
KX = 98304
KXS = 4160
UB, US, UD = 110464, 4640, 9280
TB, TBS = 129024, 8704
RB, RE, RDS = 129024, 4160, 16640
OS = 131072
LOG2E = 0x3FB8AA3B
INV2PI = 0x3E22F983
QSCALE = 0x3EB8AA3B

S_X, S_W, S_WO, S_LOGA, S_AIM, S_CR, S_CI = "s[4:5]", "s[6:7]", "s[8:9]", "s[12:13]", "s[14:15]", "s[16:17]", "s[18:19]"
S_LDT, S_DSK, S_GWT, S_OUT, S_DBG, S_WS = "s[20:21]", "s[22:23]", "s[24:25]", "s[26:27]", "s[28:29]", "s[30:31]"
R_X, R_W, R_WS = "s[32:35]", "s[36:39]", "s[40:43]"
SX, SJ, SW = "s48", "s49", "s50"

def vr(b, n=1):
    return f"v{b}" if n == 1 else f"v[{b}:{b+n-1}]"

class VM:
    def __init__(self): self.q = []
    def add(self, tag, n=1): self.q += [tag] * n
    def wait(self, a, tag):
        idx = max(i for i, t in enumerate(self.q) if t == tag)
        n = len(self.q) - 1 - idx
        a(f"s_waitcnt vmcnt({n})"); self.q = self.q[idx + 1:]

def prologue(a, end):
    a(f"""
    s_cmp_ge_u32 s2, 256
    s_cbranch_scc1 {end}
    s_load_dwordx16 s[4:19], s[0:1], 0
    s_load_dwordx8 s[20:27], s[0:1], 64
    s_load_dwordx4 s[28:31], s[0:1], 96
    v_lshrrev_b32 v1, 6, v0
    v_and_b32 v0, 63, v0
    v_readfirstlane_b32 {SW}, v1
    s_and_b32 {SX}, s2, 7
    s_lshr_b32 {SJ}, s2, 3
    s_mov_b32 s34, 0x200000
    s_mov_b32 s35, 0x20000
    s_mov_b32 s38, 0x180000
    s_mov_b32 s39, 0x20000
    s_mov_b32 s42, {WS_BYTES}
    s_mov_b32 s43, 0x20000
    s_waitcnt lgkmcnt(0)
    s_mov_b32 s32, s4
    s_mov_b32 s33, s5
    s_mov_b32 s36, s6
    s_mov_b32 s37, s7
    s_mov_b32 s40, s30
    s_mov_b32 s41, s31
    """)

def p1_gemm(a, st_mod=""):
    ACC = (16, 32, 48); SET = (64, 80)
    a(f"""
    s_lshl_b32 s52, {SJ}, 6
    s_lshl_b32 s53, {SX}, 3
    s_add_u32 s52, s52, s53
    s_lshl_b32 s53, {SW}, 1
    s_add_u32 s52, s52, s53
    v_lshlrev_b32 v1, 4, v0
    s_lshl_b32 s53, s52, 10
    v_add_u32 v2, s53, v1
    global_load_dwordx4 v[96:99], v2, {S_X}
    global_load_dwordx4 v[100:103], v2, {S_X} offset:1024
    global_load_dwordx4 v[104:107], v1, {S_GWT}
    s_lshl_b32 s54, {SX}, 5
    s_add_u32 s54, s54, {SJ}
    s_lshr_b32 s55, s54, 3
    s_and_b32 s56, s54, 7
    s_lshl_b32 s56, s56, 1
    s_and_b32 s57, {SW}, 1
    s_add_u32 s56, s56, s57
    s_lshl_b32 s57, s56, 15
    s_lshl_b32 s58, s55, 5
    s_add_u32 s57, s57, s58
    v_lshrrev_b32 v3, 5, v0
    v_lshlrev_b32 v3, 14, v3
    v_bfe_u32 v4, v0, 4, 1
    v_lshl_add_u32 v3, v4, 12, v3
    v_and_b32 v4, 15, v0
    v_lshl_add_u32 v3, v4, 1, v3
    v_add_u32 v3, s57, v3
    v_add_u32 v4, 0x2000, v3
    """)
    for j in range(8):
        a(f"global_load_short_d16{'_hi' if j & 1 else ''} v{108+j}, v{3 + (j >> 2)}, {S_WO} offset:{1024*(j&3)}")
    a(f"""
    s_lshl_b32 s55, s55, 4
    s_add_u32 s55, s55, s56
    s_lshl_b32 s55, s55, 10
    s_add_u32 s55, s55, {WOF}
    s_and_b32 s58, {SW}, 1
    s_lshr_b32 s59, {SW}, 1
    v_and_b32 v1, 31, v0
    s_lshl_b32 s60, s58, 12
    v_lshlrev_b32 v2, 7, v1
    v_add_u32 v2, s60, v2
    v_bfe_u32 v1, v0, 1, 3
    v_lshrrev_b32 v3, 5, v0
    v_xor_b32 v1, v1, v3
    """)
    for ks in range(4):
        a(f"v_xor_b32 v3, {2*ks}, v1\nv_lshl_add_u32 v{4+ks}, v3, 4, v2")
    a(f"""
    v_lshrrev_b32 v1, 5, v0
    v_lshlrev_b32 v1, 10, v1
    v_bfe_u32 v2, v0, 2, 2
    v_lshl_add_u32 v1, v2, 7, v1
    v_bfe_u32 v2, v0, 3, 1
    v_xor_b32 v2, s59, v2
    v_lshl_add_u32 v1, v2, 6, v1
    v_bfe_u32 v2, v0, 4, 1
    v_lshl_add_u32 v1, v2, 5, v1
    v_and_b32 v2, 3, v0
    v_lshl_add_u32 v1, v2, 3, v1
    v_add_u32 v8, {WR}, v1
    v_add_u32 v9, {WR + 49152}, v1
    """)
    def reads(t, ks, s):
        slot = t % 3
        a(f"ds_read_b128 {vr(s,4)}, v{4+ks} offset:{XR + slot*8192}")
        for ty in range(3):
            for ri in range(2):
                off = ty * 8192 + ks * 2048 + ri * 512
                base, o = (9, off) if slot == 2 else (8, off + slot * 24576)
                a(f"ds_read_b64_tr_b16 {vr(s+4+4*ty+2*ri,2)}, v{base} offset:{o}")
    def mm(s, first):
        c = lambda i: "0" if first else vr(ACC[i], 16)
        a(f"v_mfma_f32_32x32x16_bf16 {vr(ACC[0],16)}, {vr(s+4,4)}, {vr(s,4)}, {c(0)}")
        a(f"v_mfma_f32_32x32x16_bf16 {vr(ACC[1],16)}, {vr(s+8,4)}, {vr(s,4)}, {c(1)}")
        a(f"v_mfma_f32_32x32x16_bf16 {vr(ACC[2],16)}, {vr(s,4)}, {vr(s+12,4)}, {c(2)}")
    for t in range(8):
        a("s_barrier")
        reads(t, 0, SET[0])
        if t: mm(SET[1], False)
        for ks in range(3):
            reads(t, ks + 1, SET[(ks + 1) & 1])
            a("s_waitcnt lgkmcnt(7)")
            mm(SET[ks & 1], t == 0 and ks == 0)
        a("s_waitcnt lgkmcnt(0)")
    mm(SET[1], False)
    a(f"""
    s_lshl_b32 s60, {SX}, 2
    s_lshl_b32 s61, s59, 1
    s_add_u32 s60, s60, s61
    s_lshl_b32 s60, s60, 6
    s_lshl_b32 s61, {SJ}, 1
    s_add_u32 s61, s61, s58
    s_add_u32 s60, s60, s61
    s_lshl_b32 s61, s60, 10
    s_add_u32 s61, s61, {QF}
    s_add_u32 s62, s61, 0x10000
    s_lshl_b32 s63, s60, 11
    s_add_u32 s63, s63, {KV}
    s_add_u32 s64, s63, 0x20000
    s_mov_b32 s65, {QSCALE}
    v_lshlrev_b32 v1, 4, v0
    v_and_b32 v2, 0x33, v0
    v_bfe_u32 v3, v0, 2, 1
    v_lshl_or_b32 v2, v3, 3, v2
    v_bfe_u32 v3, v0, 3, 1
    v_lshl_or_b32 v2, v3, 2, v2
    v_lshlrev_b32 v2, 4, v2
    v_and_b32 v3, 15, v0
    v_lshlrev_b32 v3, 4, v3
    v_lshrrev_b32 v4, 5, v0
    v_lshl_add_u32 v3, v4, 8, v3
    v_bfe_u32 v4, v0, 4, 1
    v_lshl_add_u32 v3, v4, 17, v3
    """)
    for r in range(16): a(f"v_mul_f32 v{16+r}, s65, v{16+r}")
    for r in range(8): a(f"v_cvt_pk_bf16_f32 v{64+r}, v{16+2*r}, v{17+2*r}")
    a(f"buffer_store_dwordx4 v[64:67], v1, {R_WS}, s61 offen {st_mod}")
    a(f"buffer_store_dwordx4 v[68:71], v1, {R_WS}, s62 offen {st_mod}")
    for r in range(8): a(f"v_cvt_pk_bf16_f32 v{72+r}, v{32+2*r}, v{33+2*r}")
    a(f"buffer_store_dwordx4 v[72:75], v2, {R_WS}, s63 offen {st_mod}")
    a(f"buffer_store_dwordx4 v[76:79], v2, {R_WS}, s64 offen {st_mod}")
    for r in range(8): a(f"v_cvt_pk_bf16_f32 v{80+r}, v{48+2*r}, v{49+2*r}")
    a(f"buffer_store_dwordx4 v[80:83], v3, {R_WS}, s63 offen offset:1024 {st_mod}")
    a(f"buffer_store_dwordx4 v[84:87], v3, {R_WS}, s63 offen offset:1536 {st_mod}")

def p1_side(a, st_mod=""):
    a("s_waitcnt vmcnt(6)")
    for j in range(4): a(f"v_or_b32 v{116+j}, v{108+2*j}, v{109+2*j}")
    a(f"v_lshlrev_b32 v1, 4, v0\nbuffer_store_dwordx4 v[116:119], v1, {R_WS}, s55 offen {st_mod}")
    a("s_mov_b32 s66, 0xffff0000")
    for k in range(4):
        a(f"v_lshlrev_b32 v{16+2*k}, 16, v{104+k}\nv_and_b32 v{17+2*k}, s66, v{104+k}")
    for r in range(2):
        for k in range(4):
            x = 96 + 4 * r + k
            a(f"""
            v_lshlrev_b32 v26, 16, v{x}
            v_and_b32 v27, s66, v{x}
            v_mul_f32 v26, v26, v{16+2*k}
            v_mul_f32 v27, v27, v{17+2*k}
            v_cvt_pk_bf16_f32 v26, v26, v27
            v_and_b32 v27, s66, v26
            v_lshlrev_b32 v26, 16, v26
            """)
            if k == 0: a(f"v_add_f32 v{24+r}, v26, v27")
            else: a(f"v_add_f32 v{24+r}, v{24+r}, v26\nv_add_f32 v{24+r}, v{24+r}, v27")
    for d in ("row_shr:1 row_mask:0xf bank_mask:0xf bound_ctrl:0", "row_shr:2 row_mask:0xf bank_mask:0xf bound_ctrl:0",
              "row_shr:4 row_mask:0xf bank_mask:0xf bound_ctrl:0", "row_shr:8 row_mask:0xf bank_mask:0xf bound_ctrl:0",
              "row_bcast:15 row_mask:0xa bank_mask:0xf", "row_bcast:31 row_mask:0xc bank_mask:0xf"):
        for r in range(2): a(f"v_add_f32_dpp v{24+r}, v{24+r}, v{24+r} {d}")
    a(f"""
    v_cvt_pk_bf16_f32 v26, v24, v25
    s_mov_b32 s67, {LOG2E}
    v_lshlrev_b32 v24, 16, v26
    v_and_b32 v25, s66, v26
    v_mul_f32 v24, s67, v24
    v_mul_f32 v25, s67, v25
    v_exp_f32 v24, -v24
    v_exp_f32 v25, -v25
    v_add_f32 v24, 1.0, v24
    v_add_f32 v25, 1.0, v25
    v_rcp_f32 v24, v24
    v_rcp_f32 v25, v25
    s_lshl_b32 s52, s52, 2
    s_add_u32 s52, s52, {GW}
    v_cvt_pk_bf16_f32 v26, v24, v25
    v_mov_b32 v1, 0
    v_lshlrev_b32 v24, 16, v26
    v_and_b32 v25, s66, v26
    s_mov_b32 exec_lo, 0
    s_mov_b32 exec_hi, 0x80000000
    buffer_store_dwordx2 v[24:25], v1, {R_WS}, s52 offen {st_mod}
    s_mov_b64 exec, -1
    """)

def cmul(a, d, x, w, t):
    a(f"v_pk_mul_f32 {vr(t,2)}, {vr(x,2)}, {vr(w,2)} op_sel:[0,0] op_sel_hi:[1,0]")
    a(f"v_pk_fma_f32 {vr(d,2)}, {vr(x,2)}, {vr(w,2)}, {vr(t,2)} op_sel:[1,1,0] op_sel_hi:[0,1,1] neg_lo:[1,0,0]")

def p1_aux(a, st_mod=""):
    vm = VM()
    a(f"""
    s_and_b32 s51, {SW}, 3
    s_lshr_b32 s52, s51, 1
    s_and_b32 s53, s51, 1
    s_lshl_b32 s54, {SX}, 6
    s_lshl_b32 s55, {SJ}, 1
    s_add_u32 s54, s54, s55
    s_add_u32 s54, s54, s52
    s_lshl_b32 s55, s54, 8
    s_lshl_b32 s56, s53, 7
    s_add_u32 s55, s55, s56
    v_lshlrev_b32 v1, 1, v0
    v_add_u32 v1, s55, v1
    s_lshl_b32 s56, s54, 1
    v_mov_b32 v2, s56
    global_load_short_d16_hi v10, v1, {S_LOGA}
    global_load_short_d16_hi v11, v1, {S_AIM}
    global_load_short_d16_hi v12, v1, {S_CR}
    global_load_short_d16_hi v13, v1, {S_CI}
    global_load_short_d16_hi v14, v2, {S_LDT}
    global_load_short_d16_hi v15, v2, {S_DSK}
    v_lshrrev_b32 v1, 3, v0
    v_lshrrev_b32 v2, 4, v0
    s_lshl_b32 s56, s53, 2
    v_add_u32 v3, s56, v2
    v_and_b32 v5, 7, v0
    v_xor_b32 v3, v3, v5
    v_lshlrev_b32 v3, 4, v3
    v_lshl_add_u32 v4, v1, 10, v3
    v_and_b32 v2, 1, v2
    v_lshlrev_b32 v2, 2, v2
    v_xor_b32 v2, v2, v5
    v_lshlrev_b32 v2, 4, v2
    v_mov_b32 v3, 0xc00
    v_mad_u32_u24 v5, v1, v3, v2
    s_lshl_b32 s57, {SJ}, 16
    s_lshl_b32 s58, s51, 13
    s_add_u32 s57, s57, s58
    s_mul_i32 s58, s51, {16*3072}
    s_lshl_b32 s59, {SX}, 7
    s_add_u32 s58, s58, s59
    s_lshl_b32 s60, s51, 10
    s_lshl_b32 s61, s51, 11
    """)
    vm.add("par", 6)
    def dma(t):
        slot = t % 3
        a(f"""
        s_add_u32 s62, {SX}, {t}
        s_and_b32 s62, s62, 7
        s_lshl_b32 s63, s62, 7
        s_add_u32 s63, s63, s57
        s_mul_i32 s62, s62, {64*3072}
        s_add_u32 s62, s62, s58
        """)
        for i in range(2):
            a(f"s_add_u32 m0, s60, {XR + slot*8192 + i*4096}")
            if i: a("s_add_u32 s63, s63, 0x8000")
            a(f"buffer_load_dwordx4 v4, {R_X}, s63 offen lds")
        for ty in range(3):
            for i in range(2):
                a(f"s_add_u32 m0, s61, {WR + slot*24576 + ty*8192 + i*1024}")
                a(f"s_add_u32 s64, s62, {ty*1024 + i*8*3072}")
                a(f"buffer_load_dwordx4 v5, {R_W}, s64 offen lds")
        vm.add(f"s{t}", 8)
    for t in range(3): dma(t)
    a(f"""
    s_mul_i32 s65, s51, {TBS}
    s_add_u32 s65, s65, {TB}
    v_lshlrev_b32 v6, 2, v0
    v_add_u32 v6, s65, v6
    v_and_b32 v1, 31, v0
    v_lshrrev_b32 v2, 5, v0
    v_lshlrev_b32 v2, 4, v2
    v_add_u32 v2, s65, v2
    v_mov_b32 v3, 272
    v_mad_u32_u24 v7, v1, v3, v2
    v_bfe_u32 v8, v0, 3, 1
    v_and_b32 v9, 3, v0
    v_lshl_add_u32 v8, v8, 2, v9
    v_cvt_f32_u32 v8, v8
    v_bfe_u32 v9, v0, 4, 1
    v_bfe_u32 v16, v0, 2, 1
    v_lshl_add_u32 v9, v9, 1, v16
    v_min_u32 v16, 2, v9
    v_sub_u32 v16, 0, v16
    v_ldexp_f32 v16, v8, v16
    v_rndne_f32 v16, v16
    v_cvt_u32_f32 v16, v16
    v_lshlrev_b32 v17, 3, v9
    s_mov_b32 s66, 0x100d0800
    v_lshrrev_b32 v17, v17, s66
    v_and_b32 v17, 0xff, v17
    v_add_u32 v16, v16, v17
    v_mul_f32 v8, 0.125, v8
    v_rndne_f32 v8, v8
    v_cvt_u32_f32 v8, v8
    v_lshl_add_u32 v8, v9, 1, v8
    v_add_u32 v8, 19, v8
    s_cmp_eq_u32 s53, 0
    s_cselect_b64 vcc, -1, 0
    s_cselect_b32 s70, 0, 0xaaaaaaaa
    s_mov_b32 s71, s70
    v_cndmask_b32 v9, v8, v16, vcc
    v_cndmask_b32 v8, v16, v8, vcc
    v_mad_u32_u24 v9, v9, v3, v2
    v_mad_u32_u24 v8, v8, v3, v2
    v_mov_b32 v16, 0
    v_mov_b32 v17, 0
    v_mov_b32 v18, 0
    v_mov_b32 v19, 0
    v_min_u32 v1, 32, v0
    s_mul_i32 s66, s51, {US}
    s_add_u32 s66, s66, {UB}
    v_lshl_add_u32 v1, v1, 4, s66
    ds_write_b128 v1, v[16:19]
    s_mul_i32 s67, s52, {KXS}
    s_add_u32 s67, s67, {KX}
    v_mov_b32 v1, s67
    ds_write_b128 v1, v[16:19]
    """)
    vm.wait(a, "par")
    a(f"""
    s_mov_b32 s66, {LOG2E}
    s_mov_b32 s68, 0xffff0000
    s_mov_b32 s69, {INV2PI}
    v_mul_f32 v14, s66, v14
    v_mul_f32 v10, s66, v10
    v_exp_f32 v14, v14
    v_exp_f32 v10, v10
    s_mov_b32 s72, 0x41000000
    s_mov_b32 s73, 0x43800000
    v_cvt_pk_bf16_f32 v1, v14, v10
    v_lshlrev_b32 v14, 16, v1
    v_and_b32 v10, s68, v1
    v_mul_f32 v10, v10, v14
    v_mul_f32 v11, v11, v14
    v_mul_f32 v26, v12, v14
    v_mul_f32 v27, v13, v14
    v_mul_f32 v10, s66, v10
    v_mul_f32 v11, s69, v11
    v_add_f32 v26, v26, v26
    v_add_f32 v27, v27, v27
    """)
    for d, sc in ((20, None), (22, "s72"), (24, "s73")):
        if sc: a(f"v_mul_f32 v1, {sc}, v10\nv_mul_f32 v2, {sc}, v11\nv_exp_f32 v1, -v1\nv_fract_f32 v2, v2")
        else: a("v_exp_f32 v1, -v10\nv_fract_f32 v2, v11")
        a(f"v_cos_f32 v{d}, v2\nv_sin_f32 v{d+1}, v2\nv_mul_f32 v{d}, v1, v{d}\nv_mul_f32 v{d+1}, v1, v{d+1}")
    def lrow(b):
        cur = 28 + 2 * (b & 1)
        if b == 0:
            a("v_mov_b32 v3, 0x3f80\nds_write_b32 v6, v3")
            return
        if b == 1: a(f"v_mov_b32 v{cur}, v22\nv_mov_b32 v{cur+1}, v23")
        else: cmul(a, cur, 28 + 2 * ((b - 1) & 1), 22, 32)
        a(f"v_cvt_pk_bf16_f32 v{34 + (b & 1)}, v{cur}, v{cur+1}\nds_write_b32 v6, v{34 + (b & 1)} offset:{272*b}")
    for b in range(0, 6): lrow(b)
    vm.wait(a, "s0"); a("s_barrier")
    a(f"""
    v_lshrrev_b32 v1, 4, v0
    v_bfe_u32 v2, v0, 2, 2
    v_lshl_add_u32 v2, v1, 3, v2
    v_bfe_u32 v3, v0, 1, 1
    s_lshl_b32 s66, s51, 1
    v_add_u32 v3, s66, v3
    v_bfe_u32 v36, v2, 1, 3
    v_xor_b32 v36, v36, v3
    v_and_b32 v37, 1, v0
    v_lshlrev_b32 v37, 3, v37
    v_lshl_add_u32 v37, v2, 7, v37
    v_xor_b32 v38, 2, v36
    v_lshl_add_u32 v36, v36, 4, v37
    v_lshl_add_u32 v37, v38, 4, v37
    ds_read_b64_tr_b16 v[40:41], v36 offset:{XR}
    ds_read_b64_tr_b16 v[42:43], v37 offset:{XR + 512}
    ds_read_b64_tr_b16 v[44:45], v36 offset:{XR + 4096}
    ds_read_b64_tr_b16 v[46:47], v37 offset:{XR + 4096 + 512}
    v_bfe_u32 v2, v0, 1, 3
    v_lshlrev_b32 v2, 13, v2
    v_and_b32 v3, 1, v0
    v_lshl_add_u32 v2, v3, 6, v2
    v_lshl_add_u32 v2, v1, 4, v2
    s_lshl_b32 s66, {SX}, 18
    s_lshl_b32 s69, s51, 16
    s_add_u32 s66, s66, s69
    s_lshl_b32 s69, {SJ}, 8
    s_add_u32 s66, s66, s69
    s_add_u32 s66, s66, {XT}
    s_waitcnt lgkmcnt(0)
    buffer_store_dwordx4 v[40:43], v2, {R_WS}, s66 offen {st_mod}
    buffer_store_dwordx4 v[44:47], v2, {R_WS}, s66 offen offset:128 {st_mod}
    """)
    vm.add("xt", 2)
    for b in range(6, 20): lrow(b)
    vm.wait(a, "s1"); a("s_barrier")
    dma(3)
    for b in range(20, 32): lrow(b)
    LF, HK, HS, AK, AS = 64, 96, 128, 160, 176
    a("s_waitcnt lgkmcnt(0)")
    for ks in range(8): a(f"ds_read_b128 {vr(LF+4*ks,4)}, v7 offset:{32*ks}")
    vm.wait(a, "s2"); a("s_waitcnt lgkmcnt(0)\ns_barrier")
    dma(4)
    def hw(reg, row):
        t = 34 + (row & 1)
        a(f"v_cvt_pk_bf16_f32 v{t}, v{reg}, -v{reg+1}\nds_write_b32 v6, v{t} offset:{272*row}")
    H = lambda p: 40 + 2 * p
    a(f"v_mov_b32 v{H(0)}, v26\nv_mov_b32 v{H(0)+1}, v27")
    hw(H(0), 0)
    for p in range(1, 9):
        cmul(a, H(p), H(p - 1), 20, 32)
        if p < 8: hw(H(p), p)
    row = 8
    for grp in ((0, 2, 4, 6, 8), (0, 4, 8)):
        for p in grp:
            cmul(a, H(p), H(p), 24, 32); hw(H(p), row); row += 1
    vm.wait(a, "s3"); a("s_barrier")
    dma(5)
    for grp in ((0, 4, 8), (0, 8), (0, 8), (0, 8), (0, 8)):
        for p in grp:
            cmul(a, H(p), H(p), 24, 32); hw(H(p), row); row += 1
    assert row == 27
    a("s_waitcnt lgkmcnt(0)")
    for ks in range(8): a(f"ds_read_b128 {vr(HS+4*ks,4)}, v8 offset:{32*ks}")
    for ks in range(7): a(f"ds_read_b128 {vr(HK+4*ks,4)}, v9 offset:{32*ks}")
    a("s_waitcnt lgkmcnt(7)")
    a(f"ds_read_b128 {vr(HK+28,4)}, v9 offset:{32*7}")
    for ks in range(8):
        a(f"v_mfma_f32_32x32x16_bf16 {vr(AS,16)}, {vr(HS+4*ks,4)}, {vr(LF+4*ks,4)}, {'0' if ks == 0 else vr(AS,16)}")
    a("s_waitcnt lgkmcnt(0)")
    for ks in range(8):
        a(f"v_mfma_f32_32x32x16_bf16 {vr(AK,16)}, {vr(HK+4*ks,4)}, {vr(LF+4*ks,4)}, {'0' if ks == 0 else vr(AK,16)}")
    a(f"v_lshlrev_b32 v1, 4, v0\nv_add_u32 v2, s65, v1\ns_xor_b32 s66, s51, 1\ns_mul_i32 s66, s66, {TBS}\ns_add_u32 s66, s66, {TB}\nv_add_u32 v3, s66, v1")
    for i in range(4): a(f"ds_write_b128 v2, {vr(AS+4*i,4)} offset:{1024*i}")
    vm.wait(a, "s4"); a("s_waitcnt lgkmcnt(0)\ns_barrier")
    for i in range(4): a(f"ds_read_b128 {vr(AS+4*i,4)}, v3 offset:{1024*i}")
    dma(6)
    a(f"""
    s_lshl_b32 s66, s53, 11
    s_add_u32 s66, s66, s67
    v_lshrrev_b32 v2, 5, v0
    v_and_b32 v3, 31, v0
    v_lshlrev_b32 v3, 4, v3
    v_lshl_add_u32 v2, v2, 9, v3
    v_add_u32 v2, s66, v2
    s_waitcnt lgkmcnt(0)
    """)
    for i in range(16): a(f"v_add_f32 v{AK+i}, v{AK+i}, v{AS+i}")
    for rg in range(2): a(f"v_cndmask_b32 v{AK+8*rg+4}, v{AK+8*rg+4}, v{AK+8*rg+5}, s[70:71]")
    for i in range(8): a(f"v_cvt_pk_bf16_f32 v{40+i}, v{AK+2*i}, v{AK+2*i+1}")
    for rg in range(2): a(f"ds_write_b128 v2, {vr(40+4*rg,4)} offset:{16 + 1024*rg}")
    vm.wait(a, "s5"); a("s_waitcnt lgkmcnt(0)\ns_barrier")
    a(f"""
    v_add_u32 v2, s66, v1
    ds_read_b64 v[40:41], v2 offset:8
    ds_read_b128 v[42:45], v2 offset:16
    ds_read_b64 v[46:47], v2 offset:{1024+8}
    ds_read_b128 v[48:51], v2 offset:{1024+16}
    """)
    dma(7)
    a(f"""
    s_mul_i32 s66, s52, {RDS}
    s_add_u32 s66, s66, {RB}
    v_bfe_u32 v2, v0, 2, 2
    v_mov_b32 v3, {RE}
    v_mul_u32_u24 v2, v2, v3
    v_and_b32 v3, 3, v0
    v_min_u32 v3, 2, v3
    v_lshl_add_u32 v2, v3, 4, v2
    v_add_u32 v2, s66, v2
    ds_write_b128 v2, v[16:19] offset:4096
    s_lshl_b32 s69, s53, 11
    s_sub_u32 s66, s66, s69
    s_add_u32 s66, s66, {255*16 - 1024}
    v_sub_u32 v2, s66, v1
    s_mov_b32 s69, 0xffff
    s_waitcnt lgkmcnt(1)
    """)
    def expand(q):
        w = lambda i: 40 + 6 * q + 2 + i
        for e in range(4):
            o = 64 + 4 * e
            for i in range(4):
                hi = 3 - i - (0 if e >= 2 else 1)
                if e & 1: a(f"v_alignbit_b32 v{o+i}, v{w(hi)}, v{w(hi)}, 16")
                else: a(f"v_bfi_b32 v{o+i}, s69, v{w(hi)}, v{w(hi-1)}")
            a(f"ds_write_b128 v2, {vr(o,4)} offset:{e*RE + 1024*(1-q)}")
    expand(0)
    vm.wait(a, "s6"); a("s_barrier")
    expand(1)
    vm.wait(a, "s7"); a("s_barrier")
    return vm

def u_load(a, ld_mod=""):
    a(f"""
    s_lshl_b32 s66, {SX}, 18
    s_lshl_b32 s69, {SJ}, 13
    s_add_u32 s66, s66, s69
    s_lshl_b32 s69, s51, 11
    s_add_u32 s66, s66, s69
    s_add_u32 s66, s66, {XT}
    v_lshlrev_b32 v1, 4, v0
    buffer_load_dwordx4 v[40:43], v1, {R_WS}, s66 offen {ld_mod}
    buffer_load_dwordx4 v[44:47], v1, {R_WS}, s66 offen offset:1024 {ld_mod}
    v_lshrrev_b32 v2, 3, v0
    v_lshlrev_b32 v2, 6, v2
    v_and_b32 v3, 3, v0
    v_lshl_add_u32 v2, v3, 4, v2
    v_bfe_u32 v3, v0, 2, 1
    v_mul_u32_u24 v3, {UD}, v3
    s_lshl_b32 s69, s51, 10
    s_add_u32 s69, s69, {UB + 512}
    v_add3_u32 v2, v2, v3, s69
    """)

def u_store(a):
    for q in range(2):
        a(f"ds_write_b128 v2, {vr(40+4*q,4)} offset:{512*q}")
        a(f"ds_write_b64 v2, {vr(40+4*q,2)} offset:{512*q + US + 8}")
        a(f"ds_write_b64 v2, {vr(42+4*q,2)} offset:{512*q + US + 16}")

def conv(a, tag, st_mod=""):
    a(f"""
    s_mul_i32 s66, s52, {RDS}
    s_add_u32 s66, s66, {RB + 4128 - 64*7 - 512*7}
    v_and_b32 v1, 3, v0
    v_mul_u32_u24 v1, {RE}, v1
    v_lshrrev_b32 v2, 4, v0
    v_bfe_u32 v3, v0, 2, 2
    v_add_u32 v3, v3, v2
    v_lshlrev_b32 v3, 4, v3
    v_sub_u32 v1, v1, v3
    v_add_u32 v4, s66, v1
    s_mul_i32 s66, s52, {UD}
    s_add_u32 s69, s66, {UB + US + 512 + 48 - 64*7}
    v_bfe_u32 v1, v0, 1, 3
    v_lshlrev_b32 v1, 6, v1
    v_lshlrev_b32 v3, 4, v2
    v_sub_u32 v5, v1, v3
    v_add_u32 v1, v1, v3
    v_and_b32 v3, 1, v0
    v_lshl_add_u32 v7, v3, 3, v1
    v_mul_u32_u24 v3, {US}, v3
    v_sub_u32 v5, v5, v3
    v_add_u32 v5, s69, v5
    s_add_u32 s66, s66, {UB + 512}
    v_add_u32 v6, s66, v7
    s_lshl_b32 s66, s54, 12
    s_add_u32 s66, s66, {BT}
    s_cmp_eq_u32 s53, 0
    s_cbranch_scc0 L_{tag}_set1
    """)
    ACC = 16; FA = (64, 128); FB = (96, 160)
    for sidx, cs in enumerate(((0, 3, 4, 7), (1, 2, 5, 6))):
        if sidx: a.reset(); a(f"L_{tag}_set1:")
        n = max(cs) + 1
        def rd_list(rho):
            s = rho & 1; l = []
            for i in range(n):
                l.append(f"ds_read_b128 {vr(FA[s]+4*i,4)}, v4 offset:{512*(7-i) + 64*(7-rho)}")
                l.append(f"ds_read_b128 {vr(FB[s]+4*i,4)}, v5 offset:{512*i + 64*(7-rho)}")
            return l
        for r in rd_list(0)[:15]: a(r)
        pend = rd_list(0)[15:]
        for rho in range(8):
            s = rho & 1
            if pend:
                a("s_waitcnt lgkmcnt(8)")
                for r in pend: a(r)
            a("s_waitcnt lgkmcnt(0)")
            nxt = rd_list(rho + 1) if rho < 7 else []
            pend = nxt[15:]; nxt = nxt[:15]
            seen = set()
            mms = [(ci, sg, c - sg) for sg in range(n) for ci, c in enumerate(cs) if c >= sg]
            for k, (ci, sg, dl) in enumerate(mms):
                c0 = "0" if (rho == 0 and ci not in seen) else vr(ACC + 4 * ci, 4)
                seen.add(ci)
                a(f"v_mfma_f32_16x16x32_bf16 {vr(ACC+4*ci,4)}, {vr(FA[s]+4*sg,4)}, {vr(FB[s]+4*dl,4)}, {c0}")
                if k < len(nxt): a(nxt[k])
        for ci, c in enumerate(cs): a(f"ds_read_b64 {vr(40+2*ci,2)}, v6 offset:{512*c}")
        a("s_mov_b32 s68, 0xffff0000\ns_waitcnt lgkmcnt(0)")
        for ci, c in enumerate(cs):
            for k in range(2):
                a(f"""
                v_lshlrev_b32 v48, 16, v{40+2*ci+k}
                v_and_b32 v49, s68, v{40+2*ci+k}
                v_fmac_f32 v{ACC+4*ci+2*k}, v48, v15
                v_fmac_f32 v{ACC+4*ci+2*k+1}, v49, v15
                v_cvt_pk_bf16_f32 v{50+2*ci+k}, v{ACC+4*ci+2*k}, v{ACC+4*ci+2*k+1}
                """)
            a(f"buffer_store_dwordx2 {vr(50+2*ci,2)}, v7, {R_WS}, s66 offen offset:{512*c} {st_mod}")
        if sidx == 0: a(f"s_branch L_{tag}_done")
    a.reset(); a(f"L_{tag}_done:")

AQ, AKS, AV1, AV2, AS_, AO = 4, (8, 12), (16, 24), (20, 28), (32, 48), 64

def att_setup(a):
    a(f"""
    s_lshr_b32 s74, {SJ}, 3
    s_lshl_b32 s75, {SX}, 2
    s_add_u32 s74, s74, s75
    s_and_b32 s75, {SJ}, 7
    s_lshl_b32 s76, s75, 3
    s_add_u32 s76, s76, {SW}
    s_lshl_b32 s77, s74, 6
    s_add_u32 s77, s77, s76
    s_lshl_b32 s77, s77, 10
    s_add_u32 s77, s77, {QF}
    s_lshl_b32 s78, s74, 17
    s_lshl_b32 s79, {SW}, 10
    s_add_u32 s78, s78, s79
    s_add_u32 s78, s78, {KV}
    v_lshlrev_b32 v1, 4, v0
    """)

def att_dma(a, rounds, ld_mod=""):
    for r in rounds:
        a(f"s_add_u32 m0, s79, {8192*r}\ns_add_u32 s80, s78, {8192*r}\nbuffer_load_dwordx4 v1, {R_WS}, s80 offen {ld_mod} lds")

def att_regs(a):
    a(f"""
    v_lshrrev_b32 v2, 5, v0
    v_lshlrev_b32 v2, 8, v2
    v_and_b32 v3, 15, v0
    v_lshl_add_u32 v2, v3, 4, v2
    v_add_u32 v2, 1024, v2
    v_add_u32 v80, 0x10000, v1
    v_add_u32 v81, 0x10000, v2
    v_mov_b32 v3, 0xdddddddd
    s_mov_b32 s82, 0xffff
    s_mov_b32 s83, 0xffff
    """)
    for r in range(16, 32): a(f"v_mov_b32 v{r}, 0x3f803f80")
    for r in range(16): a(f"v_mov_b32 v{AO+r}, 0")

def att_main(a, hooks, prios):
    def rdk(t):
        b, o = (1, 2048 * t) if t < 32 else (80, 2048 * (t - 32))
        a(f"ds_read_b128 {vr(AKS[t&1],4)}, v{b} offset:{o}")
    def rdv(t):
        b, o = (2, 2048 * t) if t < 31 else (81, 2048 * (t - 32)) if t >= 32 else (2, None)
        if o is None:
            b, o = 2, 2048 * t
        a("s_mov_b64 exec, s[82:83]")
        a(f"ds_read_b128 {vr(AV1[t&1],4)}, v{b} offset:{o}")
        a(f"ds_read_b128 {vr(AV2[t&1],4)}, v{b} offset:{o+512}")
        a("s_mov_b64 exec, -1")
    rdk(0); rdk(1); rdv(0)
    a("s_waitcnt lgkmcnt(3)")
    a(f"v_mfma_f32_32x32x16_bf16 {vr(AS_[0],16)}, {vr(AKS[0],4)}, {vr(AQ,4)}, 0")
    for t in range(64):
        c, n = AS_[t & 1], AS_[(t + 1) & 1]
        ex = lambda i0, i1: [a(f"v_exp_f32 v{c+i}, v{c+i}") for i in range(i0, i1)]
        if t in prios: a(f"s_setprio {prios[t]}")
        ex(0, 2)
        if t: a(f"v_smfmac_f32_32x32x32_bf16 {vr(AO,16)}, {vr(AV2[(t-1)&1],4)}, {vr(n+8,8)}, v3")
        if t in hooks: hooks[t]()
        k = 0
        if t + 1 < 64: rdv(t + 1); k += 2
        if t + 2 < 64: rdk(t + 2); k += 1
        ex(2, 5)
        a(f"s_waitcnt lgkmcnt({k})")
        if t + 1 < 64: a(f"v_mfma_f32_32x32x16_bf16 {vr(n,16)}, {vr(AKS[(t+1)&1],4)}, {vr(AQ,4)}, 0")
        ex(5, 10)
        a(f"v_smfmac_f32_32x32x32_bf16 {vr(AO,16)}, {vr(AV1[t&1],4)}, {vr(c,8)}, v3")
        ex(10, 16)
    a(f"v_smfmac_f32_32x32x32_bf16 {vr(AO,16)}, {vr(AV2[1],4)}, {vr(AS_[1]+8,8)}, v3")

def att_finish(a, tag, st_mod=""):
    S = AS_[0]; NM = AS_[1]
    a(f"""
    s_lshl_b32 s80, s76, 5
    s_add_u32 s80, s80, s74
    s_lshl_b32 s80, s80, 10
    s_add_u32 s80, s80, {OF}
    s_mov_b32 s84, 0x2b800000
    s_mov_b32 s85, 0x5d800000
    v_fma_f32 v8, v{AO}, 0, v{AO+8}
    """)
    for r in range(1, 8): a(f"v_fma_f32 v8, v{AO+r}, 0, v8")
    a(f"""
    v_cmp_nge_f32 vcc, v8, s84
    v_cmp_nle_f32 s[86:87], v8, s85
    s_or_b64 vcc, vcc, s[86:87]
    s_cbranch_vccnz L_{tag}_slow
    L_{tag}_norm:
    v_rcp_f32 v8, v{AO+8}
    """)
    for r in range(8): a(f"v_mul_f32 v{AO+r}, v8, v{AO+r}")
    for r in range(4): a(f"v_cvt_pk_bf16_f32 v{12+r}, v{AO+2*r}, v{AO+2*r+1}")
    a(f"buffer_store_dwordx4 v[12:15], v1, {R_WS}, s80 offen {st_mod}")

def att_slow(a, tag):
    S = AS_[0]; NM = AS_[1]
    a.reset()
    a(f"""
    L_{tag}_slow:
    v_mov_b32 v82, v1
    v_mov_b32 v84, 0xff800000
    s_mov_b32 s84, 64
    L_{tag}_slow1:
    ds_read_b128 {vr(AKS[0],4)}, v82
    v_add_u32 v82, 2048, v82
    s_waitcnt lgkmcnt(0)
    v_mfma_f32_32x32x16_bf16 {vr(S,16)}, {vr(AKS[0],4)}, {vr(AQ,4)}, 0
    """)
    for r in range(8): a(f"v_max3_f32 v84, v{S+2*r}, v{S+2*r+1}, v84")
    a(f"""
    s_sub_u32 s84, s84, 1
    s_cmp_lg_u32 s84, 0
    s_cbranch_scc1 L_{tag}_slow1
    v_mov_b32 v85, v84
    v_permlane32_swap_b32 v84, v85
    v_max_f32 v84, v84, v85
    """)
    for r in range(16): a(f"v_sub_f32 v{NM+r}, 0, v84\nv_mov_b32 v{AO+r}, 0")
    a(f"""
    v_mov_b32 v82, v1
    v_mov_b32 v83, v2
    s_mov_b32 s84, 64
    L_{tag}_slow2:
    ds_read_b128 {vr(AKS[0],4)}, v82
    s_mov_b64 exec, s[82:83]
    ds_read_b128 {vr(AV1[0],4)}, v83
    ds_read_b128 {vr(AV2[0],4)}, v83 offset:512
    s_mov_b64 exec, -1
    v_add_u32 v82, 2048, v82
    v_add_u32 v83, 2048, v83
    s_waitcnt lgkmcnt(0)
    v_mfma_f32_32x32x16_bf16 {vr(S,16)}, {vr(AKS[0],4)}, {vr(AQ,4)}, {vr(NM,16)}
    """)
    for r in range(16): a(f"v_exp_f32 v{S+r}, v{S+r}")
    a(f"""
    v_smfmac_f32_32x32x32_bf16 {vr(AO,16)}, {vr(AV1[0],4)}, {vr(S,8)}, v3
    v_smfmac_f32_32x32x32_bf16 {vr(AO,16)}, {vr(AV2[0],4)}, {vr(S+8,8)}, v3
    s_sub_u32 s84, s84, 1
    s_cmp_lg_u32 s84, 0
    s_cbranch_scc1 L_{tag}_slow2
    s_nop 15
    s_branch L_{tag}_norm
    """)

PW, PB, PG = 96, 160, 168

def out_side_loads(a, ld_mod=""):
    a(f"""
    s_lshl_b32 s88, s75, 3
    s_lshr_b32 s89, s74, 2
    s_add_u32 s88, s88, s89
    s_and_b32 s89, s74, 3
    s_lshl_b32 s89, s89, 3
    s_add_u32 s89, s89, {SW}
    s_lshl_b32 s90, s89, 14
    s_add_u32 s90, s90, {WOF}
    """)
    for ks in range(16):
        if ks and ks % 4 == 0: a("s_add_u32 s90, s90, 4096")
        a(f"buffer_load_dwordx4 {vr(PW+4*ks,4)}, v1, {R_WS}, s90 offen offset:{1024*(ks%4)} {ld_mod}")
    a(f"""
    v_lshrrev_b32 v86, 4, v0
    v_and_b32 v87, 15, v0
    v_lshlrev_b32 v88, 14, v86
    v_lshl_add_u32 v88, v87, 1, v88
    s_lshl_b32 s90, s89, 16
    s_lshl_b32 s91, s88, 6
    s_add_u32 s90, s90, s91
    s_add_u32 s90, s90, {BT}
    """)
    for i in range(4):
        if i: a("s_add_u32 s90, s90, 4096")
        for nt in range(2): a(f"buffer_load_short_d16_hi v{PB+4*nt+i}, v88, {R_WS}, s90 offen offset:{32*nt} {ld_mod}")
    a(f"""
    v_lshlrev_b32 v88, 2, v87
    s_lshl_b32 s90, s88, 7
    s_add_u32 s90, s90, {GW}
    buffer_load_dword v{PG}, v88, {R_WS}, s90 offen {ld_mod}
    buffer_load_dword v{PG+1}, v88, {R_WS}, s90 offen offset:64 {ld_mod}
    """)

def out_side_math(a):
    a(f"""
    s_mov_b32 s68, 0xffff0000
    v_sub_f32 v88, 1.0, v{PG}
    v_sub_f32 v89, 1.0, v{PG+1}
    v_cvt_pk_bf16_f32 v89, v88, v89
    v_lshlrev_b32 v88, 16, v89
    v_and_b32 v89, s68, v89
    """)
    for nt in range(2):
        for i in range(4): a(f"v_mul_f32 v{PB+4*nt+i}, v{88+nt}, v{PB+4*nt+i}")
        for i in range(0, 4, 2):
            r = PB + 4 * nt + i
            a(f"v_cvt_pk_bf16_f32 v{r+1}, v{r}, v{r+1}\nv_lshlrev_b32 v{r}, 16, v{r+1}\nv_and_b32 v{r+1}, s68, v{r+1}")

def out_o_load(a, ld_mod=""):
    a(f"""
    s_lshl_b32 s90, s88, 15
    s_lshl_b32 s91, {SW}, 12
    s_add_u32 s90, s90, s91
    s_add_u32 s90, s90, {OF}
    """)
    for i in range(4): a(f"buffer_load_dwordx4 {vr(32+4*i,4)}, v1, {R_WS}, s90 offen offset:{1024*i} {ld_mod}")

def out_o_stage(a):
    a(f"s_add_u32 s91, s91, {OS}\nv_add_u32 v2, s91, v1")
    for i in range(4): a(f"ds_write_b128 v2, {vr(32+4*i,4)} offset:{1024*i}")

def out_gemm(a):
    a(f"""
    v_lshlrev_b32 v2, 9, v86
    v_lshl_add_u32 v2, v87, 4, v2
    v_add_u32 v2, {OS}, v2
    v_lshlrev_b32 v3, 10, v87
    v_lshl_add_u32 v3, v86, 3, v3
    s_lshl_b32 s90, s88, 15
    s_lshl_b32 s91, s89, 5
    s_add_u32 s90, s90, s91
    v_add_u32 v3, s90, v3
    v_add_u32 v4, 0x4000, v3
    s_waitcnt lgkmcnt(0)
    s_barrier
    """)
    NB = 12; FB = 16
    rd = lambda i: a(f"ds_read_b128 {vr(FB+4*(i%NB),4)}, v2 offset:{2048*(i>>1) + 256*(i&1)}")
    for i in range(NB): rd(i)
    for i in range(32):
        left = min(NB - 1, 31 - i)
        a(f"s_waitcnt lgkmcnt({left})")
        acc = 8 + 4 * (i & 1)
        a(f"v_mfma_f32_16x16x32_bf16 {vr(acc,4)}, {vr(PW+4*(i>>1),4)}, {vr(FB+4*(i%NB),4)}, {'0' if i < 2 else vr(acc,4)}")
        if i + NB < 32: rd(i + NB)
    for nt in range(2):
        for i in range(4): a(f"v_fma_f32 v{8+4*nt+i}, v{8+4*nt+i}, v{PG+nt}, v{PB+4*nt+i}")
        a(f"v_cvt_pk_bf16_f32 v{16+2*nt}, v{8+4*nt}, v{9+4*nt}\nv_cvt_pk_bf16_f32 v{17+2*nt}, v{10+4*nt}, v{11+4*nt}")
        a(f"global_store_dwordx2 v{3+nt}, {vr(16+2*nt,2)}, {S_OUT}")

STAMPS = False
def stamp(a, slot, back=0):
    if not STAMPS: return
    a(f"""
    s_memrealtime s[94:95]
    s_waitcnt lgkmcnt(0)
    s_sub_u32 s96, s28, {back}
    s_subb_u32 s97, s29, 0
    s_not_b32 s95, s94
    v_mov_b32 v190, s95
    v_mov_b32 v191, s94
    v_mov_b32 v189, 0
    s_mov_b64 exec, 1
    global_atomic_umax v189, v190, s[96:97] offset:{8*slot}
    global_atomic_umax v189, v191, s[96:97] offset:{8*slot+4}
    s_mov_b64 exec, -1
    """)

def kernel_head(a, name):
    a.reset()
    a.raw(f".globl {name}\n.p2align 8\n.type {name},@function\n{name}:")

def descriptor(name, vgpr):
    return f""".p2align 6
.amdhsa_kernel {name}
  .amdhsa_next_free_vgpr {vgpr}
  .amdhsa_next_free_sgpr 102
  .amdhsa_accum_offset {vgpr}
  .amdhsa_group_segment_fixed_size 0
  .amdhsa_kernarg_size 112
  .amdhsa_user_sgpr_count 2
  .amdhsa_user_sgpr_kernarg_segment_ptr 1
  .amdhsa_system_sgpr_workgroup_id_x 1
.end_amdhsa_kernel
"""

def header():
    ref = open(f"cdna_kernels/{NAME}.s.ref").read().split("\n")
    return "\n".join(l for l in ref[:15]) + "\n"

PRIOS = {0: 3, 38: 2, 54: 1, 61: 0}

def aux_ids(a):
    a(f"""
    s_and_b32 s51, {SW}, 3
    s_lshr_b32 s52, s51, 1
    s_and_b32 s53, s51, 1
    s_lshl_b32 s54, {SX}, 6
    s_lshl_b32 s55, {SJ}, 1
    s_add_u32 s54, s54, s55
    s_add_u32 s54, s54, s52
    """)

def build_multi(extra_empty=0):
    a = Asm()
    ks = ["proj_kernel", "conv_kernel", "attn_kernel", "outp_kernel"]
    launches = "".join(f"; @launch kernel={k} grid=(256,1,1) block=(512,1,1) lds={LDS_BYTES}\n" for k in ks)
    launches += "".join("; @launch kernel=empty_kernel grid=(256,1,1) block=(512,1,1) lds=0\n" for _ in range(extra_empty))
    a.raw(header() + launches + '.amdgcn_target "amdgcn-amd-amdhsa--gfx950"\n.text')
    kernel_head(a, ks[0]); prologue(a, "L_k1_end"); stamp(a, 0)
    a(f"s_cmp_ge_u32 {SW}, 4\ns_cbranch_scc1 L_k1_aux")
    p1_gemm(a); p1_side(a); a("s_barrier"); a("s_waitcnt vmcnt(0)") if STAMPS else None; stamp(a, 1); a("s_endpgm")
    a.reset(); a("L_k1_aux:")
    p1_aux(a)
    a(f"""
    s_waitcnt lgkmcnt(0)
    s_barrier
    s_lshl_b32 s66, {SX}, 5
    s_add_u32 s66, s66, {SJ}
    s_mul_i32 s66, s66, 36864
    s_lshl_b32 s69, s51, 13
    s_add_u32 s66, s66, s69
    s_add_u32 s66, s66, {RD}
    s_add_u32 s69, s69, {RB}
    v_lshlrev_b32 v1, 4, v0
    v_add_u32 v2, s69, v1
    """)
    for i in range(9):
        a(f"ds_read_b128 {vr(64+4*i,4)}, v2 offset:{1024*i}")
    a("s_waitcnt lgkmcnt(0)")
    for i in range(9):
        a(f"buffer_store_dwordx4 {vr(64+4*i,4)}, v1, {R_WS}, s66 offen\ns_add_u32 s66, s66, 1024")
    a("L_k1_end:\ns_endpgm")
    kernel_head(a, ks[1]); prologue(a, "L_k2_end"); stamp(a, 2, 512)
    a(f"s_cmp_lt_u32 {SW}, 4\ns_cbranch_scc1 L_k2_end")
    aux_ids(a)
    a(f"""
    s_lshl_b32 s56, s54, 1
    v_mov_b32 v2, s56
    global_load_short_d16_hi v15, v2, {S_DSK}
    v_mov_b32 v16, 0
    v_mov_b32 v17, 0
    v_mov_b32 v18, 0
    v_mov_b32 v19, 0
    v_min_u32 v1, 32, v0
    s_mul_i32 s66, s51, {US}
    s_add_u32 s66, s66, {UB}
    v_lshl_add_u32 v1, v1, 4, s66
    ds_write_b128 v1, v[16:19]
    s_lshl_b32 s66, {SX}, 5
    s_add_u32 s66, s66, {SJ}
    s_mul_i32 s66, s66, 36864
    s_lshl_b32 s69, s51, 13
    s_add_u32 s66, s66, s69
    s_add_u32 s66, s66, {RD}
    s_add_u32 s69, s69, {RB}
    v_lshlrev_b32 v1, 4, v0
    """)
    for i in range(9):
        a(f"s_add_u32 m0, s69, {1024*i}\ns_add_u32 s70, s66, {1024*i}\nbuffer_load_dwordx4 v1, {R_WS}, s70 offen lds")
    a("s_waitcnt lgkmcnt(0)\ns_barrier")
    u_load(a); a("s_waitcnt vmcnt(0)"); u_store(a)
    a("s_waitcnt lgkmcnt(0)\ns_barrier")
    conv(a, "k2c"); a("s_waitcnt vmcnt(0)") if STAMPS else None; stamp(a, 3, 512)
    a("L_k2_end:\ns_endpgm")
    kernel_head(a, ks[2]); prologue(a, "L_k3_end"); stamp(a, 4, 1024); a("s_waitcnt vmcnt(0)") if STAMPS else None
    att_setup(a)
    a(f"buffer_load_dwordx4 {vr(AQ,4)}, v1, {R_WS}, s77 offen")
    att_dma(a, range(16)); att_regs(a)
    a("s_waitcnt vmcnt(15)\ns_barrier")
    att_main(a, {2: lambda: a("s_waitcnt vmcnt(12)\ns_barrier"), 14: lambda: a("s_waitcnt vmcnt(0)\ns_barrier")}, PRIOS)
    att_finish(a, "k3"); a("s_waitcnt vmcnt(0)") if STAMPS else None; stamp(a, 5, 1024)
    a("L_k3_end:\ns_endpgm")
    att_slow(a, "k3")
    kernel_head(a, ks[3]); prologue(a, "L_k4_end"); stamp(a, 6, 1536); a("s_waitcnt vmcnt(0)") if STAMPS else None
    att_setup(a)
    a(f"s_lshl_b32 s88, s75, 3\ns_lshr_b32 s89, s74, 2\ns_add_u32 s88, s88, s89")
    out_o_load(a); out_side_loads(a)
    a(f"s_lshl_b32 s91, {SW}, 12\ns_waitcnt vmcnt(26)"); out_o_stage(a)
    a("s_waitcnt vmcnt(0)"); out_side_math(a)
    out_gemm(a); a("s_waitcnt vmcnt(0)") if STAMPS else None; stamp(a, 7, 1536)
    a("L_k4_end:\ns_endpgm")
    if extra_empty:
        kernel_head(a, "empty_kernel"); a("s_endpgm")
    a.raw('.section .rodata,"a"')
    for k in ks: a.raw(descriptor(k, 192))
    if extra_empty: a.raw(descriptor("empty_kernel", 8))
    return a.text()

if __name__ == "__main__":
    mode = sys.argv[1] if len(sys.argv) > 1 else "multi"
    out = sys.argv[2] if len(sys.argv) > 2 else f"cdna_kernels/{NAME}.s"
    STAMPS = "stamp" in mode
    txt = build_multi(int(sys.argv[3]) if len(sys.argv) > 3 else 0)
    open(out, "w").write(txt)
    print("wrote", out, len(txt), "bytes")
```

```python
import sys
from asmlib import Asm

OPT = {}
NAME = "gated_mix__softmax_full_mha__ssm_conv_s4d__prompt"
QF, KV, XT, BT, OF, WOF, GW, RD = 0x000000, 0x200000, 0x600000, 0x800000, 0xA00000, 0xC00000, 0xC80000, 0x1000000
WS_BYTES = 0x2000000
LDS_BYTES = 163840
XR, WR = 0, 24576
KX = 98304
KXS = 4160
UB, US, UD = 110464, 4640, 9280
TB, TBS = 129024, 8704
RB, RE, RDS = 129024, 4160, 16640
OS = 131072
LOG2E = 0x3FB8AA3B
INV2PI = 0x3E22F983
QSCALE = 0x3EB8AA3B

S_X, S_W, S_WO, S_LOGA, S_AIM, S_CR, S_CI = "s[4:5]", "s[6:7]", "s[8:9]", "s[12:13]", "s[14:15]", "s[16:17]", "s[18:19]"
S_LDT, S_DSK, S_GWT, S_OUT, S_DBG, S_WS = "s[20:21]", "s[22:23]", "s[24:25]", "s[26:27]", "s[28:29]", "s[30:31]"
R_X, R_W, R_WS = "s[32:35]", "s[36:39]", "s[40:43]"
SX, SJ, SW = "s48", "s49", "s50"

def vr(b, n=1):
    return f"v{b}" if n == 1 else f"v[{b}:{b+n-1}]"

class VM:
    def __init__(self): self.q = []
    def add(self, tag, n=1): self.q += [tag] * n
    def wait(self, a, tag):
        idx = max(i for i, t in enumerate(self.q) if t == tag)
        n = len(self.q) - 1 - idx
        a(f"s_waitcnt vmcnt({n})"); self.q = self.q[idx + 1:]

def prologue(a, end):
    a(f"""
    s_cmp_ge_u32 s2, 256
    s_cbranch_scc1 {end}
    s_load_dwordx16 s[4:19], s[0:1], 0
    s_load_dwordx8 s[20:27], s[0:1], 64
    s_load_dwordx4 s[28:31], s[0:1], 96
    v_lshrrev_b32 v1, 6, v0
    v_and_b32 v0, 63, v0
    v_readfirstlane_b32 {SW}, v1
    s_and_b32 {SX}, s2, 7
    s_lshr_b32 {SJ}, s2, 3
    s_mov_b32 s34, 0x200000
    s_mov_b32 s35, 0x20000
    s_mov_b32 s38, 0x180000
    s_mov_b32 s39, 0x20000
    s_mov_b32 s42, {WS_BYTES}
    s_mov_b32 s43, 0x20000
    s_waitcnt lgkmcnt(0)
    s_mov_b32 s32, s4
    s_mov_b32 s33, s5
    s_mov_b32 s36, s6
    s_mov_b32 s37, s7
    s_mov_b32 s40, s30
    s_mov_b32 s41, s31
    """)

def p1_gemm(a, st_mod=""):
    ACC = (16, 32, 48); SET = (64, 80)
    a(f"""
    s_lshl_b32 s52, {SJ}, 6
    s_lshl_b32 s53, {SX}, 3
    s_add_u32 s52, s52, s53
    s_lshl_b32 s53, {SW}, 1
    s_add_u32 s52, s52, s53
    v_lshlrev_b32 v1, 4, v0
    s_lshl_b32 s53, s52, 10
    v_add_u32 v2, s53, v1
    global_load_dwordx4 v[96:99], v2, {S_X}
    global_load_dwordx4 v[100:103], v2, {S_X} offset:1024
    global_load_dwordx4 v[104:107], v1, {S_GWT}
    s_lshl_b32 s54, {SX}, 5
    s_add_u32 s54, s54, {SJ}
    s_lshr_b32 s55, s54, 3
    s_and_b32 s56, s54, 7
    s_lshl_b32 s56, s56, 1
    s_and_b32 s57, {SW}, 1
    s_add_u32 s56, s56, s57
    s_lshl_b32 s57, s56, 15
    s_lshl_b32 s58, s55, 5
    s_add_u32 s57, s57, s58
    v_lshrrev_b32 v3, 5, v0
    v_lshlrev_b32 v3, 14, v3
    v_bfe_u32 v4, v0, 4, 1
    v_lshl_add_u32 v3, v4, 12, v3
    v_and_b32 v4, 15, v0
    v_lshl_add_u32 v3, v4, 1, v3
    v_add_u32 v3, s57, v3
    v_add_u32 v4, 0x2000, v3
    """)
    for j in range(8):
        a(f"global_load_short_d16{'_hi' if j & 1 else ''} v{108+j}, v{3 + (j >> 2)}, {S_WO} offset:{1024*(j&3)}")
    a(f"""
    s_lshl_b32 s55, s55, 4
    s_add_u32 s55, s55, s56
    s_lshl_b32 s55, s55, 10
    s_add_u32 s55, s55, {WOF}
    s_and_b32 s58, {SW}, 1
    s_lshr_b32 s59, {SW}, 1
    v_and_b32 v1, 31, v0
    s_lshl_b32 s60, s58, 12
    v_lshlrev_b32 v2, 7, v1
    v_add_u32 v2, s60, v2
    v_bfe_u32 v1, v0, 1, 3
    v_lshrrev_b32 v3, 5, v0
    v_xor_b32 v1, v1, v3
    """)
    for ks in range(4):
        a(f"v_xor_b32 v3, {2*ks}, v1\nv_lshl_add_u32 v{4+ks}, v3, 4, v2")
    a(f"""
    v_lshrrev_b32 v1, 5, v0
    v_lshlrev_b32 v1, 10, v1
    v_bfe_u32 v2, v0, 2, 2
    v_lshl_add_u32 v1, v2, 7, v1
    v_bfe_u32 v2, v0, 3, 1
    v_xor_b32 v2, s59, v2
    v_lshl_add_u32 v1, v2, 6, v1
    v_bfe_u32 v2, v0, 4, 1
    v_lshl_add_u32 v1, v2, 5, v1
    v_and_b32 v2, 3, v0
    v_lshl_add_u32 v1, v2, 3, v1
    v_add_u32 v8, {WR}, v1
    v_add_u32 v9, {WR + 49152}, v1
    """)
    def reads(t, ks, s):
        slot = t % 3
        a(f"ds_read_b128 {vr(s,4)}, v{4+ks} offset:{XR + slot*8192}")
        for ty in range(3):
            for ri in range(2):
                off = ty * 8192 + ks * 2048 + ri * 512
                base, o = (9, off) if slot == 2 else (8, off + slot * 24576)
                a(f"ds_read_b64_tr_b16 {vr(s+4+4*ty+2*ri,2)}, v{base} offset:{o}")
    def mm(s, first):
        c = lambda i: "0" if first else vr(ACC[i], 16)
        a(f"v_mfma_f32_32x32x16_bf16 {vr(ACC[0],16)}, {vr(s+4,4)}, {vr(s,4)}, {c(0)}")
        a(f"v_mfma_f32_32x32x16_bf16 {vr(ACC[1],16)}, {vr(s+8,4)}, {vr(s,4)}, {c(1)}")
        a(f"v_mfma_f32_32x32x16_bf16 {vr(ACC[2],16)}, {vr(s,4)}, {vr(s+12,4)}, {c(2)}")
    for t in range(8):
        a("s_barrier"); lstamp(a, 8 + t)
        reads(t, 0, SET[0])
        if t: mm(SET[1], False)
        for ks in range(3):
            reads(t, ks + 1, SET[(ks + 1) & 1])
            a("s_waitcnt lgkmcnt(7)")
            mm(SET[ks & 1], t == 0 and ks == 0)
        a("s_waitcnt lgkmcnt(0)")
    mm(SET[1], False)
    a(f"""
    s_lshl_b32 s60, {SX}, 2
    s_lshl_b32 s61, s59, 1
    s_add_u32 s60, s60, s61
    s_lshl_b32 s60, s60, 6
    s_lshl_b32 s61, {SJ}, 1
    s_add_u32 s61, s61, s58
    s_add_u32 s60, s60, s61
    s_lshl_b32 s61, s60, 10
    s_add_u32 s61, s61, {QF}
    s_add_u32 s62, s61, 0x10000
    s_lshl_b32 s63, s60, 11
    s_add_u32 s63, s63, {KV}
    s_add_u32 s64, s63, 0x20000
    s_mov_b32 s65, {QSCALE}
    v_lshlrev_b32 v1, 4, v0
    v_and_b32 v2, 0x33, v0
    v_bfe_u32 v3, v0, 2, 1
    v_lshl_or_b32 v2, v3, 3, v2
    v_bfe_u32 v3, v0, 3, 1
    v_lshl_or_b32 v2, v3, 2, v2
    v_lshlrev_b32 v2, 4, v2
    v_and_b32 v3, 15, v0
    v_lshlrev_b32 v3, 4, v3
    v_lshrrev_b32 v4, 5, v0
    v_lshl_add_u32 v3, v4, 8, v3
    v_bfe_u32 v4, v0, 4, 1
    v_lshl_add_u32 v3, v4, 17, v3
    """)
    for r in range(16): a(f"v_mul_f32 v{16+r}, s65, v{16+r}")
    for r in range(8): a(f"v_cvt_pk_bf16_f32 v{64+r}, v{16+2*r}, v{17+2*r}")
    a(f"buffer_store_dwordx4 v[64:67], v1, {R_WS}, s61 offen {st_mod}")
    a(f"buffer_store_dwordx4 v[68:71], v1, {R_WS}, s62 offen {st_mod}")
    for r in range(8): a(f"v_cvt_pk_bf16_f32 v{72+r}, v{32+2*r}, v{33+2*r}")
    a(f"buffer_store_dwordx4 v[72:75], v2, {R_WS}, s63 offen {st_mod}")
    a(f"buffer_store_dwordx4 v[76:79], v2, {R_WS}, s64 offen {st_mod}")
    for r in range(8): a(f"v_cvt_pk_bf16_f32 v{80+r}, v{48+2*r}, v{49+2*r}")
    a(f"buffer_store_dwordx4 v[80:83], v3, {R_WS}, s63 offen offset:1024 {st_mod}")
    a(f"buffer_store_dwordx4 v[84:87], v3, {R_WS}, s63 offen offset:1536 {st_mod}")

def p1_side(a, st_mod=""):
    a("s_waitcnt vmcnt(6)")
    for j in range(4): a(f"v_or_b32 v{116+j}, v{108+2*j}, v{109+2*j}")
    a(f"v_lshlrev_b32 v1, 4, v0\nbuffer_store_dwordx4 v[116:119], v1, {R_WS}, s55 offen {st_mod}")
    a("s_mov_b32 s66, 0xffff0000")
    for k in range(4):
        a(f"v_lshlrev_b32 v{16+2*k}, 16, v{104+k}\nv_and_b32 v{17+2*k}, s66, v{104+k}")
    for r in range(2):
        for k in range(4):
            x = 96 + 4 * r + k
            a(f"""
            v_lshlrev_b32 v26, 16, v{x}
            v_and_b32 v27, s66, v{x}
            v_mul_f32 v26, v26, v{16+2*k}
            v_mul_f32 v27, v27, v{17+2*k}
            v_cvt_pk_bf16_f32 v26, v26, v27
            v_and_b32 v27, s66, v26
            v_lshlrev_b32 v26, 16, v26
            """)
            if k == 0: a(f"v_add_f32 v{24+r}, v26, v27")
            else: a(f"v_add_f32 v{24+r}, v{24+r}, v26\nv_add_f32 v{24+r}, v{24+r}, v27")
    for d in ("row_shr:1 row_mask:0xf bank_mask:0xf bound_ctrl:0", "row_shr:2 row_mask:0xf bank_mask:0xf bound_ctrl:0",
              "row_shr:4 row_mask:0xf bank_mask:0xf bound_ctrl:0", "row_shr:8 row_mask:0xf bank_mask:0xf bound_ctrl:0",
              "row_bcast:15 row_mask:0xa bank_mask:0xf", "row_bcast:31 row_mask:0xc bank_mask:0xf"):
        for r in range(2): a(f"v_add_f32_dpp v{24+r}, v{24+r}, v{24+r} {d}")
    a(f"""
    v_cvt_pk_bf16_f32 v26, v24, v25
    s_mov_b32 s67, {LOG2E}
    v_lshlrev_b32 v24, 16, v26
    v_and_b32 v25, s66, v26
    v_mul_f32 v24, s67, v24
    v_mul_f32 v25, s67, v25
    v_exp_f32 v24, -v24
    v_exp_f32 v25, -v25
    v_add_f32 v24, 1.0, v24
    v_add_f32 v25, 1.0, v25
    v_rcp_f32 v24, v24
    v_rcp_f32 v25, v25
    s_lshl_b32 s52, s52, 2
    s_add_u32 s52, s52, {GW}
    v_cvt_pk_bf16_f32 v26, v24, v25
    v_mov_b32 v1, 0
    v_lshlrev_b32 v24, 16, v26
    v_and_b32 v25, s66, v26
    s_mov_b32 exec_lo, 0
    s_mov_b32 exec_hi, 0x80000000
    buffer_store_dwordx2 v[24:25], v1, {R_WS}, s52 offen {st_mod}
    s_mov_b64 exec, -1
    """)

def cmul(a, d, x, w, t):
    a(f"v_pk_mul_f32 {vr(t,2)}, {vr(x,2)}, {vr(w,2)} op_sel:[0,0] op_sel_hi:[1,0]")
    a(f"v_pk_fma_f32 {vr(d,2)}, {vr(x,2)}, {vr(w,2)}, {vr(t,2)} op_sel:[1,1,0] op_sel_hi:[0,1,1] neg_lo:[1,0,0]")

def p1_aux(a, st_mod=""):
    vm = VM()
    a(f"""
    s_and_b32 s51, {SW}, 3
    s_lshr_b32 s52, s51, 1
    s_and_b32 s53, s51, 1
    s_lshl_b32 s54, {SX}, 6
    s_lshl_b32 s55, {SJ}, 1
    s_add_u32 s54, s54, s55
    s_add_u32 s54, s54, s52
    s_lshl_b32 s55, s54, 8
    s_lshl_b32 s56, s53, 7
    s_add_u32 s55, s55, s56
    v_lshlrev_b32 v1, 1, v0
    v_add_u32 v1, s55, v1
    s_lshl_b32 s56, s54, 1
    v_mov_b32 v2, s56
    global_load_short_d16_hi v10, v1, {S_LOGA}
    global_load_short_d16_hi v11, v1, {S_AIM}
    global_load_short_d16_hi v12, v1, {S_CR}
    global_load_short_d16_hi v13, v1, {S_CI}
    global_load_short_d16_hi v14, v2, {S_LDT}
    global_load_short_d16_hi v15, v2, {S_DSK}
    v_lshrrev_b32 v1, 3, v0
    v_lshrrev_b32 v2, 4, v0
    s_lshl_b32 s56, s53, 2
    v_add_u32 v3, s56, v2
    v_and_b32 v5, 7, v0
    v_xor_b32 v3, v3, v5
    v_lshlrev_b32 v3, 4, v3
    v_lshl_add_u32 v4, v1, 10, v3
    v_and_b32 v2, 1, v2
    v_lshlrev_b32 v2, 2, v2
    v_xor_b32 v2, v2, v5
    v_lshlrev_b32 v2, 4, v2
    v_mov_b32 v3, 0xc00
    v_mad_u32_u24 v5, v1, v3, v2
    s_lshl_b32 s57, {SJ}, 16
    s_lshl_b32 s58, s51, 13
    s_add_u32 s57, s57, s58
    s_mul_i32 s58, s51, {16*3072}
    s_lshl_b32 s59, {SX}, 7
    s_add_u32 s58, s58, s59
    s_lshl_b32 s60, s51, 10
    s_lshl_b32 s61, s51, 11
    """)
    vm.add("par", 6)
    def dma(t):
        slot = t % 3
        a(f"""
        s_add_u32 s62, {SX}, {t}
        s_and_b32 s62, s62, 7
        s_lshl_b32 s63, s62, 7
        s_add_u32 s63, s63, s57
        s_mul_i32 s62, s62, {64*3072}
        s_add_u32 s62, s62, s58
        """)
        for i in range(2):
            a(f"s_add_u32 m0, s60, {XR + slot*8192 + i*4096}")
            if i: a("s_add_u32 s63, s63, 0x8000")
            a(f"buffer_load_dwordx4 v4, {R_X}, s63 offen lds")
        for ty in range(3):
            for i in range(2):
                a(f"s_add_u32 m0, s61, {WR + slot*24576 + ty*8192 + i*1024}")
                a(f"s_add_u32 s64, s62, {ty*1024 + i*8*3072}")
                a(f"buffer_load_dwordx4 v5, {R_W}, s64 offen lds")
        vm.add(f"s{t}", 8)
    for t in range(3): dma(t)
    a(f"""
    s_mul_i32 s65, s51, {TBS}
    s_add_u32 s65, s65, {TB}
    v_lshlrev_b32 v6, 2, v0
    v_add_u32 v6, s65, v6
    v_and_b32 v1, 31, v0
    v_lshrrev_b32 v2, 5, v0
    v_lshlrev_b32 v2, 4, v2
    v_add_u32 v2, s65, v2
    v_mov_b32 v3, 272
    v_mad_u32_u24 v7, v1, v3, v2
    v_bfe_u32 v8, v0, 3, 1
    v_and_b32 v9, 3, v0
    v_lshl_add_u32 v8, v8, 2, v9
    v_cvt_f32_u32 v8, v8
    v_bfe_u32 v9, v0, 4, 1
    v_bfe_u32 v16, v0, 2, 1
    v_lshl_add_u32 v9, v9, 1, v16
    v_min_u32 v16, 2, v9
    v_sub_u32 v16, 0, v16
    v_ldexp_f32 v16, v8, v16
    v_rndne_f32 v16, v16
    v_cvt_u32_f32 v16, v16
    v_lshlrev_b32 v17, 3, v9
    s_mov_b32 s66, 0x100d0800
    v_lshrrev_b32 v17, v17, s66
    v_and_b32 v17, 0xff, v17
    v_add_u32 v16, v16, v17
    v_mul_f32 v8, 0.125, v8
    v_rndne_f32 v8, v8
    v_cvt_u32_f32 v8, v8
    v_lshl_add_u32 v8, v9, 1, v8
    v_add_u32 v8, 19, v8
    s_cmp_eq_u32 s53, 0
    s_cselect_b64 vcc, -1, 0
    s_cselect_b32 s70, 0, 0xaaaaaaaa
    s_mov_b32 s71, s70
    v_cndmask_b32 v9, v8, v16, vcc
    v_cndmask_b32 v8, v16, v8, vcc
    v_mad_u32_u24 v9, v9, v3, v2
    v_mad_u32_u24 v8, v8, v3, v2
    v_mov_b32 v16, 0
    v_mov_b32 v17, 0
    v_mov_b32 v18, 0
    v_mov_b32 v19, 0
    v_min_u32 v1, 32, v0
    s_mul_i32 s66, s51, {US}
    s_add_u32 s66, s66, {UB}
    v_lshl_add_u32 v1, v1, 4, s66
    ds_write_b128 v1, v[16:19]
    s_mul_i32 s67, s52, {KXS}
    s_add_u32 s67, s67, {KX}
    v_mov_b32 v1, s67
    ds_write_b128 v1, v[16:19]
    """)
    vm.wait(a, "par")
    a(f"""
    s_mov_b32 s66, {LOG2E}
    s_mov_b32 s68, 0xffff0000
    s_mov_b32 s69, {INV2PI}
    v_mul_f32 v14, s66, v14
    v_mul_f32 v10, s66, v10
    v_exp_f32 v14, v14
    v_exp_f32 v10, v10
    s_mov_b32 s72, 0x41000000
    s_mov_b32 s73, 0x43800000
    v_cvt_pk_bf16_f32 v1, v14, v10
    v_lshlrev_b32 v14, 16, v1
    v_and_b32 v10, s68, v1
    v_mul_f32 v10, v10, v14
    v_mul_f32 v11, v11, v14
    v_mul_f32 v26, v12, v14
    v_mul_f32 v27, v13, v14
    v_mul_f32 v10, s66, v10
    v_mul_f32 v11, s69, v11
    v_add_f32 v26, v26, v26
    v_add_f32 v27, v27, v27
    """)
    for d, sc in ((20, None), (22, "s72"), (24, "s73")):
        if sc: a(f"v_mul_f32 v1, {sc}, v10\nv_mul_f32 v2, {sc}, v11\nv_exp_f32 v1, -v1\nv_fract_f32 v2, v2")
        else: a("v_exp_f32 v1, -v10\nv_fract_f32 v2, v11")
        a(f"v_cos_f32 v{d}, v2\nv_sin_f32 v{d+1}, v2\nv_mul_f32 v{d}, v1, v{d}\nv_mul_f32 v{d+1}, v1, v{d+1}")
    def lrow(b):
        cur = 28 + 2 * (b & 1)
        if b == 0:
            a("v_mov_b32 v3, 0x3f80\nds_write_b32 v6, v3")
            return
        if b == 1: a(f"v_mov_b32 v{cur}, v22\nv_mov_b32 v{cur+1}, v23")
        else: cmul(a, cur, 28 + 2 * ((b - 1) & 1), 22, 32)
        a(f"v_cvt_pk_bf16_f32 v{34 + (b & 1)}, v{cur}, v{cur+1}\nds_write_b32 v6, v{34 + (b & 1)} offset:{272*b}")
    for b in range(0, 6): lrow(b)
    lstamp(a, 18); vm.wait(a, "s0"); a("s_barrier")
    a(f"""
    v_lshrrev_b32 v1, 4, v0
    v_bfe_u32 v2, v0, 2, 2
    v_lshl_add_u32 v2, v1, 3, v2
    v_bfe_u32 v3, v0, 1, 1
    s_lshl_b32 s66, s51, 1
    v_add_u32 v3, s66, v3
    v_bfe_u32 v36, v2, 1, 3
    v_xor_b32 v36, v36, v3
    v_and_b32 v37, 1, v0
    v_lshlrev_b32 v37, 3, v37
    v_lshl_add_u32 v37, v2, 7, v37
    v_xor_b32 v38, 2, v36
    v_lshl_add_u32 v36, v36, 4, v37
    v_lshl_add_u32 v37, v38, 4, v37
    ds_read_b64_tr_b16 v[40:41], v36 offset:{XR}
    ds_read_b64_tr_b16 v[42:43], v37 offset:{XR + 512}
    ds_read_b64_tr_b16 v[44:45], v36 offset:{XR + 4096}
    ds_read_b64_tr_b16 v[46:47], v37 offset:{XR + 4096 + 512}
    v_bfe_u32 v2, v0, 1, 3
    v_lshlrev_b32 v2, 13, v2
    v_and_b32 v3, 1, v0
    v_lshl_add_u32 v2, v3, 6, v2
    v_lshl_add_u32 v2, v1, 4, v2
    s_lshl_b32 s66, {SX}, 18
    s_lshl_b32 s69, s51, 16
    s_add_u32 s66, s66, s69
    s_lshl_b32 s69, {SJ}, 8
    s_add_u32 s66, s66, s69
    s_add_u32 s66, s66, {XT}
    s_waitcnt lgkmcnt(0)
    buffer_store_dwordx4 v[40:43], v2, {R_WS}, s66 offen {st_mod}
    buffer_store_dwordx4 v[44:47], v2, {R_WS}, s66 offen offset:128 {st_mod}
    """)
    vm.add("xt", 2)
    for b in range(6, 20): lrow(b)
    lstamp(a, 19); vm.wait(a, "s1"); a("s_barrier")
    dma(3)
    for b in range(20, 32): lrow(b)
    LF, HK, HS, AK, AS = 64, 96, 128, 160, 176
    a("s_waitcnt lgkmcnt(0)")
    for ks in range(8): a(f"ds_read_b128 {vr(LF+4*ks,4)}, v7 offset:{32*ks}")
    lstamp(a, 20); vm.wait(a, "s2"); a("s_waitcnt lgkmcnt(0)\ns_barrier")
    dma(4)
    def hw(reg, row):
        t = 34 + (row & 1)
        a(f"v_cvt_pk_bf16_f32 v{t}, v{reg}, -v{reg+1}\nds_write_b32 v6, v{t} offset:{272*row}")
    H = lambda p: 40 + 2 * p
    a(f"v_mov_b32 v{H(0)}, v26\nv_mov_b32 v{H(0)+1}, v27")
    hw(H(0), 0)
    for p in range(1, 9):
        cmul(a, H(p), H(p - 1), 20, 32)
        if p < 8: hw(H(p), p)
    row = 8
    for grp in ((0, 2, 4, 6, 8), (0, 4, 8)):
        for p in grp:
            cmul(a, H(p), H(p), 24, 32); hw(H(p), row); row += 1
    lstamp(a, 21); vm.wait(a, "s3"); a("s_barrier")
    dma(5)
    for grp in ((0, 4, 8), (0, 8), (0, 8), (0, 8), (0, 8)):
        for p in grp:
            cmul(a, H(p), H(p), 24, 32); hw(H(p), row); row += 1
    assert row == 27
    a("s_waitcnt lgkmcnt(0)")
    for ks in range(8): a(f"ds_read_b128 {vr(HS+4*ks,4)}, v8 offset:{32*ks}")
    for ks in range(7): a(f"ds_read_b128 {vr(HK+4*ks,4)}, v9 offset:{32*ks}")
    a("s_waitcnt lgkmcnt(7)")
    a(f"ds_read_b128 {vr(HK+28,4)}, v9 offset:{32*7}")
    for ks in range(8):
        a(f"v_mfma_f32_32x32x16_bf16 {vr(AS,16)}, {vr(HS+4*ks,4)}, {vr(LF+4*ks,4)}, {'0' if ks == 0 else vr(AS,16)}")
    a("s_waitcnt lgkmcnt(0)")
    for ks in range(8):
        a(f"v_mfma_f32_32x32x16_bf16 {vr(AK,16)}, {vr(HK+4*ks,4)}, {vr(LF+4*ks,4)}, {'0' if ks == 0 else vr(AK,16)}")
    a(f"v_lshlrev_b32 v1, 4, v0\nv_add_u32 v2, s65, v1\ns_xor_b32 s66, s51, 1\ns_mul_i32 s66, s66, {TBS}\ns_add_u32 s66, s66, {TB}\nv_add_u32 v3, s66, v1")
    for i in range(4): a(f"ds_write_b128 v2, {vr(AS+4*i,4)} offset:{1024*i}")
    lstamp(a, 22); vm.wait(a, "s4"); a("s_waitcnt lgkmcnt(0)\ns_barrier")
    for i in range(4): a(f"ds_read_b128 {vr(AS+4*i,4)}, v3 offset:{1024*i}")
    dma(6)
    a(f"""
    s_lshl_b32 s66, s53, 11
    s_add_u32 s66, s66, s67
    v_lshrrev_b32 v2, 5, v0
    v_and_b32 v3, 31, v0
    v_lshlrev_b32 v3, 4, v3
    v_lshl_add_u32 v2, v2, 9, v3
    v_add_u32 v2, s66, v2
    s_waitcnt lgkmcnt(0)
    """)
    for i in range(16): a(f"v_add_f32 v{AK+i}, v{AK+i}, v{AS+i}")
    for rg in range(2): a(f"v_cndmask_b32 v{AK+8*rg+4}, v{AK+8*rg+4}, v{AK+8*rg+5}, s[70:71]")
    for i in range(8): a(f"v_cvt_pk_bf16_f32 v{40+i}, v{AK+2*i}, v{AK+2*i+1}")
    for rg in range(2): a(f"ds_write_b128 v2, {vr(40+4*rg,4)} offset:{16 + 1024*rg}")
    lstamp(a, 23); vm.wait(a, "s5"); a("s_waitcnt lgkmcnt(0)\ns_barrier")
    a(f"""
    v_add_u32 v2, s66, v1
    ds_read_b64 v[40:41], v2 offset:8
    ds_read_b128 v[42:45], v2 offset:16
    ds_read_b64 v[46:47], v2 offset:{1024+8}
    ds_read_b128 v[48:51], v2 offset:{1024+16}
    """)
    dma(7)
    a(f"""
    s_mul_i32 s66, s52, {RDS}
    s_add_u32 s66, s66, {RB}
    v_bfe_u32 v2, v0, 2, 2
    v_mov_b32 v3, {RE}
    v_mul_u32_u24 v2, v2, v3
    v_and_b32 v3, 3, v0
    v_min_u32 v3, 2, v3
    v_lshl_add_u32 v2, v3, 4, v2
    v_add_u32 v2, s66, v2
    ds_write_b128 v2, v[16:19] offset:4096
    s_lshl_b32 s69, s53, 11
    s_sub_u32 s66, s66, s69
    s_add_u32 s66, s66, {255*16 - 1024}
    v_sub_u32 v2, s66, v1
    s_mov_b32 s69, 0xffff
    s_waitcnt lgkmcnt(1)
    """)
    def expand(q):
        w = lambda i: 40 + 6 * q + 2 + i
        for e in range(4):
            o = 64 + 4 * e
            for i in range(4):
                hi = 3 - i - (0 if e >= 2 else 1)
                if e & 1: a(f"v_alignbit_b32 v{o+i}, v{w(hi)}, v{w(hi)}, 16")
                else: a(f"v_bfi_b32 v{o+i}, s69, v{w(hi)}, v{w(hi-1)}")
            a(f"ds_write_b128 v2, {vr(o,4)} offset:{e*RE + 1024*(1-q)}")
    expand(0)
    lstamp(a, 24); vm.wait(a, "s6"); a("s_barrier")
    expand(1)
    lstamp(a, 25); vm.wait(a, "s7"); a("s_barrier")
    return vm

def u_load(a, ld_mod=""):
    a(f"""
    s_lshl_b32 s66, {SX}, 18
    s_lshl_b32 s69, {SJ}, 13
    s_add_u32 s66, s66, s69
    s_lshl_b32 s69, s51, 11
    s_add_u32 s66, s66, s69
    s_add_u32 s66, s66, {XT}
    v_lshlrev_b32 v1, 4, v0
    buffer_load_dwordx4 v[40:43], v1, {R_WS}, s66 offen {ld_mod}
    buffer_load_dwordx4 v[44:47], v1, {R_WS}, s66 offen offset:1024 {ld_mod}
    v_lshrrev_b32 v2, 3, v0
    v_lshlrev_b32 v2, 6, v2
    v_and_b32 v3, 3, v0
    v_lshl_add_u32 v2, v3, 4, v2
    v_bfe_u32 v3, v0, 2, 1
    v_mul_u32_u24 v3, {UD}, v3
    s_lshl_b32 s69, s51, 10
    s_add_u32 s69, s69, {UB + 512}
    v_add3_u32 v2, v2, v3, s69
    """)

def u_store(a):
    for q in range(2):
        a(f"ds_write_b128 v2, {vr(40+4*q,4)} offset:{512*q}")
        a(f"ds_write_b64 v2, {vr(40+4*q,2)} offset:{512*q + US + 8}")
        a(f"ds_write_b64 v2, {vr(42+4*q,2)} offset:{512*q + US + 16}")

def conv(a, tag, st_mod=""):
    a(f"""
    s_mul_i32 s66, s52, {RDS}
    s_add_u32 s66, s66, {RB + 4128 - 64*7 - 512*7}
    v_and_b32 v1, 3, v0
    v_mul_u32_u24 v1, {RE}, v1
    v_lshrrev_b32 v2, 4, v0
    v_bfe_u32 v3, v0, 2, 2
    v_add_u32 v3, v3, v2
    v_lshlrev_b32 v3, 4, v3
    v_sub_u32 v1, v1, v3
    v_add_u32 v4, s66, v1
    s_mul_i32 s66, s52, {UD}
    s_add_u32 s69, s66, {UB + US + 512 + 48 - 64*7}
    v_bfe_u32 v1, v0, 1, 3
    v_lshlrev_b32 v1, 6, v1
    v_lshlrev_b32 v3, 4, v2
    v_sub_u32 v5, v1, v3
    v_add_u32 v1, v1, v3
    v_and_b32 v3, 1, v0
    v_lshl_add_u32 v7, v3, 3, v1
    v_mul_u32_u24 v3, {US}, v3
    v_sub_u32 v5, v5, v3
    v_add_u32 v5, s69, v5
    s_add_u32 s66, s66, {UB + 512}
    v_add_u32 v6, s66, v7
    s_lshl_b32 s66, s54, 12
    s_add_u32 s66, s66, {BT}
    s_cmp_eq_u32 s53, 0
    s_cbranch_scc0 L_{tag}_set1
    """)
    ACC = 16; FA = (64, 128); FB = (96, 160)
    for sidx, cs in enumerate(((0, 3, 4, 7), (1, 2, 5, 6))):
        if sidx: a.reset(); a(f"L_{tag}_set1:")
        n = max(cs) + 1
        def rd_list(rho):
            s = rho & 1; l = []
            for i in range(n):
                l.append(f"ds_read_b128 {vr(FA[s]+4*i,4)}, v4 offset:{512*(7-i) + 64*(7-rho)}")
                l.append(f"ds_read_b128 {vr(FB[s]+4*i,4)}, v5 offset:{512*i + 64*(7-rho)}")
            return l
        for r in rd_list(0)[:15]: a(r)
        pend = rd_list(0)[15:]
        for rho in range(8):
            s = rho & 1
            if pend:
                a("s_waitcnt lgkmcnt(8)")
                for r in pend: a(r)
            a("s_waitcnt lgkmcnt(0)")
            nxt = rd_list(rho + 1) if rho < 7 else []
            pend = nxt[15:]; nxt = nxt[:15]
            seen = set()
            mms = [(ci, sg, c - sg) for sg in range(n) for ci, c in enumerate(cs) if c >= sg]
            for k, (ci, sg, dl) in enumerate(mms):
                c0 = "0" if (rho == 0 and ci not in seen) else vr(ACC + 4 * ci, 4)
                seen.add(ci)
                a(f"v_mfma_f32_16x16x32_bf16 {vr(ACC+4*ci,4)}, {vr(FA[s]+4*sg,4)}, {vr(FB[s]+4*dl,4)}, {c0}")
                if k < len(nxt): a(nxt[k])
        for ci, c in enumerate(cs): a(f"ds_read_b64 {vr(40+2*ci,2)}, v6 offset:{512*c}")
        a("s_mov_b32 s68, 0xffff0000\ns_waitcnt lgkmcnt(0)")
        for ci, c in enumerate(cs):
            for k in range(2):
                a(f"""
                v_lshlrev_b32 v48, 16, v{40+2*ci+k}
                v_and_b32 v49, s68, v{40+2*ci+k}
                v_fmac_f32 v{ACC+4*ci+2*k}, v48, v15
                v_fmac_f32 v{ACC+4*ci+2*k+1}, v49, v15
                v_cvt_pk_bf16_f32 v{50+2*ci+k}, v{ACC+4*ci+2*k}, v{ACC+4*ci+2*k+1}
                """)
            a(f"buffer_store_dwordx2 {vr(50+2*ci,2)}, v7, {R_WS}, s66 offen offset:{512*c} {st_mod}")
        if sidx == 0: a(f"s_branch L_{tag}_done")
    a.reset(); a(f"L_{tag}_done:")

AQ, AKS, AV1, AV2, AS_, AO = 4, (8, 12), (16, 24), (20, 28), (32, 48), 64

def att_setup(a):
    a(f"""
    s_lshr_b32 s74, {SJ}, 3
    s_lshl_b32 s75, {SX}, 2
    s_add_u32 s74, s74, s75
    s_and_b32 s75, {SJ}, 7
    s_lshl_b32 s76, s75, 3
    s_add_u32 s76, s76, {SW}
    s_lshl_b32 s77, s74, 6
    s_add_u32 s77, s77, s76
    s_lshl_b32 s77, s77, 10
    s_add_u32 s77, s77, {QF}
    s_lshl_b32 s78, s74, 17
    s_lshl_b32 s79, {SW}, 10
    s_add_u32 s78, s78, s79
    s_add_u32 s78, s78, {KV}
    v_lshlrev_b32 v1, 4, v0
    """)

def att_dma(a, rounds, ld_mod=""):
    for r in rounds:
        a(f"s_add_u32 m0, s79, {8192*r}\ns_add_u32 s80, s78, {8192*r}\nbuffer_load_dwordx4 v1, {R_WS}, s80 offen {ld_mod} lds")

def att_regs(a):
    a(f"""
    v_lshrrev_b32 v2, 5, v0
    v_lshlrev_b32 v2, 8, v2
    v_and_b32 v3, 15, v0
    v_lshl_add_u32 v2, v3, 4, v2
    v_add_u32 v2, 1024, v2
    v_add_u32 v80, 0x10000, v1
    v_add_u32 v81, 0x10000, v2
    v_mov_b32 v3, 0xdddddddd
    s_mov_b32 s82, 0xffff
    s_mov_b32 s83, 0xffff
    """)
    if OPT.get("ones") == "few":
        a("v_and_b32 v8, 27, v0\nv_cmp_eq_u32 vcc, 16, v8\nv_mov_b32 v9, 0x3f803f80\nv_cndmask_b32 v16, 0, v9, vcc")
        for r in range(17, 32): a(f"v_mov_b32 v{r}, v16")
    else:
        for r in range(16, 32): a(f"v_mov_b32 v{r}, 0x3f803f80")
    for r in range(16): a(f"v_mov_b32 v{AO+r}, 0")

def att_main(a0, hooks, prios):
    def a(txt):
        if OPT.get("nopv") and txt.startswith("v_smfmac"): return
        if OPT.get("dense") and txt.startswith("v_smfmac"):
            import re
            m = re.match(r"v_smfmac\S+ (\S+), (\S+), v\[(\d+):\d+\], v3", txt); b = int(m.group(3)); p = 84 + (b & 8) // 2
            for k in range(4): a0(f"v_cvt_pk_bf16_f32 v{p+k}, v{b+2*k}, v{b+2*k+1}")
            a0(f"s_nop 1\nv_mfma_f32_32x32x16_bf16 {m.group(1)}, {m.group(2)}, v[{p}:{p+3}], {m.group(1)}"); return
        if OPT.get("agpr") and txt.startswith("v_smfmac"): txt = txt.replace("v[64:79]", "a[0:15]")
        if OPT.get("halfpv") and txt.startswith("v_smfmac") and ("v[20:23]" in txt or "v[28:31]" in txt): return
        if OPT.get("noqk") and txt.startswith("v_mfma"): return
        if OPT.get("nods") and txt.startswith(("ds_read", "s_mov_b64 exec")): return
        if OPT.get("noexp") and txt.startswith("v_exp"): txt = txt.replace("v_exp_f32", "v_mov_b32") + "\n" + txt.replace("v_exp_f32", "v_mov_b32")
        a0(txt)
    def rdk(t):
        b, o = (1, 2048 * t) if t < 32 else (80, 2048 * (t - 32))
        a(f"ds_read_b128 {vr(AKS[t&1],4)}, v{b} offset:{o}")
    def rdv(t):
        b, o = (2, 2048 * t) if t < 31 else (81, 2048 * (t - 32)) if t >= 32 else (2, None)
        if o is None:
            b, o = 2, 2048 * t
        a("s_mov_b64 exec, s[82:83]")
        a(f"ds_read_b128 {vr(AV1[t&1],4)}, v{b} offset:{o}")
        a(f"ds_read_b128 {vr(AV2[t&1],4)}, v{b} offset:{o+512}")
        a("s_mov_b64 exec, -1")
    rdk(0); rdk(1); rdv(0)
    a("s_waitcnt lgkmcnt(3)")
    a(f"v_mfma_f32_32x32x16_bf16 {vr(AS_[0],16)}, {vr(AKS[0],4)}, {vr(AQ,4)}, 0")
    for t in range(64):
        c, n = AS_[t & 1], AS_[(t + 1) & 1]
        ex = lambda i0, i1: [a(f"v_exp_f32 v{c+i}, v{c+i}") for i in range(i0, i1)]
        if t in prios: a(f"s_setprio {prios[t]}")
        ex(0, 2)
        if t: a(f"v_smfmac_f32_32x32x32_bf16 {vr(AO,16)}, {vr(AV2[(t-1)&1],4)}, {vr(n+8,8)}, v3")
        if t in hooks: hooks[t]()
        k = 0
        if t + 1 < 64: rdv(t + 1); k += 2
        if t + 2 < 64: rdk(t + 2); k += 1
        ex(2, 5)
        a(f"s_waitcnt lgkmcnt({k})")
        if t + 1 < 64: a(f"v_mfma_f32_32x32x16_bf16 {vr(n,16)}, {vr(AKS[(t+1)&1],4)}, {vr(AQ,4)}, 0")
        ex(5, 10)
        a(f"v_smfmac_f32_32x32x32_bf16 {vr(AO,16)}, {vr(AV1[t&1],4)}, {vr(c,8)}, v3")
        ex(10, 16)
    a(f"v_smfmac_f32_32x32x32_bf16 {vr(AO,16)}, {vr(AV2[1],4)}, {vr(AS_[1]+8,8)}, v3")

def att_main_nq(a, nq, nt, hooks, prios, QB=84, OB=100, dense=False):
    def rdk(t):
        b, o = (1, 2048 * t) if t < 32 else (80, 2048 * (t - 32))
        a(f"ds_read_b128 {vr(AKS[t&1],4)}, v{b} offset:{o}")
    def rdv(t):
        b, o = (2, 2048 * t) if t < 32 else (81, 2048 * (t - 32))
        a("s_mov_b64 exec, s[82:83]")
        a(f"ds_read_b128 {vr(AV1[t&1],4)}, v{b} offset:{o}")
        a(f"ds_read_b128 {vr(AV2[t&1],4)}, v{b} offset:{o+512}")
        a("s_mov_b64 exec, -1")
    Q = lambda i: vr(QB + 4 * i, 4); O = lambda i: vr(OB + 16 * i, 16)
    rdk(0); rdv(0)
    a("s_waitcnt lgkmcnt(2)")
    a(f"v_mfma_f32_32x32x16_bf16 {vr(AS_[0],16)}, {vr(AKS[0],4)}, {Q(0)}, 0")
    a("s_waitcnt lgkmcnt(0)")
    nv = nq * nt
    for v in range(nv):
        t, i = divmod(v, nq)
        c, n = AS_[v & 1], AS_[(v + 1) & 1]
        ex = lambda i0, i1: [a(f"v_exp_f32 v{c+k}, v{c+k}") for k in range(i0, i1)]
        if v in prios: a(f"s_setprio {prios[v]}")
        ex(0, 2)
        if v:
            tp, ip = divmod(v - 1, nq)
            a(f"v_smfmac_f32_32x32x32_bf16 {O(ip)}, {vr(AV2[tp&1],4)}, {vr(n+8,8)}, v3")
        if i == 0:
            if t in hooks: hooks[t]()
            if t + 1 < nt: rdk(t + 1); rdv(t + 1)
        ex(2, 5)
        if v + 1 < nv:
            tn, in_ = divmod(v + 1, nq)
            if in_ == 0: a("s_waitcnt lgkmcnt(0)")
            a(f"v_mfma_f32_32x32x16_bf16 {vr(n,16)}, {vr(AKS[tn&1],4)}, {Q(in_)}, 0")
        ex(5, 10)
        a(f"v_smfmac_f32_32x32x32_bf16 {O(i)}, {vr(AV1[t&1],4)}, {vr(c,8)}, v3")
        ex(10, 16)
    a(f"v_smfmac_f32_32x32x32_bf16 {O(nq-1)}, {vr(AV2[(nt-1)&1],4)}, {vr(AS_[(nv-1)&1]+8,8)}, v3")

def att_finish(a, tag, st_mod=""):
    S = AS_[0]; NM = AS_[1]
    a(f"""
    s_lshl_b32 s80, s76, 5
    s_add_u32 s80, s80, s74
    s_lshl_b32 s80, s80, 10
    s_add_u32 s80, s80, {OF}
    s_mov_b32 s84, 0x2b800000
    s_mov_b32 s85, 0x5d800000
    v_fma_f32 v8, v{AO}, 0, v{AO+8}
    """)
    for r in range(1, 8): a(f"v_fma_f32 v8, v{AO+r}, 0, v8")
    a(f"""
    v_cmp_nge_f32 vcc, v8, s84
    v_cmp_nle_f32 s[86:87], v8, s85
    s_or_b64 vcc, vcc, s[86:87]
    s_cbranch_vccnz L_{tag}_slow
    L_{tag}_norm:
    v_rcp_f32 v8, v{AO+8}
    """)
    for r in range(8): a(f"v_mul_f32 v{AO+r}, v8, v{AO+r}")
    for r in range(4): a(f"v_cvt_pk_bf16_f32 v{12+r}, v{AO+2*r}, v{AO+2*r+1}")
    a(f"buffer_store_dwordx4 v[12:15], v1, {R_WS}, s80 offen {st_mod}")

def att_slow(a, tag):
    S = AS_[0]; NM = AS_[1]
    a.reset()
    a(f"""
    L_{tag}_slow:
    v_mov_b32 v82, v1
    v_mov_b32 v84, 0xff800000
    s_mov_b32 s84, 64
    L_{tag}_slow1:
    ds_read_b128 {vr(AKS[0],4)}, v82
    v_add_u32 v82, 2048, v82
    s_waitcnt lgkmcnt(0)
    v_mfma_f32_32x32x16_bf16 {vr(S,16)}, {vr(AKS[0],4)}, {vr(AQ,4)}, 0
    """)
    for r in range(8): a(f"v_max3_f32 v84, v{S+2*r}, v{S+2*r+1}, v84")
    a(f"""
    s_sub_u32 s84, s84, 1
    s_cmp_lg_u32 s84, 0
    s_cbranch_scc1 L_{tag}_slow1
    v_mov_b32 v85, v84
    v_permlane32_swap_b32 v84, v85
    v_max_f32 v84, v84, v85
    """)
    for r in range(16): a(f"v_sub_f32 v{NM+r}, 0, v84\nv_mov_b32 v{AO+r}, 0")
    a(f"""
    v_mov_b32 v82, v1
    v_mov_b32 v83, v2
    s_mov_b32 s84, 64
    L_{tag}_slow2:
    ds_read_b128 {vr(AKS[0],4)}, v82
    s_mov_b64 exec, s[82:83]
    ds_read_b128 {vr(AV1[0],4)}, v83
    ds_read_b128 {vr(AV2[0],4)}, v83 offset:512
    s_mov_b64 exec, -1
    v_add_u32 v82, 2048, v82
    v_add_u32 v83, 2048, v83
    s_waitcnt lgkmcnt(0)
    v_mfma_f32_32x32x16_bf16 {vr(S,16)}, {vr(AKS[0],4)}, {vr(AQ,4)}, {vr(NM,16)}
    """)
    for r in range(16): a(f"v_exp_f32 v{S+r}, v{S+r}")
    a(f"""
    v_smfmac_f32_32x32x32_bf16 {vr(AO,16)}, {vr(AV1[0],4)}, {vr(S,8)}, v3
    v_smfmac_f32_32x32x32_bf16 {vr(AO,16)}, {vr(AV2[0],4)}, {vr(S+8,8)}, v3
    s_sub_u32 s84, s84, 1
    s_cmp_lg_u32 s84, 0
    s_cbranch_scc1 L_{tag}_slow2
    s_nop 15
    s_branch L_{tag}_norm
    """)

PW, PB, PG = 96, 160, 168

def out_side_loads(a, ld_mod=""):
    a(f"""
    s_lshl_b32 s88, s75, 3
    s_lshr_b32 s89, s74, 2
    s_add_u32 s88, s88, s89
    s_and_b32 s89, s74, 3
    s_lshl_b32 s89, s89, 3
    s_add_u32 s89, s89, {SW}
    s_lshl_b32 s90, s89, 14
    s_add_u32 s90, s90, {WOF}
    """)
    for ks in range(16):
        if ks and ks % 4 == 0: a("s_add_u32 s90, s90, 4096")
        a(f"buffer_load_dwordx4 {vr(PW+4*ks,4)}, v1, {R_WS}, s90 offen offset:{1024*(ks%4)} {ld_mod}")
    a(f"""
    v_lshrrev_b32 v86, 4, v0
    v_and_b32 v87, 15, v0
    v_lshlrev_b32 v88, 14, v86
    v_lshl_add_u32 v88, v87, 1, v88
    s_lshl_b32 s90, s89, 16
    s_lshl_b32 s91, s88, 6
    s_add_u32 s90, s90, s91
    s_add_u32 s90, s90, {BT}
    """)
    for i in range(4):
        if i: a("s_add_u32 s90, s90, 4096")
        for nt in range(2): a(f"buffer_load_short_d16_hi v{PB+4*nt+i}, v88, {R_WS}, s90 offen offset:{32*nt} {ld_mod}")
    a(f"""
    v_lshlrev_b32 v88, 2, v87
    s_lshl_b32 s90, s88, 7
    s_add_u32 s90, s90, {GW}
    buffer_load_dword v{PG}, v88, {R_WS}, s90 offen {ld_mod}
    buffer_load_dword v{PG+1}, v88, {R_WS}, s90 offen offset:64 {ld_mod}
    """)

def out_side_math(a):
    a(f"""
    s_mov_b32 s68, 0xffff0000
    v_sub_f32 v88, 1.0, v{PG}
    v_sub_f32 v89, 1.0, v{PG+1}
    v_cvt_pk_bf16_f32 v89, v88, v89
    v_lshlrev_b32 v88, 16, v89
    v_and_b32 v89, s68, v89
    """)
    for nt in range(2):
        for i in range(4): a(f"v_mul_f32 v{PB+4*nt+i}, v{88+nt}, v{PB+4*nt+i}")
        for i in range(0, 4, 2):
            r = PB + 4 * nt + i
            a(f"v_cvt_pk_bf16_f32 v{r+1}, v{r}, v{r+1}\nv_lshlrev_b32 v{r}, 16, v{r+1}\nv_and_b32 v{r+1}, s68, v{r+1}")

def out_o_load(a, ld_mod=""):
    a(f"""
    s_lshl_b32 s90, s88, 15
    s_lshl_b32 s91, {SW}, 12
    s_add_u32 s90, s90, s91
    s_add_u32 s90, s90, {OF}
    """)
    for i in range(4): a(f"buffer_load_dwordx4 {vr(32+4*i,4)}, v1, {R_WS}, s90 offen offset:{1024*i} {ld_mod}")

def out_o_stage(a):
    a(f"s_add_u32 s91, s91, {OS}\nv_add_u32 v2, s91, v1")
    for i in range(4): a(f"ds_write_b128 v2, {vr(32+4*i,4)} offset:{1024*i}")

def out_gemm(a):
    a(f"""
    v_lshlrev_b32 v2, 9, v86
    v_lshl_add_u32 v2, v87, 4, v2
    v_add_u32 v2, {OS}, v2
    v_lshlrev_b32 v3, 10, v87
    v_lshl_add_u32 v3, v86, 3, v3
    s_lshl_b32 s90, s88, 15
    s_lshl_b32 s91, s89, 5
    s_add_u32 s90, s90, s91
    v_add_u32 v3, s90, v3
    v_add_u32 v4, 0x4000, v3
    s_waitcnt lgkmcnt(0)
    s_barrier
    """)
    NB = 12; FB = 16
    rd = lambda i: a(f"ds_read_b128 {vr(FB+4*(i%NB),4)}, v2 offset:{2048*(i>>1) + 256*(i&1)}")
    for i in range(NB): rd(i)
    for i in range(32):
        left = min(NB - 1, 31 - i)
        a(f"s_waitcnt lgkmcnt({left})")
        acc = 8 + 4 * (i & 1)
        a(f"v_mfma_f32_16x16x32_bf16 {vr(acc,4)}, {vr(PW+4*(i>>1),4)}, {vr(FB+4*(i%NB),4)}, {'0' if i < 2 else vr(acc,4)}")
        if i + NB < 32: rd(i + NB)
    for nt in range(2):
        for i in range(4): a(f"v_fma_f32 v{8+4*nt+i}, v{8+4*nt+i}, v{PG+nt}, v{PB+4*nt+i}")
        a(f"v_cvt_pk_bf16_f32 v{16+2*nt}, v{8+4*nt}, v{9+4*nt}\nv_cvt_pk_bf16_f32 v{17+2*nt}, v{10+4*nt}, v{11+4*nt}")
        a(f"global_store_dwordx2 v{3+nt}, {vr(16+2*nt,2)}, {S_OUT}")

STAMPS = False
STB = 0x1F00000
STAMP_WAVES = {}
def stamp(a, slot, waves=range(8), drain=False):
    if not STAMPS: return
    STAMP_WAVES[slot] = list(waves)
    if drain: a("s_waitcnt vmcnt(0)")
    a(f"""
    s_memrealtime s[94:95]
    s_memtime s[98:99]
    s_lshl_b32 s96, s2, 3
    s_add_u32 s96, s96, {SW}
    s_lshl_b32 s96, s96, 2
    s_add_u32 s96, s96, {STB + 8192*slot}
    v_mov_b32 v233, 0
    s_waitcnt lgkmcnt(0)
    v_mov_b32 v234, s94
    v_mov_b32 v232, s98
    buffer_store_dword v234, v233, {R_WS}, s96 offen
    s_add_u32 s96, s96, 0x80000
    buffer_store_dword v232, v233, {R_WS}, s96 offen
    """)
    if drain: a("s_waitcnt vmcnt(0)")

LIGHT = []
def lstamp(a, slot):
    if "amp" in OPT:
        p = OPT["amp"].split(",")
        for k in range(2):
            if p[k] == str(slot): a(f"s_memrealtime s[{96+2*k}:{97+2*k}]\ns_waitcnt lgkmcnt(0)")
    if not STAMPS: return
    a(f"s_memrealtime s[94:95]\ns_memtime s[98:99]\ns_waitcnt lgkmcnt(0)\nv_writelane_b32 v230, s94, {slot}\nv_writelane_b32 v231, s98, {slot}")
    LIGHT.append(slot)
def lflush(a, waves):
    if not STAMPS: return
    mask = sum(1 << s for s in LIGHT)
    for sl in LIGHT: STAMP_WAVES[sl] = list(waves)
    LIGHT.clear()
    a(f"""
    s_lshl_b32 s96, s2, 3
    s_add_u32 s96, s96, {SW}
    s_lshl_b32 s96, s96, 2
    s_add_u32 s96, s96, {STB}
    v_lshlrev_b32 v233, 13, v0
    s_mov_b32 exec_lo, {mask}
    s_mov_b32 exec_hi, 0
    buffer_store_dword v230, v233, {R_WS}, s96 offen
    s_add_u32 s96, s96, 0x80000
    buffer_store_dword v231, v233, {R_WS}, s96 offen
    s_mov_b64 exec, -1
    """)

def stamp_reduce_kernel(a):
    kernel_head(a, "stamp_kernel")
    a("s_cmp_ge_u32 s2, 1\ns_cbranch_scc1 L_st_end\nv_mov_b32 v10, v0")
    prologue(a, "L_st_end")
    a("v_mov_b32 v2, 0\nv_lshlrev_b32 v3, 2, v10\nds_write_b32 v3, v2\ns_waitcnt lgkmcnt(0)\ns_barrier\nv_lshlrev_b32 v3, 5, v10\nv_mov_b32 v6, 0")
    for slot, waves in sorted(STAMP_WAVES.items()):
        for w in waves:
            a(f"s_mov_b32 s60, {STB + 8192*slot + 4*w}\nbuffer_load_dword v4, v3, {R_WS}, s60 offen\ns_waitcnt vmcnt(0)\nv_not_b32 v5, v4")
            a(f"ds_max_u32 v6, v5 offset:{8*slot}\nds_max_u32 v6, v4 offset:{8*slot+4}")
    a(f"s_waitcnt lgkmcnt(0)\ns_barrier\nv_lshlrev_b32 v3, 2, v10\nds_read_b32 v4, v3\nv_cmp_gt_u32 vcc, 64, v10\ns_and_saveexec_b64 s[60:61], vcc\ns_cbranch_execz L_st_end\ns_waitcnt lgkmcnt(0)\nglobal_store_dword v3, v4, {S_DBG}")
    a("L_st_end:\ns_endpgm")

def kernel_head(a, name):
    a.reset()
    a.raw(f".globl {name}\n.p2align 8\n.type {name},@function\n{name}:")

def descriptor(name, vgpr):
    if OPT.get("agpr") and name == "attn_kernel":
        return descriptor("x", 256).replace("kernel x", "kernel " + name).replace("next_free_vgpr 256", "next_free_vgpr 256").replace("accum_offset 256", "accum_offset 240")
    return f""".p2align 6
.amdhsa_kernel {name}
  .amdhsa_next_free_vgpr {vgpr}
  .amdhsa_next_free_sgpr 102
  .amdhsa_accum_offset {vgpr}
  .amdhsa_group_segment_fixed_size 0
  .amdhsa_kernarg_size 112
  .amdhsa_user_sgpr_count 2
  .amdhsa_user_sgpr_kernarg_segment_ptr 1
  .amdhsa_system_sgpr_workgroup_id_x 1
.end_amdhsa_kernel
"""

def header():
    ref = open(f"cdna_kernels/{NAME}.s.ref").read().split("\n")
    return "\n".join(l for l in ref[:15]) + "\n"

PRIOS = {0: 3, 38: 2, 54: 1, 61: 0}

def aux_ids(a):
    a(f"""
    s_and_b32 s51, {SW}, 3
    s_lshr_b32 s52, s51, 1
    s_and_b32 s53, s51, 1
    s_lshl_b32 s54, {SX}, 6
    s_lshl_b32 s55, {SJ}, 1
    s_add_u32 s54, s54, s55
    s_add_u32 s54, s54, s52
    """)

def build_multi(extra_empty=0):
    a = Asm()
    ks = ["proj_kernel", "conv_kernel", "attn_kernel", "outp_kernel"]
    launches = "".join(f"; @launch kernel={k} grid=(256,1,1) block=(512,1,1) lds={LDS_BYTES}\n" for k in ks)
    launches += "".join("; @launch kernel=empty_kernel grid=(256,1,1) block=(512,1,1) lds=0\n" for _ in range(extra_empty))
    if STAMPS: launches += "; @launch kernel=stamp_kernel grid=(1,1,1) block=(256,1,1) lds=1024\n"
    a.raw(header() + launches + '.amdgcn_target "amdgcn-amd-amdhsa--gfx950"\n.text')
    kernel_head(a, ks[0]); prologue(a, "L_k1_end"); stamp(a, 0, drain=True)
    a(f"s_cmp_ge_u32 {SW}, 4\ns_cbranch_scc1 L_k1_aux")
    p1_gemm(a); lstamp(a, 16); p1_side(a); lstamp(a, 17); lflush(a, range(4)); a("s_barrier"); stamp(a, 1, range(4), True); a("s_endpgm")
    a.reset(); a("L_k1_aux:")
    p1_aux(a); lflush(a, range(4, 8))
    a(f"""
    s_waitcnt lgkmcnt(0)
    s_barrier
    s_lshl_b32 s66, {SX}, 5
    s_add_u32 s66, s66, {SJ}
    s_mul_i32 s66, s66, 36864
    s_lshl_b32 s69, s51, 13
    s_add_u32 s66, s66, s69
    s_add_u32 s66, s66, {RD}
    s_add_u32 s69, s69, {RB}
    v_lshlrev_b32 v1, 4, v0
    v_add_u32 v2, s69, v1
    """)
    for i in range(9):
        a(f"ds_read_b128 {vr(64+4*i,4)}, v2 offset:{1024*i}")
    a("s_waitcnt lgkmcnt(0)")
    for i in range(9):
        a(f"buffer_store_dwordx4 {vr(64+4*i,4)}, v1, {R_WS}, s66 offen\ns_add_u32 s66, s66, 1024")
    a("L_k1_end:\ns_endpgm")
    kernel_head(a, ks[1]); prologue(a, "L_k2_end"); stamp(a, 2, drain=True)
    a(f"s_cmp_lt_u32 {SW}, 4\ns_cbranch_scc1 L_k2_end")
    aux_ids(a)
    a(f"""
    s_lshl_b32 s56, s54, 1
    v_mov_b32 v2, s56
    global_load_short_d16_hi v15, v2, {S_DSK}
    v_mov_b32 v16, 0
    v_mov_b32 v17, 0
    v_mov_b32 v18, 0
    v_mov_b32 v19, 0
    v_min_u32 v1, 32, v0
    s_mul_i32 s66, s51, {US}
    s_add_u32 s66, s66, {UB}
    v_lshl_add_u32 v1, v1, 4, s66
    ds_write_b128 v1, v[16:19]
    s_lshl_b32 s66, {SX}, 5
    s_add_u32 s66, s66, {SJ}
    s_mul_i32 s66, s66, 36864
    s_lshl_b32 s69, s51, 13
    s_add_u32 s66, s66, s69
    s_add_u32 s66, s66, {RD}
    s_add_u32 s69, s69, {RB}
    v_lshlrev_b32 v1, 4, v0
    """)
    for i in range(9):
        a(f"s_add_u32 m0, s69, {1024*i}\ns_add_u32 s70, s66, {1024*i}\nbuffer_load_dwordx4 v1, {R_WS}, s70 offen lds")
    a("s_waitcnt lgkmcnt(0)\ns_barrier")
    u_load(a); a("s_waitcnt vmcnt(0)"); u_store(a)
    a("s_waitcnt lgkmcnt(0)\ns_barrier")
    conv(a, "k2c"); stamp(a, 3, range(4, 8), True)
    a("L_k2_end:\ns_endpgm")
    kernel_head(a, ks[2]); prologue(a, "L_k3_end"); stamp(a, 4, drain=True)
    att_setup(a)
    a(f"buffer_load_dwordx4 {vr(AQ,4)}, v1, {R_WS}, s77 offen")
    att_dma(a, range(16)); att_regs(a)
    lstamp(a, 26); a("s_waitcnt vmcnt(15)\ns_barrier"); lstamp(a, 27)
    if "nq" in OPT:
        nq, nw = int(OPT["nq"]), int(OPT["nw"]); nt = 512 // nq // nw; qb = 84 if nq <= 4 else 216; ob = 100 if nq <= 4 else 84
        a("s_waitcnt vmcnt(0)\ns_barrier")
        for i in range(nq):
            for r in range(4): a(f"v_mov_b32 v{qb+4*i+r}, v{4+((r+i)&3)}")
            for r in range(16): a(f"v_mov_b32 v{ob+16*i+r}, 0")
        if nw == 4: a(f"s_cmp_ge_u32 {SW}, 4\ns_cbranch_scc1 L_k3_end")
        lstamp(a, 28)
        pr = {} if nw == 4 else PRIOS
        att_main_nq(a, nq, nt, {}, pr, qb, ob); lstamp(a, 29)
        for r in range(16): a(f"v_mov_b32 v{64+r}, v{100+r}")
    else:
      att_main(a, {2: lambda: a("s_waitcnt vmcnt(12)\ns_barrier"), 14: lambda: (a("s_waitcnt vmcnt(0)\ns_barrier"), lstamp(a, 28))}, PRIOS); lstamp(a, 29)
    att_finish(a, "k3"); lflush(a, range(8)); stamp(a, 5, drain=True)
    a("L_k3_end:\ns_endpgm")
    att_slow(a, "k3")
    kernel_head(a, ks[3]); prologue(a, "L_k4_end"); stamp(a, 6, drain=True)
    att_setup(a)
    a(f"s_lshl_b32 s88, s75, 3\ns_lshr_b32 s89, s74, 2\ns_add_u32 s88, s88, s89")
    out_o_load(a); out_side_loads(a)
    a(f"s_lshl_b32 s91, {SW}, 12\ns_waitcnt vmcnt(26)"); out_o_stage(a)
    a("s_waitcnt vmcnt(0)"); out_side_math(a)
    out_gemm(a); stamp(a, 7, drain=True)
    a("L_k4_end:\ns_endpgm")
    if extra_empty:
        kernel_head(a, "empty_kernel"); a("s_endpgm")
    if STAMPS: stamp_reduce_kernel(a)
    a.raw('.section .rodata,"a"')
    if STAMPS: a.raw(descriptor("stamp_kernel", 32))
    for k in ks: a.raw(descriptor(k, 256 if STAMPS else 192))
    if extra_empty: a.raw(descriptor("empty_kernel", 8))
    return a.text()

if __name__ == "__main__":
    mode = sys.argv[1] if len(sys.argv) > 1 else "multi"
    out = sys.argv[2] if len(sys.argv) > 2 else f"cdna_kernels/{NAME}.s"
    STAMPS = "stamp" in mode
    for o in sys.argv[4:]:
        k, _, v = o.partition("="); OPT[k] = v or True
    txt = build_multi(int(sys.argv[3]) if len(sys.argv) > 3 else 0)
    open(out, "w").write(txt)
    print("wrote", out, len(txt), "bytes")
```

```python
import sys
import gen as G
from gen import *

FL = 0xC90000
F_N, F_S1, F_S2, F_S3, F_S4 = FL, FL + 0x1000, FL + 0x2000, FL + 0x4000, FL + 0x8000
HT, HTS = 98304, 7344
VN = 192
SPIN = 400000
SC = "sc1"

def poll(a, tag, vaddr, soff, vt=193, first_issued=False, n=1):
    ld = f"buffer_load_dword{'x4' if n == 4 else ''} {vr(vt, n)}, v{vaddr}, {R_WS}, {soff} offen {SC}"
    a(f"s_mov_b32 s92, {SPIN}")
    if first_issued: a(f"s_branch L_{tag}_chk")
    a.reset(); a(f"L_{tag}_poll:\n{ld}\ns_waitcnt vmcnt(0)")
    a(f"L_{tag}_chk:")
    a(f"v_cmp_ne_u32 vcc, v{vt}, v{VN}")
    for i in range(1, n): a(f"v_cmp_ne_u32 s[90:91], v{vt+i}, v{VN}\ns_or_b64 vcc, vcc, s[90:91]")
    if n == 1: a("s_nop 1")
    a(f"""
    s_cbranch_vccz L_{tag}_ok
    s_sub_u32 s92, s92, 1
    s_cmp_lg_u32 s92, 0
    s_cbranch_scc1 L_{tag}_poll
    L_{tag}_ok:
    """)

def signal(a, soff):
    a(f"""
    v_mov_b32 v193, 0
    s_mov_b64 exec, 1
    buffer_store_dword v{VN}, v193, {R_WS}, {soff} offen {SC}
    s_mov_b64 exec, -1
    """)

def ids_and_params(a, role):
    aux_ids(a)
    a(f"""
    s_lshl_b32 s55, s54, 8
    s_lshl_b32 s56, s53, 7
    s_add_u32 s55, s55, s56
    v_lshlrev_b32 v1, 1, v0
    v_add_u32 v1, s55, v1
    s_lshl_b32 s56, s54, 1
    v_mov_b32 v2, s56
    global_load_short_d16_hi v10, v1, {S_LOGA}
    global_load_short_d16_hi v11, v1, {S_AIM}
    global_load_short_d16_hi v14, v2, {S_LDT}
    """)
    if role == "G": a(f"global_load_short_d16_hi v12, v1, {S_CR}\nglobal_load_short_d16_hi v13, v1, {S_CI}")
    else: a(f"global_load_short_d16_hi v15, v2, {S_DSK}")
    a(f"v_mov_b32 v3, 0\ns_mov_b32 s56, {F_N}\nbuffer_load_dword v{VN}, v3, {R_WS}, s56 offen {SC}")
    return 6 if role == "G" else 5

def s4d_base(a, role):
    a(f"""
    s_mov_b32 s66, {LOG2E}
    s_mov_b32 s68, 0xffff0000
    s_mov_b32 s69, {INV2PI}
    v_mul_f32 v14, s66, v14
    v_mul_f32 v10, s66, v10
    v_exp_f32 v14, v14
    v_exp_f32 v10, v10
    v_add_u32 v{VN}, 1, v{VN}
    v_cvt_pk_bf16_f32 v1, v14, v10
    v_lshlrev_b32 v14, 16, v1
    v_and_b32 v10, s68, v1
    v_mul_f32 v10, v10, v14
    v_mul_f32 v11, v11, v14
    """)
    if role == "G": a("v_mul_f32 v40, v12, v14\nv_mul_f32 v41, v13, v14\nv_add_f32 v40, v40, v40\nv_add_f32 v41, v41, v41")
    a("v_mul_f32 v10, s66, v10\nv_mul_f32 v11, s69, v11")

def cexp(a, items):
    for k, (d, sc) in enumerate(items):
        m, g = 32 + 2 * k, 33 + 2 * k
        if sc: a(f"v_mul_f32 v{m}, {sc}, v10\nv_mul_f32 v{g}, {sc}, v11\nv_exp_f32 v{m}, -v{m}\nv_fract_f32 v{g}, v{g}")
        else: a(f"v_exp_f32 v{m}, -v10\nv_fract_f32 v{g}, v11")
    for k, (d, sc) in enumerate(items): a(f"v_cos_f32 v{d}, v{33+2*k}\nv_sin_f32 v{d+1}, v{33+2*k}")
    for k, (d, sc) in enumerate(items): a(f"v_mul_f32 v{d}, v{32+2*k}, v{d}\nv_mul_f32 v{d+1}, v{32+2*k}, v{d+1}")

def cmuls(a, ops):
    for k, (d, x, w) in enumerate(ops): a(f"v_pk_mul_f32 {vr(56+2*k,2)}, {vr(x,2)}, {vr(w,2)} op_sel:[0,0] op_sel_hi:[1,0]")
    for k, (d, x, w) in enumerate(ops): a(f"v_pk_fma_f32 {vr(d,2)}, {vr(x,2)}, {vr(w,2)}, {vr(56+2*k,2)} op_sel:[1,1,0] op_sel_hi:[0,1,1] neg_lo:[1,0,0]")

class RowWriter:
    def __init__(self, a, vaddr, neg): self.a, self.v, self.neg, self.row, self.base, self.pend = a, vaddr, neg, 0, 0, []; self.tb = 72
    def put(self, reg):
        t = self.tb + (self.row & 3)
        if reg is None: self.a(f"v_mov_b32 v{t}, 0x3f80")
        else: self.a(f"v_cvt_pk_bf16_f32 v{t}, v{reg}, {'-' if self.neg else ''}v{reg+1}")
        self.pend.append((self.row, t)); self.row += 1
        if len(self.pend) == 2: self.flush()
    def flush(self):
        a = self.a
        if not self.pend: return
        if self.pend[0][0] - self.base >= 4:
            a(f"v_add_u32 v{self.v}, {272*4}, v{self.v}"); self.base += 4
        o = [(r - self.base) * 68 for r, _ in self.pend]
        if len(self.pend) == 2: a(f"ds_write2_b32 v{self.v}, v{self.pend[0][1]}, v{self.pend[1][1]} offset0:{o[0]} offset1:{o[1]}")
        else: a(f"ds_write_b32 v{self.v}, v{self.pend[0][1]} offset:{4*o[0]}")
        self.pend = []

def h_rows(a):
    a(f"s_mul_i32 s65, s51, {HTS}\ns_add_u32 s65, s65, {HT}\nv_lshlrev_b32 v15, 2, v0\nv_add_u32 v15, s65, v15")
    a("s_mov_b32 s73, 0x43800000")
    cexp(a, [(20, None), (24, "s73")])
    H = lambda p: 40 + 2 * p if p < 8 else 28
    rw = RowWriter(a, 15, True)
    cmuls(a, [(H(1), H(0), 20), (22, 20, 20)])
    rw.put(H(0)); rw.put(H(1))
    cmuls(a, [(H(2), H(0), 22), (H(3), H(1), 22), (26, 22, 22)])
    rw.put(H(2)); rw.put(H(3))
    cmuls(a, [(H(4 + i), H(i), 26) for i in range(4)])
    cmuls(a, [(H(8), H(4), 26)])
    for p in range(4, 8): rw.put(H(p))
    for grp in ((0, 2, 4, 6, 8), (0, 4, 8), (0, 4, 8), (0, 8), (0, 8), (0, 8), (0, 8)):
        cmuls(a, [(H(p), H(p), 24) for p in grp])
        for p in grp: rw.put(H(p))
    rw.flush()
    assert rw.row == 27

def l_rows(a):
    a("s_mov_b32 s72, 0x41000000")
    cexp(a, [(42, "s72")])
    rw = RowWriter(a, 6, False)
    L = lambda i: 40 + 2 * i
    cmuls(a, [(L(2), L(1), L(1))])
    rw.put(None); rw.put(L(1))
    cmuls(a, [(L(3), L(2), L(1)), (L(0), L(2), L(2))])
    a(f"v_mov_b32 v26, v{L(0)}\nv_mov_b32 v27, v{L(0)+1}")
    rw.put(L(2)); rw.put(L(3))
    cmuls(a, [(L(i), L(i), 26) for i in range(1, 4)])
    for i in range(4): rw.put(L(i))
    for g in range(2, 8):
        cmuls(a, [(L(i), L(i), 26) for i in range(4)])
        for i in range(4): rw.put(L(i))
    assert rw.row == 32

def g_phase1(a):
    npar = ids_and_params(a, "G")
    src = []
    class Cap:
        def __call__(self, t): src.append(t)
        def reset(self): pass
    G.p1_gemm(Cap(), SC)
    txt = "\n".join(src)
    i = txt.index("s_barrier")
    pre, rest = txt[:i], txt[i:]
    pre = pre.replace("s52", "s76").replace("s53", "s77").replace("s54", "s78").replace("s55", "s79").replace("s56", "s80").replace("s57", "s81")
    a(pre)
    a("s_waitcnt vmcnt(11)")
    s4d_base(a, "G"); h_rows(a)
    lstamp(a, 1)
    a("s_waitcnt lgkmcnt(0)")
    a(rest)
    lstamp(a, 16)
    a(f"""
    s_lshl_b32 s60, {SX}, 1
    s_add_u32 s60, s60, s59
    s_lshl_b32 s60, s60, 8
    s_lshl_b32 s61, {SJ}, 3
    s_add_u32 s61, s61, s60
    s_lshl_b32 s62, s58, 2
    s_add_u32 s61, s61, s62
    s_add_u32 s61, s61, {F_S2}
    s_waitcnt vmcnt(0)
    """)
    signal(a, "s61")
    lstamp(a, 17)
    src.clear(); G.p1_side(Cap(), SC)
    a("\n".join(src).replace("s_waitcnt vmcnt(6)", "").replace("s52", "s76").replace("s55", "s79"))
    a(f"""
    s_cmp_lg_u32 {SW}, 0
    s_cbranch_scc1 L_s2_skip
    s_lshr_b32 s60, {SJ}, 4
    s_lshl_b32 s61, {SX}, 1
    s_add_u32 s60, s60, s61
    s_lshl_b32 s60, s60, 8
    s_add_u32 s60, s60, {F_S2}
    v_lshlrev_b32 v2, 2, v0
    """)
    poll(a, "s2", 2, "s60")
    a.reset(); a("L_s2_skip:")
    lstamp(a, 2)

def a_phase1(a):
    vm = VM()
    vm.add("par", ids_and_params(a, "A"))
    a(f"""
    v_lshrrev_b32 v1, 3, v0
    v_lshrrev_b32 v2, 4, v0
    s_lshl_b32 s56, s53, 2
    v_add_u32 v3, s56, v2
    v_and_b32 v5, 7, v0
    v_xor_b32 v3, v3, v5
    v_lshlrev_b32 v3, 4, v3
    v_lshl_add_u32 v4, v1, 10, v3
    v_and_b32 v2, 1, v2
    v_lshlrev_b32 v2, 2, v2
    v_xor_b32 v2, v2, v5
    v_lshlrev_b32 v2, 4, v2
    v_mov_b32 v3, 0xc00
    v_mad_u32_u24 v5, v1, v3, v2
    s_lshl_b32 s57, {SJ}, 16
    s_lshl_b32 s58, s51, 13
    s_add_u32 s57, s57, s58
    s_mul_i32 s58, s51, {16*3072}
    s_lshl_b32 s59, {SX}, 7
    s_add_u32 s58, s58, s59
    s_lshl_b32 s60, s51, 10
    s_lshl_b32 s61, s51, 11
    """)
    def dma(t):
        slot = t % 3
        a(f"""
        s_add_u32 s62, {SX}, {t}
        s_and_b32 s62, s62, 7
        s_lshl_b32 s63, s62, 7
        s_add_u32 s63, s63, s57
        s_mul_i32 s62, s62, {64*3072}
        s_add_u32 s62, s62, s58
        """)
        for i in range(2):
            a(f"s_add_u32 m0, s60, {XR + slot*8192 + i*4096}")
            if i: a("s_add_u32 s63, s63, 0x8000")
            a(f"buffer_load_dwordx4 v4, {R_X}, s63 offen lds")
        for ty in range(3):
            for i in range(2):
                a(f"s_add_u32 m0, s61, {WR + slot*24576 + ty*8192 + i*1024}")
                a(f"s_add_u32 s64, s62, {ty*1024 + i*8*3072}")
                a(f"buffer_load_dwordx4 v5, {R_W}, s64 offen lds")
        vm.add(f"s{t}", 8)
    for t in range(3): dma(t)
    lstamp(a, 18)
    a(f"""
    s_mul_i32 s65, s51, {TBS}
    s_add_u32 s65, s65, {TB}
    v_lshlrev_b32 v6, 2, v0
    v_add_u32 v6, s65, v6
    v_and_b32 v1, 31, v0
    v_lshrrev_b32 v2, 5, v0
    v_lshlrev_b32 v2, 4, v2
    v_add_u32 v18, s65, v2
    v_mov_b32 v3, 272
    v_mad_u32_u24 v7, v1, v3, v18
    s_mul_i32 s66, s51, {HTS}
    s_add_u32 s66, s66, {HT}
    v_add_u32 v2, s66, v2
    v_bfe_u32 v8, v0, 3, 1
    v_and_b32 v9, 3, v0
    v_lshl_add_u32 v8, v8, 2, v9
    v_cvt_f32_u32 v8, v8
    v_bfe_u32 v9, v0, 4, 1
    v_bfe_u32 v16, v0, 2, 1
    v_lshl_add_u32 v9, v9, 1, v16
    v_min_u32 v16, 2, v9
    v_sub_u32 v16, 0, v16
    v_ldexp_f32 v16, v8, v16
    v_rndne_f32 v16, v16
    v_cvt_u32_f32 v16, v16
    v_lshlrev_b32 v17, 3, v9
    s_mov_b32 s66, 0x100d0800
    v_lshrrev_b32 v17, v17, s66
    v_and_b32 v17, 0xff, v17
    v_add_u32 v16, v16, v17
    v_mul_f32 v8, 0.125, v8
    v_rndne_f32 v8, v8
    v_cvt_u32_f32 v8, v8
    v_lshl_add_u32 v8, v9, 1, v8
    v_add_u32 v8, 19, v8
    s_cmp_eq_u32 s53, 0
    s_cselect_b64 vcc, -1, 0
    s_cselect_b32 s70, 0, 0xaaaaaaaa
    s_mov_b32 s71, s70
    v_cndmask_b32 v9, v8, v16, vcc
    v_cndmask_b32 v8, v16, v8, vcc
    v_mad_u32_u24 v9, v9, v3, v2
    v_mad_u32_u24 v8, v8, v3, v2
    v_mov_b32 v16, 0
    v_mov_b32 v17, 0
    v_mov_b32 v18, 0
    v_mov_b32 v19, 0
    s_mul_i32 s67, s52, {KXS}
    s_add_u32 s67, s67, {KX}
    """)
    vm.wait(a, "par")
    s4d_base(a, "A"); l_rows(a)
    a(f"""
    v_lshrrev_b32 v1, 4, v0
    v_bfe_u32 v2, v0, 2, 2
    v_lshl_add_u32 v2, v1, 3, v2
    v_bfe_u32 v3, v0, 1, 1
    s_lshl_b32 s66, s51, 1
    v_add_u32 v3, s66, v3
    v_bfe_u32 v36, v2, 1, 3
    v_xor_b32 v36, v36, v3
    v_and_b32 v37, 1, v0
    v_lshlrev_b32 v37, 3, v37
    v_lshl_add_u32 v37, v2, 7, v37
    v_xor_b32 v38, 2, v36
    v_lshl_add_u32 v36, v36, 4, v37
    v_lshl_add_u32 v37, v38, 4, v37
    v_bfe_u32 v2, v0, 1, 3
    v_lshlrev_b32 v2, 13, v2
    v_and_b32 v3, 1, v0
    v_lshl_add_u32 v2, v3, 6, v2
    v_lshl_add_u32 v2, v1, 4, v2
    s_lshl_b32 s66, {SX}, 18
    s_lshl_b32 s69, s51, 16
    s_add_u32 s66, s66, s69
    s_lshl_b32 s69, {SJ}, 8
    s_add_u32 s66, s66, s69
    s_add_u32 s66, s66, {XT}
    """)
    LF, HK, HS, AK, AS = 64, 96, 128, 160, 176
    for ks in range(8): a(f"ds_read_b128 {vr(LF+4*ks,4)}, v7 offset:{32*ks}")
    lstamp(a, 19)
    vm.wait(a, "s0"); a("s_waitcnt lgkmcnt(0)\ns_barrier")
    a(f"""
    ds_read_b64_tr_b16 v[40:41], v36 offset:{XR}
    ds_read_b64_tr_b16 v[42:43], v37 offset:{XR + 512}
    ds_read_b64_tr_b16 v[44:45], v36 offset:{XR + 4096}
    ds_read_b64_tr_b16 v[46:47], v37 offset:{XR + 4096 + 512}
    """)
    for ks in range(8): a(f"ds_read_b128 {vr(HS+4*ks,4)}, v8 offset:{32*ks}")
    a(f"""
    s_waitcnt lgkmcnt(8)
    buffer_store_dwordx4 v[40:43], v2, {R_WS}, s66 offen {SC}
    buffer_store_dwordx4 v[44:47], v2, {R_WS}, s66 offen offset:128 {SC}
    """)
    vm.add("xt", 2)
    for ks in range(7): a(f"ds_read_b128 {vr(HK+4*ks,4)}, v9 offset:{32*ks}")
    a("s_waitcnt lgkmcnt(7)")
    a(f"ds_read_b128 {vr(HK+28,4)}, v9 offset:{32*7}")
    for ks in range(8):
        a(f"v_mfma_f32_32x32x16_bf16 {vr(AS,16)}, {vr(HS+4*ks,4)}, {vr(LF+4*ks,4)}, {'0' if ks == 0 else vr(AS,16)}")
    a("s_waitcnt lgkmcnt(0)")
    for ks in range(8):
        a(f"v_mfma_f32_32x32x16_bf16 {vr(AK,16)}, {vr(HK+4*ks,4)}, {vr(LF+4*ks,4)}, {'0' if ks == 0 else vr(AK,16)}")
        if ks == 0:
            a(f"v_lshlrev_b32 v1, 4, v0\nv_add_u32 v2, s65, v1\ns_xor_b32 s66, s51, 1\ns_mul_i32 s66, s66, {TBS}\ns_add_u32 s66, s66, {TB}\nv_add_u32 v3, s66, v1")
        if ks >= 4: a(f"ds_write_b128 v2, {vr(AS+4*(ks-4),4)} offset:{1024*(ks-4)}")
    lstamp(a, 20)
    vm.wait(a, "s1"); a("s_waitcnt lgkmcnt(0)\ns_barrier")
    for i in range(4): a(f"ds_read_b128 {vr(AS+4*i,4)}, v3 offset:{1024*i}")
    dma(3)
    a(f"""
    v_mov_b32 v2, s67
    ds_write_b128 v2, v[16:19]
    v_min_u32 v2, 32, v0
    s_mul_i32 s66, s51, {US}
    s_add_u32 s66, s66, {UB}
    v_lshl_add_u32 v2, v2, 4, s66
    ds_write_b128 v2, v[16:19]
    s_lshl_b32 s66, s53, 11
    s_add_u32 s66, s66, s67
    v_lshrrev_b32 v2, 5, v0
    v_and_b32 v3, 31, v0
    v_lshlrev_b32 v3, 4, v3
    v_lshl_add_u32 v2, v2, 9, v3
    v_add_u32 v2, s66, v2
    s_waitcnt lgkmcnt(2)
    """)
    for i in range(16): a(f"v_add_f32 v{AK+i}, v{AK+i}, v{AS+i}")
    for rg in range(2): a(f"v_cndmask_b32 v{AK+8*rg+4}, v{AK+8*rg+4}, v{AK+8*rg+5}, s[70:71]")
    for i in range(8): a(f"v_cvt_pk_bf16_f32 v{40+i}, v{AK+2*i}, v{AK+2*i+1}")
    for rg in range(2): a(f"ds_write_b128 v2, {vr(40+4*rg,4)} offset:{16 + 1024*rg}")
    lstamp(a, 21)
    vm.wait(a, "s2"); a("s_waitcnt lgkmcnt(0)\ns_barrier")
    a(f"""
    v_add_u32 v2, s66, v1
    ds_read_b64 v[40:41], v2 offset:8
    ds_read_b128 v[42:45], v2 offset:16
    ds_read_b64 v[46:47], v2 offset:{1024+8}
    ds_read_b128 v[48:51], v2 offset:{1024+16}
    """)
    dma(4)
    a(f"""
    s_mul_i32 s66, s52, {RDS}
    s_add_u32 s66, s66, {RB}
    v_bfe_u32 v2, v0, 2, 2
    v_mov_b32 v3, {RE}
    v_mul_u32_u24 v2, v2, v3
    v_and_b32 v3, 3, v0
    v_min_u32 v3, 2, v3
    v_lshl_add_u32 v2, v3, 4, v2
    v_add_u32 v2, s66, v2
    ds_write_b128 v2, v[16:19] offset:4096
    s_lshl_b32 s69, s53, 11
    s_sub_u32 s66, s66, s69
    s_add_u32 s66, s66, {255*16 - 1024}
    v_sub_u32 v2, s66, v1
    s_mov_b32 s69, 0xffff
    s_waitcnt lgkmcnt(1)
    """)
    def expand(q):
        w = lambda i: 40 + 6 * q + 2 + i
        for e in range(4):
            o = 64 + 4 * e
            for i in range(4):
                hi = 3 - i - (0 if e >= 2 else 1)
                if e & 1: a(f"v_alignbit_b32 v{o+i}, v{w(hi)}, v{w(hi)}, 16")
                else: a(f"v_bfi_b32 v{o+i}, s69, v{w(hi)}, v{w(hi-1)}")
            a(f"ds_write_b128 v2, {vr(o,4)} offset:{e*RE + 1024*(1-q)}")
    expand(0)
    a(f"""
    s_lshl_b32 s72, {SX}, 2
    s_add_u32 s73, s72, s51
    s_lshl_b32 s73, s73, 7
    s_lshl_b32 s66, {SJ}, 2
    s_add_u32 s73, s73, s66
    s_add_u32 s73, s73, {F_S1}
    s_lshr_b32 s66, {SJ}, 3
    s_add_u32 s72, s72, s66
    s_lshl_b32 s72, s72, 7
    s_add_u32 s72, s72, {F_S1}
    """)
    lstamp(a, 22)
    vm.wait(a, "s3"); signal(a, "s73"); vm.add("f1"); a("s_barrier")
    dma(5)
    expand(1)
    lstamp(a, 23)
    vm.wait(a, "s4"); a("s_waitcnt lgkmcnt(0)\ns_barrier")
    dma(6)
    vm.wait(a, "s5"); a("s_barrier")
    dma(7)
    a(f"""
    v_and_b32 v8, 31, v0
    v_lshlrev_b32 v8, 2, v8
    s_lshl_b32 s66, {SX}, 18
    s_lshl_b32 s69, {SJ}, 13
    s_add_u32 s66, s66, s69
    s_lshl_b32 s69, s52, 6
    s_add_u32 s66, s66, s69
    s_add_u32 s66, s66, {XT}
    v_lshrrev_b32 v2, 2, v0
    v_and_b32 v3, 3, v0
    v_lshlrev_b32 v3, 4, v3
    v_lshl_add_u32 v9, v2, 7, v3
    s_mul_i32 s69, s52, {UD}
    s_add_u32 s69, s69, {UB + 512}
    v_add_u32 v2, s69, v1
    """)
    vm.wait(a, "s6"); a("s_barrier")
    vm.wait(a, "s7"); a("s_barrier")
    lstamp(a, 24)
    poll(a, "s1", 8, "s72")
    for q in range(4):
        a(f"buffer_load_dwordx4 {vr(40+4*q,4)}, v9, {R_WS}, s66 offen offset:{2048*(q&1)} {SC}")
        if q == 1: a("s_add_u32 s66, s66, 4096")
    for q in range(4):
        a(f"s_waitcnt vmcnt({3-q})")
        a(f"ds_write_b128 v2, {vr(40+4*q,4)} offset:{1024*q}")
        a(f"ds_write_b64 v2, {vr(40+4*q,2)} offset:{1024*q + US + 8}")
        a(f"ds_write_b64 v2, {vr(42+4*q,2)} offset:{1024*q + US + 16}")
    lstamp(a, 25)
    conv(a, "cv", SC)
    lstamp(a, 3)

def build_fused():
    a = Asm()
    k = NAME + "_kernel"
    launches = f"; @launch grid=(256,1,1) block=(512,1,1) lds={LDS_BYTES}\n"
    if G.STAMPS:
        launches = f"; @launch kernel={k} grid=(256,1,1) block=(512,1,1) lds={LDS_BYTES}\n; @launch kernel=stamp_kernel grid=(1,1,1) block=(256,1,1) lds=1024\n"
    a.raw(header() + launches + '.amdgcn_target "amdgcn-amd-amdhsa--gfx950"\n.text')
    kernel_head(a, k)
    if "amp" in OPT: lstamp(a, "E")
    prologue(a, "L_end")
    lstamp(a, 0)
    a(f"s_cmp_lt_u32 {SW}, 4\ns_cbranch_scc1 L_gemm")
    a_phase1(a)
    la = list(G.LIGHT); G.LIGHT[:] = [0] if G.STAMPS else []
    a("s_branch L_att")
    a.reset(); a("L_gemm:")
    g_phase1(a)
    lg = list(G.LIGHT); G.LIGHT[:] = sorted(set(la) | set(lg))
    a.reset(); a("L_att:")
    att_setup(a)
    a("s_waitcnt lgkmcnt(0)\ns_barrier")
    lstamp(a, 4)
    a(f"buffer_load_dwordx4 {vr(AQ,4)}, v1, {R_WS}, s77 offen {SC}")
    att_dma(a, range(16), SC); att_regs(a)
    a("s_waitcnt vmcnt(15)\ns_barrier"); lstamp(a, 27)
    def h14():
        a(f"""
        s_waitcnt vmcnt(0)
        s_barrier
        s_cmp_lg_u32 {SW}, 0
        s_cbranch_scc1 L_s3_skip
        s_lshl_b32 s84, {SX}, 7
        s_lshl_b32 s85, {SJ}, 2
        s_add_u32 s84, s84, s85
        s_add_u32 s84, s84, {F_S3}
        """)
        signal(a, "s84")
        a("L_s3_skip:")
        lstamp(a, 28)
    def h36():
        a(f"s_mov_b32 s84, {F_S3}\nbuffer_load_dwordx4 v[172:175], v1, {R_WS}, s84 offen {SC}")
    def h40():
        a("s_waitcnt vmcnt(0)")
        poll(a, "s3", 1, "s84", 172, True, 4)
        out_side_loads(a, SC)
        a(f"""
        s_or_b32 s84, s2, {SW}
        s_cmp_lg_u32 s84, 0
        s_cbranch_scc1 L_n_skip
        s_mov_b32 s84, {F_N}
        """)
        signal(a, "s84")
        a("L_n_skip:")
    att_main(a, {2: lambda: a("s_waitcnt vmcnt(12)\ns_barrier"), 14: h14, 36: h36, 40: h40}, PRIOS)
    lstamp(a, 29)
    att_finish(a, "at", SC)
    a(f"""
    s_lshl_b32 s84, s76, 7
    s_lshl_b32 s85, s74, 2
    s_add_u32 s84, s84, s85
    s_add_u32 s84, s84, {F_S4}
    s_lshl_b32 s85, s88, 7
    s_lshl_b32 s86, {SW}, 4
    s_add_u32 s85, s85, s86
    s_add_u32 s85, s85, {F_S4}
    v_and_b32 v5, 3, v0
    v_lshlrev_b32 v5, 2, v5
    s_waitcnt vmcnt(0)
    """)
    signal(a, "s84")
    lstamp(a, 5)
    out_side_math(a)
    poll(a, "s4", 5, "s85")
    lstamp(a, 6)
    out_o_load(a, SC)
    a("s_waitcnt vmcnt(0)")
    out_o_stage(a)
    lstamp(a, 30)
    out_gemm(a)
    lstamp(a, 7)
    if G.STAMPS:
        lflush(a, range(8))
        for s in la:
            if s: G.STAMP_WAVES[s] = list(range(4, 8))
        for s in lg:
            if s: G.STAMP_WAVES[s] = list(range(4))
    if "amp" in OPT:
        w = OPT["amp"].split(",")[2]
        a(f"""
        s_cmp_lg_u32 s2, {OPT.get("ampwg", 0)}
        s_cbranch_scc1 L_end
        s_cmp_lg_u32 {SW}, {w}
        s_cbranch_scc1 L_end
        s_sub_u32 s98, s98, s96
        s_lshl_b32 s98, s98, 2
        s_min_u32 s98, s98, 40000
        s_memrealtime s[96:97]
        s_waitcnt lgkmcnt(0)
        L_amp:
        s_memrealtime s[100:101]
        s_waitcnt lgkmcnt(0)
        s_sub_u32 s100, s100, s96
        s_cmp_lt_u32 s100, s98
        s_cbranch_scc1 L_amp
        """)
    a("L_end:\ns_endpgm")
    att_slow(a, "at")
    if G.STAMPS: stamp_reduce_kernel(a)
    a.raw('.section .rodata,"a"')
    if G.STAMPS: a.raw(descriptor("stamp_kernel", 32))
    a.raw(descriptor(k, 256 if G.STAMPS else 200))
    return a.text()

if __name__ == "__main__":
    out = sys.argv[1]
    for o in sys.argv[2:]:
        kk, _, v = o.partition("="); OPT[kk] = v or True
    G.STAMPS = bool(OPT.get("stamp"))
    OPT.setdefault("ones", "few")
    txt = build_fused()
    open(out, "w").write(txt)
    print("wrote", out, len(txt), "bytes")
```

```python
import sys
from asmlib import Asm

OPT = {}
NAME = "gated_mix__softmax_full_mha__ssm_conv_s4d__prompt"
QF, KV, XT, BT, OF, WOF, GW, RD = 0x000000, 0x200000, 0x600000, 0x800000, 0xA00000, 0xC00000, 0xC80000, 0x1000000
WS_BYTES = 0x2000000
LDS_BYTES = 163840
XR, WR = 0, 24576
KX = 98304
KXS = 4160
UB, US, UD = 110464, 4640, 9280
TB, TBS = 129024, 8704
RB, RE, RDS = 129024, 4160, 16640
OS = 131072
LOG2E = 0x3FB8AA3B
INV2PI = 0x3E22F983
QSCALE = 0x3EB8AA3B

S_X, S_W, S_WO, S_LOGA, S_AIM, S_CR, S_CI = "s[4:5]", "s[6:7]", "s[8:9]", "s[12:13]", "s[14:15]", "s[16:17]", "s[18:19]"
S_LDT, S_DSK, S_GWT, S_OUT, S_DBG, S_WS = "s[20:21]", "s[22:23]", "s[24:25]", "s[26:27]", "s[28:29]", "s[30:31]"
R_X, R_W, R_WS = "s[32:35]", "s[36:39]", "s[40:43]"
SX, SJ, SW = "s48", "s49", "s50"

def vr(b, n=1):
    return f"v{b}" if n == 1 else f"v[{b}:{b+n-1}]"

class VM:
    def __init__(self): self.q = []
    def add(self, tag, n=1): self.q += [tag] * n
    def wait(self, a, tag):
        idx = max(i for i, t in enumerate(self.q) if t == tag)
        n = len(self.q) - 1 - idx
        a(f"s_waitcnt vmcnt({n})"); self.q = self.q[idx + 1:]

def prologue(a, end):
    a(f"""
    s_cmp_ge_u32 s2, 256
    s_cbranch_scc1 {end}
    s_load_dwordx16 s[4:19], s[0:1], 0
    s_load_dwordx8 s[20:27], s[0:1], 64
    s_load_dwordx4 s[28:31], s[0:1], 96
    v_lshrrev_b32 v1, 6, v0
    v_and_b32 v0, 63, v0
    v_readfirstlane_b32 {SW}, v1
    s_and_b32 {SX}, s2, 7
    s_lshr_b32 {SJ}, s2, 3
    s_mov_b32 s34, 0x200000
    s_mov_b32 s35, 0x20000
    s_mov_b32 s38, 0x180000
    s_mov_b32 s39, 0x20000
    s_mov_b32 s42, {WS_BYTES if not OPT.get('wsoff') else 0x1000000}
    s_mov_b32 s43, 0x20000
    s_waitcnt lgkmcnt(0)
    s_mov_b32 s32, s4
    s_mov_b32 s33, s5
    s_mov_b32 s36, s6
    s_mov_b32 s37, s7
    s_add_u32 s40, s30, {int(OPT.get("wsoff", "0"), 0)}
    s_addc_u32 s41, s31, 0
    """)

def p1_gemm(a, st_mod=""):
    ACC = (16, 32, 48); SET = (64, 80)
    a(f"""
    s_lshl_b32 s52, {SJ}, 6
    s_lshl_b32 s53, {SX}, 3
    s_add_u32 s52, s52, s53
    s_lshl_b32 s53, {SW}, 1
    s_add_u32 s52, s52, s53
    v_lshlrev_b32 v1, 4, v0
    s_lshl_b32 s53, s52, 10
    v_add_u32 v2, s53, v1
    global_load_dwordx4 v[96:99], v2, {S_X}
    global_load_dwordx4 v[100:103], v2, {S_X} offset:1024
    global_load_dwordx4 v[104:107], v1, {S_GWT}
    s_lshl_b32 s54, {SX}, 5
    s_add_u32 s54, s54, {SJ}
    s_lshr_b32 s55, s54, 3
    s_and_b32 s56, s54, 7
    s_lshl_b32 s56, s56, 1
    s_and_b32 s57, {SW}, 1
    s_add_u32 s56, s56, s57
    s_lshl_b32 s57, s56, 15
    s_lshl_b32 s58, s55, 5
    s_add_u32 s57, s57, s58
    v_lshrrev_b32 v3, 5, v0
    v_lshlrev_b32 v3, 14, v3
    v_bfe_u32 v4, v0, 4, 1
    v_lshl_add_u32 v3, v4, 12, v3
    v_and_b32 v4, 15, v0
    v_lshl_add_u32 v3, v4, 1, v3
    v_add_u32 v3, s57, v3
    v_add_u32 v4, 0x2000, v3
    """)
    for j in range(8):
        a(f"global_load_short_d16{'_hi' if j & 1 else ''} v{108+j}, v{3 + (j >> 2)}, {S_WO} offset:{1024*(j&3)}")
    a(f"""
    s_lshl_b32 s55, s55, 4
    s_add_u32 s55, s55, s56
    s_lshl_b32 s55, s55, 10
    s_add_u32 s55, s55, {WOF}
    s_and_b32 s58, {SW}, 1
    s_lshr_b32 s59, {SW}, 1
    v_and_b32 v1, 31, v0
    s_lshl_b32 s60, s58, 12
    v_lshlrev_b32 v2, 7, v1
    v_add_u32 v2, s60, v2
    v_bfe_u32 v1, v0, 1, 3
    v_lshrrev_b32 v3, 5, v0
    v_xor_b32 v1, v1, v3
    """)
    for ks in range(4):
        a(f"v_xor_b32 v3, {2*ks}, v1\nv_lshl_add_u32 v{4+ks}, v3, 4, v2")
    a(f"""
    v_lshrrev_b32 v1, 5, v0
    v_lshlrev_b32 v1, 10, v1
    v_bfe_u32 v2, v0, 2, 2
    v_lshl_add_u32 v1, v2, 7, v1
    v_bfe_u32 v2, v0, 3, 1
    v_xor_b32 v2, s59, v2
    v_lshl_add_u32 v1, v2, 6, v1
    v_bfe_u32 v2, v0, 4, 1
    v_lshl_add_u32 v1, v2, 5, v1
    v_and_b32 v2, 3, v0
    v_lshl_add_u32 v1, v2, 3, v1
    v_add_u32 v8, {WR}, v1
    v_add_u32 v9, {WR + 49152}, v1
    """)
    def reads(t, ks, s):
        slot = t % 3
        a(f"ds_read_b128 {vr(s,4)}, v{4+ks} offset:{XR + slot*8192}")
        for ty in range(3):
            for ri in range(2):
                off = ty * 8192 + ks * 2048 + ri * 512
                base, o = (9, off) if slot == 2 else (8, off + slot * 24576)
                a(f"ds_read_b64_tr_b16 {vr(s+4+4*ty+2*ri,2)}, v{base} offset:{o}")
    def mm(s, first):
        c = lambda i: "0" if first else vr(ACC[i], 16)
        a(f"v_mfma_f32_32x32x16_bf16 {vr(ACC[0],16)}, {vr(s+4,4)}, {vr(s,4)}, {c(0)}")
        a(f"v_mfma_f32_32x32x16_bf16 {vr(ACC[1],16)}, {vr(s+8,4)}, {vr(s,4)}, {c(1)}")
        a(f"v_mfma_f32_32x32x16_bf16 {vr(ACC[2],16)}, {vr(s,4)}, {vr(s+12,4)}, {c(2)}")
    for t in range(8):
        a("s_barrier"); lstamp(a, 8 + t)
        reads(t, 0, SET[0])
        if t: mm(SET[1], False)
        for ks in range(3):
            reads(t, ks + 1, SET[(ks + 1) & 1])
            a("s_waitcnt lgkmcnt(7)")
            mm(SET[ks & 1], t == 0 and ks == 0)
        a("s_waitcnt lgkmcnt(0)")
    mm(SET[1], False)
    a(f"""
    s_lshl_b32 s60, {SX}, 2
    s_lshl_b32 s61, s59, 1
    s_add_u32 s60, s60, s61
    s_lshl_b32 s60, s60, 6
    s_lshl_b32 s61, {SJ}, 1
    s_add_u32 s61, s61, s58
    s_add_u32 s60, s60, s61
    s_lshl_b32 s61, s60, 10
    s_add_u32 s61, s61, {QF}
    s_add_u32 s62, s61, 0x10000
    s_lshl_b32 s63, s60, 11
    s_add_u32 s63, s63, {KV}
    s_add_u32 s64, s63, 0x20000
    s_mov_b32 s65, {QSCALE}
    v_lshlrev_b32 v1, 4, v0
    v_and_b32 v2, 0x33, v0
    v_bfe_u32 v3, v0, 2, 1
    v_lshl_or_b32 v2, v3, 3, v2
    v_bfe_u32 v3, v0, 3, 1
    v_lshl_or_b32 v2, v3, 2, v2
    v_lshlrev_b32 v2, 4, v2
    v_and_b32 v3, 15, v0
    v_lshlrev_b32 v3, 4, v3
    v_lshrrev_b32 v4, 5, v0
    v_lshl_add_u32 v3, v4, 8, v3
    v_bfe_u32 v4, v0, 4, 1
    v_lshl_add_u32 v3, v4, 17, v3
    """)
    for r in range(16): a(f"v_mul_f32 v{16+r}, s65, v{16+r}")
    for r in range(8): a(f"v_cvt_pk_bf16_f32 v{64+r}, v{16+2*r}, v{17+2*r}")
    a(f"buffer_store_dwordx4 v[64:67], v1, {R_WS}, s61 offen {st_mod}")
    a(f"buffer_store_dwordx4 v[68:71], v1, {R_WS}, s62 offen {st_mod}")
    for r in range(8): a(f"v_cvt_pk_bf16_f32 v{72+r}, v{32+2*r}, v{33+2*r}")
    a(f"buffer_store_dwordx4 v[72:75], v2, {R_WS}, s63 offen {st_mod}")
    a(f"buffer_store_dwordx4 v[76:79], v2, {R_WS}, s64 offen {st_mod}")
    for r in range(8): a(f"v_cvt_pk_bf16_f32 v{80+r}, v{48+2*r}, v{49+2*r}")
    a(f"buffer_store_dwordx4 v[80:83], v3, {R_WS}, s63 offen offset:1024 {st_mod}")
    a(f"buffer_store_dwordx4 v[84:87], v3, {R_WS}, s63 offen offset:1536 {st_mod}")

def p1_side(a, st_mod=""):
    a("s_waitcnt vmcnt(6)")
    for j in range(4): a(f"v_or_b32 v{116+j}, v{108+2*j}, v{109+2*j}")
    a(f"v_lshlrev_b32 v1, 4, v0\nbuffer_store_dwordx4 v[116:119], v1, {R_WS}, s55 offen {st_mod}")
    a("s_mov_b32 s66, 0xffff0000")
    for k in range(4):
        a(f"v_lshlrev_b32 v{16+2*k}, 16, v{104+k}\nv_and_b32 v{17+2*k}, s66, v{104+k}")
    for r in range(2):
        for k in range(4):
            x = 96 + 4 * r + k
            a(f"""
            v_lshlrev_b32 v26, 16, v{x}
            v_and_b32 v27, s66, v{x}
            v_mul_f32 v26, v26, v{16+2*k}
            v_mul_f32 v27, v27, v{17+2*k}
            v_cvt_pk_bf16_f32 v26, v26, v27
            v_and_b32 v27, s66, v26
            v_lshlrev_b32 v26, 16, v26
            """)
            if k == 0: a(f"v_add_f32 v{24+r}, v26, v27")
            else: a(f"v_add_f32 v{24+r}, v{24+r}, v26\nv_add_f32 v{24+r}, v{24+r}, v27")
    for d in ("row_shr:1 row_mask:0xf bank_mask:0xf bound_ctrl:0", "row_shr:2 row_mask:0xf bank_mask:0xf bound_ctrl:0",
              "row_shr:4 row_mask:0xf bank_mask:0xf bound_ctrl:0", "row_shr:8 row_mask:0xf bank_mask:0xf bound_ctrl:0",
              "row_bcast:15 row_mask:0xa bank_mask:0xf", "row_bcast:31 row_mask:0xc bank_mask:0xf"):
        for r in range(2): a(f"v_add_f32_dpp v{24+r}, v{24+r}, v{24+r} {d}")
    a(f"""
    v_cvt_pk_bf16_f32 v26, v24, v25
    s_mov_b32 s67, {LOG2E}
    v_lshlrev_b32 v24, 16, v26
    v_and_b32 v25, s66, v26
    v_mul_f32 v24, s67, v24
    v_mul_f32 v25, s67, v25
    v_exp_f32 v24, -v24
    v_exp_f32 v25, -v25
    v_add_f32 v24, 1.0, v24
    v_add_f32 v25, 1.0, v25
    v_rcp_f32 v24, v24
    v_rcp_f32 v25, v25
    s_lshl_b32 s52, s52, 2
    s_add_u32 s52, s52, {GW}
    v_cvt_pk_bf16_f32 v26, v24, v25
    v_mov_b32 v1, 0
    v_lshlrev_b32 v24, 16, v26
    v_and_b32 v25, s66, v26
    s_mov_b32 exec_lo, 0
    s_mov_b32 exec_hi, 0x80000000
    buffer_store_dwordx2 v[24:25], v1, {R_WS}, s52 offen {st_mod}
    s_mov_b64 exec, -1
    """)

def cmul(a, d, x, w, t):
    a(f"v_pk_mul_f32 {vr(t,2)}, {vr(x,2)}, {vr(w,2)} op_sel:[0,0] op_sel_hi:[1,0]")
    a(f"v_pk_fma_f32 {vr(d,2)}, {vr(x,2)}, {vr(w,2)}, {vr(t,2)} op_sel:[1,1,0] op_sel_hi:[0,1,1] neg_lo:[1,0,0]")

def p1_aux(a, st_mod=""):
    vm = VM()
    a(f"""
    s_and_b32 s51, {SW}, 3
    s_lshr_b32 s52, s51, 1
    s_and_b32 s53, s51, 1
    s_lshl_b32 s54, {SX}, 6
    s_lshl_b32 s55, {SJ}, 1
    s_add_u32 s54, s54, s55
    s_add_u32 s54, s54, s52
    s_lshl_b32 s55, s54, 8
    s_lshl_b32 s56, s53, 7
    s_add_u32 s55, s55, s56
    v_lshlrev_b32 v1, 1, v0
    v_add_u32 v1, s55, v1
    s_lshl_b32 s56, s54, 1
    v_mov_b32 v2, s56
    global_load_short_d16_hi v10, v1, {S_LOGA}
    global_load_short_d16_hi v11, v1, {S_AIM}
    global_load_short_d16_hi v12, v1, {S_CR}
    global_load_short_d16_hi v13, v1, {S_CI}
    global_load_short_d16_hi v14, v2, {S_LDT}
    global_load_short_d16_hi v15, v2, {S_DSK}
    v_lshrrev_b32 v1, 3, v0
    v_lshrrev_b32 v2, 4, v0
    s_lshl_b32 s56, s53, 2
    v_add_u32 v3, s56, v2
    v_and_b32 v5, 7, v0
    v_xor_b32 v3, v3, v5
    v_lshlrev_b32 v3, 4, v3
    v_lshl_add_u32 v4, v1, 10, v3
    v_and_b32 v2, 1, v2
    v_lshlrev_b32 v2, 2, v2
    v_xor_b32 v2, v2, v5
    v_lshlrev_b32 v2, 4, v2
    v_mov_b32 v3, 0xc00
    v_mad_u32_u24 v5, v1, v3, v2
    s_lshl_b32 s57, {SJ}, 16
    s_lshl_b32 s58, s51, 13
    s_add_u32 s57, s57, s58
    s_mul_i32 s58, s51, {16*3072}
    s_lshl_b32 s59, {SX}, 7
    s_add_u32 s58, s58, s59
    s_lshl_b32 s60, s51, 10
    s_lshl_b32 s61, s51, 11
    """)
    vm.add("par", 6)
    def dma(t):
        slot = t % 3
        a(f"""
        s_add_u32 s62, {SX}, {t}
        s_and_b32 s62, s62, 7
        s_lshl_b32 s63, s62, 7
        s_add_u32 s63, s63, s57
        s_mul_i32 s62, s62, {64*3072}
        s_add_u32 s62, s62, s58
        """)
        for i in range(2):
            a(f"s_add_u32 m0, s60, {XR + slot*8192 + i*4096}")
            if i: a("s_add_u32 s63, s63, 0x8000")
            a(f"buffer_load_dwordx4 v4, {R_X}, s63 offen lds")
        for ty in range(3):
            for i in range(2):
                a(f"s_add_u32 m0, s61, {WR + slot*24576 + ty*8192 + i*1024}")
                a(f"s_add_u32 s64, s62, {ty*1024 + i*8*3072}")
                a(f"buffer_load_dwordx4 v5, {R_W}, s64 offen lds")
        vm.add(f"s{t}", 8)
    for t in range(3): dma(t)
    a(f"""
    s_mul_i32 s65, s51, {TBS}
    s_add_u32 s65, s65, {TB}
    v_lshlrev_b32 v6, 2, v0
    v_add_u32 v6, s65, v6
    v_and_b32 v1, 31, v0
    v_lshrrev_b32 v2, 5, v0
    v_lshlrev_b32 v2, 4, v2
    v_add_u32 v2, s65, v2
    v_mov_b32 v3, 272
    v_mad_u32_u24 v7, v1, v3, v2
    v_bfe_u32 v8, v0, 3, 1
    v_and_b32 v9, 3, v0
    v_lshl_add_u32 v8, v8, 2, v9
    v_cvt_f32_u32 v8, v8
    v_bfe_u32 v9, v0, 4, 1
    v_bfe_u32 v16, v0, 2, 1
    v_lshl_add_u32 v9, v9, 1, v16
    v_min_u32 v16, 2, v9
    v_sub_u32 v16, 0, v16
    v_ldexp_f32 v16, v8, v16
    v_rndne_f32 v16, v16
    v_cvt_u32_f32 v16, v16
    v_lshlrev_b32 v17, 3, v9
    s_mov_b32 s66, 0x100d0800
    v_lshrrev_b32 v17, v17, s66
    v_and_b32 v17, 0xff, v17
    v_add_u32 v16, v16, v17
    v_mul_f32 v8, 0.125, v8
    v_rndne_f32 v8, v8
    v_cvt_u32_f32 v8, v8
    v_lshl_add_u32 v8, v9, 1, v8
    v_add_u32 v8, 19, v8
    s_cmp_eq_u32 s53, 0
    s_cselect_b64 vcc, -1, 0
    s_cselect_b32 s70, 0, 0xaaaaaaaa
    s_mov_b32 s71, s70
    v_cndmask_b32 v9, v8, v16, vcc
    v_cndmask_b32 v8, v16, v8, vcc
    v_mad_u32_u24 v9, v9, v3, v2
    v_mad_u32_u24 v8, v8, v3, v2
    v_mov_b32 v16, 0
    v_mov_b32 v17, 0
    v_mov_b32 v18, 0
    v_mov_b32 v19, 0
    v_min_u32 v1, 32, v0
    s_mul_i32 s66, s51, {US}
    s_add_u32 s66, s66, {UB}
    v_lshl_add_u32 v1, v1, 4, s66
    ds_write_b128 v1, v[16:19]
    s_mul_i32 s67, s52, {KXS}
    s_add_u32 s67, s67, {KX}
    v_mov_b32 v1, s67
    ds_write_b128 v1, v[16:19]
    """)
    vm.wait(a, "par")
    a(f"""
    s_mov_b32 s66, {LOG2E}
    s_mov_b32 s68, 0xffff0000
    s_mov_b32 s69, {INV2PI}
    v_mul_f32 v14, s66, v14
    v_mul_f32 v10, s66, v10
    v_exp_f32 v14, v14
    v_exp_f32 v10, v10
    s_mov_b32 s72, 0x41000000
    s_mov_b32 s73, 0x43800000
    v_cvt_pk_bf16_f32 v1, v14, v10
    v_lshlrev_b32 v14, 16, v1
    v_and_b32 v10, s68, v1
    v_mul_f32 v10, v10, v14
    v_mul_f32 v11, v11, v14
    v_mul_f32 v26, v12, v14
    v_mul_f32 v27, v13, v14
    v_mul_f32 v10, s66, v10
    v_mul_f32 v11, s69, v11
    v_add_f32 v26, v26, v26
    v_add_f32 v27, v27, v27
    """)
    for d, sc in ((20, None), (22, "s72"), (24, "s73")):
        if sc: a(f"v_mul_f32 v1, {sc}, v10\nv_mul_f32 v2, {sc}, v11\nv_exp_f32 v1, -v1\nv_fract_f32 v2, v2")
        else: a("v_exp_f32 v1, -v10\nv_fract_f32 v2, v11")
        a(f"v_cos_f32 v{d}, v2\nv_sin_f32 v{d+1}, v2\nv_mul_f32 v{d}, v1, v{d}\nv_mul_f32 v{d+1}, v1, v{d+1}")
    def lrow(b):
        cur = 28 + 2 * (b & 1)
        if b == 0:
            a("v_mov_b32 v3, 0x3f80\nds_write_b32 v6, v3")
            return
        if b == 1: a(f"v_mov_b32 v{cur}, v22\nv_mov_b32 v{cur+1}, v23")
        else: cmul(a, cur, 28 + 2 * ((b - 1) & 1), 22, 32)
        a(f"v_cvt_pk_bf16_f32 v{34 + (b & 1)}, v{cur}, v{cur+1}\nds_write_b32 v6, v{34 + (b & 1)} offset:{272*b}")
    for b in range(0, 6): lrow(b)
    lstamp(a, 18); vm.wait(a, "s0"); a("s_barrier")
    a(f"""
    v_lshrrev_b32 v1, 4, v0
    v_bfe_u32 v2, v0, 2, 2
    v_lshl_add_u32 v2, v1, 3, v2
    v_bfe_u32 v3, v0, 1, 1
    s_lshl_b32 s66, s51, 1
    v_add_u32 v3, s66, v3
    v_bfe_u32 v36, v2, 1, 3
    v_xor_b32 v36, v36, v3
    v_and_b32 v37, 1, v0
    v_lshlrev_b32 v37, 3, v37
    v_lshl_add_u32 v37, v2, 7, v37
    v_xor_b32 v38, 2, v36
    v_lshl_add_u32 v36, v36, 4, v37
    v_lshl_add_u32 v37, v38, 4, v37
    ds_read_b64_tr_b16 v[40:41], v36 offset:{XR}
    ds_read_b64_tr_b16 v[42:43], v37 offset:{XR + 512}
    ds_read_b64_tr_b16 v[44:45], v36 offset:{XR + 4096}
    ds_read_b64_tr_b16 v[46:47], v37 offset:{XR + 4096 + 512}
    v_bfe_u32 v2, v0, 1, 3
    v_lshlrev_b32 v2, 13, v2
    v_and_b32 v3, 1, v0
    v_lshl_add_u32 v2, v3, 6, v2
    v_lshl_add_u32 v2, v1, 4, v2
    s_lshl_b32 s66, {SX}, 18
    s_lshl_b32 s69, s51, 16
    s_add_u32 s66, s66, s69
    s_lshl_b32 s69, {SJ}, 8
    s_add_u32 s66, s66, s69
    s_add_u32 s66, s66, {XT}
    s_waitcnt lgkmcnt(0)
    buffer_store_dwordx4 v[40:43], v2, {R_WS}, s66 offen {st_mod}
    buffer_store_dwordx4 v[44:47], v2, {R_WS}, s66 offen offset:128 {st_mod}
    """)
    vm.add("xt", 2)
    for b in range(6, 20): lrow(b)
    lstamp(a, 19); vm.wait(a, "s1"); a("s_barrier")
    dma(3)
    for b in range(20, 32): lrow(b)
    LF, HK, HS, AK, AS = 64, 96, 128, 160, 176
    a("s_waitcnt lgkmcnt(0)")
    for ks in range(8): a(f"ds_read_b128 {vr(LF+4*ks,4)}, v7 offset:{32*ks}")
    lstamp(a, 20); vm.wait(a, "s2"); a("s_waitcnt lgkmcnt(0)\ns_barrier")
    dma(4)
    def hw(reg, row):
        t = 34 + (row & 1)
        a(f"v_cvt_pk_bf16_f32 v{t}, v{reg}, -v{reg+1}\nds_write_b32 v6, v{t} offset:{272*row}")
    H = lambda p: 40 + 2 * p
    a(f"v_mov_b32 v{H(0)}, v26\nv_mov_b32 v{H(0)+1}, v27")
    hw(H(0), 0)
    for p in range(1, 9):
        cmul(a, H(p), H(p - 1), 20, 32)
        if p < 8: hw(H(p), p)
    row = 8
    for grp in ((0, 2, 4, 6, 8), (0, 4, 8)):
        for p in grp:
            cmul(a, H(p), H(p), 24, 32); hw(H(p), row); row += 1
    lstamp(a, 21); vm.wait(a, "s3"); a("s_barrier")
    dma(5)
    for grp in ((0, 4, 8), (0, 8), (0, 8), (0, 8), (0, 8)):
        for p in grp:
            cmul(a, H(p), H(p), 24, 32); hw(H(p), row); row += 1
    assert row == 27
    a("s_waitcnt lgkmcnt(0)")
    for ks in range(8): a(f"ds_read_b128 {vr(HS+4*ks,4)}, v8 offset:{32*ks}")
    for ks in range(7): a(f"ds_read_b128 {vr(HK+4*ks,4)}, v9 offset:{32*ks}")
    a("s_waitcnt lgkmcnt(7)")
    a(f"ds_read_b128 {vr(HK+28,4)}, v9 offset:{32*7}")
    for ks in range(8):
        a(f"v_mfma_f32_32x32x16_bf16 {vr(AS,16)}, {vr(HS+4*ks,4)}, {vr(LF+4*ks,4)}, {'0' if ks == 0 else vr(AS,16)}")
    a("s_waitcnt lgkmcnt(0)")
    for ks in range(8):
        a(f"v_mfma_f32_32x32x16_bf16 {vr(AK,16)}, {vr(HK+4*ks,4)}, {vr(LF+4*ks,4)}, {'0' if ks == 0 else vr(AK,16)}")
    a(f"v_lshlrev_b32 v1, 4, v0\nv_add_u32 v2, s65, v1\ns_xor_b32 s66, s51, 1\ns_mul_i32 s66, s66, {TBS}\ns_add_u32 s66, s66, {TB}\nv_add_u32 v3, s66, v1")
    for i in range(4): a(f"ds_write_b128 v2, {vr(AS+4*i,4)} offset:{1024*i}")
    lstamp(a, 22); vm.wait(a, "s4"); a("s_waitcnt lgkmcnt(0)\ns_barrier")
    for i in range(4): a(f"ds_read_b128 {vr(AS+4*i,4)}, v3 offset:{1024*i}")
    dma(6)
    a(f"""
    s_lshl_b32 s66, s53, 11
    s_add_u32 s66, s66, s67
    v_lshrrev_b32 v2, 5, v0
    v_and_b32 v3, 31, v0
    v_lshlrev_b32 v3, 4, v3
    v_lshl_add_u32 v2, v2, 9, v3
    v_add_u32 v2, s66, v2
    s_waitcnt lgkmcnt(0)
    """)
    for i in range(16): a(f"v_add_f32 v{AK+i}, v{AK+i}, v{AS+i}")
    for rg in range(2): a(f"v_cndmask_b32 v{AK+8*rg+4}, v{AK+8*rg+4}, v{AK+8*rg+5}, s[70:71]")
    for i in range(8): a(f"v_cvt_pk_bf16_f32 v{40+i}, v{AK+2*i}, v{AK+2*i+1}")
    for rg in range(2): a(f"ds_write_b128 v2, {vr(40+4*rg,4)} offset:{16 + 1024*rg}")
    lstamp(a, 23); vm.wait(a, "s5"); a("s_waitcnt lgkmcnt(0)\ns_barrier")
    a(f"""
    v_add_u32 v2, s66, v1
    ds_read_b64 v[40:41], v2 offset:8
    ds_read_b128 v[42:45], v2 offset:16
    ds_read_b64 v[46:47], v2 offset:{1024+8}
    ds_read_b128 v[48:51], v2 offset:{1024+16}
    """)
    dma(7)
    a(f"""
    s_mul_i32 s66, s52, {RDS}
    s_add_u32 s66, s66, {RB}
    v_bfe_u32 v2, v0, 2, 2
    v_mov_b32 v3, {RE}
    v_mul_u32_u24 v2, v2, v3
    v_and_b32 v3, 3, v0
    v_min_u32 v3, 2, v3
    v_lshl_add_u32 v2, v3, 4, v2
    v_add_u32 v2, s66, v2
    ds_write_b128 v2, v[16:19] offset:4096
    s_lshl_b32 s69, s53, 11
    s_sub_u32 s66, s66, s69
    s_add_u32 s66, s66, {255*16 - 1024}
    v_sub_u32 v2, s66, v1
    s_mov_b32 s69, 0xffff
    s_waitcnt lgkmcnt(1)
    """)
    def expand(q):
        w = lambda i: 40 + 6 * q + 2 + i
        for e in range(4):
            o = 64 + 4 * e
            for i in range(4):
                hi = 3 - i - (0 if e >= 2 else 1)
                if e & 1: a(f"v_alignbit_b32 v{o+i}, v{w(hi)}, v{w(hi)}, 16")
                else: a(f"v_bfi_b32 v{o+i}, s69, v{w(hi)}, v{w(hi-1)}")
            a(f"ds_write_b128 v2, {vr(o,4)} offset:{e*RE + 1024*(1-q)}")
    expand(0)
    lstamp(a, 24); vm.wait(a, "s6"); a("s_barrier")
    expand(1)
    lstamp(a, 25); vm.wait(a, "s7"); a("s_barrier")
    return vm

def u_load(a, ld_mod=""):
    a(f"""
    s_lshl_b32 s66, {SX}, 18
    s_lshl_b32 s69, {SJ}, 13
    s_add_u32 s66, s66, s69
    s_lshl_b32 s69, s51, 11
    s_add_u32 s66, s66, s69
    s_add_u32 s66, s66, {XT}
    v_lshlrev_b32 v1, 4, v0
    buffer_load_dwordx4 v[40:43], v1, {R_WS}, s66 offen {ld_mod}
    buffer_load_dwordx4 v[44:47], v1, {R_WS}, s66 offen offset:1024 {ld_mod}
    v_lshrrev_b32 v2, 3, v0
    v_lshlrev_b32 v2, 6, v2
    v_and_b32 v3, 3, v0
    v_lshl_add_u32 v2, v3, 4, v2
    v_bfe_u32 v3, v0, 2, 1
    v_mul_u32_u24 v3, {UD}, v3
    s_lshl_b32 s69, s51, 10
    s_add_u32 s69, s69, {UB + 512}
    v_add3_u32 v2, v2, v3, s69
    """)

def u_store(a):
    for q in range(2):
        a(f"ds_write_b128 v2, {vr(40+4*q,4)} offset:{512*q}")
        a(f"ds_write_b64 v2, {vr(40+4*q,2)} offset:{512*q + US + 8}")
        a(f"ds_write_b64 v2, {vr(42+4*q,2)} offset:{512*q + US + 16}")

def conv(a, tag, st_mod=""):
    a(f"""
    s_mul_i32 s66, s52, {RDS}
    s_add_u32 s66, s66, {RB + 4128 - 64*7 - 512*7}
    v_and_b32 v1, 3, v0
    v_mul_u32_u24 v1, {RE}, v1
    v_lshrrev_b32 v2, 4, v0
    v_bfe_u32 v3, v0, 2, 2
    v_add_u32 v3, v3, v2
    v_lshlrev_b32 v3, 4, v3
    v_sub_u32 v1, v1, v3
    v_add_u32 v4, s66, v1
    s_mul_i32 s66, s52, {UD}
    s_add_u32 s69, s66, {UB + US + 512 + 48 - 64*7}
    v_bfe_u32 v1, v0, 1, 3
    v_lshlrev_b32 v1, 6, v1
    v_lshlrev_b32 v3, 4, v2
    v_sub_u32 v5, v1, v3
    v_add_u32 v1, v1, v3
    v_and_b32 v3, 1, v0
    v_lshl_add_u32 v7, v3, 3, v1
    v_mul_u32_u24 v3, {US}, v3
    v_sub_u32 v5, v5, v3
    v_add_u32 v5, s69, v5
    s_add_u32 s66, s66, {UB + 512}
    v_add_u32 v6, s66, v7
    s_lshl_b32 s66, s54, 12
    s_add_u32 s66, s66, {BT}
    s_cmp_eq_u32 s53, 0
    s_cbranch_scc0 L_{tag}_set1
    """)
    ACC = 16; FA = (64, 128); FB = (96, 160)
    for sidx, cs in enumerate(((0, 3, 4, 7), (1, 2, 5, 6))):
        if sidx: a.reset(); a(f"L_{tag}_set1:")
        n = max(cs) + 1
        def rd_list(rho):
            s = rho & 1; l = []
            for i in range(n):
                l.append(f"ds_read_b128 {vr(FA[s]+4*i,4)}, v4 offset:{512*(7-i) + 64*(7-rho)}")
                l.append(f"ds_read_b128 {vr(FB[s]+4*i,4)}, v5 offset:{512*i + 64*(7-rho)}")
            return l
        for r in rd_list(0)[:15]: a(r)
        pend = rd_list(0)[15:]
        for rho in range(8):
            s = rho & 1
            if pend:
                a("s_waitcnt lgkmcnt(8)")
                for r in pend: a(r)
            a("s_waitcnt lgkmcnt(0)")
            nxt = rd_list(rho + 1) if rho < 7 else []
            pend = nxt[15:]; nxt = nxt[:15]
            seen = set()
            mms = [(ci, sg, c - sg) for sg in range(n) for ci, c in enumerate(cs) if c >= sg]
            for k, (ci, sg, dl) in enumerate(mms):
                c0 = "0" if (rho == 0 and ci not in seen) else vr(ACC + 4 * ci, 4)
                seen.add(ci)
                a(f"v_mfma_f32_16x16x32_bf16 {vr(ACC+4*ci,4)}, {vr(FA[s]+4*sg,4)}, {vr(FB[s]+4*dl,4)}, {c0}")
                if k < len(nxt): a(nxt[k])
        for ci, c in enumerate(cs): a(f"ds_read_b64 {vr(40+2*ci,2)}, v6 offset:{512*c}")
        a("s_mov_b32 s68, 0xffff0000\ns_waitcnt lgkmcnt(0)")
        for ci, c in enumerate(cs):
            for k in range(2):
                a(f"""
                v_lshlrev_b32 v48, 16, v{40+2*ci+k}
                v_and_b32 v49, s68, v{40+2*ci+k}
                v_fmac_f32 v{ACC+4*ci+2*k}, v48, v15
                v_fmac_f32 v{ACC+4*ci+2*k+1}, v49, v15
                v_cvt_pk_bf16_f32 v{50+2*ci+k}, v{ACC+4*ci+2*k}, v{ACC+4*ci+2*k+1}
                """)
            a(f"buffer_store_dwordx2 {vr(50+2*ci,2)}, v7, {R_WS}, s66 offen offset:{512*c} {st_mod}")
        if sidx == 0: a(f"s_branch L_{tag}_done")
    a.reset(); a(f"L_{tag}_done:")

AQ, AKS, AV1, AV2, AS_, AO = 4, (8, 12), (16, 24), (20, 28), (32, 48), 64

def att_setup(a):
    a(f"""
    s_lshr_b32 s74, {SJ}, 3
    s_lshl_b32 s75, {SX}, 2
    s_add_u32 s74, s74, s75
    s_and_b32 s75, {SJ}, 7
    s_lshl_b32 s76, s75, 3
    s_add_u32 s76, s76, {SW}
    s_lshl_b32 s77, s74, 6
    s_add_u32 s77, s77, s76
    s_lshl_b32 s77, s77, 10
    s_add_u32 s77, s77, {QF}
    s_lshl_b32 s78, s74, 17
    s_lshl_b32 s79, {SW}, 10
    s_add_u32 s78, s78, s79
    s_add_u32 s78, s78, {KV}
    v_lshlrev_b32 v1, 4, v0
    """)

def att_dma(a, rounds, ld_mod=""):
    for r in rounds:
        a(f"s_add_u32 m0, s79, {8192*r}\ns_add_u32 s80, s78, {8192*r}\nbuffer_load_dwordx4 v1, {R_WS}, s80 offen {ld_mod} lds")

def att_regs(a):
    a(f"""
    v_lshrrev_b32 v2, 5, v0
    v_lshlrev_b32 v2, 8, v2
    v_and_b32 v3, 15, v0
    v_lshl_add_u32 v2, v3, 4, v2
    v_add_u32 v2, 1024, v2
    v_add_u32 v80, 0x10000, v1
    v_add_u32 v81, 0x10000, v2
    v_mov_b32 v3, 0xdddddddd
    s_mov_b32 s82, 0xffff
    s_mov_b32 s83, 0xffff
    """)
    if OPT.get("ones") == "few":
        a("v_and_b32 v8, 27, v0\nv_cmp_eq_u32 vcc, 16, v8\nv_mov_b32 v9, 0x3f803f80\nv_cndmask_b32 v16, 0, v9, vcc")
        for r in range(17, 32): a(f"v_mov_b32 v{r}, v16")
    else:
        for r in range(16, 32): a(f"v_mov_b32 v{r}, 0x3f803f80")
    for r in range(16): a(f"v_mov_b32 v{AO+r}, 0")

def att_main(a0, hooks, prios):
    def a(txt):
        if OPT.get("nopv") and txt.startswith("v_smfmac"): return
        if OPT.get("dense") and txt.startswith("v_smfmac"):
            import re
            m = re.match(r"v_smfmac\S+ (\S+), (\S+), v\[(\d+):\d+\], v3", txt); b = int(m.group(3)); p = 84 + (b & 8) // 2
            for k in range(4): a0(f"v_cvt_pk_bf16_f32 v{p+k}, v{b+2*k}, v{b+2*k+1}")
            a0(f"s_nop 1\nv_mfma_f32_32x32x16_bf16 {m.group(1)}, {m.group(2)}, v[{p}:{p+3}], {m.group(1)}"); return
        if OPT.get("agpr") and txt.startswith("v_smfmac"): txt = txt.replace("v[64:79]", "a[0:15]")
        if OPT.get("halfpv") and txt.startswith("v_smfmac") and ("v[20:23]" in txt or "v[28:31]" in txt): return
        if OPT.get("noqk") and txt.startswith("v_mfma"): return
        if OPT.get("nods") and txt.startswith(("ds_read", "s_mov_b64 exec")): return
        if OPT.get("noexp") and txt.startswith("v_exp"): txt = txt.replace("v_exp_f32", "v_mov_b32") + "\n" + txt.replace("v_exp_f32", "v_mov_b32")
        a0(txt)
    def rdk(t):
        b, o = (1, 2048 * t) if t < 32 else (80, 2048 * (t - 32))
        a(f"ds_read_b128 {vr(AKS[t&1],4)}, v{b} offset:{o}")
    def rdv(t):
        b, o = (2, 2048 * t) if t < 31 else (81, 2048 * (t - 32)) if t >= 32 else (2, None)
        if o is None:
            b, o = 2, 2048 * t
        a("s_mov_b64 exec, s[82:83]")
        a(f"ds_read_b128 {vr(AV1[t&1],4)}, v{b} offset:{o}")
        a(f"ds_read_b128 {vr(AV2[t&1],4)}, v{b} offset:{o+512}")
        a("s_mov_b64 exec, -1")
    rdk(0); rdk(1); rdv(0)
    a("s_waitcnt lgkmcnt(3)")
    a(f"v_mfma_f32_32x32x16_bf16 {vr(AS_[0],16)}, {vr(AKS[0],4)}, {vr(AQ,4)}, 0")
    for t in range(64):
        c, n = AS_[t & 1], AS_[(t + 1) & 1]
        ex = lambda i0, i1: [a(f"v_exp_f32 v{c+i}, v{c+i}") for i in range(i0, i1)]
        if t in prios: a(f"s_setprio {prios[t]}")
        ex(0, 2)
        if t: a(f"v_smfmac_f32_32x32x32_bf16 {vr(AO,16)}, {vr(AV2[(t-1)&1],4)}, {vr(n+8,8)}, v3")
        if t in hooks: hooks[t]()
        k = 0
        if t + 1 < 64: rdv(t + 1); k += 2
        if t + 2 < 64: rdk(t + 2); k += 1
        ex(2, 5)
        a(f"s_waitcnt lgkmcnt({k})")
        if t + 1 < 64: a(f"v_mfma_f32_32x32x16_bf16 {vr(n,16)}, {vr(AKS[(t+1)&1],4)}, {vr(AQ,4)}, 0")
        ex(5, 10)
        a(f"v_smfmac_f32_32x32x32_bf16 {vr(AO,16)}, {vr(AV1[t&1],4)}, {vr(c,8)}, v3")
        ex(10, 16)
    a(f"v_smfmac_f32_32x32x32_bf16 {vr(AO,16)}, {vr(AV2[1],4)}, {vr(AS_[1]+8,8)}, v3")

def att_main_nq(a, nq, nt, hooks, prios, QB=84, OB=100, dense=False):
    def rdk(t):
        b, o = (1, 2048 * t) if t < 32 else (80, 2048 * (t - 32))
        a(f"ds_read_b128 {vr(AKS[t&1],4)}, v{b} offset:{o}")
    def rdv(t):
        b, o = (2, 2048 * t) if t < 32 else (81, 2048 * (t - 32))
        a("s_mov_b64 exec, s[82:83]")
        a(f"ds_read_b128 {vr(AV1[t&1],4)}, v{b} offset:{o}")
        a(f"ds_read_b128 {vr(AV2[t&1],4)}, v{b} offset:{o+512}")
        a("s_mov_b64 exec, -1")
    Q = lambda i: vr(QB + 4 * i, 4); O = lambda i: vr(OB + 16 * i, 16)
    rdk(0); rdv(0)
    a("s_waitcnt lgkmcnt(2)")
    a(f"v_mfma_f32_32x32x16_bf16 {vr(AS_[0],16)}, {vr(AKS[0],4)}, {Q(0)}, 0")
    a("s_waitcnt lgkmcnt(0)")
    nv = nq * nt
    for v in range(nv):
        t, i = divmod(v, nq)
        c, n = AS_[v & 1], AS_[(v + 1) & 1]
        ex = lambda i0, i1: [a(f"v_exp_f32 v{c+k}, v{c+k}") for k in range(i0, i1)]
        if v in prios: a(f"s_setprio {prios[v]}")
        ex(0, 2)
        if v:
            tp, ip = divmod(v - 1, nq)
            a(f"v_smfmac_f32_32x32x32_bf16 {O(ip)}, {vr(AV2[tp&1],4)}, {vr(n+8,8)}, v3")
        if i == 0:
            if t in hooks: hooks[t]()
            if t + 1 < nt: rdk(t + 1); rdv(t + 1)
        ex(2, 5)
        if v + 1 < nv:
            tn, in_ = divmod(v + 1, nq)
            if in_ == 0: a("s_waitcnt lgkmcnt(0)")
            a(f"v_mfma_f32_32x32x16_bf16 {vr(n,16)}, {vr(AKS[tn&1],4)}, {Q(in_)}, 0")
        ex(5, 10)
        a(f"v_smfmac_f32_32x32x32_bf16 {O(i)}, {vr(AV1[t&1],4)}, {vr(c,8)}, v3")
        ex(10, 16)
    a(f"v_smfmac_f32_32x32x32_bf16 {O(nq-1)}, {vr(AV2[(nt-1)&1],4)}, {vr(AS_[(nv-1)&1]+8,8)}, v3")

def att_finish(a, tag, st_mod=""):
    S = AS_[0]; NM = AS_[1]
    a(f"""
    s_lshl_b32 s80, s76, 5
    s_add_u32 s80, s80, s74
    s_lshl_b32 s80, s80, 10
    s_add_u32 s80, s80, {OF}
    s_mov_b32 s84, 0x2b800000
    s_mov_b32 s85, 0x5d800000
    v_fma_f32 v8, v{AO}, 0, v{AO+8}
    """)
    for r in range(1, 8): a(f"v_fma_f32 v8, v{AO+r}, 0, v8")
    a(f"""
    v_cmp_nge_f32 vcc, v8, s84
    v_cmp_nle_f32 s[86:87], v8, s85
    s_or_b64 vcc, vcc, s[86:87]
    s_cbranch_vccnz L_{tag}_slow
    L_{tag}_norm:
    v_rcp_f32 v8, v{AO+8}
    """)
    for r in range(8): a(f"v_mul_f32 v{AO+r}, v8, v{AO+r}")
    for r in range(4): a(f"v_cvt_pk_bf16_f32 v{12+r}, v{AO+2*r}, v{AO+2*r+1}")
    a(f"buffer_store_dwordx4 v[12:15], v1, {R_WS}, s80 offen {st_mod}")

def att_slow(a, tag):
    S = AS_[0]; NM = AS_[1]
    a.reset()
    a(f"""
    L_{tag}_slow:
    v_mov_b32 v82, v1
    v_mov_b32 v84, 0xff800000
    s_mov_b32 s84, 64
    L_{tag}_slow1:
    ds_read_b128 {vr(AKS[0],4)}, v82
    v_add_u32 v82, 2048, v82
    s_waitcnt lgkmcnt(0)
    v_mfma_f32_32x32x16_bf16 {vr(S,16)}, {vr(AKS[0],4)}, {vr(AQ,4)}, 0
    """)
    for r in range(8): a(f"v_max3_f32 v84, v{S+2*r}, v{S+2*r+1}, v84")
    a(f"""
    s_sub_u32 s84, s84, 1
    s_cmp_lg_u32 s84, 0
    s_cbranch_scc1 L_{tag}_slow1
    v_mov_b32 v85, v84
    v_permlane32_swap_b32 v84, v85
    v_max_f32 v84, v84, v85
    """)
    for r in range(16): a(f"v_sub_f32 v{NM+r}, 0, v84\nv_mov_b32 v{AO+r}, 0")
    a(f"""
    v_mov_b32 v82, v1
    v_mov_b32 v83, v2
    s_mov_b32 s84, 64
    L_{tag}_slow2:
    ds_read_b128 {vr(AKS[0],4)}, v82
    s_mov_b64 exec, s[82:83]
    ds_read_b128 {vr(AV1[0],4)}, v83
    ds_read_b128 {vr(AV2[0],4)}, v83 offset:512
    s_mov_b64 exec, -1
    v_add_u32 v82, 2048, v82
    v_add_u32 v83, 2048, v83
    s_waitcnt lgkmcnt(0)
    v_mfma_f32_32x32x16_bf16 {vr(S,16)}, {vr(AKS[0],4)}, {vr(AQ,4)}, {vr(NM,16)}
    """)
    for r in range(16): a(f"v_exp_f32 v{S+r}, v{S+r}")
    a(f"""
    v_smfmac_f32_32x32x32_bf16 {vr(AO,16)}, {vr(AV1[0],4)}, {vr(S,8)}, v3
    v_smfmac_f32_32x32x32_bf16 {vr(AO,16)}, {vr(AV2[0],4)}, {vr(S+8,8)}, v3
    s_sub_u32 s84, s84, 1
    s_cmp_lg_u32 s84, 0
    s_cbranch_scc1 L_{tag}_slow2
    s_nop 15
    s_branch L_{tag}_norm
    """)

PW, PB, PG = 96, 160, 168

def out_side_loads(a, ld_mod=""):
    a(f"""
    s_lshl_b32 s88, s75, 3
    s_lshr_b32 s89, s74, 2
    s_add_u32 s88, s88, s89
    s_and_b32 s89, s74, 3
    s_lshl_b32 s89, s89, 3
    s_add_u32 s89, s89, {SW}
    s_lshl_b32 s90, s89, 14
    s_add_u32 s90, s90, {WOF}
    """)
    for ks in range(16):
        if ks and ks % 4 == 0: a("s_add_u32 s90, s90, 4096")
        a(f"buffer_load_dwordx4 {vr(PW+4*ks,4)}, v1, {R_WS}, s90 offen offset:{1024*(ks%4)} {ld_mod}")
    a(f"""
    v_lshrrev_b32 v86, 4, v0
    v_and_b32 v87, 15, v0
    v_lshlrev_b32 v88, 14, v86
    v_lshl_add_u32 v88, v87, 1, v88
    s_lshl_b32 s90, s89, 16
    s_lshl_b32 s91, s88, 6
    s_add_u32 s90, s90, s91
    s_add_u32 s90, s90, {BT}
    """)
    for i in range(4):
        if i: a("s_add_u32 s90, s90, 4096")
        for nt in range(2): a(f"buffer_load_short_d16_hi v{PB+4*nt+i}, v88, {R_WS}, s90 offen offset:{32*nt} {ld_mod}")
    a(f"""
    v_lshlrev_b32 v88, 2, v87
    s_lshl_b32 s90, s88, 7
    s_add_u32 s90, s90, {GW}
    buffer_load_dword v{PG}, v88, {R_WS}, s90 offen {ld_mod}
    buffer_load_dword v{PG+1}, v88, {R_WS}, s90 offen offset:64 {ld_mod}
    """)

def out_side_math(a):
    a(f"""
    s_mov_b32 s68, 0xffff0000
    v_sub_f32 v88, 1.0, v{PG}
    v_sub_f32 v89, 1.0, v{PG+1}
    v_cvt_pk_bf16_f32 v89, v88, v89
    v_lshlrev_b32 v88, 16, v89
    v_and_b32 v89, s68, v89
    """)
    for nt in range(2):
        for i in range(4): a(f"v_mul_f32 v{PB+4*nt+i}, v{88+nt}, v{PB+4*nt+i}")
        for i in range(0, 4, 2):
            r = PB + 4 * nt + i
            a(f"v_cvt_pk_bf16_f32 v{r+1}, v{r}, v{r+1}\nv_lshlrev_b32 v{r}, 16, v{r+1}\nv_and_b32 v{r+1}, s68, v{r+1}")

def out_o_load(a, ld_mod=""):
    a(f"""
    s_lshl_b32 s90, s88, 15
    s_lshl_b32 s91, {SW}, 12
    s_add_u32 s90, s90, s91
    s_add_u32 s90, s90, {OF}
    """)
    for i in range(4): a(f"buffer_load_dwordx4 {vr(32+4*i,4)}, v1, {R_WS}, s90 offen offset:{1024*i} {ld_mod}")

def out_o_stage(a):
    a(f"s_add_u32 s91, s91, {OS}\nv_add_u32 v2, s91, v1")
    for i in range(4): a(f"ds_write_b128 v2, {vr(32+4*i,4)} offset:{1024*i}")

def out_gemm(a):
    a(f"""
    v_lshlrev_b32 v2, 9, v86
    v_lshl_add_u32 v2, v87, 4, v2
    v_add_u32 v2, {OS}, v2
    v_lshlrev_b32 v3, 10, v87
    v_lshl_add_u32 v3, v86, 3, v3
    s_lshl_b32 s90, s88, 15
    s_lshl_b32 s91, s89, 5
    s_add_u32 s90, s90, s91
    v_add_u32 v3, s90, v3
    v_add_u32 v4, 0x4000, v3
    s_waitcnt lgkmcnt(0)
    s_barrier
    """)
    NB = 12; FB = 16
    rd = lambda i: a(f"ds_read_b128 {vr(FB+4*(i%NB),4)}, v2 offset:{2048*(i>>1) + 256*(i&1)}")
    for i in range(NB): rd(i)
    for i in range(32):
        left = min(NB - 1, 31 - i)
        a(f"s_waitcnt lgkmcnt({left})")
        acc = 8 + 4 * (i & 1)
        a(f"v_mfma_f32_16x16x32_bf16 {vr(acc,4)}, {vr(PW+4*(i>>1),4)}, {vr(FB+4*(i%NB),4)}, {'0' if i < 2 else vr(acc,4)}")
        if i + NB < 32: rd(i + NB)
    for nt in range(2):
        for i in range(4): a(f"v_fma_f32 v{8+4*nt+i}, v{8+4*nt+i}, v{PG+nt}, v{PB+4*nt+i}")
        a(f"v_cvt_pk_bf16_f32 v{16+2*nt}, v{8+4*nt}, v{9+4*nt}\nv_cvt_pk_bf16_f32 v{17+2*nt}, v{10+4*nt}, v{11+4*nt}")
        a(f"global_store_dwordx2 v{3+nt}, {vr(16+2*nt,2)}, {S_OUT}")

STAMPS = False
STB = 0x1F00000
STAMP_WAVES = {}
def stamp(a, slot, waves=range(8), drain=False):
    if not STAMPS: return
    STAMP_WAVES[slot] = list(waves)
    if drain: a("s_waitcnt vmcnt(0)")
    a(f"""
    s_memrealtime s[94:95]
    s_memtime s[98:99]
    s_lshl_b32 s96, s2, 3
    s_add_u32 s96, s96, {SW}
    s_lshl_b32 s96, s96, 2
    s_add_u32 s96, s96, {STB + 8192*slot}
    v_mov_b32 v253, 0
    s_waitcnt lgkmcnt(0)
    v_mov_b32 v254, s94
    v_mov_b32 v252, s98
    buffer_store_dword v254, v253, {R_WS}, s96 offen
    s_add_u32 s96, s96, 0x80000
    buffer_store_dword v252, v253, {R_WS}, s96 offen
    """)
    if drain: a("s_waitcnt vmcnt(0)")

LIGHT = []
def lstamp(a, slot):
    if "amp" in OPT:
        p = OPT["amp"].split(",")
        for k in range(2):
            if p[k] == str(slot): a(f"s_memrealtime s[{96+2*k}:{97+2*k}]\ns_waitcnt lgkmcnt(0)")
    if not STAMPS: return
    if OPT.get("stamp") is not True and str(slot) not in OPT["stamp"].split(","): return
    a(f"s_memrealtime s[94:95]\ns_memtime s[98:99]\ns_waitcnt lgkmcnt(0)\nv_writelane_b32 v250, s94, {slot}\nv_writelane_b32 v251, s98, {slot}")
    LIGHT.append(slot)
def lflush(a, waves):
    if not STAMPS: return
    mask = sum(1 << s for s in LIGHT)
    for sl in LIGHT: STAMP_WAVES[sl] = list(waves)
    LIGHT.clear()
    a(f"""
    s_lshl_b32 s96, s2, 3
    s_add_u32 s96, s96, {SW}
    s_lshl_b32 s96, s96, 2
    s_add_u32 s96, s96, {STB}
    v_lshlrev_b32 v253, 13, v0
    s_mov_b32 exec_lo, {mask}
    s_mov_b32 exec_hi, 0
    buffer_store_dword v250, v253, {R_WS}, s96 offen
    s_add_u32 s96, s96, 0x80000
    buffer_store_dword v251, v253, {R_WS}, s96 offen
    s_mov_b64 exec, -1
    """)

def stamp_reduce_kernel(a):
    kernel_head(a, "stamp_kernel")
    a("s_cmp_ge_u32 s2, 1\ns_cbranch_scc1 L_st_end\nv_mov_b32 v10, v0")
    prologue(a, "L_st_end")
    a("v_mov_b32 v2, 0\nv_lshlrev_b32 v3, 2, v10\nds_write_b32 v3, v2\ns_waitcnt lgkmcnt(0)\ns_barrier\nv_lshlrev_b32 v3, 5, v10\nv_mov_b32 v6, 0")
    for slot, waves in sorted(STAMP_WAVES.items()):
        for w in waves:
            a(f"s_mov_b32 s60, {STB + 8192*slot + 4*w}\nbuffer_load_dword v4, v3, {R_WS}, s60 offen\ns_waitcnt vmcnt(0)\nv_not_b32 v5, v4")
            a(f"ds_max_u32 v6, v5 offset:{8*slot}\nds_max_u32 v6, v4 offset:{8*slot+4}")
    a(f"s_waitcnt lgkmcnt(0)\ns_barrier\nv_lshlrev_b32 v3, 2, v10\nds_read_b32 v4, v3\nv_cmp_gt_u32 vcc, 64, v10\ns_and_saveexec_b64 s[60:61], vcc\ns_cbranch_execz L_st_end\ns_waitcnt lgkmcnt(0)\nglobal_store_dword v3, v4, {S_DBG}")
    a("L_st_end:\ns_endpgm")

def kernel_head(a, name):
    a.reset()
    a.raw(f".globl {name}\n.p2align 8\n.type {name},@function\n{name}:")

def descriptor(name, vgpr):
    if OPT.get("agpr") and name == "attn_kernel":
        return descriptor("x", 256).replace("kernel x", "kernel " + name).replace("next_free_vgpr 256", "next_free_vgpr 256").replace("accum_offset 256", "accum_offset 240")
    return f""".p2align 6
.amdhsa_kernel {name}
  .amdhsa_next_free_vgpr {vgpr}
  .amdhsa_next_free_sgpr 102
  .amdhsa_accum_offset {vgpr}
  .amdhsa_group_segment_fixed_size 0
  .amdhsa_kernarg_size 112
  .amdhsa_user_sgpr_count 2
  .amdhsa_user_sgpr_kernarg_segment_ptr 1
  .amdhsa_system_sgpr_workgroup_id_x 1
.end_amdhsa_kernel
"""

def header():
    ref = open(f"cdna_kernels/{NAME}.s.ref").read().split("\n")
    return "\n".join(l for l in ref[:15]) + "\n"

PRIOS = {0: 3, 38: 2, 54: 1, 61: 0}

def aux_ids(a):
    a(f"""
    s_and_b32 s51, {SW}, 3
    s_lshr_b32 s52, s51, 1
    s_and_b32 s53, s51, 1
    s_lshl_b32 s54, {SX}, 6
    s_lshl_b32 s55, {SJ}, 1
    s_add_u32 s54, s54, s55
    s_add_u32 s54, s54, s52
    """)

def build_multi(extra_empty=0):
    a = Asm()
    ks = ["proj_kernel", "conv_kernel", "attn_kernel", "outp_kernel"]
    launches = "".join(f"; @launch kernel={k} grid=(256,1,1) block=(512,1,1) lds={LDS_BYTES}\n" for k in ks)
    launches += "".join("; @launch kernel=empty_kernel grid=(256,1,1) block=(512,1,1) lds=0\n" for _ in range(extra_empty))
    if STAMPS: launches += "; @launch kernel=stamp_kernel grid=(1,1,1) block=(256,1,1) lds=1024\n"
    a.raw(header() + launches + '.amdgcn_target "amdgcn-amd-amdhsa--gfx950"\n.text')
    kernel_head(a, ks[0]); prologue(a, "L_k1_end"); stamp(a, 0, drain=True)
    a(f"s_cmp_ge_u32 {SW}, 4\ns_cbranch_scc1 L_k1_aux")
    p1_gemm(a); lstamp(a, 16); p1_side(a); lstamp(a, 17); lflush(a, range(4)); a("s_barrier"); stamp(a, 1, range(4), True); a("s_endpgm")
    a.reset(); a("L_k1_aux:")
    p1_aux(a); lflush(a, range(4, 8))
    a(f"""
    s_waitcnt lgkmcnt(0)
    s_barrier
    s_lshl_b32 s66, {SX}, 5
    s_add_u32 s66, s66, {SJ}
    s_mul_i32 s66, s66, 36864
    s_lshl_b32 s69, s51, 13
    s_add_u32 s66, s66, s69
    s_add_u32 s66, s66, {RD}
    s_add_u32 s69, s69, {RB}
    v_lshlrev_b32 v1, 4, v0
    v_add_u32 v2, s69, v1
    """)
    for i in range(9):
        a(f"ds_read_b128 {vr(64+4*i,4)}, v2 offset:{1024*i}")
    a("s_waitcnt lgkmcnt(0)")
    for i in range(9):
        a(f"buffer_store_dwordx4 {vr(64+4*i,4)}, v1, {R_WS}, s66 offen\ns_add_u32 s66, s66, 1024")
    a("L_k1_end:\ns_endpgm")
    kernel_head(a, ks[1]); prologue(a, "L_k2_end"); stamp(a, 2, drain=True)
    a(f"s_cmp_lt_u32 {SW}, 4\ns_cbranch_scc1 L_k2_end")
    aux_ids(a)
    a(f"""
    s_lshl_b32 s56, s54, 1
    v_mov_b32 v2, s56
    global_load_short_d16_hi v15, v2, {S_DSK}
    v_mov_b32 v16, 0
    v_mov_b32 v17, 0
    v_mov_b32 v18, 0
    v_mov_b32 v19, 0
    v_min_u32 v1, 32, v0
    s_mul_i32 s66, s51, {US}
    s_add_u32 s66, s66, {UB}
    v_lshl_add_u32 v1, v1, 4, s66
    ds_write_b128 v1, v[16:19]
    s_lshl_b32 s66, {SX}, 5
    s_add_u32 s66, s66, {SJ}
    s_mul_i32 s66, s66, 36864
    s_lshl_b32 s69, s51, 13
    s_add_u32 s66, s66, s69
    s_add_u32 s66, s66, {RD}
    s_add_u32 s69, s69, {RB}
    v_lshlrev_b32 v1, 4, v0
    """)
    for i in range(9):
        a(f"s_add_u32 m0, s69, {1024*i}\ns_add_u32 s70, s66, {1024*i}\nbuffer_load_dwordx4 v1, {R_WS}, s70 offen lds")
    a("s_waitcnt lgkmcnt(0)\ns_barrier")
    u_load(a); a("s_waitcnt vmcnt(0)"); u_store(a)
    a("s_waitcnt lgkmcnt(0)\ns_barrier")
    conv(a, "k2c"); stamp(a, 3, range(4, 8), True)
    a("L_k2_end:\ns_endpgm")
    kernel_head(a, ks[2]); prologue(a, "L_k3_end"); stamp(a, 4, drain=True)
    att_setup(a)
    a(f"buffer_load_dwordx4 {vr(AQ,4)}, v1, {R_WS}, s77 offen")
    att_dma(a, range(16)); att_regs(a)
    lstamp(a, 26); a("s_waitcnt vmcnt(15)\ns_barrier"); lstamp(a, 27)
    if "nq" in OPT:
        nq, nw = int(OPT["nq"]), int(OPT["nw"]); nt = 512 // nq // nw; qb = 84 if nq <= 4 else 216; ob = 100 if nq <= 4 else 84
        a("s_waitcnt vmcnt(0)\ns_barrier")
        for i in range(nq):
            for r in range(4): a(f"v_mov_b32 v{qb+4*i+r}, v{4+((r+i)&3)}")
            for r in range(16): a(f"v_mov_b32 v{ob+16*i+r}, 0")
        if nw == 4: a(f"s_cmp_ge_u32 {SW}, 4\ns_cbranch_scc1 L_k3_end")
        lstamp(a, 28)
        pr = {} if nw == 4 else PRIOS
        att_main_nq(a, nq, nt, {}, pr, qb, ob); lstamp(a, 29)
        for r in range(16): a(f"v_mov_b32 v{64+r}, v{100+r}")
    else:
      att_main(a, {2: lambda: a("s_waitcnt vmcnt(12)\ns_barrier"), 14: lambda: (a("s_waitcnt vmcnt(0)\ns_barrier"), lstamp(a, 28))}, PRIOS); lstamp(a, 29)
    att_finish(a, "k3"); lflush(a, range(8)); stamp(a, 5, drain=True)
    a("L_k3_end:\ns_endpgm")
    att_slow(a, "k3")
    kernel_head(a, ks[3]); prologue(a, "L_k4_end"); stamp(a, 6, drain=True)
    att_setup(a)
    a(f"s_lshl_b32 s88, s75, 3\ns_lshr_b32 s89, s74, 2\ns_add_u32 s88, s88, s89")
    out_o_load(a); out_side_loads(a)
    a(f"s_lshl_b32 s91, {SW}, 12\ns_waitcnt vmcnt(26)"); out_o_stage(a)
    a("s_waitcnt vmcnt(0)"); out_side_math(a)
    out_gemm(a); stamp(a, 7, drain=True)
    a("L_k4_end:\ns_endpgm")
    if extra_empty:
        kernel_head(a, "empty_kernel"); a("s_endpgm")
    if STAMPS: stamp_reduce_kernel(a)
    a.raw('.section .rodata,"a"')
    if STAMPS: a.raw(descriptor("stamp_kernel", 32))
    for k in ks: a.raw(descriptor(k, 256 if STAMPS else 192))
    if extra_empty: a.raw(descriptor("empty_kernel", 8))
    return a.text()

if __name__ == "__main__":
    mode = sys.argv[1] if len(sys.argv) > 1 else "multi"
    out = sys.argv[2] if len(sys.argv) > 2 else f"cdna_kernels/{NAME}.s"
    STAMPS = "stamp" in mode
    for o in sys.argv[4:]:
        k, _, v = o.partition("="); OPT[k] = v or True
    txt = build_multi(int(sys.argv[3]) if len(sys.argv) > 3 else 0)
    open(out, "w").write(txt)
    print("wrote", out, len(txt), "bytes")
```

```python
import sys
import gen as G
from gen import (Asm, OPT, NAME, vr, VM, prologue, aux_ids, kernel_head, descriptor, header, lstamp, lflush, stamp_reduce_kernel,
                 QF, KV, XT, BT, OF, WOF, GW, LDS_BYTES, LOG2E, INV2PI, QSCALE,
                 S_X, S_WO, S_LOGA, S_AIM, S_CR, S_CI, S_LDT, S_DSK, S_GWT, S_OUT, R_X, R_W, R_WS, SX, SJ, SW,
                 AQ, AKS, AV1, AV2, AS_, AO, PW, PB, PG, att_main, att_finish, att_slow, out_side_loads, out_side_math)
from gen2 import cmuls, RowWriter, cexp

SC = "sc1"
SPIN = 400000
FL = 0xC90000
F_N, F_S1, F_S2, F_S3, F_S4 = FL, FL + 0x1000, FL + 0x3000, FL + 0x4000, FL + 0x8000
SLOT = 32768
def slot_addr(t): return SLOT * (1 + ((t + 1) & 3))
TBS, HTS = 8704, 7344
EX0, KX0, KXD = 0, 16384, 4608
RE, RSZ = 4160, 16640
US = 4640
OS = 131072
VN, VX, VZ, VT = 240, 241, 242, 244
DB, DA = 224, 232
PRIOS = {0: 3, 38: 2, 54: 1, 61: 0}

def poll(a, tag, vaddr, soff, first_issued=False, n=1, ncmp=None, vt=VT):
    ld = f"buffer_load_dword{'' if n == 1 else 'x%d' % n} {vr(vt, n)}, v{vaddr}, {R_WS}, {soff} offen {SC}"
    ncmp = ncmp or n
    a(f"s_mov_b32 s92, {SPIN}")
    if first_issued: a(f"s_branch L_{tag}_chk")
    a(f"L_{tag}_poll:\n{ld}\ns_waitcnt vmcnt(0)")
    a(f"L_{tag}_chk:")
    a(f"v_cmp_ne_u32 vcc, v{vt}, v{VN}")
    for i in range(1, ncmp): a(f"v_cmp_ne_u32 s[90:91], v{vt+i}, v{VN}\ns_or_b64 vcc, vcc, s[90:91]")
    if ncmp == 1: a("s_nop 1")
    a(f"""
    s_cbranch_vccz L_{tag}_ok
    s_sub_u32 s92, s92, 1
    s_cmp_lg_u32 s92, 0
    s_cbranch_scc1 L_{tag}_poll
    L_{tag}_ok:
    """)

def signal(a, soff, mod=SC, n=1):
    a(f"""
    s_mov_b64 exec, 1
    buffer_store_dword{'' if n == 1 else 'x2'} {vr(VN, n)}, v{VZ}, {R_WS}, {soff} offen {mod}
    s_mov_b64 exec, -1
    """)

def epoch_load(a):
    a(f"v_mov_b32 v{VZ}, 0\ns_mov_b32 s56, {F_N}\nbuffer_load_dword v{VN}, v{VZ}, {R_WS}, s56 offen {SC}")

DX, DW = 94, 95
def dma_setup(a):
    a(f"""
    v_lshrrev_b32 v1, 3, v0
    v_lshrrev_b32 v2, 4, v0
    s_and_b32 s58, {SW}, 1
    s_lshl_b32 s56, s58, 2
    v_add_u32 v3, s56, v2
    v_and_b32 v{DW}, 7, v0
    v_xor_b32 v3, v3, v{DW}
    v_lshlrev_b32 v3, 4, v3
    v_lshl_add_u32 v{DX}, v1, 10, v3
    v_and_b32 v2, 1, v2
    v_lshlrev_b32 v2, 2, v2
    v_xor_b32 v2, v2, v{DW}
    v_lshlrev_b32 v2, 4, v2
    v_mov_b32 v3, 0xc00
    v_mad_u32_u24 v{DW}, v1, v3, v2
    s_lshl_b32 s44, {SJ}, 16
    s_lshl_b32 s45, {SW}, 13
    s_add_u32 s44, s44, s45
    s_mul_i32 s45, {SW}, {16*3072}
    s_lshl_b32 s56, {SX}, 7
    s_add_u32 s45, s45, s56
    s_lshl_b32 s46, {SW}, 10
    s_lshl_b32 s47, {SW}, 11
    """)

def dma_pieces(t, part="xw"):
    base = slot_addr(t); out = []
    head = f"s_add_u32 s56, {SX}, {t}\ns_and_b32 s56, s56, 7\n"
    if "x" in part:
        for i in range(2):
            p = (head + "s_lshl_b32 s57, s56, 7\ns_add_u32 s57, s57, s44\n") if i == 0 else "s_add_u32 s57, s57, 0x8000\n"
            out.append(p + f"s_add_u32 m0, s46, {base + i*4096}\nbuffer_load_dwordx4 v{DX}, {R_X}, s57 offen lds")
        head = ""
    if "w" in part:
        for i in range(2):
            for ty in range(3):
                p = ""
                if ty == 0: p = (head + f"s_mul_i32 s56, s56, {64*3072}\ns_add_u32 s56, s56, s45\n") if i == 0 else f"s_add_u32 s56, s56, {8*3072}\n"
                out.append(p + f"s_add_u32 m0, s47, {base + 8192 + ty*8192 + i*1024 - ty*1024}\nbuffer_load_dwordx4 v{DW}, {R_W}, s56 offen offset:{ty*1024} lds")
    return out

def dma(a, vm, t, part="xw", tag=None):
    for p in dma_pieces(t, part): a(p); vm.add(tag or f"s{t}")

def att_consts(a):
    G.att_setup(a); G.att_regs(a)

def g_phase1(a):
    vm = VM()
    ACC = (96, 112, 128); SETS = (144, 160, 176, 192)
    XA, WA = 4, 12
    GX, GG, GO = 32, 40, 44
    dma_setup(a)
    a("s_barrier")
    for t in range(2): dma(a, vm, t)
    lstamp(a, 18)
    a(f"""
    s_getreg_b32 s62, hwreg(HW_REG_XCC_ID)
    v_mov_b32 v{VX}, s62
    s_lshr_b32 s59, {SW}, 1
    v_and_b32 v1, 31, v0
    s_lshl_b32 s60, s58, 12
    s_add_u32 s60, s60, {SLOT}
    v_lshlrev_b32 v2, 7, v1
    v_add_u32 v2, s60, v2
    v_bfe_u32 v1, v0, 1, 3
    v_lshrrev_b32 v3, 5, v0
    v_xor_b32 v1, v1, v3
    """)
    for ks in range(4):
        a(f"v_xor_b32 v3, {2*ks}, v1\nv_lshl_add_u32 v{XA+ks}, v3, 4, v2\nv_add_u32 v{XA+4+ks}, 0x10000, v{XA+ks}")
    a(f"""
    v_lshrrev_b32 v1, 5, v0
    v_lshlrev_b32 v1, 10, v1
    v_bfe_u32 v2, v0, 2, 2
    v_lshl_add_u32 v1, v2, 7, v1
    v_bfe_u32 v2, v0, 3, 1
    v_xor_b32 v2, s59, v2
    v_lshl_add_u32 v1, v2, 6, v1
    v_bfe_u32 v2, v0, 4, 1
    v_lshl_add_u32 v1, v2, 5, v1
    v_and_b32 v2, 3, v0
    v_lshl_add_u32 v1, v2, 3, v1
    v_add_u32 v{WA}, {SLOT + 8192}, v1
    v_add_u32 v{WA+1}, {SLOT + 8192 + 65536}, v1
    s_lshl_b32 s67, {SJ}, 6
    s_lshl_b32 s62, {SX}, 3
    s_add_u32 s67, s67, s62
    s_lshl_b32 s62, {SW}, 1
    s_add_u32 s67, s67, s62
    v_lshlrev_b32 v15, 4, v0
    s_lshl_b32 s62, s67, 10
    v_add_u32 v14, s62, v15
    s_lshl_b32 s62, {SX}, 5
    s_add_u32 s62, s62, {SJ}
    s_lshr_b32 s69, s62, 3
    s_and_b32 s63, s62, 7
    s_lshl_b32 s63, s63, 1
    s_add_u32 s63, s63, s58
    s_lshl_b32 s64, s63, 15
    s_lshl_b32 s62, s69, 5
    s_add_u32 s64, s64, s62
    v_lshrrev_b32 v3, 5, v0
    v_lshlrev_b32 v3, 14, v3
    v_bfe_u32 v2, v0, 4, 1
    v_lshl_add_u32 v3, v2, 12, v3
    v_and_b32 v2, 15, v0
    v_lshl_add_u32 v3, v2, 1, v3
    v_add_u32 v52, s64, v3
    v_add_u32 v57, 0x2000, v52
    s_lshl_b32 s69, s69, 4
    s_add_u32 s69, s69, s63
    s_lshl_b32 s69, s69, 10
    s_add_u32 s69, s69, {WOF}
    s_lshl_b32 s67, s67, 2
    s_add_u32 s67, s67, {GW}
    s_lshl_b32 s72, {SX}, 2
    s_add_u32 s72, s72, {SW}
    s_lshl_b32 s72, s72, 8
    s_add_u32 s72, s72, {F_S1}
    v_and_b32 v53, 31, v0
    v_lshlrev_b32 v53, 3, v53
    s_lshl_b32 s70, {SX}, 1
    s_lshr_b32 s71, {SJ}, 4
    s_add_u32 s71, s71, s70
    s_lshl_b32 s71, s71, 8
    s_add_u32 s71, s71, {F_S2}
    s_add_u32 s70, s70, s59
    s_lshl_b32 s70, s70, 8
    s_lshl_b32 s62, {SJ}, 3
    s_add_u32 s70, s70, s62
    s_lshl_b32 s62, s58, 2
    s_add_u32 s70, s70, s62
    s_add_u32 s70, s70, {F_S2}
    v_lshlrev_b32 v54, 2, v0
    s_lshl_b32 s60, {SX}, 2
    s_lshl_b32 s61, s59, 1
    s_add_u32 s60, s60, s61
    s_lshl_b32 s60, s60, 6
    s_lshl_b32 s61, {SJ}, 1
    s_add_u32 s61, s61, s58
    s_add_u32 s60, s60, s61
    s_lshl_b32 s61, s60, 10
    s_add_u32 s61, s61, {QF}
    s_add_u32 s62, s61, 0x10000
    s_lshl_b32 s63, s60, 11
    s_add_u32 s63, s63, {KV}
    s_add_u32 s64, s63, 0x20000
    s_mov_b32 s65, {QSCALE}
    v_and_b32 v55, 0x33, v0
    v_bfe_u32 v3, v0, 2, 1
    v_lshl_or_b32 v55, v3, 3, v55
    v_bfe_u32 v3, v0, 3, 1
    v_lshl_or_b32 v55, v3, 2, v55
    v_lshlrev_b32 v55, 4, v55
    v_and_b32 v56, 15, v0
    v_lshlrev_b32 v56, 4, v56
    v_lshrrev_b32 v3, 5, v0
    v_lshl_add_u32 v56, v3, 8, v56
    v_bfe_u32 v3, v0, 4, 1
    v_lshl_add_u32 v56, v3, 17, v56
    """)
    for r in range(DA, DA + 4): a(f"v_mov_b32 v{r}, 0")
    epoch_load(a); vm.add("n")
    dma(a, vm, 2)
    lstamp(a, 1)
    def reads(t, ks):
        p = slot_addr(t) // SLOT - 1; s = SETS[ks]; hi = p >> 1; o0 = (p & 1) * SLOT
        l = [f"ds_read_b128 {vr(s,4)}, v{XA + 4*hi + ks} offset:{o0}"]
        for ty in (1, 2, 0):
            for ri in range(2):
                l.append(f"ds_read_b64_tr_b16 {vr(s+4+4*ty+2*ri,2)}, v{WA+hi} offset:{o0 + ty*8192 + ks*2048 + ri*512}")
        return l
    def mf(ks, i, first=False):
        s = SETS[ks]; c = "0" if first else vr(ACC[i], 16)
        ab = f"{vr(s,4)}, {vr(s+12,4)}" if i == 2 else f"{vr(s+4+4*i,4)}, {vr(s,4)}"
        a(f"v_mfma_f32_32x32x16_bf16 {vr(ACC[i],16)}, {ab}, {c}")
    pend = []
    def mm(ks, first, rd=(), nd=2):
        rd = list(rd)
        for i, r in zip((1, 2, 0), (rd[:4], rd[4:], [])):
            mf(ks, i, first)
            for x in r: a(x)
        for _ in range(nd):
            if pend:
                tag, p = pend.pop(0); a(p); vm.add(tag)
    side = [f"global_load_dwordx4 {vr(GX,4)}, v14, {S_X}", f"global_load_dwordx4 {vr(GX+4,4)}, v14, {S_X} offset:1024", f"global_load_dwordx4 {vr(GG,4)}, v15, {S_GWT}"]
    side += [f"global_load_short_d16{'_hi' if j & 1 else ''} v{GO+j}, v{57 if j >> 2 else 52}, {S_WO} offset:{1024*(j&3)}" for j in range(8)]
    for t in range(8):
        if OPT.get("gpos") == "pre": lstamp(a, 8 + t)
        vm.wait(a, f"s{t}")
        if t == 3: a(f"v_add_u32 v{VN}, 1, v{VN}")
        if OPT.get("gpos") == "mid": lstamp(a, 8 + t)
        a("s_barrier")
        if not OPT.get("gpos"): lstamp(a, 8 + t)
        nd = 2
        if t == 0: pend += [("s3w", p) for p in dma_pieces(3, "w")]; nd = 3
        if t == 1: pend += [("s3", p) for p in dma_pieces(3, "x")]; nd = 3
        if 1 <= t <= 4: pend += [(f"s{t+3}", p) for p in dma_pieces(t + 3)]
        if t == 5: pend += [("side", p) for p in side]; nd = 3
        if t == 6: pend += [("f", f"buffer_load_dwordx2 {vr(VT,2)}, v53, {R_WS}, s72 offen {SC}")]
        if t == 0:
            for x in reads(0, 0) + reads(0, 1): a(x)
        else:
            mm(2, False, reads(t, 0), nd)
            mm(3, False, reads(t, 1), nd)
        a("s_waitcnt lgkmcnt(7)")
        mm(0, t == 0, reads(t, 2), nd)
        a("s_waitcnt lgkmcnt(7)")
        mm(1, False, reads(t, 3), nd)
        assert not pend
        if t == 7:
            a("s_waitcnt vmcnt(0)")
            poll(a, "s1g", 53, "s72", True, 2, 1)
            a(f"v_cmp_ne_u32 s[94:95], v{VT+1}, v{VX}")
        a("s_waitcnt lgkmcnt(0)")
    a("s_cmp_eq_u64 s[94:95], 0")
    if OPT.get("nofast"): a("s_branch L_st_far")
    a("s_cbranch_scc0 L_st_far")
    cv = lambda d, s: [f"v_cvt_pk_bf16_f32 v{d+r}, v{s+2*r}, v{s+2*r+1}" for r in range(8)]
    for mod in ("", SC):
        if mod: a.reset(); a("L_st_far:")
        for ks, i in ((2, 1), (3, 1), (2, 2), (3, 2), (2, 0)): mf(ks, i)
        a("s_nop 6")
        for x in cv(16, ACC[1])[:4]: a(x)
        mf(3, 0)
        for x in cv(16, ACC[1])[4:]: a(x)
        a(f"buffer_store_dwordx4 v[16:19], v55, {R_WS}, s63 offen {mod}\nbuffer_store_dwordx4 v[20:23], v55, {R_WS}, s64 offen {mod}")
        for x in cv(24, ACC[2]): a(x)
        a(f"buffer_store_dwordx4 v[24:27], v56, {R_WS}, s63 offen offset:1024 {mod}\nbuffer_store_dwordx4 v[28:31], v56, {R_WS}, s63 offen offset:1536 {mod}")
        a("v_lshlrev_b32 v1, 4, v0")
        for h in range(2):
            for r in range(8): a(f"v_mul_f32 v{ACC[0]+8*h+r}, s65, v{ACC[0]+8*h+r}")
            for x in cv(68, ACC[0])[4*h:4*h+4]: a(x)
            a(f"buffer_store_dwordx4 {vr(68+4*h,4)}, v1, {R_WS}, s{61+h} offen {mod}")
        if not mod: lstamp(a, 16)
        a("s_mov_b32 s68, 0xffff0000")
        for j in range(4): a(f"v_or_b32 v{DB+j}, v{GO+2*j}, v{GO+2*j+1}")
        for k in range(4): a(f"v_lshlrev_b32 v{144+2*k}, 16, v{GG+k}\nv_and_b32 v{145+2*k}, s68, v{GG+k}")
        a("s_waitcnt vmcnt(0)")
        signal(a, "s70", mod)
        if not mod: a("s_branch L_st_done")
    a.reset(); a("L_st_done:")
    lstamp(a, 17)
    a(f"buffer_load_dword v{VT}, v54, {R_WS}, s71 offen {SC}")
    for k in range(4):
        for r in range(2):
            x = GX + 4 * r + k; t = 154 + 2 * r
            a(f"v_lshlrev_b32 v{t}, 16, v{x}\nv_and_b32 v{t+1}, s68, v{x}\nv_mul_f32 v{t}, v{t}, v{144+2*k}\nv_mul_f32 v{t+1}, v{t+1}, v{145+2*k}")
        for r in range(2):
            t = 154 + 2 * r
            a(f"v_cvt_pk_bf16_f32 v{t}, v{t}, v{t+1}\nv_and_b32 v{t+1}, s68, v{t}\nv_lshlrev_b32 v{t}, 16, v{t}")
            if k == 0: a(f"v_add_f32 v{152+r}, v{t}, v{t+1}")
            else: a(f"v_add_f32 v{152+r}, v{152+r}, v{t}\nv_add_f32 v{152+r}, v{152+r}, v{t+1}")
    for d in ("row_shr:1 row_mask:0xf bank_mask:0xf bound_ctrl:0", "row_shr:2 row_mask:0xf bank_mask:0xf bound_ctrl:0",
              "row_shr:4 row_mask:0xf bank_mask:0xf bound_ctrl:0", "row_shr:8 row_mask:0xf bank_mask:0xf bound_ctrl:0",
              "row_bcast:15 row_mask:0xa bank_mask:0xf", "row_bcast:31 row_mask:0xc bank_mask:0xf"):
        for r in range(2): a(f"v_add_f32_dpp v{152+r}, v{152+r}, v{152+r} {d}")
    a(f"""
    v_cvt_pk_bf16_f32 v154, v152, v153
    s_mov_b32 s60, {LOG2E}
    v_lshlrev_b32 v152, 16, v154
    v_and_b32 v153, s68, v154
    v_mul_f32 v152, s60, v152
    v_mul_f32 v153, s60, v153
    v_exp_f32 v152, -v152
    v_exp_f32 v153, -v153
    v_add_f32 v152, 1.0, v152
    v_add_f32 v153, 1.0, v153
    v_rcp_f32 v152, v152
    v_rcp_f32 v153, v153
    s_nop 0
    v_cvt_pk_bf16_f32 v154, v152, v153
    v_lshlrev_b32 v{DB+4}, 16, v154
    v_and_b32 v{DB+5}, s68, v154
    """)
    att_consts(a)
    a(f"s_cmp_lg_u32 {SW}, 0\ns_cbranch_scc1 L_s2_skip\ns_waitcnt vmcnt(0)")
    poll(a, "s2", 54, "s71", True)
    a.reset(); a("L_s2_skip:")
    lstamp(a, 2)

def deferred_stores(a):
    a(f"s_cmp_lt_u32 {SW}, 4\ns_cbranch_scc1 L_df_g")
    for ci in range(4): a(f"buffer_store_dwordx2 {vr(DB+2*ci,2)}, v{DA+ci}, {R_WS}, s66 offen {SC}")
    a(f"""
    s_branch L_df_done
    L_df_g:
    buffer_store_dwordx4 {vr(DB,4)}, v1, {R_WS}, s69 offen {SC}
    s_mov_b32 exec_lo, 0
    s_mov_b32 exec_hi, 0x80000000
    buffer_store_dwordx2 {vr(DB+4,2)}, v{VZ}, {R_WS}, s67 offen {SC}
    s_mov_b64 exec, -1
    L_df_done:
    """)

CA, CB, CU, CD, CE = 86, 87, 88, 90, 91
CACC = 32
def conv(a):
    FA = (96, 160); FB = (128, 192)
    q = []
    def issue(key, txt):
        if len(q) >= 15:
            a("s_waitcnt lgkmcnt(14)"); del q[:len(q) - 14]
        a(txt); q.append(key)
    def need(keys):
        idx = [i for i, k in enumerate(q) if k in keys]
        if idx:
            a(f"s_waitcnt lgkmcnt({len(q) - 1 - max(idx)})"); del q[:max(idx) + 1]
    def rd_list(rho):
        s = rho & 1; l = []
        for i in range(8):
            l.append(((rho, "A", i), f"ds_read_b128 {vr(FA[s]+4*i,4)}, v{CA} offset:{512*(7-i) + 64*(3-rho)}"))
            l.append(((rho, "B", i), f"ds_read_b128 {vr(FB[s]+4*i,4)}, v{CB} offset:{512*i + 64*(3-rho)}"))
        return l
    for k, t in rd_list(0): issue(k, t)
    seen = set()
    mms = sorted([(sg, dl) for sg in range(8) for dl in range(8 - sg)], key=lambda m: max(2 * m[0], 2 * m[1] + 1))
    for rho in range(4):
        s = rho & 1
        nxt = rd_list(rho + 1) if rho < 3 else [(("u", i), f"ds_read_b64 {vr(DB+2*i,2)}, v{CU} offset:{512*i}") for i in range(4)]
        k0 = 14 if rho == 0 else 0
        for k, (sg, dl) in enumerate(mms):
            if rho == 0: need({(rho, "A", sg), (rho, "B", dl)})
            elif k == 0: need({(rho, "B", 7)})
            c = sg + dl; acc = vr(CACC + 4 * c, 4)
            a(f"v_mfma_f32_16x16x32_bf16 {acc}, {vr(FA[s]+4*sg,4)}, {vr(FB[s]+4*dl,4)}, {acc if c in seen else '0'}")
            seen.add(c)
            if k >= k0 and (k - k0) % 2 == 0:
                for x in nxt[k - k0:k - k0 + 2]: issue(*x)
    a("s_cmp_eq_u32 s53, 0\ns_cbranch_scc0 L_cv_hi\ns_nop 5")
    for i in range(4): a(f"ds_write_b128 v{CE}, {vr(CACC+16+4*i,4)} offset:{1024*i}")
    a("s_branch L_cv_sent\nL_cv_hi:\ns_nop 5")
    for i in range(4): a(f"ds_write_b128 v{CE}, {vr(CACC+4*i,4)} offset:{1024*i}")
    a("s_nop 1")
    for i in range(16): a(f"v_mov_b32 v{CACC+i}, v{CACC+16+i}")
    a(f"L_cv_sent:\nv_xor_b32 v{CE}, 0x1000, v{CE}\ns_waitcnt lgkmcnt(0)")

def conv_finish(a):
    a(f"s_cmp_lt_u32 {SW}, 4\ns_cbranch_scc1 L_cv_fin")
    for i in range(4): a(f"ds_read_b128 {vr(96+4*i,4)}, v{CE} offset:{1024*i}")
    a("s_mov_b32 s68, 0xffff0000")
    for i in range(8): a(f"v_lshlrev_b32 v{48+2*i}, 16, v{DB+i}\nv_and_b32 v{49+2*i}, s68, v{DB+i}")
    for i in range(16): a(f"v_fmac_f32 v{CACC+i}, v{48+i}, v{CD}")
    a("s_waitcnt lgkmcnt(0)")
    for i in range(16): a(f"v_add_f32 v{CACC+i}, v{CACC+i}, v{96+i}")
    for i in range(8): a(f"v_cvt_pk_bf16_f32 v{DB+i}, v{CACC+2*i}, v{CACC+2*i+1}")
    a("L_cv_fin:")

def a_params(a):
    aux_ids(a)
    a(f"""
    s_lshl_b32 s55, s54, 8
    s_lshl_b32 s56, s53, 7
    s_add_u32 s55, s55, s56
    v_lshlrev_b32 v1, 1, v0
    v_add_u32 v1, s55, v1
    s_lshl_b32 s56, s54, 1
    v_mov_b32 v2, s56
    global_load_short_d16_hi v10, v1, {S_LOGA}
    global_load_short_d16_hi v14, v2, {S_LDT}
    global_load_short_d16_hi v11, v1, {S_AIM}
    global_load_short_d16_hi v12, v1, {S_CR}
    global_load_short_d16_hi v13, v1, {S_CI}
    global_load_short_d16_hi v{CD}, v2, {S_DSK}
    """)
    epoch_load(a)
    if not OPT.get("nocpf"):
        a(f"""
        s_getpc_b64 s[62:63]
        L_pc:
        s_and_b32 s64, {SJ}, 3
        s_lshl_b32 s64, s64, 2
        s_add_u32 s64, s64, s51
        s_lshl_b32 s64, s64, 11
        v_lshlrev_b32 v3, 7, v0
        v_add_u32 v3, s64, v3
        v_min_u32 v3, L_codeend - L_pc - 4, v3
        s_mov_b64 exec, 0xffff
        global_load_dword v93, v3, s[62:63]
        s_mov_b64 exec, -1
        """)

def rows(a, regs, row0, neg, tb):
    for k, r in enumerate(regs):
        if r is None: a(f"v_mov_b32 v{tb+k}, 0x3f80")
        else: a(f"v_cvt_pk_bf16_f32 v{tb+k}, v{r}, {'-' if neg else ''}v{r+1}")
    for k in range(len(regs)): a(f"ds_write_addtid_b32 v{tb+k} offset:{272*(row0+k)}")
    return row0 + len(regs)

def a_phase1(a):
    vm = VM()
    vm.add("par", 7)
    if not OPT.get("nocpf"): vm.add("cpf")
    a("s_setprio 2")
    a(f"""
    s_mul_i32 s65, s51, {TBS}
    s_mov_b32 m0, s65
    v_and_b32 v1, 31, v0
    v_lshrrev_b32 v2, 5, v0
    v_lshlrev_b32 v2, 4, v2
    v_add_u32 v18, s65, v2
    v_mov_b32 v3, 272
    v_mad_u32_u24 v7, v1, v3, v18
    s_mul_i32 s65, s51, {HTS}
    v_add_u32 v2, s65, v2
    v_bfe_u32 v8, v0, 3, 1
    v_and_b32 v9, 3, v0
    v_lshl_add_u32 v8, v8, 2, v9
    v_cvt_f32_u32 v8, v8
    v_bfe_u32 v9, v0, 4, 1
    v_bfe_u32 v16, v0, 2, 1
    v_lshl_add_u32 v9, v9, 1, v16
    v_min_u32 v16, 2, v9
    v_sub_u32 v16, 0, v16
    v_ldexp_f32 v16, v8, v16
    v_rndne_f32 v16, v16
    v_cvt_u32_f32 v16, v16
    v_lshlrev_b32 v17, 3, v9
    s_mov_b32 s66, 0x100d0800
    v_lshrrev_b32 v17, v17, s66
    v_and_b32 v17, 0xff, v17
    v_add_u32 v16, v16, v17
    v_mul_f32 v8, 0.125, v8
    v_rndne_f32 v8, v8
    v_cvt_u32_f32 v8, v8
    v_lshl_add_u32 v8, v9, 1, v8
    v_add_u32 v8, 19, v8
    s_cmp_eq_u32 s53, 0
    s_cselect_b64 vcc, -1, 0
    s_cselect_b32 s70, 0, 0xaaaaaaaa
    s_mov_b32 s71, s70
    v_cndmask_b32 v9, v8, v16, vcc
    v_cndmask_b32 v8, v16, v8, vcc
    v_mad_u32_u24 v9, v9, v3, v2
    v_mad_u32_u24 v8, v8, v3, v2
    v_lshrrev_b32 v1, 4, v0
    v_bfe_u32 v2, v0, 2, 2
    v_lshl_add_u32 v2, v1, 3, v2
    v_bfe_u32 v3, v0, 1, 1
    s_lshl_b32 s66, s51, 1
    v_add_u32 v3, s66, v3
    v_bfe_u32 v4, v2, 1, 3
    v_xor_b32 v4, v4, v3
    v_and_b32 v5, 1, v0
    v_lshlrev_b32 v5, 3, v5
    v_lshl_add_u32 v5, v2, 7, v5
    v_add_u32 v5, {slot_addr(0)}, v5
    v_xor_b32 v6, 2, v4
    v_lshl_add_u32 v4, v4, 4, v5
    v_lshl_add_u32 v5, v6, 4, v5
    v_bfe_u32 v6, v0, 1, 3
    v_lshlrev_b32 v6, 13, v6
    v_and_b32 v3, 1, v0
    v_lshl_add_u32 v6, v3, 6, v6
    v_lshl_add_u32 v6, v1, 4, v6
    s_lshl_b32 s60, {SX}, 18
    s_lshl_b32 s62, s51, 16
    s_add_u32 s60, s60, s62
    s_lshl_b32 s62, {SJ}, 8
    s_add_u32 s60, s60, s62
    s_add_u32 s60, s60, {XT}
    s_lshl_b32 s72, {SX}, 2
    s_add_u32 s61, s72, s51
    s_lshl_b32 s61, s61, 8
    s_lshl_b32 s62, {SJ}, 3
    s_add_u32 s61, s61, s62
    s_add_u32 s61, s61, {F_S1}
    s_lshr_b32 s62, {SJ}, 3
    s_add_u32 s72, s72, s62
    s_lshl_b32 s72, s72, 8
    s_add_u32 s72, s72, {F_S1}
    s_getreg_b32 s62, hwreg(HW_REG_XCC_ID)
    v_mov_b32 v{VX}, s62
    s_mov_b32 s66, {LOG2E}
    s_mov_b32 s68, 0xffff0000
    s_mov_b32 s69, {INV2PI}
    s_mov_b32 s62, 0x41000000
    s_mov_b32 s63, 0x43800000
    """)
    vm.wait(a, "par")
    lstamp(a, 31)
    a(f"""
    v_mul_f32 v14, s66, v14
    v_mul_f32 v10, s66, v10
    v_exp_f32 v14, v14
    v_exp_f32 v10, v10
    v_add_u32 v{VN}, 1, v{VN}
    v_cvt_pk_bf16_f32 v1, v14, v10
    v_lshlrev_b32 v14, 16, v1
    v_and_b32 v10, s68, v1
    v_mul_f32 v10, v10, v14
    v_mul_f32 v11, v11, v14
    v_mul_f32 v10, s66, v10
    v_mul_f32 v11, s69, v11
    """)
    L = lambda i: 76 + 2 * i
    H = lambda p: 40 + 2 * p if p < 8 else 28
    LF, HK, HS, AK, AS = 96, 128, 160, 192, 208
    cexp(a, [(L(1), "s62")])
    cmuls(a, [(L(2), L(1), L(1))])
    cmuls(a, [(L(3), L(2), L(1)), (84, L(2), L(2))])
    lstamp(a, 24)
    a("s_barrier")
    a("""
    ds_read_b64_tr_b16 v[192:193], v4
    ds_read_b64_tr_b16 v[194:195], v5 offset:512
    ds_read_b64_tr_b16 v[196:197], v4 offset:4096
    ds_read_b64_tr_b16 v[198:199], v5 offset:4608
    """)
    r = rows(a, [None, L(1), L(2), L(3)], 0, False, 72)
    cmuls(a, [(L(i), L(i), 84) for i in range(1, 4)])
    r = rows(a, [84, L(1), L(2), L(3)], r, False, 16)
    a(f"""
    s_waitcnt lgkmcnt(8)
    buffer_store_dwordx4 v[192:195], v6, {R_WS}, s60 offen {SC}
    buffer_store_dwordx4 v[196:199], v6, {R_WS}, s60 offen offset:128 {SC}
    """)
    vm.add("xt", 2)
    cmuls(a, [(L(0), 84, 84)] + [(L(i), L(i), 84) for i in range(1, 4)])
    for g in range(2, 8):
        r = rows(a, [L(i) for i in range(4)], r, False, 72 if g & 1 == 0 else 16)
        if g < 7: cmuls(a, [(L(i), L(i), 84) for i in range(4)])
    assert r == 32
    for ks in range(8): a(f"ds_read_b128 {vr(LF+4*ks,4)}, v7 offset:{32*ks}")
    a("v_mul_f32 v40, v12, v14\nv_mul_f32 v41, v13, v14\nv_add_f32 v40, v40, v40\nv_add_f32 v41, v41, v41\ns_mov_b32 m0, s65")
    cexp(a, [(20, None), (24, "s63")])
    cmuls(a, [(H(1), H(0), 20), (22, 20, 20)])
    cmuls(a, [(H(2), H(0), 22), (H(3), H(1), 22), (26, 22, 22)])
    cmuls(a, [(H(4 + i), H(i), 26) for i in range(4)])
    lstamp(a, 19)
    a("s_waitcnt lgkmcnt(0)\ns_barrier")
    cmuls(a, [(H(8), H(4), 26)])
    r = rows(a, [H(p) for p in range(8)], 0, True, 76)
    for g, grp in enumerate(((0, 2, 4, 6, 8), (0, 4, 8), (0, 4, 8))):
        cmuls(a, [(H(p), H(p), 24) for p in grp])
        r = rows(a, [H(p) for p in grp], r, True, 72 if g & 1 == 0 else 16)
    cmuls(a, [(42, H(0), 24), (46, H(8), 24), (30, 24, 24)])
    cmuls(a, [(50, 42, 24), (52, 46, 24), (H(0), 42, 30), (H(8), 46, 30)])
    cmuls(a, [(44, 50, 30), (48, 52, 30)])
    r = rows(a, [42, 46, 50, 52, H(0), H(8), 44, 48], r, True, 76)
    assert r == 27
    a("s_waitcnt lgkmcnt(7)")
    for ks in range(8): a(f"ds_read_b128 {vr(HS+4*ks,4)}, v8 offset:{32*ks}")
    a("s_waitcnt lgkmcnt(7)")
    for ks in range(8): a(f"ds_read_b128 {vr(HK+4*ks,4)}, v9 offset:{32*ks}")
    a(f"""
    v_lshlrev_b32 v1, 4, v0
    s_lshl_b32 s66, s51, 12
    v_add_u32 v2, s66, v1
    v_xor_b32 v3, 0x1000, v2
    s_waitcnt lgkmcnt(8)
    """)
    for ks in range(8):
        a(f"v_mfma_f32_32x32x16_bf16 {vr(AS,16)}, {vr(HS+4*ks,4)}, {vr(LF+4*ks,4)}, {'0' if ks == 0 else vr(AS,16)}")
        if ks == 1:
            lstamp(a, 20)
            a("s_waitcnt lgkmcnt(0)\ns_barrier")
    for ks in range(8):
        a(f"v_mfma_f32_32x32x16_bf16 {vr(AK,16)}, {vr(HK+4*ks,4)}, {vr(LF+4*ks,4)}, {'0' if ks == 0 else vr(AK,16)}")
        if ks == 4:
            for i in range(4): a(f"ds_write_b128 v2, {vr(AS+4*i,4)} offset:{1024*i}")
    a(f"""
    v_mov_b32 v60, 0
    v_mov_b32 v61, 0
    v_mov_b32 v62, 0
    v_mov_b32 v63, 0
    s_mul_i32 s67, s52, {KXD}
    s_add_u32 s67, s67, {KX0}
    v_mov_b32 v2, s67
    ds_write_b128 v2, v[60:63]
    s_lshl_b32 s66, s53, 11
    s_add_u32 s66, s66, s67
    v_lshrrev_b32 v2, 5, v0
    v_and_b32 v4, 31, v0
    v_lshlrev_b32 v4, 4, v4
    v_lshl_add_u32 v2, v2, 9, v4
    v_add_u32 v2, s66, v2
    """)
    vm.wait(a, "xt"); signal(a, "s61", SC, 2); vm.add("f1")
    lstamp(a, 21)
    a("s_waitcnt lgkmcnt(0)\ns_setprio 0\ns_barrier")
    for i in range(4): a(f"ds_read_b128 {vr(AS+4*i,4)}, v3 offset:{1024*i}")
    a("s_waitcnt lgkmcnt(0)")
    for i in range(16): a(f"v_add_f32 v{AK+i}, v{AK+i}, v{AS+i}")
    for rg in range(2): a(f"v_cndmask_b32 v{AK+8*rg+4}, v{AK+8*rg+4}, v{AK+8*rg+5}, s[70:71]")
    for i in range(8): a(f"v_cvt_pk_bf16_f32 v{40+i}, v{AK+2*i}, v{AK+2*i+1}")
    for rg in range(2): a(f"ds_write_b128 v2, {vr(40+4*rg,4)} offset:{16 + 1024*rg}")
    lstamp(a, 22)
    a("s_waitcnt lgkmcnt(0)\ns_barrier")
    a(f"""
    v_add_u32 v2, s66, v1
    ds_read_b64 v[40:41], v2 offset:8
    ds_read_b128 v[42:45], v2 offset:16
    ds_read_b64 v[46:47], v2 offset:{1024+8}
    ds_read_b128 v[48:51], v2 offset:{1024+16}
    s_cmp_eq_u32 s52, 0
    s_cselect_b32 s67, 0, {slot_addr(4)}
    v_bfe_u32 v2, v0, 2, 2
    v_mul_u32_u24 v2, {RE}, v2
    v_and_b32 v3, 3, v0
    v_min_u32 v3, 2, v3
    v_lshl_add_u32 v2, v3, 4, v2
    v_add_u32 v52, s67, v2
    s_lshl_b32 s69, s53, 11
    s_sub_u32 s66, s67, s69
    s_add_u32 s66, s66, {255*16 - 1024}
    v_sub_u32 v53, s66, v1
    v_min_u32 v2, 32, v0
    s_mul_i32 s66, s53, {US}
    s_add_u32 s66, s66, s67
    s_add_u32 s66, s66, {RSZ}
    v_lshl_add_u32 v54, v2, 4, s66
    s_mov_b32 s69, 0xffff
    s_waitcnt lgkmcnt(0)
    """)
    RG = 96
    for q in range(2):
        w = lambda i: 40 + 6 * q + 2 + i
        for e in range(4):
            o = RG + 16 * q + 4 * e
            for i in range(4):
                hi = 3 - i - (0 if e >= 2 else 1)
                if e & 1: a(f"v_alignbit_b32 v{o+i}, v{w(hi)}, v{w(hi)}, 16")
                else: a(f"v_bfi_b32 v{o+i}, s69, v{w(hi)}, v{w(hi-1)}")
    a(f"""
    v_and_b32 v55, 31, v0
    v_lshlrev_b32 v55, 3, v55
    s_lshl_b32 s66, s51, 2
    s_add_u32 s66, s66, 32000
    v_mov_b32 v59, s66
    ds_write_b32 v59, v60
    s_lshl_b32 s71, {SX}, 18
    s_lshl_b32 s69, {SJ}, 13
    s_add_u32 s71, s71, s69
    s_lshl_b32 s69, s52, 6
    s_add_u32 s71, s71, s69
    s_lshl_b32 s69, s53, 12
    s_add_u32 s71, s71, s69
    s_add_u32 s71, s71, {XT}
    v_lshrrev_b32 v2, 2, v0
    v_and_b32 v3, 3, v0
    v_lshlrev_b32 v3, 4, v3
    v_lshl_add_u32 v56, v2, 7, v3
    s_lshl_b32 s70, s53, 11
    s_add_u32 s69, s67, s70
    s_add_u32 s69, s69, {RSZ + 512}
    v_add_u32 v57, s69, v1
    s_lshl_b32 s73, s53, 8
    s_sub_u32 s73, s67, s73
    s_add_u32 s66, s73, {4128 - 64*7 - 512*7 + 256}
    v_and_b32 v4, 3, v0
    v_mul_u32_u24 v4, {RE}, v4
    v_lshrrev_b32 v2, 4, v0
    v_bfe_u32 v3, v0, 2, 2
    v_add_u32 v3, v3, v2
    v_lshlrev_b32 v3, 4, v3
    v_sub_u32 v4, v4, v3
    v_add_u32 v{CA}, s66, v4
    s_add_u32 s66, s73, {RSZ + US + 512 + 48 - 64*7 + 256}
    v_bfe_u32 v4, v0, 1, 3
    v_lshlrev_b32 v4, 6, v4
    v_lshlrev_b32 v3, 4, v2
    v_sub_u32 v5, v4, v3
    v_add_u32 v4, v4, v3
    v_and_b32 v3, 1, v0
    v_lshl_add_u32 v4, v3, 3, v4
    v_mul_u32_u24 v3, {US}, v3
    v_sub_u32 v5, v5, v3
    v_add_u32 v{CB}, s66, v5
    v_add_u32 v{CU}, s69, v4
    v_add_u32 v{DA}, s70, v4
    v_add_u32 v{DA+1}, 512, v{DA}
    v_add_u32 v{DA+2}, 1024, v{DA}
    v_add_u32 v{DA+3}, 1536, v{DA}
    s_lshl_b32 s66, s51, 12
    s_add_u32 s66, s66, {OS}
    v_add_u32 v{CE}, s66, v1
    s_lshl_b32 s66, s54, 12
    s_add_u32 s66, s66, {BT}
    """)
    lstamp(a, 23)
    a("s_waitcnt lgkmcnt(0)\ns_barrier")
    a(f"buffer_load_dword v{VT}, v55, {R_WS}, s72 offen {SC}")
    a("ds_write_b128 v52, v[60:63] offset:4096\nds_write_b128 v54, v[60:63]")
    for q in range(2):
        for e in range(4): a(f"ds_write_b128 v53, {vr(RG+16*q+4*e,4)} offset:{e*RE + 1024*(1-q)}")
    a("s_waitcnt lgkmcnt(0)\ns_barrier")
    att_consts(a)
    def uload():
        for q in range(2): a(f"buffer_load_dwordx4 {vr(32+4*q,4)}, v56, {R_WS}, s71 offen offset:{2048*q} {SC}")
    a(f"""
    s_waitcnt vmcnt(0)
    v_cmp_ne_u32 vcc, v{VT}, v{VN}
    s_nop 1
    s_cbranch_vccnz L_u_late
    """)
    uload()
    a("s_barrier\ns_branch L_u_have")
    a("L_u_late:\ns_barrier")
    poll(a, "s1", 55, "s72")
    uload()
    a("L_u_have:\ns_waitcnt vmcnt(0)")
    for q in range(2): a(f"ds_write_b128 v57, {vr(32+4*q,4)} offset:{1024*q}")
    for q in range(2):
        a(f"ds_write_b64 v57, {vr(32+4*q,2)} offset:{1024*q + US + 8}")
        a(f"ds_write_b64 v57, {vr(34+4*q,2)} offset:{1024*q + US + 16}")
    a(f"""
    ds_write_b32 v59, v59
    v_xor_b32 v59, 4, v59
    s_mov_b32 s92, {SPIN}
    L_pair:
    ds_read_b32 v58, v59
    s_waitcnt lgkmcnt(0)
    v_readfirstlane_b32 s93, v58
    s_sub_u32 s92, s92, 1
    s_cmp_eq_u32 s92, 0
    s_cbranch_scc1 L_pair_ok
    s_cmp_eq_u32 s93, 0
    s_cbranch_scc1 L_pair
    L_pair_ok:
    """)
    lstamp(a, 25)
    conv(a)
    lstamp(a, 3)

def out_gemm(a):
    a(f"""
    v_lshlrev_b32 v2, 9, v86
    v_lshl_add_u32 v2, v87, 4, v2
    v_add_u32 v2, {OS}, v2
    v_lshlrev_b32 v3, 10, v87
    v_lshl_add_u32 v3, v86, 3, v3
    s_lshl_b32 s84, s88, 15
    s_lshl_b32 s86, s89, 5
    s_add_u32 s84, s84, s86
    v_add_u32 v3, s84, v3
    v_add_u32 v4, 0x4000, v3
    """)
    def go():
        NB = 12; FB = 16
        rd = lambda i: a(f"ds_read_b128 {vr(FB+4*(i%NB),4)}, v2 offset:{2048*(i>>1) + 256*(i&1)}")
        for i in range(NB): rd(i)
        for i in range(32):
            a(f"s_waitcnt lgkmcnt({min(NB - 1, 31 - i)})")
            acc = 8 + 4 * (i & 1)
            a(f"v_mfma_f32_16x16x32_bf16 {vr(acc,4)}, {vr(PW+4*(i>>1),4)}, {vr(FB+4*(i%NB),4)}, {'0' if i < 2 else vr(acc,4)}")
            if i + NB < 32: rd(i + NB)
        for nt in range(2):
            for i in range(4): a(f"v_fma_f32 v{8+4*nt+i}, v{8+4*nt+i}, v{PG+nt}, v{PB+4*nt+i}")
            a(f"v_cvt_pk_bf16_f32 v{16+2*nt}, v{8+4*nt}, v{9+4*nt}\nv_cvt_pk_bf16_f32 v{17+2*nt}, v{10+4*nt}, v{11+4*nt}")
            a(f"global_store_dwordx2 v{3+nt}, {vr(16+2*nt,2)}, {S_OUT}")
    return go

def build_fused():
    a = Asm()
    k = NAME + "_kernel"
    launches = f"; @launch grid=(256,1,1) block=(512,1,1) lds={LDS_BYTES}\n"
    if G.STAMPS:
        launches = f"; @launch kernel={k} grid=(256,1,1) block=(512,1,1) lds={LDS_BYTES}\n; @launch kernel=stamp_kernel grid=(1,1,1) block=(256,1,1) lds=1024\n"
    a.raw(header() + launches + '.amdgcn_target "amdgcn-amd-amdhsa--gfx950"\n.text')
    kernel_head(a, k)
    if "amp" in OPT: lstamp(a, "E")
    prologue(a, "L_end")
    lstamp(a, 0)
    a(f"s_cmp_lt_u32 {SW}, 4\ns_cbranch_scc1 L_gemm")
    a_params(a)
    a("s_barrier\ns_branch L_aux")
    a.reset(); a("L_gemm:")
    g_phase1(a)
    lg = list(G.LIGHT); G.LIGHT[:] = [s for s in lg if s == 0]
    a("s_branch L_att")
    a.reset(); a("L_aux:")
    a_phase1(a)
    la = list(G.LIGHT); G.LIGHT[:] = sorted(set(la) | set(lg))
    a.reset(); a("L_att:")
    a("s_barrier")
    lstamp(a, 4)
    a(f"buffer_load_dwordx4 {vr(AQ,4)}, v1, {R_WS}, s77 offen {SC}")
    G.att_dma(a, range(4), SC)
    conv_finish(a)
    a("s_waitcnt vmcnt(3)\ns_barrier"); lstamp(a, 27)
    def hdma(t):
        def f():
            if t == 2:
                a("s_waitcnt vmcnt(2)\ns_barrier")
                deferred_stores(a)
            G.att_dma(a, [4 + t], SC)
        return f
    def h14():
        a(f"""
        s_waitcnt vmcnt(0)
        s_barrier
        s_cmp_lg_u32 {SW}, 0
        s_cbranch_scc1 L_s3_skip
        s_lshl_b32 s84, {SX}, 7
        s_lshl_b32 s85, {SJ}, 2
        s_add_u32 s84, s84, s85
        s_add_u32 s84, s84, {F_S3}
        """)
        signal(a, "s84")
        a("L_s3_skip:")
        lstamp(a, 28)
    def h36():
        a(f"s_mov_b32 s84, {F_S3}\nbuffer_load_dwordx4 {vr(VT,4)}, v1, {R_WS}, s84 offen {SC}")
    def h40():
        a("s_waitcnt vmcnt(0)")
        poll(a, "s3", 1, "s84", True, 4)
        out_side_loads(a, SC)
        a(f"""
        s_or_b32 s84, s2, {SW}
        s_cmp_lg_u32 s84, 0
        s_cbranch_scc1 L_n_skip
        s_mov_b32 s84, {F_N}
        """)
        signal(a, "s84")
        a("L_n_skip:")
    hooks = {t: hdma(t) for t in range(12)}
    hooks.update({14: h14, 36: h36, 40: h40})
    att_main(a, hooks, PRIOS)
    lstamp(a, 29)
    att_finish(a, "at", SC)
    a(f"""
    s_lshl_b32 s81, s76, 7
    s_lshl_b32 s85, s74, 2
    s_add_u32 s81, s81, s85
    s_add_u32 s81, s81, {F_S4}
    s_lshl_b32 s85, s88, 7
    s_lshl_b32 s86, {SW}, 4
    s_add_u32 s85, s85, s86
    s_add_u32 s85, s85, {F_S4}
    v_and_b32 v5, 3, v0
    v_lshlrev_b32 v5, 2, v5
    s_lshl_b32 s93, s88, 15
    s_lshl_b32 s86, {SW}, 12
    s_add_u32 s93, s93, s86
    s_add_u32 s93, s93, {OF}
    s_add_u32 m0, s86, {OS}
    s_waitcnt vmcnt(1)
    """)
    out_side_math(a)
    gemm = out_gemm(a)
    a("s_waitcnt vmcnt(0)")
    signal(a, "s81")
    lstamp(a, 5)
    poll(a, "s4", 5, "s85")
    lstamp(a, 6)
    for i in range(4): a(f"buffer_load_dwordx4 v1, {R_WS}, s93 offen offset:{1024*i} {SC} lds")
    a("s_waitcnt vmcnt(0)")
    lstamp(a, 30)
    a("s_barrier")
    gemm()
    lstamp(a, 7)
    if G.STAMPS:
        lflush(a, range(8))
        for s in la:
            if s: G.STAMP_WAVES[s] = list(range(4, 8))
        for s in lg:
            if s: G.STAMP_WAVES[s] = list(range(4))
    if "amp" in OPT:
        w = OPT["amp"].split(",")[2]
        a(f"""
        s_cmp_lg_u32 s2, {OPT.get("ampwg", 0)}
        s_cbranch_scc1 L_end
        s_cmp_lg_u32 {SW}, {w}
        s_cbranch_scc1 L_end
        s_sub_u32 s98, s98, s96
        s_lshl_b32 s98, s98, 2
        s_min_u32 s98, s98, 40000
        s_memrealtime s[96:97]
        s_waitcnt lgkmcnt(0)
        L_amp:
        s_memrealtime s[100:101]
        s_waitcnt lgkmcnt(0)
        s_sub_u32 s100, s100, s96
        s_cmp_lt_u32 s100, s98
        s_cbranch_scc1 L_amp
        """)
    a("L_end:\ns_endpgm")
    att_slow(a, "at")
    a("L_codeend:\ns_endpgm")
    if G.STAMPS: stamp_reduce_kernel(a)
    a.raw('.section .rodata,"a"')
    if G.STAMPS: a.raw(descriptor("stamp_kernel", 32))
    a.raw(descriptor(k, 256))
    return a.text()

if __name__ == "__main__":
    out = sys.argv[1]
    for o in sys.argv[2:]:
        kk, _, v = o.partition("="); OPT[kk] = v or True
    G.STAMPS = bool(OPT.get("stamp"))
    OPT.setdefault("ones", "few")
    txt = build_fused()
    open(out, "w").write(txt)
    print("wrote", out, len(txt), "bytes")
```

```python
import sys
import gen as G
from gen import (Asm, OPT, NAME, vr, VM, prologue, aux_ids, kernel_head, descriptor, header, lstamp, lflush, stamp_reduce_kernel,
                 QF, KV, XT, BT, OF, WOF, GW, LDS_BYTES, LOG2E, INV2PI, QSCALE,
                 S_X, S_WO, S_LOGA, S_AIM, S_CR, S_CI, S_LDT, S_DSK, S_GWT, S_OUT, R_X, R_W, R_WS, SX, SJ, SW,
                 AQ, AKS, AV1, AV2, AS_, AO, PW, PB, PG, att_main, att_finish, att_slow, out_side_loads, out_side_math)
from gen2 import cmuls, RowWriter, cexp

SC = "sc1"
SPIN = 400000
FL = 0xC90000
F_N, F_S1, F_S2, F_S3, F_S4 = FL, FL + 0x1000, FL + 0x3000, FL + 0x4000, FL + 0x8000
SLOT = 32768
def slot_addr(t): return SLOT * (1 + ((t + 1) & 3))
TBS, HTS = 8704, 7344
EX0, KX0, KXD = 0, 16384, 4608
RE, RSZ = 4160, 16640
US = 4640
OS = 131072
VN, VX, VZ, VT = 240, 241, 242, 244
DB, DA = 224, 232
PRIOS = {0: 3, 38: 2, 54: 1, 61: 0}

def poll(a, tag, vaddr, soff, first_issued=False, n=1, ncmp=None, vt=VT):
    ld = f"buffer_load_dword{'' if n == 1 else 'x%d' % n} {vr(vt, n)}, v{vaddr}, {R_WS}, {soff} offen {SC}"
    ncmp = ncmp or n
    a(f"s_mov_b32 s92, {SPIN}")
    if first_issued: a(f"s_branch L_{tag}_chk")
    a(f"L_{tag}_poll:\n{ld}\ns_waitcnt vmcnt(0)")
    a(f"L_{tag}_chk:")
    a(f"v_cmp_ne_u32 vcc, v{vt}, v{VN}")
    for i in range(1, ncmp): a(f"v_cmp_ne_u32 s[90:91], v{vt+i}, v{VN}\ns_or_b64 vcc, vcc, s[90:91]")
    if ncmp == 1: a("s_nop 1")
    a(f"""
    s_cbranch_vccz L_{tag}_ok
    s_sub_u32 s92, s92, 1
    s_cmp_lg_u32 s92, 0
    s_cbranch_scc1 L_{tag}_poll
    L_{tag}_ok:
    """)

def signal(a, soff, mod=SC, n=1):
    a(f"""
    s_mov_b64 exec, 1
    buffer_store_dword{'' if n == 1 else 'x2'} {vr(VN, n)}, v{VZ}, {R_WS}, {soff} offen {mod}
    s_mov_b64 exec, -1
    """)

def epoch_load(a):
    a(f"v_mov_b32 v{VZ}, 0\ns_mov_b32 s56, {F_N}\nbuffer_load_dword v{VN}, v{VZ}, {R_WS}, s56 offen {SC}")

DX, DW = 94, 95
def dma_setup(a):
    a(f"""
    v_lshrrev_b32 v1, 3, v0
    v_lshrrev_b32 v2, 4, v0
    s_and_b32 s58, {SW}, 1
    s_lshl_b32 s56, s58, 2
    v_add_u32 v3, s56, v2
    v_and_b32 v{DW}, 7, v0
    v_xor_b32 v3, v3, v{DW}
    v_lshlrev_b32 v3, 4, v3
    v_lshl_add_u32 v{DX}, v1, 10, v3
    v_and_b32 v2, 1, v2
    v_lshlrev_b32 v2, 2, v2
    v_xor_b32 v2, v2, v{DW}
    v_lshlrev_b32 v2, 4, v2
    v_mov_b32 v3, 0xc00
    v_mad_u32_u24 v{DW}, v1, v3, v2
    s_lshl_b32 s44, {SJ}, 16
    s_lshl_b32 s45, {SW}, 13
    s_add_u32 s44, s44, s45
    s_mul_i32 s45, {SW}, {16*3072}
    s_lshl_b32 s56, {SX}, 7
    s_add_u32 s45, s45, s56
    s_lshl_b32 s46, {SW}, 10
    s_lshl_b32 s47, {SW}, 11
    """)

def dma_pieces(t, part="xw"):
    base = slot_addr(t); out = []
    head = f"s_add_u32 s56, {SX}, {t}\ns_and_b32 s56, s56, 7\n"
    if "x" in part:
        for i in range(2):
            p = (head + "s_lshl_b32 s57, s56, 7\ns_add_u32 s57, s57, s44\n") if i == 0 else "s_add_u32 s57, s57, 0x8000\n"
            out.append(p + f"s_add_u32 m0, s46, {base + i*4096}\nbuffer_load_dwordx4 v{DX}, {R_X}, s57 offen lds")
        head = ""
    if "w" in part:
        for i in range(2):
            for ty in range(3):
                p = ""
                if ty == 0: p = (head + f"s_mul_i32 s56, s56, {64*3072}\ns_add_u32 s56, s56, s45\n") if i == 0 else f"s_add_u32 s56, s56, {8*3072}\n"
                out.append(p + f"s_add_u32 m0, s47, {base + 8192 + ty*8192 + i*1024 - ty*1024}\nbuffer_load_dwordx4 v{DW}, {R_W}, s56 offen offset:{ty*1024} lds")
    return out

def dma(a, vm, t, part="xw", tag=None):
    for p in dma_pieces(t, part): a(p); vm.add(tag or f"s{t}")

def att_consts(a):
    G.att_setup(a)
    a(f"""
    v_lshrrev_b32 v2, 5, v0
    v_lshlrev_b32 v2, 8, v2
    v_and_b32 v3, 15, v0
    v_lshl_add_u32 v2, v3, 4, v2
    v_add_u32 v2, 1024, v2
    v_add_u32 v80, 0x10000, v1
    v_add_u32 v81, 0x10000, v2
    s_mov_b32 s82, 0xffff
    s_mov_b32 s83, 0xffff
    v_and_b32 v3, 27, v0
    v_cmp_eq_u32 vcc, 16, v3
    v_mov_b32 v17, 0x3f803f80
    v_mov_b32 v3, 0xdddddddd
    v_cndmask_b32 v16, 0, v17, vcc
    """)
    for r in range(17, 32): a(f"v_mov_b32 v{r}, v16")
    for r in range(16): a(f"v_mov_b32 v{AO+r}, 0")

def g_phase1(a):
    vm = VM()
    ACC = (96, 112, 128); SETS = (144, 160, 176, 192)
    XA, WA = 4, 12
    GX, GG, GO = 32, 40, 44
    dma_setup(a)
    a("s_barrier")
    for t in range(2): dma(a, vm, t)
    lstamp(a, 18)
    a(f"""
    s_getreg_b32 s62, hwreg(HW_REG_XCC_ID)
    v_mov_b32 v{VX}, s62
    s_lshr_b32 s59, {SW}, 1
    v_and_b32 v1, 31, v0
    s_lshl_b32 s60, s58, 12
    s_add_u32 s60, s60, {SLOT}
    v_lshlrev_b32 v2, 7, v1
    v_add_u32 v2, s60, v2
    v_bfe_u32 v1, v0, 1, 3
    v_lshrrev_b32 v3, 5, v0
    v_xor_b32 v1, v1, v3
    """)
    for ks in range(4):
        a(f"v_xor_b32 v3, {2*ks}, v1\nv_lshl_add_u32 v{XA+ks}, v3, 4, v2\nv_add_u32 v{XA+4+ks}, 0x10000, v{XA+ks}")
    a(f"""
    v_lshrrev_b32 v1, 5, v0
    v_lshlrev_b32 v1, 10, v1
    v_bfe_u32 v2, v0, 2, 2
    v_lshl_add_u32 v1, v2, 7, v1
    v_bfe_u32 v2, v0, 3, 1
    v_xor_b32 v2, s59, v2
    v_lshl_add_u32 v1, v2, 6, v1
    v_bfe_u32 v2, v0, 4, 1
    v_lshl_add_u32 v1, v2, 5, v1
    v_and_b32 v2, 3, v0
    v_lshl_add_u32 v1, v2, 3, v1
    v_add_u32 v{WA}, {SLOT + 8192}, v1
    v_add_u32 v{WA+1}, {SLOT + 8192 + 65536}, v1
    s_lshl_b32 s67, {SJ}, 6
    s_lshl_b32 s62, {SX}, 3
    s_add_u32 s67, s67, s62
    s_lshl_b32 s62, {SW}, 1
    s_add_u32 s67, s67, s62
    v_lshlrev_b32 v15, 4, v0
    s_lshl_b32 s62, s67, 10
    v_add_u32 v14, s62, v15
    s_lshl_b32 s62, {SX}, 5
    s_add_u32 s62, s62, {SJ}
    s_lshr_b32 s69, s62, 3
    s_and_b32 s63, s62, 7
    s_lshl_b32 s63, s63, 1
    s_add_u32 s63, s63, s58
    s_lshl_b32 s64, s63, 15
    s_lshl_b32 s62, s69, 5
    s_add_u32 s64, s64, s62
    v_lshrrev_b32 v3, 5, v0
    v_lshlrev_b32 v3, 14, v3
    v_bfe_u32 v2, v0, 4, 1
    v_lshl_add_u32 v3, v2, 12, v3
    v_and_b32 v2, 15, v0
    v_lshl_add_u32 v3, v2, 1, v3
    v_add_u32 v52, s64, v3
    v_add_u32 v57, 0x2000, v52
    s_lshl_b32 s69, s69, 4
    s_add_u32 s69, s69, s63
    s_lshl_b32 s69, s69, 10
    s_add_u32 s69, s69, {WOF}
    s_lshl_b32 s67, s67, 2
    s_add_u32 s67, s67, {GW}
    s_lshl_b32 s72, {SX}, 2
    s_add_u32 s72, s72, {SW}
    s_lshl_b32 s72, s72, 8
    s_add_u32 s72, s72, {F_S1}
    v_and_b32 v53, 31, v0
    v_lshlrev_b32 v53, 3, v53
    s_lshl_b32 s70, {SX}, 1
    s_lshr_b32 s71, {SJ}, 4
    s_add_u32 s71, s71, s70
    s_lshl_b32 s71, s71, 8
    s_add_u32 s71, s71, {F_S2}
    s_add_u32 s70, s70, s59
    s_lshl_b32 s70, s70, 8
    s_lshl_b32 s62, {SJ}, 3
    s_add_u32 s70, s70, s62
    s_lshl_b32 s62, s58, 2
    s_add_u32 s70, s70, s62
    s_add_u32 s70, s70, {F_S2}
    v_lshlrev_b32 v54, 2, v0
    s_lshl_b32 s60, {SX}, 2
    s_lshl_b32 s61, s59, 1
    s_add_u32 s60, s60, s61
    s_lshl_b32 s60, s60, 6
    s_lshl_b32 s61, {SJ}, 1
    s_add_u32 s61, s61, s58
    s_add_u32 s60, s60, s61
    s_lshl_b32 s61, s60, 10
    s_add_u32 s61, s61, {QF}
    s_add_u32 s62, s61, 0x10000
    s_lshl_b32 s63, s60, 11
    s_add_u32 s63, s63, {KV}
    s_add_u32 s64, s63, 0x20000
    s_mov_b32 s65, {QSCALE}
    v_and_b32 v55, 0x33, v0
    v_bfe_u32 v3, v0, 2, 1
    v_lshl_or_b32 v55, v3, 3, v55
    v_bfe_u32 v3, v0, 3, 1
    v_lshl_or_b32 v55, v3, 2, v55
    v_lshlrev_b32 v55, 4, v55
    v_and_b32 v56, 15, v0
    v_lshlrev_b32 v56, 4, v56
    v_lshrrev_b32 v3, 5, v0
    v_lshl_add_u32 v56, v3, 8, v56
    v_bfe_u32 v3, v0, 4, 1
    v_lshl_add_u32 v56, v3, 17, v56
    """)
    for r in range(DA, DA + 4): a(f"v_mov_b32 v{r}, 0")
    epoch_load(a); vm.add("n")
    dma(a, vm, 2)
    att_consts(a)
    lstamp(a, 1)
    def reads(t, ks):
        p = slot_addr(t) // SLOT - 1; s = SETS[ks]; hi = p >> 1; o0 = (p & 1) * SLOT
        l = [f"ds_read_b128 {vr(s,4)}, v{XA + 4*hi + ks} offset:{o0}"]
        for ty in (1, 2, 0):
            for ri in range(2):
                l.append(f"ds_read_b64_tr_b16 {vr(s+4+4*ty+2*ri,2)}, v{WA+hi} offset:{o0 + ty*8192 + ks*2048 + ri*512}")
        return l
    def mf(ks, i, first=False):
        s = SETS[ks]; c = "0" if first else vr(ACC[i], 16)
        ab = f"{vr(s,4)}, {vr(s+12,4)}" if i == 2 else f"{vr(s+4+4*i,4)}, {vr(s,4)}"
        a(f"v_mfma_f32_32x32x16_bf16 {vr(ACC[i],16)}, {ab}, {c}")
    pend = []
    def mm(ks, first, rd=(), nd=2):
        rd = list(rd)
        for i, r in zip((1, 2, 0), (rd[:4], rd[4:], [])):
            mf(ks, i, first)
            for x in r: a(x)
        for _ in range(nd):
            if pend:
                tag, p = pend.pop(0); a(p); vm.add(tag)
    side = [f"global_load_dwordx4 {vr(GX,4)}, v14, {S_X}", f"global_load_dwordx4 {vr(GX+4,4)}, v14, {S_X} offset:1024", f"global_load_dwordx4 {vr(GG,4)}, v15, {S_GWT}"]
    side += [f"global_load_short_d16{'_hi' if j & 1 else ''} v{GO+j}, v{57 if j >> 2 else 52}, {S_WO} offset:{1024*(j&3)}" for j in range(8)]
    for t in range(8):
        if OPT.get("gpos") == "pre": lstamp(a, 8 + t)
        vm.wait(a, f"s{t}")
        if t == 3: a(f"v_add_u32 v{VN}, 1, v{VN}")
        if OPT.get("gpos") == "mid": lstamp(a, 8 + t)
        a("s_barrier")
        if not OPT.get("gpos"): lstamp(a, 8 + t)
        nd = 2
        if t == 0: pend += [("s3w", p) for p in dma_pieces(3, "w")]; nd = 3
        if t == 1: pend += [("s3", p) for p in dma_pieces(3, "x")]; nd = 3
        if 1 <= t <= 4: pend += [(f"s{t+3}", p) for p in dma_pieces(t + 3)]
        if t == 5: pend += [("side", p) for p in side]; nd = 3
        if t == 6: pend += [("f", f"buffer_load_dwordx2 {vr(VT,2)}, v53, {R_WS}, s72 offen {SC}")]
        if t == 0:
            for x in reads(0, 0) + reads(0, 1): a(x)
        else:
            mm(2, False, reads(t, 0), nd)
            mm(3, False, reads(t, 1), nd)
        a("s_waitcnt lgkmcnt(7)")
        mm(0, t == 0, reads(t, 2), nd)
        a("s_waitcnt lgkmcnt(7)")
        mm(1, False, reads(t, 3), nd)
        assert not pend
        if t == 7:
            a("s_waitcnt vmcnt(0)")
            poll(a, "s1g", 53, "s72", True, 2, 1)
            a(f"v_cmp_ne_u32 s[94:95], v{VT+1}, v{VX}")
        a("s_waitcnt lgkmcnt(0)")
    a("s_cmp_eq_u64 s[94:95], 0")
    if OPT.get("nofast"): a("s_branch L_st_far")
    a("s_cbranch_scc0 L_st_far")
    cv = lambda d, s: [f"v_cvt_pk_bf16_f32 v{d+r}, v{s+2*r}, v{s+2*r+1}" for r in range(8)]
    for mod in ("", SC):
        if mod: a.reset(); a("L_st_far:")
        for ks, i in ((2, 1), (3, 1), (2, 2), (3, 2), (2, 0)): mf(ks, i)
        a("s_nop 6")
        for x in cv(144, ACC[1])[:4]: a(x)
        mf(3, 0)
        for x in cv(144, ACC[1])[4:]: a(x)
        a(f"buffer_store_dwordx4 v[144:147], v55, {R_WS}, s63 offen {mod}\nbuffer_store_dwordx4 v[148:151], v55, {R_WS}, s64 offen {mod}")
        for x in cv(152, ACC[2]): a(x)
        a(f"buffer_store_dwordx4 v[152:155], v56, {R_WS}, s63 offen offset:1024 {mod}\nbuffer_store_dwordx4 v[156:159], v56, {R_WS}, s63 offen offset:1536 {mod}")
        for h in range(2):
            for r in range(8): a(f"v_mul_f32 v{ACC[0]+8*h+r}, s65, v{ACC[0]+8*h+r}")
            for x in cv(160, ACC[0])[4*h:4*h+4]: a(x)
            a(f"buffer_store_dwordx4 {vr(160+4*h,4)}, v1, {R_WS}, s{61+h} offen {mod}")
        if not mod: lstamp(a, 16)
        a("s_mov_b32 s68, 0xffff0000")
        for k in range(4): a(f"v_lshlrev_b32 v{168+2*k}, 16, v{GG+k}\nv_and_b32 v{169+2*k}, s68, v{GG+k}")
        for k in range(4):
            for r in range(2):
                x = GX + 4 * r + k; t = 180 + 2 * r
                a(f"v_lshlrev_b32 v{t}, 16, v{x}\nv_and_b32 v{t+1}, s68, v{x}\nv_mul_f32 v{t}, v{t}, v{168+2*k}\nv_mul_f32 v{t+1}, v{t+1}, v{169+2*k}")
                a(f"v_cvt_pk_bf16_f32 v{x}, v{t}, v{t+1}")
        a("s_waitcnt vmcnt(0)")
        signal(a, "s70", mod)
        if not mod: a("s_branch L_st_done")
    a.reset(); a("L_st_done:")
    lstamp(a, 17)
    a(f"buffer_load_dword v{VT}, v54, {R_WS}, s71 offen {SC}")
    for k in range(4):
        for r in range(2):
            x = GX + 4 * r + k; t = 180 + 2 * r
            a(f"v_and_b32 v{t+1}, s68, v{x}\nv_lshlrev_b32 v{t}, 16, v{x}")
            if k == 0: a(f"v_add_f32 v{176+r}, v{t}, v{t+1}")
            else: a(f"v_add_f32 v{176+r}, v{176+r}, v{t}\nv_add_f32 v{176+r}, v{176+r}, v{t+1}")
    wo_pack = [f"v_or_b32 v{DB+j}, v{GO+2*j}, v{GO+2*j+1}" for j in range(4)]
    for d in ("row_shr:1 row_mask:0xf bank_mask:0xf bound_ctrl:0", "row_shr:2 row_mask:0xf bank_mask:0xf bound_ctrl:0",
              "row_shr:4 row_mask:0xf bank_mask:0xf bound_ctrl:0", "row_shr:8 row_mask:0xf bank_mask:0xf bound_ctrl:0",
              "row_bcast:15 row_mask:0xa bank_mask:0xf", "row_bcast:31 row_mask:0xc bank_mask:0xf"):
        if wo_pack: a(wo_pack.pop())
        for r in range(2): a(f"v_add_f32_dpp v{176+r}, v{176+r}, v{176+r} {d}")
    a(f"""
    v_cvt_pk_bf16_f32 v178, v176, v177
    s_mov_b32 s60, {LOG2E}
    v_lshlrev_b32 v176, 16, v178
    v_and_b32 v177, s68, v178
    v_mul_f32 v176, s60, v176
    v_mul_f32 v177, s60, v177
    v_exp_f32 v176, -v176
    v_exp_f32 v177, -v177
    v_add_f32 v176, 1.0, v176
    v_add_f32 v177, 1.0, v177
    v_rcp_f32 v176, v176
    v_rcp_f32 v177, v177
    s_nop 0
    v_cvt_pk_bf16_f32 v178, v176, v177
    v_lshlrev_b32 v{DB+4}, 16, v178
    v_and_b32 v{DB+5}, s68, v178
    """)
    a(f"s_cmp_lg_u32 {SW}, 0\ns_cbranch_scc1 L_s2_skip\ns_waitcnt vmcnt(0)")
    poll(a, "s2", 54, "s71", True)
    a.reset(); a("L_s2_skip:")
    lstamp(a, 2)

def deferred_stores(a):
    a(f"s_cmp_lt_u32 {SW}, 4\ns_cbranch_scc1 L_df_g")
    for ci in range(4): a(f"buffer_store_dwordx2 {vr(DB+2*ci,2)}, v{DA+ci}, {R_WS}, s66 offen {SC}")
    a(f"""
    s_branch L_df_done
    L_df_g:
    buffer_store_dwordx4 {vr(DB,4)}, v1, {R_WS}, s69 offen {SC}
    s_mov_b32 exec_lo, 0
    s_mov_b32 exec_hi, 0x80000000
    buffer_store_dwordx2 {vr(DB+4,2)}, v{VZ}, {R_WS}, s67 offen {SC}
    s_mov_b64 exec, -1
    L_df_done:
    """)

CA, CB, CU, CD, CE = 86, 87, 88, 90, 91
CACC = 32
def conv(a):
    FA = (96, 160); FB = (128, 192)
    q = []
    def issue(key, txt):
        if len(q) >= 15:
            a("s_waitcnt lgkmcnt(14)"); del q[:len(q) - 14]
        a(txt); q.append(key)
    def need(keys):
        idx = [i for i, k in enumerate(q) if k in keys]
        if idx:
            a(f"s_waitcnt lgkmcnt({len(q) - 1 - max(idx)})"); del q[:max(idx) + 1]
    def rd_list(rho):
        s = rho & 1; l = []
        for i in range(8):
            l.append(((rho, "A", i), f"ds_read_b128 {vr(FA[s]+4*i,4)}, v{CA} offset:{512*(7-i) + 64*(3-rho)}"))
            l.append(((rho, "B", i), f"ds_read_b128 {vr(FB[s]+4*i,4)}, v{CB} offset:{512*i + 64*(3-rho)}"))
        return l
    for k, t in rd_list(0): issue(k, t)
    seen = set()
    mms = sorted([(sg, dl) for sg in range(8) for dl in range(8 - sg)], key=lambda m: max(2 * m[0], 2 * m[1] + 1))
    for rho in range(4):
        s = rho & 1
        nxt = rd_list(rho + 1) if rho < 3 else [(("u", i), f"ds_read_b64 {vr(DB+2*i,2)}, v{CU} offset:{512*i}") for i in range(4)]
        k0 = 14 if rho == 0 else 0
        for k, (sg, dl) in enumerate(mms):
            if rho == 0: need({(rho, "A", sg), (rho, "B", dl)})
            elif k == 0: need({(rho, "B", 7)})
            c = sg + dl; acc = vr(CACC + 4 * c, 4)
            a(f"v_mfma_f32_16x16x32_bf16 {acc}, {vr(FA[s]+4*sg,4)}, {vr(FB[s]+4*dl,4)}, {acc if c in seen else '0'}")
            seen.add(c)
            if k >= k0 and (k - k0) % 2 == 0:
                for x in nxt[k - k0:k - k0 + 2]: issue(*x)
    a("s_cmp_eq_u32 s53, 0\ns_cbranch_scc0 L_cv_hi\ns_nop 5")
    for i in range(4): a(f"ds_write_b128 v{CE}, {vr(CACC+16+4*i,4)} offset:{1024*i}")
    a("s_branch L_cv_sent\nL_cv_hi:\ns_nop 5")
    for i in range(4): a(f"ds_write_b128 v{CE}, {vr(CACC+4*i,4)} offset:{1024*i}")
    a("s_nop 1")
    for i in range(16): a(f"v_mov_b32 v{CACC+i}, v{CACC+16+i}")
    a(f"L_cv_sent:\nv_xor_b32 v{CE}, 0x1000, v{CE}\ns_waitcnt lgkmcnt(0)")

def conv_finish(a):
    a(f"s_cmp_lt_u32 {SW}, 4\ns_cbranch_scc1 L_cv_fin")
    for i in range(4): a(f"ds_read_b128 {vr(96+4*i,4)}, v{CE} offset:{1024*i}")
    a("s_mov_b32 s68, 0xffff0000")
    for i in range(8): a(f"v_lshlrev_b32 v{48+2*i}, 16, v{DB+i}\nv_and_b32 v{49+2*i}, s68, v{DB+i}")
    for i in range(16): a(f"v_fmac_f32 v{CACC+i}, v{48+i}, v{CD}")
    a("s_waitcnt lgkmcnt(0)")
    for i in range(16): a(f"v_add_f32 v{CACC+i}, v{CACC+i}, v{96+i}")
    for i in range(8): a(f"v_cvt_pk_bf16_f32 v{DB+i}, v{CACC+2*i}, v{CACC+2*i+1}")
    a("L_cv_fin:")

def a_params(a):
    aux_ids(a)
    a(f"""
    s_lshl_b32 s55, s54, 8
    s_lshl_b32 s56, s53, 7
    s_add_u32 s55, s55, s56
    v_lshlrev_b32 v1, 1, v0
    v_add_u32 v1, s55, v1
    s_lshl_b32 s56, s54, 1
    v_mov_b32 v2, s56
    global_load_short_d16_hi v10, v1, {S_LOGA}
    global_load_short_d16_hi v14, v2, {S_LDT}
    global_load_short_d16_hi v11, v1, {S_AIM}
    global_load_short_d16_hi v12, v1, {S_CR}
    global_load_short_d16_hi v13, v1, {S_CI}
    global_load_short_d16_hi v{CD}, v2, {S_DSK}
    """)
    epoch_load(a)
    if not OPT.get("nocpf"):
        a(f"""
        s_getpc_b64 s[62:63]
        L_pc:
        s_and_b32 s64, {SJ}, 3
        s_lshl_b32 s64, s64, 2
        s_add_u32 s64, s64, s51
        s_lshl_b32 s64, s64, 11
        v_lshlrev_b32 v3, 7, v0
        v_add_u32 v3, s64, v3
        v_min_u32 v3, L_codeend - L_pc - 4, v3
        s_mov_b64 exec, 0xffff
        global_load_dword v93, v3, s[62:63]
        s_mov_b64 exec, -1
        """)

def rows(a, regs, row0, neg, tb):
    for k, r in enumerate(regs):
        if r is None: a(f"v_mov_b32 v{tb+k}, 0x3f80")
        else: a(f"v_cvt_pk_bf16_f32 v{tb+k}, v{r}, {'-' if neg else ''}v{r+1}")
    for k in range(len(regs)): a(f"ds_write_addtid_b32 v{tb+k} offset:{272*(row0+k)}")
    return row0 + len(regs)

def smul_list(ops):
    T = list(range(32, 40)) + [16, 17, 18, 19]; l = []
    for k, (d, x, w) in enumerate(ops): l += [f"v_mul_f32 v{T[2*k]}, v{x+1}, v{w+1}", f"v_mul_f32 v{T[2*k+1]}, v{x}, v{w+1}"]
    for k, (d, x, w) in enumerate(ops):
        if d == w:
            l += [f"v_fma_f32 v{d+1}, v{x+1}, v{w}, v{T[2*k+1]}", f"v_fma_f32 v{d}, v{x}, v{w}, -v{T[2*k]}"]
        else:
            l += [f"v_fma_f32 v{d}, v{x}, v{w}, -v{T[2*k]}", f"v_fma_f32 v{d+1}, v{x+1}, v{w}, v{T[2*k+1]}"]
    return l

def a_phase1(a):
    vm = VM()
    vm.add("par", 7)
    if not OPT.get("nocpf"): vm.add("cpf")
    a("s_setprio 2")
    a(f"""
    s_mul_i32 s65, s51, {TBS}
    s_mov_b32 m0, s65
    v_and_b32 v1, 31, v0
    v_lshrrev_b32 v2, 5, v0
    v_lshlrev_b32 v2, 4, v2
    s_mul_i32 s66, s52, {2*TBS}
    v_add_u32 v18, s66, v2
    v_mov_b32 v3, 272
    v_mad_u32_u24 v7, v1, v3, v18
    s_mul_i32 s65, s51, {HTS}
    s_mul_i32 s66, s52, {2*HTS}
    v_add_u32 v2, s66, v2
    v_bfe_u32 v8, v0, 3, 1
    v_and_b32 v9, 3, v0
    v_lshl_add_u32 v8, v8, 2, v9
    v_cvt_f32_u32 v8, v8
    v_bfe_u32 v9, v0, 4, 1
    v_bfe_u32 v16, v0, 2, 1
    v_lshl_add_u32 v9, v9, 1, v16
    v_min_u32 v16, 2, v9
    v_sub_u32 v16, 0, v16
    v_ldexp_f32 v16, v8, v16
    v_rndne_f32 v16, v16
    v_cvt_u32_f32 v16, v16
    v_lshlrev_b32 v17, 3, v9
    s_mov_b32 s66, 0x100d0800
    v_lshrrev_b32 v17, v17, s66
    v_and_b32 v17, 0xff, v17
    v_add_u32 v16, v16, v17
    v_mul_f32 v8, 0.125, v8
    v_rndne_f32 v8, v8
    v_cvt_u32_f32 v8, v8
    v_lshl_add_u32 v8, v9, 1, v8
    v_add_u32 v8, 19, v8
    s_cmp_eq_u32 s53, 0
    s_cselect_b64 vcc, -1, 0
    s_cselect_b32 s70, 0, 0xaaaaaaaa
    s_mov_b32 s71, s70
    v_cndmask_b32 v9, v8, v16, vcc
    v_mad_u32_u24 v9, v9, v3, v2
    v_lshrrev_b32 v1, 4, v0
    v_bfe_u32 v2, v0, 2, 2
    v_lshl_add_u32 v2, v1, 3, v2
    v_bfe_u32 v3, v0, 1, 1
    s_lshl_b32 s66, s51, 1
    v_add_u32 v3, s66, v3
    v_bfe_u32 v4, v2, 1, 3
    v_xor_b32 v4, v4, v3
    v_and_b32 v5, 1, v0
    v_lshlrev_b32 v5, 3, v5
    v_lshl_add_u32 v5, v2, 7, v5
    v_add_u32 v5, {slot_addr(0)}, v5
    v_xor_b32 v6, 2, v4
    v_lshl_add_u32 v4, v4, 4, v5
    v_lshl_add_u32 v5, v6, 4, v5
    v_bfe_u32 v6, v0, 1, 3
    v_lshlrev_b32 v6, 13, v6
    v_and_b32 v3, 1, v0
    v_lshl_add_u32 v6, v3, 6, v6
    v_lshl_add_u32 v6, v1, 4, v6
    s_lshl_b32 s60, {SX}, 18
    s_lshl_b32 s62, s51, 16
    s_add_u32 s60, s60, s62
    s_lshl_b32 s62, {SJ}, 8
    s_add_u32 s60, s60, s62
    s_add_u32 s60, s60, {XT}
    s_lshl_b32 s72, {SX}, 2
    s_add_u32 s61, s72, s51
    s_lshl_b32 s61, s61, 8
    s_lshl_b32 s62, {SJ}, 3
    s_add_u32 s61, s61, s62
    s_add_u32 s61, s61, {F_S1}
    s_lshr_b32 s62, {SJ}, 3
    s_add_u32 s72, s72, s62
    s_lshl_b32 s72, s72, 8
    s_add_u32 s72, s72, {F_S1}
    s_getreg_b32 s62, hwreg(HW_REG_XCC_ID)
    v_mov_b32 v{VX}, s62
    s_mov_b32 s66, {LOG2E}
    s_mov_b32 s68, 0xffff0000
    s_mov_b32 s69, {INV2PI}
    s_mov_b32 s62, 0x41000000
    s_mov_b32 s63, 0x43800000
    """)
    vm.wait(a, "par")
    lstamp(a, 31)
    a(f"""
    v_mul_f32 v14, s66, v14
    v_mul_f32 v10, s66, v10
    v_exp_f32 v14, v14
    v_exp_f32 v10, v10
    v_add_u32 v{VN}, 1, v{VN}
    v_cvt_pk_bf16_f32 v1, v14, v10
    v_lshlrev_b32 v14, 16, v1
    v_and_b32 v10, s68, v1
    v_mul_f32 v10, v10, v14
    v_mul_f32 v11, v11, v14
    v_mul_f32 v10, s66, v10
    v_mul_f32 v11, s69, v11
    """)
    L = lambda i: 76 + 2 * i
    H = lambda p: 40 + 2 * p if p < 8 else 28
    LF, HF, AK, HP = 96, 160, 224, 59
    cexp(a, [(L(1), "s62")])
    cmuls(a, [(L(2), L(1), L(1))])
    cmuls(a, [(L(3), L(2), L(1)), (84, L(2), L(2))])
    r = rows(a, [None, L(1), L(2), L(3)], 0, False, 72)
    cmuls(a, [(L(i), L(i), 84) for i in range(1, 4)])
    r = rows(a, [84, L(1), L(2), L(3)], r, False, 16)
    cmuls(a, [(L(0), 84, 84)] + [(L(i), L(i), 84) for i in range(1, 4)])
    for g in range(2, 8):
        r = rows(a, [L(i) for i in range(4)], r, False, 72 if g & 1 == 0 else 16)
        if g < 7: cmuls(a, [(L(i), L(i), 84) for i in range(4)])
    assert r == 32
    lstamp(a, 24)
    a("s_waitcnt lgkmcnt(0)\ns_barrier")
    a("""
    ds_read_b64_tr_b16 v[224:225], v4
    ds_read_b64_tr_b16 v[226:227], v5 offset:512
    ds_read_b64_tr_b16 v[228:229], v4 offset:4096
    ds_read_b64_tr_b16 v[230:231], v5 offset:4608
    """)
    lrd = [f"ds_read_b128 {vr(LF+4*ks,4)}, v7 offset:{TBS*(ks>>3) + 32*(ks&7)}" for ks in range(16)]
    for x in lrd[:8]: a(x)
    a("v_mul_f32 v40, v12, v14\nv_mul_f32 v41, v13, v14\nv_add_f32 v40, v40, v40\nv_add_f32 v41, v41, v41\ns_mov_b32 m0, s65")
    a(f"""
    s_waitcnt lgkmcnt(7)
    buffer_store_dwordx4 v[224:227], v6, {R_WS}, s60 offen {SC}
    buffer_store_dwordx4 v[228:231], v6, {R_WS}, s60 offen offset:128 {SC}
    """)
    vm.add("xt", 2)
    for x in lrd[8:]: a(x)
    cexp(a, [(20, None), (24, "s63")])
    hl = []; row = [0]
    def hm(ops): hl.extend(smul_list(ops))
    def hp(regs):
        for g in regs: hl.append(f"v_cvt_pk_bf16_f32 v{HP+row[0]}, v{g}, -v{g+1}"); row[0] += 1
    hm([(H(1), H(0), 20), (22, 20, 20)])
    hm([(H(2), H(0), 22), (H(3), H(1), 22), (26, 22, 22), (30, 24, 24)])
    hm([(H(4 + i), H(i), 26) for i in range(4)])
    hm([(H(8), H(4), 26)]); hp([H(p) for p in range(8)])
    for grp in ((0, 2, 4, 6, 8), (0, 4, 8), (0, 4, 8)):
        hm([(H(p), H(p), 24) for p in grp]); hp([H(p) for p in grp])
    hm([(42, H(0), 24), (46, H(8), 24)])
    hm([(50, 42, 24), (52, 46, 24), (H(0), 42, 30), (H(8), 46, 30)])
    hm([(44, 50, 30), (48, 52, 30)]); hp([42, 46, 50, 52, H(0), H(8), 44, 48])
    assert row[0] == 27
    cut = int(OPT.get("hcut", 64))
    for x in hl[:cut]: a(x)
    lstamp(a, 19)
    a("s_waitcnt lgkmcnt(0)\ns_barrier")
    done = 0
    for k, x in enumerate(hl[cut:]):
        a(x)
        n = sum("cvt" in y for y in hl[:cut + k + 1])
        if n - done >= 8 or (k == len(hl) - cut - 1):
            for j in range(done, n): a(f"ds_write_addtid_b32 v{HP+j} offset:{272*j}")
            done = n
    vm.wait(a, "xt"); signal(a, "s61", SC, 2); vm.add("f1")
    lstamp(a, 20)
    a("s_waitcnt lgkmcnt(0)\ns_setprio 0\ns_barrier")
    hrd = [f"ds_read_b128 {vr(HF+4*ks,4)}, v9 offset:{HTS*(ks>>3) + 32*(ks&7)}" for ks in range(16)]
    for x in hrd[:12]: a(x)
    a(f"""
    v_lshlrev_b32 v1, 4, v0
    v_mov_b32 v60, 0
    v_mov_b32 v61, 0
    v_mov_b32 v62, 0
    v_mov_b32 v63, 0
    s_mul_i32 s67, s52, {KXD}
    s_add_u32 s67, s67, {KX0}
    v_mov_b32 v3, s67
    s_lshl_b32 s66, s53, 11
    s_add_u32 s66, s66, s67
    v_lshrrev_b32 v2, 5, v0
    v_and_b32 v4, 31, v0
    v_lshlrev_b32 v4, 4, v4
    v_lshl_add_u32 v2, v2, 9, v4
    v_add_u32 v2, s66, v2
    s_waitcnt lgkmcnt(4)
    """)
    for x in hrd[12:]: a(x)
    km = lambda ks: a(f"v_mfma_f32_32x32x16_bf16 {vr(AK,16)}, {vr(HF+4*ks,4)}, {vr(LF+4*ks,4)}, {'0' if ks == 0 else vr(AK,16)}")
    for ks in range(8): km(ks)
    lstamp(a, 21)
    a("s_waitcnt lgkmcnt(0)\ns_barrier")
    for ks in range(8, 16): km(ks)
    a("ds_write_b128 v3, v[60:63]")
    for rg in range(2): a(f"v_cndmask_b32 v{AK+8*rg+4}, v{AK+8*rg+4}, v{AK+8*rg+5}, s[70:71]")
    for i in range(8): a(f"v_cvt_pk_bf16_f32 v{40+i}, v{AK+2*i}, v{AK+2*i+1}")
    for rg in range(2): a(f"ds_write_b128 v2, {vr(40+4*rg,4)} offset:{16 + 1024*rg}")
    lstamp(a, 22)
    a("s_waitcnt lgkmcnt(0)\ns_barrier")
    a(f"""
    v_add_u32 v2, s66, v1
    ds_read_b64 v[40:41], v2 offset:8
    ds_read_b128 v[42:45], v2 offset:16
    ds_read_b64 v[46:47], v2 offset:{1024+8}
    ds_read_b128 v[48:51], v2 offset:{1024+16}
    s_cmp_eq_u32 s52, 0
    s_cselect_b32 s67, 0, {slot_addr(4)}
    v_bfe_u32 v2, v0, 2, 2
    v_mul_u32_u24 v2, {RE}, v2
    v_and_b32 v3, 3, v0
    v_min_u32 v3, 2, v3
    v_lshl_add_u32 v2, v3, 4, v2
    v_add_u32 v52, s67, v2
    s_lshl_b32 s69, s53, 11
    s_sub_u32 s66, s67, s69
    s_add_u32 s66, s66, {255*16 - 1024}
    v_sub_u32 v53, s66, v1
    v_min_u32 v2, 32, v0
    s_mul_i32 s66, s53, {US}
    s_add_u32 s66, s66, s67
    s_add_u32 s66, s66, {RSZ}
    v_lshl_add_u32 v54, v2, 4, s66
    s_mov_b32 s69, 0xffff
    s_waitcnt lgkmcnt(0)
    """)
    RG = 96
    for q in range(2):
        w = lambda i: 40 + 6 * q + 2 + i
        for e in range(4):
            o = RG + 16 * q + 4 * e
            for i in range(4):
                hi = 3 - i - (0 if e >= 2 else 1)
                if e & 1: a(f"v_alignbit_b32 v{o+i}, v{w(hi)}, v{w(hi)}, 16")
                else: a(f"v_bfi_b32 v{o+i}, s69, v{w(hi)}, v{w(hi-1)}")
    a(f"""
    v_and_b32 v55, 31, v0
    v_lshlrev_b32 v55, 3, v55
    s_lshl_b32 s66, s51, 2
    s_add_u32 s66, s66, 32000
    v_mov_b32 v59, s66
    ds_write_b32 v59, v60
    s_lshl_b32 s71, {SX}, 18
    s_lshl_b32 s69, {SJ}, 13
    s_add_u32 s71, s71, s69
    s_lshl_b32 s69, s52, 6
    s_add_u32 s71, s71, s69
    s_lshl_b32 s69, s53, 12
    s_add_u32 s71, s71, s69
    s_add_u32 s71, s71, {XT}
    v_lshrrev_b32 v2, 2, v0
    v_and_b32 v3, 3, v0
    v_lshlrev_b32 v3, 4, v3
    v_lshl_add_u32 v56, v2, 7, v3
    s_lshl_b32 s70, s53, 11
    s_add_u32 s69, s67, s70
    s_add_u32 s69, s69, {RSZ + 512}
    v_add_u32 v57, s69, v1
    s_lshl_b32 s73, s53, 8
    s_sub_u32 s73, s67, s73
    s_add_u32 s66, s73, {4128 - 64*7 - 512*7 + 256}
    v_and_b32 v4, 3, v0
    v_mul_u32_u24 v4, {RE}, v4
    v_lshrrev_b32 v2, 4, v0
    v_bfe_u32 v3, v0, 2, 2
    v_add_u32 v3, v3, v2
    v_lshlrev_b32 v3, 4, v3
    v_sub_u32 v4, v4, v3
    v_add_u32 v{CA}, s66, v4
    s_add_u32 s66, s73, {RSZ + US + 512 + 48 - 64*7 + 256}
    v_bfe_u32 v4, v0, 1, 3
    v_lshlrev_b32 v4, 6, v4
    v_lshlrev_b32 v3, 4, v2
    v_sub_u32 v5, v4, v3
    v_add_u32 v4, v4, v3
    v_and_b32 v3, 1, v0
    v_lshl_add_u32 v4, v3, 3, v4
    v_mul_u32_u24 v3, {US}, v3
    v_sub_u32 v5, v5, v3
    v_add_u32 v{CB}, s66, v5
    v_add_u32 v{CU}, s69, v4
    v_add_u32 v{DA}, s70, v4
    v_add_u32 v{DA+1}, 512, v{DA}
    v_add_u32 v{DA+2}, 1024, v{DA}
    v_add_u32 v{DA+3}, 1536, v{DA}
    s_lshl_b32 s66, s51, 12
    s_add_u32 s66, s66, {OS}
    v_add_u32 v{CE}, s66, v1
    s_lshl_b32 s66, s54, 12
    s_add_u32 s66, s66, {BT}
    """)
    lstamp(a, 23)
    a("s_waitcnt lgkmcnt(0)\ns_barrier")
    a(f"buffer_load_dword v{VT}, v55, {R_WS}, s72 offen {SC}")
    a("ds_write_b128 v52, v[60:63] offset:4096\nds_write_b128 v54, v[60:63]")
    for q in range(2):
        for e in range(4): a(f"ds_write_b128 v53, {vr(RG+16*q+4*e,4)} offset:{e*RE + 1024*(1-q)}")
    a("s_waitcnt lgkmcnt(0)\ns_barrier")
    att_consts(a)
    def uload():
        for q in range(2): a(f"buffer_load_dwordx4 {vr(32+4*q,4)}, v56, {R_WS}, s71 offen offset:{2048*q} {SC}")
    a(f"""
    s_waitcnt vmcnt(0)
    v_cmp_ne_u32 vcc, v{VT}, v{VN}
    s_nop 1
    s_cbranch_vccnz L_u_late
    """)
    uload()
    a("s_barrier\ns_branch L_u_have")
    a("L_u_late:\ns_barrier")
    poll(a, "s1", 55, "s72")
    uload()
    a("L_u_have:\ns_waitcnt vmcnt(0)")
    for q in range(2): a(f"ds_write_b128 v57, {vr(32+4*q,4)} offset:{1024*q}")
    for q in range(2):
        a(f"ds_write_b64 v57, {vr(32+4*q,2)} offset:{1024*q + US + 8}")
        a(f"ds_write_b64 v57, {vr(34+4*q,2)} offset:{1024*q + US + 16}")
    a(f"""
    ds_write_b32 v59, v59
    v_xor_b32 v59, 4, v59
    s_mov_b32 s92, {SPIN}
    L_pair:
    ds_read_b32 v58, v59
    s_waitcnt lgkmcnt(0)
    v_readfirstlane_b32 s93, v58
    s_sub_u32 s92, s92, 1
    s_cmp_eq_u32 s92, 0
    s_cbranch_scc1 L_pair_ok
    s_cmp_eq_u32 s93, 0
    s_cbranch_scc1 L_pair
    L_pair_ok:
    """)
    lstamp(a, 25)
    conv(a)
    lstamp(a, 3)

def out_gemm(a):
    a(f"""
    v_lshlrev_b32 v2, 9, v86
    v_lshl_add_u32 v2, v87, 4, v2
    v_add_u32 v2, {OS}, v2
    v_lshlrev_b32 v3, 10, v87
    v_lshl_add_u32 v3, v86, 3, v3
    s_lshl_b32 s84, s88, 15
    s_lshl_b32 s86, s89, 5
    s_add_u32 s84, s84, s86
    v_add_u32 v3, s84, v3
    v_add_u32 v4, 0x4000, v3
    """)
    def go():
        NB = 12; FB = 16
        rd = lambda i: a(f"ds_read_b128 {vr(FB+4*(i%NB),4)}, v2 offset:{2048*(i>>1) + 256*(i&1)}")
        for i in range(NB): rd(i)
        for i in range(32):
            a(f"s_waitcnt lgkmcnt({min(NB - 1, 31 - i)})")
            acc = 8 + 4 * (i & 1)
            a(f"v_mfma_f32_16x16x32_bf16 {vr(acc,4)}, {vr(PW+4*(i>>1),4)}, {vr(FB+4*(i%NB),4)}, {'0' if i < 2 else vr(acc,4)}")
            if i + NB < 32: rd(i + NB)
        for nt in range(2):
            for i in range(4): a(f"v_fma_f32 v{8+4*nt+i}, v{8+4*nt+i}, v{PG+nt}, v{PB+4*nt+i}")
            a(f"v_cvt_pk_bf16_f32 v{16+2*nt}, v{8+4*nt}, v{9+4*nt}\nv_cvt_pk_bf16_f32 v{17+2*nt}, v{10+4*nt}, v{11+4*nt}")
            a(f"global_store_dwordx2 v{3+nt}, {vr(16+2*nt,2)}, {S_OUT}")
    return go

def build_fused():
    a = Asm()
    k = NAME + "_kernel"
    launches = f"; @launch grid=(256,1,1) block=(512,1,1) lds={LDS_BYTES}\n"
    if G.STAMPS:
        launches = f"; @launch kernel={k} grid=(256,1,1) block=(512,1,1) lds={LDS_BYTES}\n; @launch kernel=stamp_kernel grid=(1,1,1) block=(256,1,1) lds=1024\n"
    a.raw(header() + launches + '.amdgcn_target "amdgcn-amd-amdhsa--gfx950"\n.text')
    kernel_head(a, k)
    if "amp" in OPT: lstamp(a, "E")
    prologue(a, "L_end")
    lstamp(a, 0)
    a(f"s_cmp_lt_u32 {SW}, 4\ns_cbranch_scc1 L_gemm")
    a_params(a)
    a("s_barrier\ns_branch L_aux")
    a.reset(); a("L_gemm:")
    g_phase1(a)
    lg = list(G.LIGHT); G.LIGHT[:] = [s for s in lg if s == 0]
    a("s_branch L_att")
    a.reset(); a("L_aux:")
    a_phase1(a)
    la = list(G.LIGHT); G.LIGHT[:] = sorted(set(la) | set(lg))
    a.reset(); a("L_att:")
    a("s_barrier")
    lstamp(a, 4)
    KM = "" if OPT.get("kvplain") else SC
    a(f"buffer_load_dwordx4 {vr(AQ,4)}, v1, {R_WS}, s77 offen {KM}")
    G.att_dma(a, [0], KM)
    lstamp(a, 26)
    conv_finish(a)
    a("s_waitcnt vmcnt(0)\ns_barrier"); lstamp(a, 27)
    def hdma(t):
        def f():
            if t == 2:
                a("s_waitcnt vmcnt(2)\ns_barrier")
                deferred_stores(a)
            if t == 10: a("s_waitcnt vmcnt(1)\ns_barrier")
            G.att_dma(a, [1 + 2 * t, 2 + 2 * t] if t < 2 else [3 + t], KM)
        return f
    def h14():
        a(f"""
        s_waitcnt vmcnt(0)
        s_barrier
        s_cmp_lg_u32 {SW}, 0
        s_cbranch_scc1 L_s3_skip
        s_lshl_b32 s84, {SX}, 7
        s_lshl_b32 s85, {SJ}, 2
        s_add_u32 s84, s84, s85
        s_add_u32 s84, s84, {F_S3}
        """)
        signal(a, "s84")
        a("L_s3_skip:")
        lstamp(a, 28)
    def h36():
        a(f"s_mov_b32 s84, {F_S3}\nbuffer_load_dwordx4 {vr(VT,4)}, v1, {R_WS}, s84 offen {SC}")
    def h40():
        a("s_waitcnt vmcnt(0)")
        poll(a, "s3", 1, "s84", True, 4)
        out_side_loads(a, SC)
        a(f"""
        s_or_b32 s84, s2, {SW}
        s_cmp_lg_u32 s84, 0
        s_cbranch_scc1 L_n_skip
        s_mov_b32 s84, {F_N}
        """)
        signal(a, "s84")
        a("L_n_skip:")
    hooks = {t: hdma(t) for t in range(13)}
    hooks.update({20: h14, 36: h36, 40: h40})
    att_main(a, hooks, PRIOS)
    lstamp(a, 29)
    att_finish(a, "at", SC)
    a(f"""
    s_lshl_b32 s81, s76, 7
    s_lshl_b32 s85, s74, 2
    s_add_u32 s81, s81, s85
    s_add_u32 s81, s81, {F_S4}
    s_lshl_b32 s85, s88, 7
    s_lshl_b32 s86, {SW}, 4
    s_add_u32 s85, s85, s86
    s_add_u32 s85, s85, {F_S4}
    v_and_b32 v5, 3, v0
    v_lshlrev_b32 v5, 2, v5
    s_lshl_b32 s93, s88, 15
    s_lshl_b32 s86, {SW}, 12
    s_add_u32 s93, s93, s86
    s_add_u32 s93, s93, {OF}
    s_add_u32 m0, s86, {OS}
    s_waitcnt vmcnt(1)
    """)
    out_side_math(a)
    gemm = out_gemm(a)
    a("s_waitcnt vmcnt(0)")
    signal(a, "s81")
    lstamp(a, 5)
    poll(a, "s4", 5, "s85")
    lstamp(a, 6)
    for i in range(4): a(f"buffer_load_dwordx4 v1, {R_WS}, s93 offen offset:{1024*i} {SC} lds")
    a("s_waitcnt vmcnt(0)")
    lstamp(a, 30)
    a("s_barrier")
    gemm()
    lstamp(a, 7)
    if G.STAMPS:
        lflush(a, range(8))
        for s in la:
            if s: G.STAMP_WAVES[s] = list(range(4, 8))
        for s in lg:
            if s: G.STAMP_WAVES[s] = list(range(4))
    if "amp" in OPT:
        w = OPT["amp"].split(",")[2]
        a(f"""
        s_cmp_lg_u32 s2, {OPT.get("ampwg", 0)}
        s_cbranch_scc1 L_end
        s_cmp_lg_u32 {SW}, {w}
        s_cbranch_scc1 L_end
        s_sub_u32 s98, s98, s96
        s_lshl_b32 s98, s98, 2
        s_min_u32 s98, s98, 40000
        s_memrealtime s[96:97]
        s_waitcnt lgkmcnt(0)
        L_amp:
        s_memrealtime s[100:101]
        s_waitcnt lgkmcnt(0)
        s_sub_u32 s100, s100, s96
        s_cmp_lt_u32 s100, s98
        s_cbranch_scc1 L_amp
        """)
    a("L_end:\ns_endpgm")
    att_slow(a, "at")
    a("L_codeend:\ns_endpgm")
    if G.STAMPS: stamp_reduce_kernel(a)
    a.raw('.section .rodata,"a"')
    if G.STAMPS: a.raw(descriptor("stamp_kernel", 32))
    a.raw(descriptor(k, 256))
    return a.text()

if __name__ == "__main__":
    out = sys.argv[1]
    for o in sys.argv[2:]:
        kk, _, v = o.partition("="); OPT[kk] = v or True
    G.STAMPS = bool(OPT.get("stamp"))
    OPT.setdefault("ones", "few")
    txt = build_fused()
    open(out, "w").write(txt)
    print("wrote", out, len(txt), "bytes")
```

```python
import sys
import gen as G
from gen import (Asm, OPT, NAME, vr, VM, prologue, aux_ids, kernel_head, descriptor, header, lstamp, lflush, stamp_reduce_kernel,
                 QF, KV, XT, BT, OF, WOF, GW, LDS_BYTES, LOG2E, INV2PI, QSCALE,
                 S_X, S_WO, S_LOGA, S_AIM, S_CR, S_CI, S_LDT, S_DSK, S_GWT, S_OUT, R_X, R_W, R_WS, SX, SJ, SW,
                 AQ, AKS, AV1, AV2, AS_, AO, PW, PB, PG, att_main, att_finish, att_slow, out_side_loads, out_side_math)
from gen2 import cmuls, RowWriter, cexp

SC = "sc1"
SPIN = 400000
FL = 0xC90000
F_N, F_S1, F_S2, F_S3, F_S4 = FL, FL + 0x1000, FL + 0x3000, FL + 0x4000, FL + 0x8000
SLOT = 32768
def slot_addr(t): return SLOT * (1 + ((t + 1) & 3))
TBS, HTS = 8704, 7344
EX0, KX0, KXD = 0, 16384, 4608
RE, RSZ = 4160, 16640
US = 4640
OS = 131072
VN, VX, VZ, VT = 240, 241, 242, 244
DB, DA = 224, 232
PRIOS = {0: 3, 38: 2, 54: 1, 61: 0}

def poll(a, tag, vaddr, soff, first_issued=False, n=1, ncmp=None, vt=VT):
    ld = f"buffer_load_dword{'' if n == 1 else 'x%d' % n} {vr(vt, n)}, v{vaddr}, {R_WS}, {soff} offen {SC}"
    ncmp = ncmp or n
    a(f"s_mov_b32 s92, {SPIN}")
    if first_issued: a(f"s_branch L_{tag}_chk")
    a(f"L_{tag}_poll:\n{ld}\ns_waitcnt vmcnt(0)")
    a(f"L_{tag}_chk:")
    a(f"v_cmp_ne_u32 vcc, v{vt}, v{VN}")
    for i in range(1, ncmp): a(f"v_cmp_ne_u32 s[90:91], v{vt+i}, v{VN}\ns_or_b64 vcc, vcc, s[90:91]")
    if ncmp == 1: a("s_nop 1")
    a(f"""
    s_cbranch_vccz L_{tag}_ok
    s_sub_u32 s92, s92, 1
    s_cmp_lg_u32 s92, 0
    s_cbranch_scc1 L_{tag}_poll
    L_{tag}_ok:
    """)

def signal(a, soff, mod=SC, n=1):
    a(f"""
    s_mov_b64 exec, 1
    buffer_store_dword{'' if n == 1 else 'x2'} {vr(VN, n)}, v{VZ}, {R_WS}, {soff} offen {mod}
    s_mov_b64 exec, -1
    """)

def epoch_load(a):
    a(f"v_mov_b32 v{VZ}, 0\ns_mov_b32 s56, {F_N}\nbuffer_load_dword v{VN}, v{VZ}, {R_WS}, s56 offen {SC}")

DX, DW = 94, 95
def dma_setup(a):
    a(f"""
    v_lshrrev_b32 v1, 3, v0
    v_lshrrev_b32 v2, 4, v0
    s_and_b32 s58, {SW}, 1
    s_lshl_b32 s56, s58, 2
    v_add_u32 v3, s56, v2
    v_and_b32 v{DW}, 7, v0
    v_xor_b32 v3, v3, v{DW}
    v_lshlrev_b32 v3, 4, v3
    v_lshl_add_u32 v{DX}, v1, 10, v3
    v_and_b32 v2, 1, v2
    v_lshlrev_b32 v2, 2, v2
    v_xor_b32 v2, v2, v{DW}
    v_lshlrev_b32 v2, 4, v2
    v_mov_b32 v3, 0xc00
    v_mad_u32_u24 v{DW}, v1, v3, v2
    s_lshl_b32 s44, {SJ}, 16
    s_lshl_b32 s45, {SW}, 13
    s_add_u32 s44, s44, s45
    s_mul_i32 s45, {SW}, {16*3072}
    s_lshl_b32 s56, {SX}, 7
    s_add_u32 s45, s45, s56
    s_lshl_b32 s46, {SW}, 10
    s_lshl_b32 s47, {SW}, 11
    """)

def dma_pieces(t, part="xw"):
    base = slot_addr(t); out = []
    head = f"s_add_u32 s56, {SX}, {t}\ns_and_b32 s56, s56, 7\n"
    if "x" in part:
        for i in range(2):
            p = (head + "s_lshl_b32 s57, s56, 7\ns_add_u32 s57, s57, s44\n") if i == 0 else "s_add_u32 s57, s57, 0x8000\n"
            out.append(p + f"s_add_u32 m0, s46, {base + i*4096}\nbuffer_load_dwordx4 v{DX}, {R_X}, s57 offen lds")
        head = ""
    if "w" in part:
        for i in range(2):
            for ty in range(3):
                p = ""
                if ty == 0: p = (head + f"s_mul_i32 s56, s56, {64*3072}\ns_add_u32 s56, s56, s45\n") if i == 0 else f"s_add_u32 s56, s56, {8*3072}\n"
                out.append(p + f"s_add_u32 m0, s47, {base + 8192 + ty*8192 + i*1024 - ty*1024}\nbuffer_load_dwordx4 v{DW}, {R_W}, s56 offen offset:{ty*1024} lds")
    return out

def dma(a, vm, t, part="xw", tag=None):
    for p in dma_pieces(t, part): a(p); vm.add(tag or f"s{t}")

def att_consts(a):
    G.att_setup(a)
    a(f"""
    v_lshrrev_b32 v2, 5, v0
    v_lshlrev_b32 v2, 8, v2
    v_and_b32 v3, 15, v0
    v_lshl_add_u32 v2, v3, 4, v2
    v_add_u32 v2, 1024, v2
    v_add_u32 v80, 0x10000, v1
    v_add_u32 v81, 0x10000, v2
    s_mov_b32 s82, 0xffff
    s_mov_b32 s83, 0xffff
    v_and_b32 v3, 27, v0
    v_cmp_eq_u32 vcc, 16, v3
    v_mov_b32 v17, 0x3f803f80
    v_mov_b32 v3, 0xdddddddd
    v_cndmask_b32 v16, 0, v17, vcc
    """)
    for r in range(17, 32): a(f"v_mov_b32 v{r}, v16")
    for r in range(16): a(f"v_mov_b32 v{AO+r}, 0")

def g_phase1(a):
    vm = VM()
    ACC = (96, 112, 128); SETS = (144, 160, 176, 192)
    XA, WA = 4, 12
    GX, GG, GO = 32, 40, 44
    dma_setup(a)
    a("s_barrier")
    for t in range(2): dma(a, vm, t)
    lstamp(a, 18)
    a(f"""
    s_getreg_b32 s62, hwreg(HW_REG_XCC_ID)
    v_mov_b32 v{VX}, s62
    s_lshr_b32 s59, {SW}, 1
    v_and_b32 v1, 31, v0
    s_lshl_b32 s60, s58, 12
    s_add_u32 s60, s60, {SLOT}
    v_lshlrev_b32 v2, 7, v1
    v_add_u32 v2, s60, v2
    v_bfe_u32 v1, v0, 1, 3
    v_lshrrev_b32 v3, 5, v0
    v_xor_b32 v1, v1, v3
    """)
    for ks in range(4):
        a(f"v_xor_b32 v3, {2*ks}, v1\nv_lshl_add_u32 v{XA+ks}, v3, 4, v2\nv_add_u32 v{XA+4+ks}, 0x10000, v{XA+ks}")
    a(f"""
    v_lshrrev_b32 v1, 5, v0
    v_lshlrev_b32 v1, 10, v1
    v_bfe_u32 v2, v0, 2, 2
    v_lshl_add_u32 v1, v2, 7, v1
    v_bfe_u32 v2, v0, 3, 1
    v_xor_b32 v2, s59, v2
    v_lshl_add_u32 v1, v2, 6, v1
    v_bfe_u32 v2, v0, 4, 1
    v_lshl_add_u32 v1, v2, 5, v1
    v_and_b32 v2, 3, v0
    v_lshl_add_u32 v1, v2, 3, v1
    v_add_u32 v{WA}, {SLOT + 8192}, v1
    v_add_u32 v{WA+1}, {SLOT + 8192 + 65536}, v1
    s_lshl_b32 s67, {SJ}, 6
    s_lshl_b32 s62, {SX}, 3
    s_add_u32 s67, s67, s62
    s_lshl_b32 s62, {SW}, 1
    s_add_u32 s67, s67, s62
    v_lshlrev_b32 v15, 4, v0
    s_lshl_b32 s62, s67, 10
    v_add_u32 v14, s62, v15
    s_lshl_b32 s62, {SX}, 5
    s_add_u32 s62, s62, {SJ}
    s_lshr_b32 s69, s62, 3
    s_and_b32 s63, s62, 7
    s_lshl_b32 s63, s63, 1
    s_add_u32 s63, s63, s58
    s_lshl_b32 s64, s63, 15
    s_lshl_b32 s62, s69, 5
    s_add_u32 s64, s64, s62
    v_lshrrev_b32 v3, 5, v0
    v_lshlrev_b32 v3, 14, v3
    v_bfe_u32 v2, v0, 4, 1
    v_lshl_add_u32 v3, v2, 12, v3
    v_and_b32 v2, 15, v0
    v_lshl_add_u32 v3, v2, 1, v3
    v_add_u32 v52, s64, v3
    v_add_u32 v57, 0x2000, v52
    s_lshl_b32 s69, s69, 4
    s_add_u32 s69, s69, s63
    s_lshl_b32 s69, s69, 10
    s_add_u32 s69, s69, {WOF}
    s_lshl_b32 s67, s67, 2
    s_add_u32 s67, s67, {GW}
    s_lshl_b32 s72, {SX}, 2
    s_add_u32 s72, s72, {SW}
    s_lshl_b32 s72, s72, 8
    s_add_u32 s72, s72, {F_S1}
    v_and_b32 v53, 31, v0
    v_lshlrev_b32 v53, 3, v53
    s_lshl_b32 s70, {SX}, 1
    s_lshr_b32 s71, {SJ}, 4
    s_add_u32 s71, s71, s70
    s_lshl_b32 s71, s71, 8
    s_add_u32 s71, s71, {F_S2}
    s_add_u32 s70, s70, s59
    s_lshl_b32 s70, s70, 8
    s_lshl_b32 s62, {SJ}, 3
    s_add_u32 s70, s70, s62
    s_lshl_b32 s62, s58, 2
    s_add_u32 s70, s70, s62
    s_add_u32 s70, s70, {F_S2}
    v_lshlrev_b32 v54, 2, v0
    s_lshl_b32 s60, {SX}, 2
    s_lshl_b32 s61, s59, 1
    s_add_u32 s60, s60, s61
    s_lshl_b32 s60, s60, 6
    s_lshl_b32 s61, {SJ}, 1
    s_add_u32 s61, s61, s58
    s_add_u32 s60, s60, s61
    s_lshl_b32 s61, s60, 10
    s_add_u32 s61, s61, {QF}
    s_add_u32 s62, s61, 0x10000
    s_lshl_b32 s63, s60, 11
    s_add_u32 s63, s63, {KV}
    s_add_u32 s64, s63, 0x20000
    s_mov_b32 s65, {QSCALE}
    v_and_b32 v55, 0x33, v0
    v_bfe_u32 v3, v0, 2, 1
    v_lshl_or_b32 v55, v3, 3, v55
    v_bfe_u32 v3, v0, 3, 1
    v_lshl_or_b32 v55, v3, 2, v55
    v_lshlrev_b32 v55, 4, v55
    v_and_b32 v56, 15, v0
    v_lshlrev_b32 v56, 4, v56
    v_lshrrev_b32 v3, 5, v0
    v_lshl_add_u32 v56, v3, 8, v56
    v_bfe_u32 v3, v0, 4, 1
    v_lshl_add_u32 v56, v3, 17, v56
    """)
    for r in range(DA, DA + 4): a(f"v_mov_b32 v{r}, 0")
    epoch_load(a); vm.add("n")
    dma(a, vm, 2)
    att_consts(a)
    lstamp(a, 1)
    def reads(t, ks):
        p = slot_addr(t) // SLOT - 1; s = SETS[ks]; hi = p >> 1; o0 = (p & 1) * SLOT
        l = [f"ds_read_b128 {vr(s,4)}, v{XA + 4*hi + ks} offset:{o0}"]
        for ty in (1, 2, 0):
            for ri in range(2):
                l.append(f"ds_read_b64_tr_b16 {vr(s+4+4*ty+2*ri,2)}, v{WA+hi} offset:{o0 + ty*8192 + ks*2048 + ri*512}")
        return l
    def mf(ks, i, first=False):
        s = SETS[ks]; c = "0" if first else vr(ACC[i], 16)
        ab = f"{vr(s,4)}, {vr(s+12,4)}" if i == 2 else f"{vr(s+4+4*i,4)}, {vr(s,4)}"
        a(f"v_mfma_f32_32x32x16_bf16 {vr(ACC[i],16)}, {ab}, {c}")
    pend = []
    def mm(ks, first, rd=(), nd=2):
        rd = list(rd)
        for i, r in zip((1, 2, 0), (rd[:4], rd[4:], [])):
            mf(ks, i, first)
            for x in r: a(x)
        for _ in range(nd):
            if pend:
                tag, p = pend.pop(0); a(p); vm.add(tag)
    side = [f"global_load_dwordx4 {vr(GX,4)}, v14, {S_X}", f"global_load_dwordx4 {vr(GX+4,4)}, v14, {S_X} offset:1024", f"global_load_dwordx4 {vr(GG,4)}, v15, {S_GWT}"]
    side += [f"global_load_short_d16{'_hi' if j & 1 else ''} v{GO+j}, v{57 if j >> 2 else 52}, {S_WO} offset:{1024*(j&3)}" for j in range(8)]
    for t in range(8):
        if OPT.get("gpos") == "pre": lstamp(a, 8 + t)
        vm.wait(a, f"s{t}")
        if t == 3: a(f"v_add_u32 v{VN}, 1, v{VN}")
        if OPT.get("gpos") == "mid": lstamp(a, 8 + t)
        a("s_barrier")
        if not OPT.get("gpos"): lstamp(a, 8 + t)
        nd = 2
        if t == 0: pend += [("s3w", p) for p in dma_pieces(3, "w")]; nd = 3
        if t == 1: pend += [("s3", p) for p in dma_pieces(3, "x")]; nd = 3
        if 1 <= t <= 4: pend += [(f"s{t+3}", p) for p in dma_pieces(t + 3)]
        if t == 5: pend += [("side", p) for p in side]; nd = 3
        if t == 6: pend += [("f", f"buffer_load_dwordx2 {vr(VT,2)}, v53, {R_WS}, s72 offen {SC}")]
        if t == 0:
            for x in reads(0, 0) + reads(0, 1): a(x)
        else:
            mm(2, False, reads(t, 0), nd)
            mm(3, False, reads(t, 1), nd)
        a("s_waitcnt lgkmcnt(7)")
        mm(0, t == 0, reads(t, 2), nd)
        a("s_waitcnt lgkmcnt(7)")
        mm(1, False, reads(t, 3), nd)
        assert not pend
        if t == 7:
            a("s_waitcnt vmcnt(0)")
            poll(a, "s1g", 53, "s72", True, 2, 1)
            a(f"v_cmp_ne_u32 s[94:95], v{VT+1}, v{VX}")
        a("s_waitcnt lgkmcnt(0)")
    a("s_cmp_eq_u64 s[94:95], 0")
    if OPT.get("nofast"): a("s_branch L_st_far")
    a("s_cbranch_scc0 L_st_far")
    cv = lambda d, s: [f"v_cvt_pk_bf16_f32 v{d+r}, v{s+2*r}, v{s+2*r+1}" for r in range(8)]
    for mod in ("", SC):
        if mod: a.reset(); a("L_st_far:")
        for ks, i in ((2, 1), (3, 1), (2, 2), (3, 2), (2, 0)): mf(ks, i)
        a("s_nop 6")
        for x in cv(144, ACC[1])[:4]: a(x)
        mf(3, 0)
        for x in cv(144, ACC[1])[4:]: a(x)
        a(f"buffer_store_dwordx4 v[144:147], v55, {R_WS}, s63 offen {mod}\nbuffer_store_dwordx4 v[148:151], v55, {R_WS}, s64 offen {mod}")
        for x in cv(152, ACC[2]): a(x)
        a(f"buffer_store_dwordx4 v[152:155], v56, {R_WS}, s63 offen offset:1024 {mod}\nbuffer_store_dwordx4 v[156:159], v56, {R_WS}, s63 offen offset:1536 {mod}")
        for h in range(2):
            for r in range(8): a(f"v_mul_f32 v{ACC[0]+8*h+r}, s65, v{ACC[0]+8*h+r}")
            for x in cv(160, ACC[0])[4*h:4*h+4]: a(x)
            a(f"buffer_store_dwordx4 {vr(160+4*h,4)}, v1, {R_WS}, s{61+h} offen {mod}")
        if not mod: lstamp(a, 16)
        a("s_mov_b32 s68, 0xffff0000")
        for k in range(4): a(f"v_lshlrev_b32 v{168+2*k}, 16, v{GG+k}\nv_and_b32 v{169+2*k}, s68, v{GG+k}")
        for k in range(4):
            for r in range(2):
                x = GX + 4 * r + k; t = 180 + 2 * r
                a(f"v_lshlrev_b32 v{t}, 16, v{x}\nv_and_b32 v{t+1}, s68, v{x}\nv_mul_f32 v{t}, v{t}, v{168+2*k}\nv_mul_f32 v{t+1}, v{t+1}, v{169+2*k}")
                a(f"v_cvt_pk_bf16_f32 v{x}, v{t}, v{t+1}")
        a("s_waitcnt vmcnt(0)")
        signal(a, "s70", mod)
        if not mod: a("s_branch L_st_done")
    a.reset(); a("L_st_done:")
    lstamp(a, 17)
    a(f"buffer_load_dword v{VT}, v54, {R_WS}, s71 offen {SC}")
    for k in range(4):
        for r in range(2):
            x = GX + 4 * r + k; t = 180 + 2 * r
            a(f"v_and_b32 v{t+1}, s68, v{x}\nv_lshlrev_b32 v{t}, 16, v{x}")
            if k == 0: a(f"v_add_f32 v{176+r}, v{t}, v{t+1}")
            else: a(f"v_add_f32 v{176+r}, v{176+r}, v{t}\nv_add_f32 v{176+r}, v{176+r}, v{t+1}")
    wo_pack = [f"v_or_b32 v{DB+j}, v{GO+2*j}, v{GO+2*j+1}" for j in range(4)]
    for d in ("row_shr:1 row_mask:0xf bank_mask:0xf bound_ctrl:0", "row_shr:2 row_mask:0xf bank_mask:0xf bound_ctrl:0",
              "row_shr:4 row_mask:0xf bank_mask:0xf bound_ctrl:0", "row_shr:8 row_mask:0xf bank_mask:0xf bound_ctrl:0",
              "row_bcast:15 row_mask:0xa bank_mask:0xf", "row_bcast:31 row_mask:0xc bank_mask:0xf"):
        if wo_pack: a(wo_pack.pop())
        for r in range(2): a(f"v_add_f32_dpp v{176+r}, v{176+r}, v{176+r} {d}")
    a(f"""
    v_cvt_pk_bf16_f32 v178, v176, v177
    s_mov_b32 s60, {LOG2E}
    v_lshlrev_b32 v176, 16, v178
    v_and_b32 v177, s68, v178
    v_mul_f32 v176, s60, v176
    v_mul_f32 v177, s60, v177
    v_exp_f32 v176, -v176
    v_exp_f32 v177, -v177
    v_add_f32 v176, 1.0, v176
    v_add_f32 v177, 1.0, v177
    v_rcp_f32 v176, v176
    v_rcp_f32 v177, v177
    s_nop 0
    v_cvt_pk_bf16_f32 v178, v176, v177
    v_lshlrev_b32 v{DB+4}, 16, v178
    v_and_b32 v{DB+5}, s68, v178
    """)
    a(f"s_cmp_lg_u32 {SW}, 0\ns_cbranch_scc1 L_s2_skip\ns_waitcnt vmcnt(0)")
    poll(a, "s2", 54, "s71", True)
    a.reset(); a("L_s2_skip:")
    lstamp(a, 2)

def deferred_stores(a):
    a(f"s_cmp_lt_u32 {SW}, 4\ns_cbranch_scc1 L_df_g")
    for ci in range(4): a(f"buffer_store_dwordx2 {vr(DB+2*ci,2)}, v{DA+ci}, {R_WS}, s66 offen {SC}")
    a(f"""
    s_branch L_df_done
    L_df_g:
    buffer_store_dwordx4 {vr(DB,4)}, v1, {R_WS}, s69 offen {SC}
    s_mov_b32 exec_lo, 0
    s_mov_b32 exec_hi, 0x80000000
    buffer_store_dwordx2 {vr(DB+4,2)}, v{VZ}, {R_WS}, s67 offen {SC}
    s_mov_b64 exec, -1
    L_df_done:
    """)

CA, CB, CU, CD, CE = 86, 87, 88, 90, 91
CACC = 32
def conv(a):
    FA = (96, 160); FB = (128, 192)
    q = []
    def issue(key, txt):
        if len(q) >= 15:
            a("s_waitcnt lgkmcnt(14)"); del q[:len(q) - 14]
        a(txt); q.append(key)
    def need(keys):
        idx = [i for i, k in enumerate(q) if k in keys]
        if idx:
            a(f"s_waitcnt lgkmcnt({len(q) - 1 - max(idx)})"); del q[:max(idx) + 1]
    def rd_list(rho):
        s = rho & 1; l = []
        for i in range(8):
            l.append(((rho, "A", i), f"ds_read_b128 {vr(FA[s]+4*i,4)}, v{CA} offset:{512*(7-i) + 64*(3-rho)}"))
            l.append(((rho, "B", i), f"ds_read_b128 {vr(FB[s]+4*i,4)}, v{CB} offset:{512*i + 64*(3-rho)}"))
        return l
    for k, t in rd_list(0): issue(k, t)
    seen = set()
    mms = sorted([(sg, dl) for sg in range(8) for dl in range(8 - sg)], key=lambda m: max(2 * m[0], 2 * m[1] + 1))
    for rho in range(4):
        s = rho & 1
        nxt = rd_list(rho + 1) if rho < 3 else [(("u", i), f"ds_read_b64 {vr(DB+2*i,2)}, v{CU} offset:{512*i}") for i in range(4)]
        k0 = 14 if rho == 0 else 0
        for k, (sg, dl) in enumerate(mms):
            if rho == 0: need({(rho, "A", sg), (rho, "B", dl)})
            elif k == 0: need({(rho, "B", 7)})
            c = sg + dl; acc = vr(CACC + 4 * c, 4)
            a(f"v_mfma_f32_16x16x32_bf16 {acc}, {vr(FA[s]+4*sg,4)}, {vr(FB[s]+4*dl,4)}, {acc if c in seen else '0'}")
            seen.add(c)
            if k >= k0 and (k - k0) % 2 == 0:
                for x in nxt[k - k0:k - k0 + 2]: issue(*x)
    a("s_cmp_eq_u32 s53, 0\ns_cbranch_scc0 L_cv_hi\ns_nop 5")
    for i in range(4): a(f"ds_write_b128 v{CE}, {vr(CACC+16+4*i,4)} offset:{1024*i}")
    a("s_branch L_cv_sent\nL_cv_hi:\ns_nop 5")
    for i in range(4): a(f"ds_write_b128 v{CE}, {vr(CACC+4*i,4)} offset:{1024*i}")
    a("s_nop 1")
    for i in range(16): a(f"v_mov_b32 v{CACC+i}, v{CACC+16+i}")
    a(f"L_cv_sent:\nv_xor_b32 v{CE}, 0x1000, v{CE}\ns_waitcnt lgkmcnt(0)")

def conv_finish(a):
    a(f"s_cmp_lt_u32 {SW}, 4\ns_cbranch_scc1 L_cv_fin")
    for i in range(4): a(f"ds_read_b128 {vr(96+4*i,4)}, v{CE} offset:{1024*i}")
    a("s_mov_b32 s68, 0xffff0000")
    for i in range(8): a(f"v_lshlrev_b32 v{48+2*i}, 16, v{DB+i}\nv_and_b32 v{49+2*i}, s68, v{DB+i}")
    for i in range(16): a(f"v_fmac_f32 v{CACC+i}, v{48+i}, v{CD}")
    a("s_waitcnt lgkmcnt(0)")
    for i in range(16): a(f"v_add_f32 v{CACC+i}, v{CACC+i}, v{96+i}")
    for i in range(8): a(f"v_cvt_pk_bf16_f32 v{DB+i}, v{CACC+2*i}, v{CACC+2*i+1}")
    a("L_cv_fin:")

def a_params(a):
    aux_ids(a)
    a(f"""
    s_lshl_b32 s55, s54, 8
    s_lshl_b32 s56, s53, 7
    s_add_u32 s55, s55, s56
    v_lshlrev_b32 v1, 1, v0
    v_add_u32 v1, s55, v1
    s_lshl_b32 s56, s54, 1
    v_mov_b32 v2, s56
    global_load_short_d16_hi v10, v1, {S_LOGA}
    global_load_short_d16_hi v14, v2, {S_LDT}
    global_load_short_d16_hi v11, v1, {S_AIM}
    global_load_short_d16_hi v12, v1, {S_CR}
    global_load_short_d16_hi v13, v1, {S_CI}
    global_load_short_d16_hi v{CD}, v2, {S_DSK}
    """)
    epoch_load(a)
    if not OPT.get("nocpf"):
        a(f"""
        s_getpc_b64 s[62:63]
        L_pc:
        s_and_b32 s64, {SJ}, 3
        s_lshl_b32 s64, s64, 2
        s_add_u32 s64, s64, s51
        s_lshl_b32 s64, s64, 11
        v_lshlrev_b32 v3, 7, v0
        v_add_u32 v3, s64, v3
        v_min_u32 v3, L_codeend - L_pc - 4, v3
        s_mov_b64 exec, 0xffff
        global_load_dword v93, v3, s[62:63]
        s_mov_b64 exec, -1
        """)

def rows(a, regs, row0, neg, tb):
    for k, r in enumerate(regs):
        if r is None: a(f"v_mov_b32 v{tb+k}, 0x3f80")
        else: a(f"v_cvt_pk_bf16_f32 v{tb+k}, v{r}, {'-' if neg else ''}v{r+1}")
    for k in range(len(regs)): a(f"ds_write_addtid_b32 v{tb+k} offset:{272*(row0+k)}")
    return row0 + len(regs)

def smul_list(ops):
    T = list(range(32, 40)) + [16, 17, 18, 19]; l = []
    for k, (d, x, w) in enumerate(ops): l += [f"v_mul_f32 v{T[2*k]}, v{x+1}, v{w+1}", f"v_mul_f32 v{T[2*k+1]}, v{x}, v{w+1}"]
    for k, (d, x, w) in enumerate(ops):
        if d == w:
            l += [f"v_fma_f32 v{d+1}, v{x+1}, v{w}, v{T[2*k+1]}", f"v_fma_f32 v{d}, v{x}, v{w}, -v{T[2*k]}"]
        else:
            l += [f"v_fma_f32 v{d}, v{x}, v{w}, -v{T[2*k]}", f"v_fma_f32 v{d+1}, v{x+1}, v{w}, v{T[2*k+1]}"]
    return l

def a_phase1(a):
    vm = VM()
    vm.add("par", 7)
    if not OPT.get("nocpf"): vm.add("cpf")
    a("s_setprio 2")
    a(f"""
    s_mul_i32 s65, s51, {TBS}
    s_mov_b32 m0, s65
    v_and_b32 v1, 31, v0
    v_lshrrev_b32 v2, 5, v0
    v_lshlrev_b32 v2, 4, v2
    s_mul_i32 s66, s52, {2*TBS}
    v_add_u32 v18, s66, v2
    v_mov_b32 v3, 272
    v_mad_u32_u24 v7, v1, v3, v18
    s_mul_i32 s65, s51, {HTS}
    s_mul_i32 s66, s52, {2*HTS}
    v_add_u32 v2, s66, v2
    v_bfe_u32 v8, v0, 3, 1
    v_and_b32 v9, 3, v0
    v_lshl_add_u32 v8, v8, 2, v9
    v_cvt_f32_u32 v8, v8
    v_bfe_u32 v9, v0, 4, 1
    v_bfe_u32 v16, v0, 2, 1
    v_lshl_add_u32 v9, v9, 1, v16
    v_min_u32 v16, 2, v9
    v_sub_u32 v16, 0, v16
    v_ldexp_f32 v16, v8, v16
    v_rndne_f32 v16, v16
    v_cvt_u32_f32 v16, v16
    v_lshlrev_b32 v17, 3, v9
    s_mov_b32 s66, 0x100d0800
    v_lshrrev_b32 v17, v17, s66
    v_and_b32 v17, 0xff, v17
    v_add_u32 v16, v16, v17
    v_mul_f32 v8, 0.125, v8
    v_rndne_f32 v8, v8
    v_cvt_u32_f32 v8, v8
    v_lshl_add_u32 v8, v9, 1, v8
    v_add_u32 v8, 19, v8
    s_cmp_eq_u32 s53, 0
    s_cselect_b64 vcc, -1, 0
    s_cselect_b32 s70, 0, 0xaaaaaaaa
    s_mov_b32 s71, s70
    v_cndmask_b32 v9, v8, v16, vcc
    v_mad_u32_u24 v9, v9, v3, v2
    v_lshrrev_b32 v1, 4, v0
    v_bfe_u32 v2, v0, 2, 2
    v_lshl_add_u32 v2, v1, 3, v2
    v_bfe_u32 v3, v0, 1, 1
    s_lshl_b32 s66, s51, 1
    v_add_u32 v3, s66, v3
    v_bfe_u32 v4, v2, 1, 3
    v_xor_b32 v4, v4, v3
    v_and_b32 v5, 1, v0
    v_lshlrev_b32 v5, 3, v5
    v_lshl_add_u32 v5, v2, 7, v5
    v_add_u32 v5, {slot_addr(0)}, v5
    v_xor_b32 v6, 2, v4
    v_lshl_add_u32 v4, v4, 4, v5
    v_lshl_add_u32 v5, v6, 4, v5
    v_bfe_u32 v6, v0, 1, 3
    v_lshlrev_b32 v6, 13, v6
    v_and_b32 v3, 1, v0
    v_lshl_add_u32 v6, v3, 6, v6
    v_lshl_add_u32 v6, v1, 4, v6
    s_lshl_b32 s60, {SX}, 18
    s_lshl_b32 s62, s51, 16
    s_add_u32 s60, s60, s62
    s_lshl_b32 s62, {SJ}, 8
    s_add_u32 s60, s60, s62
    s_add_u32 s60, s60, {XT}
    s_lshl_b32 s72, {SX}, 2
    s_add_u32 s61, s72, s51
    s_lshl_b32 s61, s61, 8
    s_lshl_b32 s62, {SJ}, 3
    s_add_u32 s61, s61, s62
    s_add_u32 s61, s61, {F_S1}
    s_lshr_b32 s62, {SJ}, 3
    s_add_u32 s72, s72, s62
    s_lshl_b32 s72, s72, 8
    s_add_u32 s72, s72, {F_S1}
    s_getreg_b32 s62, hwreg(HW_REG_XCC_ID)
    v_mov_b32 v{VX}, s62
    s_mov_b32 s66, {LOG2E}
    s_mov_b32 s68, 0xffff0000
    s_mov_b32 s69, {INV2PI}
    s_mov_b32 s62, 0x41000000
    s_mov_b32 s63, 0x43800000
    """)
    vm.wait(a, "par")
    lstamp(a, 31)
    a(f"""
    v_mul_f32 v14, s66, v14
    v_mul_f32 v10, s66, v10
    v_exp_f32 v14, v14
    v_exp_f32 v10, v10
    v_add_u32 v{VN}, 1, v{VN}
    v_cvt_pk_bf16_f32 v1, v14, v10
    v_lshlrev_b32 v14, 16, v1
    v_and_b32 v10, s68, v1
    v_mul_f32 v10, v10, v14
    v_mul_f32 v11, v11, v14
    v_mul_f32 v10, s66, v10
    v_mul_f32 v11, s69, v11
    """)
    L = lambda i: 76 + 2 * i
    H = lambda p: 40 + 2 * p if p < 8 else 28
    LF, HF, AK, HP = 96, 160, 224, 59
    cexp(a, [(L(1), "s62")])
    cmuls(a, [(L(2), L(1), L(1))])
    cmuls(a, [(L(3), L(2), L(1)), (84, L(2), L(2))])
    r = rows(a, [None, L(1), L(2), L(3)], 0, False, 72)
    cmuls(a, [(L(i), L(i), 84) for i in range(1, 4)])
    r = rows(a, [84, L(1), L(2), L(3)], r, False, 16)
    cmuls(a, [(L(0), 84, 84)] + [(L(i), L(i), 84) for i in range(1, 4)])
    for g in range(2, 8):
        r = rows(a, [L(i) for i in range(4)], r, False, 72 if g & 1 == 0 else 16)
        if g < 7: cmuls(a, [(L(i), L(i), 84) for i in range(4)])
    assert r == 32
    lstamp(a, 24)
    a("s_waitcnt lgkmcnt(0)\ns_barrier")
    a("""
    ds_read_b64_tr_b16 v[224:225], v4
    ds_read_b64_tr_b16 v[226:227], v5 offset:512
    ds_read_b64_tr_b16 v[228:229], v4 offset:4096
    ds_read_b64_tr_b16 v[230:231], v5 offset:4608
    """)
    lrd = [f"ds_read_b128 {vr(LF+4*ks,4)}, v7 offset:{TBS*(ks>>3) + 32*(ks&7)}" for ks in range(16)]
    for x in lrd[:8]: a(x)
    a("v_mul_f32 v40, v12, v14\nv_mul_f32 v41, v13, v14\nv_add_f32 v40, v40, v40\nv_add_f32 v41, v41, v41\ns_mov_b32 m0, s65")
    a(f"""
    s_waitcnt lgkmcnt(7)
    buffer_store_dwordx4 v[224:227], v6, {R_WS}, s60 offen {SC}
    buffer_store_dwordx4 v[228:231], v6, {R_WS}, s60 offen offset:128 {SC}
    """)
    vm.add("xt", 2)
    for x in lrd[8:]: a(x)
    cexp(a, [(20, None), (24, "s63")])
    hl = []; row = [0]
    def hm(ops): hl.extend(smul_list(ops))
    def hp(regs):
        for g in regs: hl.append(f"v_cvt_pk_bf16_f32 v{HP+row[0]}, v{g}, -v{g+1}"); row[0] += 1
    hm([(H(1), H(0), 20), (22, 20, 20)])
    hm([(H(2), H(0), 22), (H(3), H(1), 22), (26, 22, 22), (30, 24, 24)])
    hm([(H(4 + i), H(i), 26) for i in range(4)])
    hm([(H(8), H(4), 26)]); hp([H(p) for p in range(8)])
    for grp in ((0, 2, 4, 6, 8), (0, 4, 8), (0, 4, 8)):
        hm([(H(p), H(p), 24) for p in grp]); hp([H(p) for p in grp])
    hm([(42, H(0), 24), (46, H(8), 24)])
    hm([(50, 42, 24), (52, 46, 24), (H(0), 42, 30), (H(8), 46, 30)])
    hm([(44, 50, 30), (48, 52, 30)]); hp([42, 46, 50, 52, H(0), H(8), 44, 48])
    assert row[0] == 27
    cut = int(OPT.get("hcut", 64))
    for x in hl[:cut]: a(x)
    lstamp(a, 19)
    a("s_waitcnt lgkmcnt(0)\ns_barrier")
    done = 0
    for k, x in enumerate(hl[cut:]):
        a(x)
        n = sum("cvt" in y for y in hl[:cut + k + 1])
        if n - done >= 8 or (k == len(hl) - cut - 1):
            for j in range(done, n): a(f"ds_write_addtid_b32 v{HP+j} offset:{272*j}")
            done = n
    vm.wait(a, "xt"); signal(a, "s61", SC, 2); vm.add("f1")
    lstamp(a, 20)
    a("s_waitcnt lgkmcnt(0)\ns_setprio 0\ns_barrier")
    hrd = [f"ds_read_b128 {vr(HF+4*ks,4)}, v9 offset:{HTS*(ks>>3) + 32*(ks&7)}" for ks in range(16)]
    for x in hrd[:12]: a(x)
    a(f"""
    v_lshlrev_b32 v1, 4, v0
    v_mov_b32 v60, 0
    v_mov_b32 v61, 0
    v_mov_b32 v62, 0
    v_mov_b32 v63, 0
    s_mul_i32 s67, s52, {KXD}
    s_add_u32 s67, s67, {KX0}
    v_mov_b32 v3, s67
    s_lshl_b32 s66, s53, 11
    s_add_u32 s66, s66, s67
    v_lshrrev_b32 v2, 5, v0
    v_and_b32 v4, 31, v0
    v_lshlrev_b32 v4, 4, v4
    v_lshl_add_u32 v2, v2, 9, v4
    v_add_u32 v2, s66, v2
    s_waitcnt lgkmcnt(4)
    """)
    for x in hrd[12:]: a(x)
    km = lambda ks: a(f"v_mfma_f32_32x32x16_bf16 {vr(AK,16)}, {vr(HF+4*ks,4)}, {vr(LF+4*ks,4)}, {'0' if ks == 0 else vr(AK,16)}")
    for ks in range(8): km(ks)
    lstamp(a, 21)
    a("s_waitcnt lgkmcnt(0)\ns_barrier")
    for ks in range(8, 16): km(ks)
    a("ds_write_b128 v3, v[60:63]")
    for rg in range(2): a(f"v_cndmask_b32 v{AK+8*rg+4}, v{AK+8*rg+4}, v{AK+8*rg+5}, s[70:71]")
    for i in range(8): a(f"v_cvt_pk_bf16_f32 v{40+i}, v{AK+2*i}, v{AK+2*i+1}")
    for rg in range(2): a(f"ds_write_b128 v2, {vr(40+4*rg,4)} offset:{16 + 1024*rg}")
    lstamp(a, 22)
    a("s_waitcnt lgkmcnt(0)\ns_barrier")
    a(f"""
    v_add_u32 v2, s66, v1
    ds_read_b64 v[40:41], v2 offset:8
    ds_read_b128 v[42:45], v2 offset:16
    ds_read_b64 v[46:47], v2 offset:{1024+8}
    ds_read_b128 v[48:51], v2 offset:{1024+16}
    s_cmp_eq_u32 s52, 0
    s_cselect_b32 s67, 0, {slot_addr(4)}
    v_bfe_u32 v2, v0, 2, 2
    v_mul_u32_u24 v2, {RE}, v2
    v_and_b32 v3, 3, v0
    v_min_u32 v3, 2, v3
    v_lshl_add_u32 v2, v3, 4, v2
    v_add_u32 v52, s67, v2
    s_lshl_b32 s69, s53, 11
    s_sub_u32 s66, s67, s69
    s_add_u32 s66, s66, {255*16 - 1024}
    v_sub_u32 v53, s66, v1
    v_min_u32 v2, 32, v0
    s_mul_i32 s66, s53, {US}
    s_add_u32 s66, s66, s67
    s_add_u32 s66, s66, {RSZ}
    v_lshl_add_u32 v54, v2, 4, s66
    s_mov_b32 s69, 0xffff
    s_waitcnt lgkmcnt(0)
    """)
    RG = 96
    for q in range(2):
        w = lambda i: 40 + 6 * q + 2 + i
        for e in range(4):
            o = RG + 16 * q + 4 * e
            for i in range(4):
                hi = 3 - i - (0 if e >= 2 else 1)
                if e & 1: a(f"v_alignbit_b32 v{o+i}, v{w(hi)}, v{w(hi)}, 16")
                else: a(f"v_bfi_b32 v{o+i}, s69, v{w(hi)}, v{w(hi-1)}")
    a(f"""
    v_and_b32 v55, 31, v0
    v_lshlrev_b32 v55, 3, v55
    s_lshl_b32 s66, s51, 2
    s_add_u32 s66, s66, 32000
    v_mov_b32 v59, s66
    ds_write_b32 v59, v60
    s_lshl_b32 s71, {SX}, 18
    s_lshl_b32 s69, {SJ}, 13
    s_add_u32 s71, s71, s69
    s_lshl_b32 s69, s52, 6
    s_add_u32 s71, s71, s69
    s_lshl_b32 s69, s53, 12
    s_add_u32 s71, s71, s69
    s_add_u32 s71, s71, {XT}
    v_lshrrev_b32 v2, 2, v0
    v_and_b32 v3, 3, v0
    v_lshlrev_b32 v3, 4, v3
    v_lshl_add_u32 v56, v2, 7, v3
    s_lshl_b32 s70, s53, 11
    s_add_u32 s69, s67, s70
    s_add_u32 s69, s69, {RSZ + 512}
    v_add_u32 v57, s69, v1
    s_lshl_b32 s73, s53, 8
    s_sub_u32 s73, s67, s73
    s_add_u32 s66, s73, {4128 - 64*7 - 512*7 + 256}
    v_and_b32 v4, 3, v0
    v_mul_u32_u24 v4, {RE}, v4
    v_lshrrev_b32 v2, 4, v0
    v_bfe_u32 v3, v0, 2, 2
    v_add_u32 v3, v3, v2
    v_lshlrev_b32 v3, 4, v3
    v_sub_u32 v4, v4, v3
    v_add_u32 v{CA}, s66, v4
    s_add_u32 s66, s73, {RSZ + US + 512 + 48 - 64*7 + 256}
    v_bfe_u32 v4, v0, 1, 3
    v_lshlrev_b32 v4, 6, v4
    v_lshlrev_b32 v3, 4, v2
    v_sub_u32 v5, v4, v3
    v_add_u32 v4, v4, v3
    v_and_b32 v3, 1, v0
    v_lshl_add_u32 v4, v3, 3, v4
    v_mul_u32_u24 v3, {US}, v3
    v_sub_u32 v5, v5, v3
    v_add_u32 v{CB}, s66, v5
    v_add_u32 v{CU}, s69, v4
    v_add_u32 v{DA}, s70, v4
    v_add_u32 v{DA+1}, 512, v{DA}
    v_add_u32 v{DA+2}, 1024, v{DA}
    v_add_u32 v{DA+3}, 1536, v{DA}
    s_lshl_b32 s66, s51, 12
    s_add_u32 s66, s66, {OS}
    v_add_u32 v{CE}, s66, v1
    s_lshl_b32 s66, s54, 12
    s_add_u32 s66, s66, {BT}
    """)
    lstamp(a, 23)
    a("s_waitcnt lgkmcnt(0)\ns_barrier")
    a(f"buffer_load_dword v{VT}, v55, {R_WS}, s72 offen {SC}")
    a("ds_write_b128 v52, v[60:63] offset:4096\nds_write_b128 v54, v[60:63]")
    for q in range(2):
        for e in range(4): a(f"ds_write_b128 v53, {vr(RG+16*q+4*e,4)} offset:{e*RE + 1024*(1-q)}")
    a("s_waitcnt lgkmcnt(0)\ns_barrier")
    att_consts(a)
    def uload():
        for q in range(2): a(f"buffer_load_dwordx4 {vr(32+4*q,4)}, v56, {R_WS}, s71 offen offset:{2048*q} {SC}")
    a(f"""
    s_waitcnt vmcnt(0)
    v_cmp_ne_u32 vcc, v{VT}, v{VN}
    s_nop 1
    s_cbranch_vccnz L_u_late
    """)
    uload()
    a("s_barrier\ns_branch L_u_have")
    a("L_u_late:\ns_barrier")
    poll(a, "s1", 55, "s72")
    uload()
    a("L_u_have:\ns_waitcnt vmcnt(0)")
    for q in range(2): a(f"ds_write_b128 v57, {vr(32+4*q,4)} offset:{1024*q}")
    for q in range(2):
        a(f"ds_write_b64 v57, {vr(32+4*q,2)} offset:{1024*q + US + 8}")
        a(f"ds_write_b64 v57, {vr(34+4*q,2)} offset:{1024*q + US + 16}")
    a(f"""
    ds_write_b32 v59, v59
    v_xor_b32 v59, 4, v59
    s_mov_b32 s92, {SPIN}
    L_pair:
    ds_read_b32 v58, v59
    s_waitcnt lgkmcnt(0)
    v_readfirstlane_b32 s93, v58
    s_sub_u32 s92, s92, 1
    s_cmp_eq_u32 s92, 0
    s_cbranch_scc1 L_pair_ok
    s_cmp_eq_u32 s93, 0
    s_cbranch_scc1 L_pair
    L_pair_ok:
    """)
    lstamp(a, 25)
    conv(a)
    lstamp(a, 3)

def out_gemm(a):
    a(f"""
    v_lshlrev_b32 v2, 9, v86
    v_lshl_add_u32 v2, v87, 4, v2
    v_add_u32 v2, {OS}, v2
    v_lshlrev_b32 v3, 10, v87
    v_lshl_add_u32 v3, v86, 3, v3
    s_lshl_b32 s84, s88, 15
    s_lshl_b32 s86, s89, 5
    s_add_u32 s84, s84, s86
    v_add_u32 v3, s84, v3
    v_add_u32 v4, 0x4000, v3
    """)
    def go():
        NB = 12; FB = 16
        rd = lambda i: a(f"ds_read_b128 {vr(FB+4*(i%NB),4)}, v2 offset:{2048*(i>>1) + 256*(i&1)}")
        for i in range(NB): rd(i)
        for i in range(32):
            a(f"s_waitcnt lgkmcnt({min(NB - 1, 31 - i)})")
            acc = 8 + 4 * (i & 1)
            a(f"v_mfma_f32_16x16x32_bf16 {vr(acc,4)}, {vr(PW+4*(i>>1),4)}, {vr(FB+4*(i%NB),4)}, {'0' if i < 2 else vr(acc,4)}")
            if i + NB < 32: rd(i + NB)
        for nt in range(2):
            for i in range(4): a(f"v_fma_f32 v{8+4*nt+i}, v{8+4*nt+i}, v{PG+nt}, v{PB+4*nt+i}")
            a(f"v_cvt_pk_bf16_f32 v{16+2*nt}, v{8+4*nt}, v{9+4*nt}\nv_cvt_pk_bf16_f32 v{17+2*nt}, v{10+4*nt}, v{11+4*nt}")
            a(f"global_store_dwordx2 v{3+nt}, {vr(16+2*nt,2)}, {S_OUT}")
    return go

def build_fused():
    a = Asm()
    k = NAME + "_kernel"
    launches = f"; @launch grid=(256,1,1) block=(512,1,1) lds={LDS_BYTES}\n"
    if G.STAMPS:
        launches = f"; @launch kernel={k} grid=(256,1,1) block=(512,1,1) lds={LDS_BYTES}\n; @launch kernel=stamp_kernel grid=(1,1,1) block=(256,1,1) lds=1024\n"
    a.raw(header() + launches + '.amdgcn_target "amdgcn-amd-amdhsa--gfx950"\n.text')
    kernel_head(a, k)
    if "amp" in OPT: lstamp(a, "E")
    prologue(a, "L_end")
    lstamp(a, 0)
    a(f"s_cmp_lt_u32 {SW}, 4\ns_cbranch_scc1 L_gemm")
    a_params(a)
    a("s_barrier\ns_branch L_aux")
    a.reset(); a("L_gemm:")
    g_phase1(a)
    lg = list(G.LIGHT); G.LIGHT[:] = [s for s in lg if s == 0]
    a("s_branch L_att")
    a.reset(); a("L_aux:")
    a_phase1(a)
    la = list(G.LIGHT); G.LIGHT[:] = sorted(set(la) | set(lg))
    a.reset(); a("L_att:")
    a("s_barrier")
    lstamp(a, 4)
    KM = "" if OPT.get("kvplain") else SC
    a(f"buffer_load_dwordx4 {vr(AQ,4)}, v1, {R_WS}, s77 offen {KM}")
    G.att_dma(a, [0], KM)
    lstamp(a, 26)
    conv_finish(a)
    a("s_waitcnt vmcnt(0)\ns_barrier"); lstamp(a, 27)
    sched = {0: [1, 2], 1: [3, 4, 5], 2: [6, 7], 3: [8, 9, 10], 4: [11, 12, 13], 5: [14, 15]}
    def hdma(t):
        def f():
            if t == 2: a("s_waitcnt vmcnt(3)\ns_barrier")
            G.att_dma(a, sched[t], KM)
            if t == 5: deferred_stores(a)
        return f
    def h10():
        a(f"""
        s_waitcnt vmcnt(0)
        s_barrier
        s_cmp_lg_u32 {SW}, 0
        s_cbranch_scc1 L_s3_skip
        s_lshl_b32 s84, {SX}, 7
        s_lshl_b32 s85, {SJ}, 2
        s_add_u32 s84, s84, s85
        s_add_u32 s84, s84, {F_S3}
        """)
        signal(a, "s84")
        a("L_s3_skip:")
        lstamp(a, 28)
    def h_s3ld():
        a(f"s_mov_b32 s84, {F_S3}\nbuffer_load_dwordx4 {vr(VT,4)}, v1, {R_WS}, s84 offen {SC}")
    def wof_dma(r):
        for i in range(4): a(f"buffer_load_dwordx4 v1, {R_WS}, s90 offen offset:{1024*i} {SC} lds")
        if r < 3: a("s_add_u32 s90, s90, 4096")
    def h_s3chk():
        a("s_waitcnt vmcnt(0)")
        poll(a, "s3", 1, "s84", True, 4)
        a(f"""
        s_lshl_b32 s88, s75, 3
        s_lshr_b32 s89, s74, 2
        s_add_u32 s88, s88, s89
        s_and_b32 s89, s74, 3
        s_lshl_b32 s89, s89, 3
        s_add_u32 s89, s89, {SW}
        s_lshl_b32 s90, s89, 14
        s_add_u32 s90, s90, {WOF}
        s_lshl_b32 s86, {SW}, 12
        s_add_u32 s86, s86, {OS}
        s_mov_b32 m0, s86
        v_add_u32 v92, s86, v1
        """)
        if OPT.get("nos3"): return
        wof_dma(0)
        a(f"""
        s_or_b32 s84, s2, {SW}
        s_cmp_lg_u32 s84, 0
        s_cbranch_scc1 L_n_skip
        s_mov_b32 s84, {F_N}
        """)
        signal(a, "s84")
        a("L_n_skip:")
    def h_wrd(r):
        def f():
            if OPT.get("nos3"): return
            a("s_waitcnt vmcnt(0)")
            for i in range(4): a(f"ds_read_b128 {vr(PW+16*r+4*i,4)}, v92 offset:{1024*i}")
        return f
    def h_wld(r):
        def f():
            if OPT.get("nos3"): return
            wof_dma(r)
        return f
    def h_side():
        if OPT.get("nos3"):
            a("v_lshrrev_b32 v86, 4, v0\nv_and_b32 v87, 15, v0"); return
        a(f"""
        v_lshrrev_b32 v86, 4, v0
        v_and_b32 v87, 15, v0
        v_lshlrev_b32 v88, 14, v86
        v_lshl_add_u32 v88, v87, 1, v88
        s_lshl_b32 s90, s89, 16
        s_lshl_b32 s91, s88, 6
        s_add_u32 s90, s90, s91
        s_add_u32 s90, s90, {BT}
        """)
        for i in range(4):
            if i: a("s_add_u32 s90, s90, 4096")
            for nt in range(2): a(f"buffer_load_short_d16_hi v{PB+4*nt+i}, v88, {R_WS}, s90 offen offset:{32*nt} {SC}")
        a(f"""
        v_lshlrev_b32 v88, 2, v87
        s_lshl_b32 s90, s88, 7
        s_add_u32 s90, s90, {GW}
        buffer_load_dword v{PG}, v88, {R_WS}, s90 offen {SC}
        buffer_load_dword v{PG+1}, v88, {R_WS}, s90 offen offset:64 {SC}
        """)
    hooks = {t: hdma(t) for t in sched}
    hooks.update({10: h10, 26: h_s3ld, 30: h_s3chk, 52: h_side})
    for r in range(4):
        hooks[34 + 5 * r] = h_wrd(r)
        if r < 3: hooks[35 + 5 * r] = h_wld(r + 1)
    prios = {0: 3, 6: 2, 8: 1, 9: 0, 10: 3, 42: 2, 56: 1, 62: 0}
    if "prios" in OPT: prios = {int(x.split(":")[0]): int(x.split(":")[1]) for x in OPT["prios"].split(",")}
    att_main(a, hooks, prios)
    lstamp(a, 29)
    att_finish(a, "at", SC)
    a(f"""
    s_lshl_b32 s81, s76, 7
    s_lshl_b32 s85, s74, 2
    s_add_u32 s81, s81, s85
    s_add_u32 s81, s81, {F_S4}
    s_lshl_b32 s85, s88, 7
    s_lshl_b32 s86, {SW}, 4
    s_add_u32 s85, s85, s86
    s_add_u32 s85, s85, {F_S4}
    v_and_b32 v5, 3, v0
    v_lshlrev_b32 v5, 2, v5
    s_lshl_b32 s93, s88, 15
    s_lshl_b32 s86, {SW}, 12
    s_add_u32 s93, s93, s86
    s_add_u32 s93, s93, {OF}
    s_waitcnt vmcnt(1)
    """)
    out_side_math(a)
    gemm = out_gemm(a)
    a("s_waitcnt vmcnt(0)")
    signal(a, "s81")
    lstamp(a, 5)
    poll(a, "s4", 5, "s85")
    lstamp(a, 6)
    for i in range(4): a(f"buffer_load_dwordx4 v1, {R_WS}, s93 offen offset:{1024*i} {SC} lds")
    a("s_waitcnt vmcnt(0)")
    lstamp(a, 30)
    a("s_barrier")
    gemm()
    lstamp(a, 7)
    if G.STAMPS:
        lflush(a, range(8))
        for s in la:
            if s: G.STAMP_WAVES[s] = list(range(4, 8))
        for s in lg:
            if s: G.STAMP_WAVES[s] = list(range(4))
    if "amp" in OPT:
        w = OPT["amp"].split(",")[2]
        a(f"""
        s_cmp_lg_u32 s2, {OPT.get("ampwg", 0)}
        s_cbranch_scc1 L_end
        s_cmp_lg_u32 {SW}, {w}
        s_cbranch_scc1 L_end
        s_sub_u32 s98, s98, s96
        s_lshl_b32 s98, s98, 2
        s_min_u32 s98, s98, 40000
        s_memrealtime s[96:97]
        s_waitcnt lgkmcnt(0)
        L_amp:
        s_memrealtime s[100:101]
        s_waitcnt lgkmcnt(0)
        s_sub_u32 s100, s100, s96
        s_cmp_lt_u32 s100, s98
        s_cbranch_scc1 L_amp
        """)
    a("L_end:\ns_endpgm")
    att_slow(a, "at")
    a("L_codeend:\ns_endpgm")
    if G.STAMPS: stamp_reduce_kernel(a)
    a.raw('.section .rodata,"a"')
    if G.STAMPS: a.raw(descriptor("stamp_kernel", 32))
    a.raw(descriptor(k, 256))
    return a.text()

if __name__ == "__main__":
    out = sys.argv[1]
    for o in sys.argv[2:]:
        kk, _, v = o.partition("="); OPT[kk] = v or True
    G.STAMPS = bool(OPT.get("stamp"))
    OPT.setdefault("ones", "few")
    txt = build_fused()
    open(out, "w").write(txt)
    print("wrote", out, len(txt), "bytes")
```

```python
import sys
import gen as G
from gen import (Asm, OPT, NAME, vr, VM, prologue, aux_ids, kernel_head, descriptor, header, lstamp, lflush, stamp_reduce_kernel,
                 QF, KV, XT, BT, OF, WOF, GW, LDS_BYTES, LOG2E, INV2PI, QSCALE,
                 S_X, S_WO, S_LOGA, S_AIM, S_CR, S_CI, S_LDT, S_DSK, S_GWT, S_OUT, R_X, R_W, R_WS, SX, SJ, SW,
                 AQ, AKS, AV1, AV2, AS_, AO, PW, PB, PG, att_main, att_finish, att_slow, out_side_loads, out_side_math)
from gen2 import cmuls, RowWriter, cexp

SC = "sc1"
SPIN = 400000
FL = 0xC90000
F_N, F_S1, F_S2, F_S3, F_S4 = FL, FL + 0x1000, FL + 0x3000, FL + 0x4000, FL + 0x8000
SLOT = 32768
def slot_addr(t): return SLOT * (1 + ((t + 1) & 3))
TBS, HTS = 8704, 7344
EX0, KX0, KXD = 0, 16384, 4608
RE, RSZ = 4160, 16640
US = 4640
OS = 131072
VN, VX, VZ, VT, VS = 240, 241, 242, 244, 236
DB, DA = 224, 232
PRIOS = {0: 3, 38: 2, 54: 1, 61: 0}

def poll(a, tag, vaddr, soff, first_issued=False, n=1, ncmp=None, vt=VT, sleep=4):
    ld = f"buffer_load_dword{'' if n == 1 else 'x%d' % n} {vr(vt, n)}, v{vaddr}, {R_WS}, {soff} offen {SC}"
    ncmp = ncmp or n
    a(f"s_mov_b32 s92, {SPIN}")
    if first_issued: a(f"s_branch L_{tag}_chk")
    a(f"L_{tag}_poll:\n{ld}\ns_waitcnt vmcnt(0)")
    a(f"L_{tag}_chk:")
    a(f"v_cmp_ne_u32 vcc, v{vt}, v{VN}")
    for i in range(1, ncmp): a(f"v_cmp_ne_u32 s[90:91], v{vt+i}, v{VN}\ns_or_b64 vcc, vcc, s[90:91]")
    if ncmp == 1: a("s_nop 1")
    a(f"""
    s_cbranch_vccz L_{tag}_ok
    s_sleep {sleep}
    s_sub_u32 s92, s92, 1
    s_cmp_lg_u32 s92, 0
    s_cbranch_scc1 L_{tag}_poll
    L_{tag}_ok:
    """)

def signal(a, soff, mod=SC, n=1):
    a(f"""
    s_mov_b64 exec, 1
    buffer_store_dword{'' if n == 1 else 'x2'} {vr(VN, n)}, v{VZ}, {R_WS}, {soff} offen {mod}
    s_mov_b64 exec, -1
    """)

def epoch_load(a):
    a(f"v_mov_b32 v{VZ}, 0\ns_mov_b32 s56, {F_N}\nbuffer_load_dword v{VN}, v{VZ}, {R_WS}, s56 offen {SC}")

DX, DW = 94, 95
def dma_setup(a):
    a(f"""
    v_lshrrev_b32 v1, 3, v0
    v_lshrrev_b32 v2, 4, v0
    s_and_b32 s58, {SW}, 1
    s_lshl_b32 s56, s58, 2
    v_add_u32 v3, s56, v2
    v_and_b32 v{DW}, 7, v0
    v_xor_b32 v3, v3, v{DW}
    v_lshlrev_b32 v3, 4, v3
    v_lshl_add_u32 v{DX}, v1, 10, v3
    v_and_b32 v2, 1, v2
    v_lshlrev_b32 v2, 2, v2
    v_xor_b32 v2, v2, v{DW}
    v_lshlrev_b32 v2, 4, v2
    v_mov_b32 v3, 0xc00
    v_mad_u32_u24 v{DW}, v1, v3, v2
    s_lshl_b32 s44, {SJ}, 16
    s_lshl_b32 s45, {SW}, 13
    s_add_u32 s44, s44, s45
    s_mul_i32 s45, {SW}, {16*3072}
    s_lshl_b32 s56, {SX}, 7
    s_add_u32 s45, s45, s56
    s_lshl_b32 s46, {SW}, 10
    s_lshl_b32 s47, {SW}, 11
    """)

def dma_pieces(t, part="xw"):
    base = slot_addr(t); out = []
    head = f"s_add_u32 s56, {SX}, {t}\ns_and_b32 s56, s56, 7\n"
    if "x" in part:
        for i in range(2):
            p = (head + "s_lshl_b32 s57, s56, 7\ns_add_u32 s57, s57, s44\n") if i == 0 else "s_add_u32 s57, s57, 0x8000\n"
            out.append(p + f"s_add_u32 m0, s46, {base + i*4096}\nbuffer_load_dwordx4 v{DX}, {R_X}, s57 offen lds")
        head = ""
    if "w" in part:
        for i in range(2):
            for ty in range(3):
                p = ""
                if ty == 0: p = (head + f"s_mul_i32 s56, s56, {64*3072}\ns_add_u32 s56, s56, s45\n") if i == 0 else f"s_add_u32 s56, s56, {8*3072}\n"
                out.append(p + f"s_add_u32 m0, s47, {base + 8192 + ty*8192 + i*1024 - ty*1024}\nbuffer_load_dwordx4 v{DW}, {R_W}, s56 offen offset:{ty*1024} lds")
    return out

def dma(a, vm, t, part="xw", tag=None):
    for p in dma_pieces(t, part): a(p); vm.add(tag or f"s{t}")

def kv_dma(a, rounds, mod):
    for r in rounds:
        if OPT.get("norot"):
            a(f"s_add_u32 m0, s79, {8192*r}\ns_add_u32 s80, s78, {8192*r}")
        else:
            a(f"s_add_u32 s80, s81, {8192*r}\ns_and_b32 s80, s80, 0x1ffff\ns_add_u32 m0, s79, {8192*r}\ns_add_u32 s80, s80, s78")
        a(f"buffer_load_dwordx4 v1, {R_WS}, s80 offen {mod} lds")

def att_consts(a):
    G.att_setup(a)
    a(f"""
    v_lshrrev_b32 v2, 5, v0
    v_lshlrev_b32 v2, 8, v2
    v_and_b32 v3, 15, v0
    v_lshl_add_u32 v2, v3, 4, v2
    v_add_u32 v2, 1024, v2
    v_add_u32 v80, 0x10000, v1
    v_add_u32 v81, 0x10000, v2
    s_lshl_b32 s81, s75, 14
    s_mov_b32 s82, 0xffff
    s_mov_b32 s83, 0xffff
    v_and_b32 v3, 27, v0
    v_cmp_eq_u32 vcc, 16, v3
    v_mov_b32 v17, 0x3f803f80
    v_mov_b32 v3, 0xdddddddd
    v_cndmask_b32 v16, 0, v17, vcc
    """)
    for r in range(17, 32): a(f"v_mov_b32 v{r}, v16")
    for r in range(16): a(f"v_mov_b32 v{AO+r}, 0")
    a(f"v_mov_b32 v92, {LDS_BYTES - 4}\nv_mov_b32 v93, 1")

def g_phase1(a):
    vm = VM()
    ACC = (96, 112, 128); SETS = (144, 160, 176, 192)
    XA, WA = 4, 12
    GX, GG, GO = 32, 40, 44
    dma_setup(a)
    a("s_barrier")
    for t in range(2): dma(a, vm, t)
    lstamp(a, 18)
    a(f"""
    s_getreg_b32 s62, hwreg(HW_REG_XCC_ID)
    v_mov_b32 v{VX}, s62
    s_lshr_b32 s59, {SW}, 1
    v_and_b32 v1, 31, v0
    s_lshl_b32 s60, s58, 12
    s_add_u32 s60, s60, {SLOT}
    v_lshlrev_b32 v2, 7, v1
    v_add_u32 v2, s60, v2
    v_bfe_u32 v1, v0, 1, 3
    v_lshrrev_b32 v3, 5, v0
    v_xor_b32 v1, v1, v3
    """)
    for ks in range(4):
        a(f"v_xor_b32 v3, {2*ks}, v1\nv_lshl_add_u32 v{XA+ks}, v3, 4, v2\nv_add_u32 v{XA+4+ks}, 0x10000, v{XA+ks}")
    a(f"""
    v_lshrrev_b32 v1, 5, v0
    v_lshlrev_b32 v1, 10, v1
    v_bfe_u32 v2, v0, 2, 2
    v_lshl_add_u32 v1, v2, 7, v1
    v_bfe_u32 v2, v0, 3, 1
    v_xor_b32 v2, s59, v2
    v_lshl_add_u32 v1, v2, 6, v1
    v_bfe_u32 v2, v0, 4, 1
    v_lshl_add_u32 v1, v2, 5, v1
    v_and_b32 v2, 3, v0
    v_lshl_add_u32 v1, v2, 3, v1
    v_add_u32 v{WA}, {SLOT + 8192}, v1
    v_add_u32 v{WA+1}, {SLOT + 8192 + 65536}, v1
    s_lshl_b32 s67, {SJ}, 6
    s_lshl_b32 s62, {SX}, 3
    s_add_u32 s67, s67, s62
    s_lshl_b32 s62, {SW}, 1
    s_add_u32 s67, s67, s62
    v_lshlrev_b32 v15, 4, v0
    s_lshl_b32 s62, s67, 10
    v_add_u32 v14, s62, v15
    s_lshl_b32 s62, {SX}, 5
    s_add_u32 s62, s62, {SJ}
    s_lshr_b32 s69, s62, 3
    s_and_b32 s63, s62, 7
    s_lshl_b32 s63, s63, 1
    s_add_u32 s63, s63, s58
    s_lshl_b32 s64, s63, 15
    s_lshl_b32 s62, s69, 5
    s_add_u32 s64, s64, s62
    v_lshrrev_b32 v3, 5, v0
    v_lshlrev_b32 v3, 14, v3
    v_bfe_u32 v2, v0, 4, 1
    v_lshl_add_u32 v3, v2, 12, v3
    v_and_b32 v2, 15, v0
    v_lshl_add_u32 v3, v2, 1, v3
    v_add_u32 v52, s64, v3
    v_add_u32 v57, 0x2000, v52
    s_lshl_b32 s69, s69, 4
    s_add_u32 s69, s69, s63
    s_lshl_b32 s69, s69, 10
    s_add_u32 s69, s69, {WOF}
    s_lshl_b32 s67, s67, 2
    s_add_u32 s67, s67, {GW}
    s_lshl_b32 s72, {SX}, 2
    s_add_u32 s72, s72, {SW}
    s_lshl_b32 s72, s72, 8
    s_add_u32 s72, s72, {F_S1}
    v_and_b32 v53, 31, v0
    v_lshlrev_b32 v53, 3, v53
    s_lshl_b32 s70, {SX}, 1
    s_lshr_b32 s71, {SJ}, 4
    s_add_u32 s71, s71, s70
    s_lshl_b32 s71, s71, 8
    s_add_u32 s71, s71, {F_S2}
    s_add_u32 s70, s70, s59
    s_lshl_b32 s70, s70, 8
    s_lshl_b32 s62, {SJ}, 3
    s_add_u32 s70, s70, s62
    s_lshl_b32 s62, s58, 2
    s_add_u32 s70, s70, s62
    s_add_u32 s70, s70, {F_S2}
    v_lshlrev_b32 v54, 2, v0
    s_lshl_b32 s60, {SX}, 2
    s_lshl_b32 s61, s59, 1
    s_add_u32 s60, s60, s61
    s_lshl_b32 s60, s60, 6
    s_lshl_b32 s61, {SJ}, 1
    s_add_u32 s61, s61, s58
    s_add_u32 s60, s60, s61
    s_lshl_b32 s61, s60, 10
    s_add_u32 s61, s61, {QF}
    s_add_u32 s62, s61, 0x10000
    s_lshl_b32 s63, s60, 11
    s_add_u32 s63, s63, {KV}
    s_add_u32 s64, s63, 0x20000
    s_mov_b32 s65, {QSCALE}
    v_and_b32 v55, 0x33, v0
    v_bfe_u32 v3, v0, 2, 1
    v_lshl_or_b32 v55, v3, 3, v55
    v_bfe_u32 v3, v0, 3, 1
    v_lshl_or_b32 v55, v3, 2, v55
    v_lshlrev_b32 v55, 4, v55
    v_and_b32 v56, 15, v0
    v_lshlrev_b32 v56, 4, v56
    v_lshrrev_b32 v3, 5, v0
    v_lshl_add_u32 v56, v3, 8, v56
    v_bfe_u32 v3, v0, 4, 1
    v_lshl_add_u32 v56, v3, 17, v56
    """)
    for r in range(DA, DA + 4): a(f"v_mov_b32 v{r}, 0")
    epoch_load(a); vm.add("n")
    dma(a, vm, 2)
    att_consts(a)
    lstamp(a, 1)
    def reads(t, ks):
        p = slot_addr(t) // SLOT - 1; s = SETS[ks]; hi = p >> 1; o0 = (p & 1) * SLOT
        l = [f"ds_read_b128 {vr(s,4)}, v{XA + 4*hi + ks} offset:{o0}"]
        for ty in (1, 2, 0):
            for ri in range(2):
                l.append(f"ds_read_b64_tr_b16 {vr(s+4+4*ty+2*ri,2)}, v{WA+hi} offset:{o0 + ty*8192 + ks*2048 + ri*512}")
        return l
    def mf(ks, i, first=False):
        s = SETS[ks]; c = "0" if first else vr(ACC[i], 16)
        ab = f"{vr(s,4)}, {vr(s+12,4)}" if i == 2 else f"{vr(s+4+4*i,4)}, {vr(s,4)}"
        a(f"v_mfma_f32_32x32x16_bf16 {vr(ACC[i],16)}, {ab}, {c}")
    pend = []
    def mm(ks, first, rd=(), nd=2):
        rd = list(rd)
        for i, r in zip((1, 2, 0), (rd[:4], rd[4:], [])):
            mf(ks, i, first)
            for x in r: a(x)
        for _ in range(nd):
            if pend:
                tag, p = pend.pop(0); a(p); vm.add(tag)
    side = [f"global_load_dwordx4 {vr(GX,4)}, v14, {S_X}", f"global_load_dwordx4 {vr(GX+4,4)}, v14, {S_X} offset:1024", f"global_load_dwordx4 {vr(GG,4)}, v15, {S_GWT}"]
    side += [f"global_load_short_d16{'_hi' if j & 1 else ''} v{GO+j}, v{57 if j >> 2 else 52}, {S_WO} offset:{1024*(j&3)}" for j in range(8)]
    for t in range(8):
        if OPT.get("gpos") == "pre": lstamp(a, 8 + t)
        vm.wait(a, f"s{t}")
        if t == 3: a(f"v_add_u32 v{VN}, 1, v{VN}")
        if OPT.get("gpos") == "mid": lstamp(a, 8 + t)
        a("s_barrier")
        if not OPT.get("gpos"): lstamp(a, 8 + t)
        nd = 2
        if t == 0: pend += [("s3w", p) for p in dma_pieces(3, "w")]; nd = 3
        if t == 1: pend += [("s3", p) for p in dma_pieces(3, "x")]; nd = 3
        if 1 <= t <= 4: pend += [(f"s{t+3}", p) for p in dma_pieces(t + 3)]
        if t == 5: pend += [("side", p) for p in side]; nd = 3
        if t == 6: pend += [("f", f"buffer_load_dwordx2 {vr(VT,2)}, v53, {R_WS}, s72 offen {SC}")]
        if t == 0:
            for x in reads(0, 0) + reads(0, 1): a(x)
        else:
            mm(2, False, reads(t, 0), nd)
            mm(3, False, reads(t, 1), nd)
        a("s_waitcnt lgkmcnt(7)")
        mm(0, t == 0, reads(t, 2), nd)
        a("s_waitcnt lgkmcnt(7)")
        mm(1, False, reads(t, 3), nd)
        assert not pend
        if t == 7:
            a("s_waitcnt vmcnt(0)")
            poll(a, "s1g", 53, "s72", True, 2, 1)
            a(f"v_cmp_ne_u32 s[94:95], v{VT+1}, v{VX}")
        a("s_waitcnt lgkmcnt(0)")
    a("s_cmp_eq_u64 s[94:95], 0")
    if OPT.get("nofast"): a("s_branch L_st_far")
    a("s_cbranch_scc0 L_st_far")
    cv = lambda d, s: [f"v_cvt_pk_bf16_f32 v{d+r}, v{s+2*r}, v{s+2*r+1}" for r in range(8)]
    for mod in ("", SC):
        if mod: a.reset(); a("L_st_far:")
        for ks, i in ((2, 1), (3, 1), (2, 2), (3, 2), (2, 0)): mf(ks, i)
        a("s_nop 6")
        for x in cv(144, ACC[1])[:4]: a(x)
        mf(3, 0)
        for x in cv(144, ACC[1])[4:]: a(x)
        a(f"buffer_store_dwordx4 v[144:147], v55, {R_WS}, s63 offen {mod}\nbuffer_store_dwordx4 v[148:151], v55, {R_WS}, s64 offen {mod}")
        for x in cv(152, ACC[2]): a(x)
        a(f"buffer_store_dwordx4 v[152:155], v56, {R_WS}, s63 offen offset:1024 {mod}\nbuffer_store_dwordx4 v[156:159], v56, {R_WS}, s63 offen offset:1536 {mod}")
        for h in range(2):
            for r in range(8): a(f"v_mul_f32 v{ACC[0]+8*h+r}, s65, v{ACC[0]+8*h+r}")
            for x in cv(160, ACC[0])[4*h:4*h+4]: a(x)
            a(f"buffer_store_dwordx4 {vr(160+4*h,4)}, v1, {R_WS}, s{61+h} offen {mod}")
        if not mod: lstamp(a, 16)
        a("s_mov_b32 s68, 0xffff0000")
        for k in range(4): a(f"v_lshlrev_b32 v{168+2*k}, 16, v{GG+k}\nv_and_b32 v{169+2*k}, s68, v{GG+k}")
        for k in range(4):
            for r in range(2):
                x = GX + 4 * r + k; t = 180 + 2 * r
                a(f"v_lshlrev_b32 v{t}, 16, v{x}\nv_and_b32 v{t+1}, s68, v{x}\nv_mul_f32 v{t}, v{t}, v{168+2*k}\nv_mul_f32 v{t+1}, v{t+1}, v{169+2*k}")
                a(f"v_cvt_pk_bf16_f32 v{x}, v{t}, v{t+1}")
        a("s_waitcnt vmcnt(0)")
        signal(a, "s70", mod)
        if not mod: a("s_branch L_st_done")
    a.reset(); a("L_st_done:")
    lstamp(a, 17)
    a(f"buffer_load_dword v{VT}, v54, {R_WS}, s71 offen {SC}")
    for k in range(4):
        for r in range(2):
            x = GX + 4 * r + k; t = 180 + 2 * r
            a(f"v_and_b32 v{t+1}, s68, v{x}\nv_lshlrev_b32 v{t}, 16, v{x}")
            if k == 0: a(f"v_add_f32 v{176+r}, v{t}, v{t+1}")
            else: a(f"v_add_f32 v{176+r}, v{176+r}, v{t}\nv_add_f32 v{176+r}, v{176+r}, v{t+1}")
    wo_pack = [f"v_or_b32 v{DB+j}, v{GO+2*j}, v{GO+2*j+1}" for j in range(4)]
    for d in ("row_shr:1 row_mask:0xf bank_mask:0xf bound_ctrl:0", "row_shr:2 row_mask:0xf bank_mask:0xf bound_ctrl:0",
              "row_shr:4 row_mask:0xf bank_mask:0xf bound_ctrl:0", "row_shr:8 row_mask:0xf bank_mask:0xf bound_ctrl:0",
              "row_bcast:15 row_mask:0xa bank_mask:0xf", "row_bcast:31 row_mask:0xc bank_mask:0xf"):
        if wo_pack: a(wo_pack.pop())
        for r in range(2): a(f"v_add_f32_dpp v{176+r}, v{176+r}, v{176+r} {d}")
    a(f"""
    v_cvt_pk_bf16_f32 v178, v176, v177
    s_mov_b32 s60, {LOG2E}
    v_lshlrev_b32 v176, 16, v178
    v_and_b32 v177, s68, v178
    v_mul_f32 v176, s60, v176
    v_mul_f32 v177, s60, v177
    v_exp_f32 v176, -v176
    v_exp_f32 v177, -v177
    v_add_f32 v176, 1.0, v176
    v_add_f32 v177, 1.0, v177
    v_rcp_f32 v176, v176
    v_rcp_f32 v177, v177
    s_nop 0
    v_cvt_pk_bf16_f32 v178, v176, v177
    v_lshlrev_b32 v{DB+4}, 16, v178
    v_and_b32 v{DB+5}, s68, v178
    """)
    a(f"s_cmp_lg_u32 {SW}, 0\ns_cbranch_scc1 L_s2_skip\ns_waitcnt vmcnt(0)")
    poll(a, "s2", 54, "s71", True, sleep=1)
    a.reset(); a("L_s2_skip:")
    lstamp(a, 2)

def deferred_stores(a):
    a(f"s_cmp_lt_u32 {SW}, 4\ns_cbranch_scc1 L_df_g")
    for ci in range(4): a(f"buffer_store_dwordx2 {vr(DB+2*ci,2)}, v{DA+ci}, {R_WS}, s66 offen {SC}")
    a(f"""
    s_branch L_df_done
    L_df_g:
    buffer_store_dwordx4 {vr(DB,4)}, v1, {R_WS}, s69 offen {SC}
    s_mov_b32 exec_lo, 0
    s_mov_b32 exec_hi, 0x80000000
    buffer_store_dwordx2 {vr(DB+4,2)}, v{VZ}, {R_WS}, s67 offen {SC}
    s_mov_b64 exec, -1
    L_df_done:
    """)

CA, CB, CU, CD, CE = 86, 87, 88, 90, 91
CACC = 32
def conv(a):
    FA = (96, 160); FB = (128, 192)
    q = []
    def issue(key, txt):
        if len(q) >= 15:
            a("s_waitcnt lgkmcnt(14)"); del q[:len(q) - 14]
        a(txt); q.append(key)
    def need(keys):
        idx = [i for i, k in enumerate(q) if k in keys]
        if idx:
            a(f"s_waitcnt lgkmcnt({len(q) - 1 - max(idx)})"); del q[:max(idx) + 1]
    def rd_list(rho):
        s = rho & 1; l = []
        for i in range(8):
            l.append(((rho, "A", i), f"ds_read_b128 {vr(FA[s]+4*i,4)}, v{CA} offset:{512*(7-i) + 64*(3-rho)}"))
            l.append(((rho, "B", i), f"ds_read_b128 {vr(FB[s]+4*i,4)}, v{CB} offset:{512*i + 64*(3-rho)}"))
        return l
    for k, t in rd_list(0): issue(k, t)
    seen = set()
    mms = sorted([(sg, dl) for sg in range(8) for dl in range(8 - sg)], key=lambda m: max(2 * m[0], 2 * m[1] + 1))
    for rho in range(4):
        s = rho & 1
        nxt = rd_list(rho + 1) if rho < 3 else [(("u", i), f"ds_read_b64 {vr(DB+2*i,2)}, v{CU} offset:{512*i}") for i in range(4)]
        k0 = 14 if rho == 0 else 0
        for k, (sg, dl) in enumerate(mms):
            if rho == 0: need({(rho, "A", sg), (rho, "B", dl)})
            elif k == 0: need({(rho, "B", 7)})
            c = sg + dl; acc = vr(CACC + 4 * c, 4)
            a(f"v_mfma_f32_16x16x32_bf16 {acc}, {vr(FA[s]+4*sg,4)}, {vr(FB[s]+4*dl,4)}, {acc if c in seen else '0'}")
            seen.add(c)
            if k >= k0 and (k - k0) % 2 == 0:
                for x in nxt[k - k0:k - k0 + 2]: issue(*x)
    a("s_cmp_eq_u32 s53, 0\ns_cbranch_scc0 L_cv_hi\ns_nop 5")
    for i in range(4): a(f"ds_write_b128 v{CE}, {vr(CACC+16+4*i,4)} offset:{1024*i}")
    a("s_branch L_cv_sent\nL_cv_hi:\ns_nop 5")
    for i in range(4): a(f"ds_write_b128 v{CE}, {vr(CACC+4*i,4)} offset:{1024*i}")
    a("s_nop 1")
    for i in range(16): a(f"v_mov_b32 v{CACC+i}, v{CACC+16+i}")
    a(f"L_cv_sent:\nv_xor_b32 v{CE}, 0x1000, v{CE}\ns_waitcnt lgkmcnt(0)")

def conv_finish(a):
    a(f"s_cmp_lt_u32 {SW}, 4\ns_cbranch_scc1 L_cv_fin")
    for i in range(4): a(f"ds_read_b128 {vr(96+4*i,4)}, v{CE} offset:{1024*i}")
    a("s_mov_b32 s68, 0xffff0000")
    for i in range(8): a(f"v_lshlrev_b32 v{48+2*i}, 16, v{DB+i}\nv_and_b32 v{49+2*i}, s68, v{DB+i}")
    for i in range(16): a(f"v_fmac_f32 v{CACC+i}, v{48+i}, v{CD}")
    a("s_waitcnt lgkmcnt(0)")
    for i in range(16): a(f"v_add_f32 v{CACC+i}, v{CACC+i}, v{96+i}")
    for i in range(8): a(f"v_cvt_pk_bf16_f32 v{DB+i}, v{CACC+2*i}, v{CACC+2*i+1}")
    a("L_cv_fin:")

def a_params(a):
    aux_ids(a)
    a(f"""
    s_lshl_b32 s55, s54, 8
    s_lshl_b32 s56, s53, 7
    s_add_u32 s55, s55, s56
    v_lshlrev_b32 v1, 1, v0
    v_add_u32 v1, s55, v1
    s_lshl_b32 s56, s54, 1
    v_mov_b32 v2, s56
    global_load_short_d16_hi v10, v1, {S_LOGA}
    global_load_short_d16_hi v14, v2, {S_LDT}
    global_load_short_d16_hi v11, v1, {S_AIM}
    global_load_short_d16_hi v12, v1, {S_CR}
    global_load_short_d16_hi v13, v1, {S_CI}
    global_load_short_d16_hi v{CD}, v2, {S_DSK}
    """)
    epoch_load(a)
    if not OPT.get("nocpf"):
        a(f"""
        s_getpc_b64 s[62:63]
        L_pc:
        s_and_b32 s64, {SJ}, 3
        s_lshl_b32 s64, s64, 2
        s_add_u32 s64, s64, s51
        s_lshl_b32 s64, s64, 11
        v_lshlrev_b32 v3, 7, v0
        v_add_u32 v3, s64, v3
        v_min_u32 v3, L_codeend - L_pc - 4, v3
        s_mov_b64 exec, 0xffff
        global_load_dword v93, v3, s[62:63]
        s_mov_b64 exec, -1
        """)

def rows(a, regs, row0, neg, tb):
    for k, r in enumerate(regs):
        if r is None: a(f"v_mov_b32 v{tb+k}, 0x3f80")
        else: a(f"v_cvt_pk_bf16_f32 v{tb+k}, v{r}, {'-' if neg else ''}v{r+1}")
    for k in range(len(regs)): a(f"ds_write_addtid_b32 v{tb+k} offset:{272*(row0+k)}")
    return row0 + len(regs)

def smul_list(ops):
    T = list(range(32, 40)) + [16, 17, 18, 19]; l = []
    for k, (d, x, w) in enumerate(ops): l += [f"v_mul_f32 v{T[2*k]}, v{x+1}, v{w+1}", f"v_mul_f32 v{T[2*k+1]}, v{x}, v{w+1}"]
    for k, (d, x, w) in enumerate(ops):
        if d == w:
            l += [f"v_fma_f32 v{d+1}, v{x+1}, v{w}, v{T[2*k+1]}", f"v_fma_f32 v{d}, v{x}, v{w}, -v{T[2*k]}"]
        else:
            l += [f"v_fma_f32 v{d}, v{x}, v{w}, -v{T[2*k]}", f"v_fma_f32 v{d+1}, v{x+1}, v{w}, v{T[2*k+1]}"]
    return l

def a_phase1(a):
    vm = VM()
    vm.add("par", 7)
    if not OPT.get("nocpf"): vm.add("cpf")
    a("s_setprio 2")
    a(f"""
    s_mul_i32 s65, s51, {TBS}
    s_mov_b32 m0, s65
    v_and_b32 v1, 31, v0
    v_lshrrev_b32 v2, 5, v0
    v_lshlrev_b32 v2, 4, v2
    s_mul_i32 s66, s52, {2*TBS}
    v_add_u32 v18, s66, v2
    v_mov_b32 v3, 272
    v_mad_u32_u24 v7, v1, v3, v18
    s_mul_i32 s65, s51, {HTS}
    s_mul_i32 s66, s52, {2*HTS}
    v_add_u32 v2, s66, v2
    v_bfe_u32 v8, v0, 3, 1
    v_and_b32 v9, 3, v0
    v_lshl_add_u32 v8, v8, 2, v9
    v_cvt_f32_u32 v8, v8
    v_bfe_u32 v9, v0, 4, 1
    v_bfe_u32 v16, v0, 2, 1
    v_lshl_add_u32 v9, v9, 1, v16
    v_min_u32 v16, 2, v9
    v_sub_u32 v16, 0, v16
    v_ldexp_f32 v16, v8, v16
    v_rndne_f32 v16, v16
    v_cvt_u32_f32 v16, v16
    v_lshlrev_b32 v17, 3, v9
    s_mov_b32 s66, 0x100d0800
    v_lshrrev_b32 v17, v17, s66
    v_and_b32 v17, 0xff, v17
    v_add_u32 v16, v16, v17
    v_mul_f32 v8, 0.125, v8
    v_rndne_f32 v8, v8
    v_cvt_u32_f32 v8, v8
    v_lshl_add_u32 v8, v9, 1, v8
    v_add_u32 v8, 19, v8
    s_cmp_eq_u32 s53, 0
    s_cselect_b64 vcc, -1, 0
    s_cselect_b32 s70, 0, 0xaaaaaaaa
    s_mov_b32 s71, s70
    v_cndmask_b32 v9, v8, v16, vcc
    v_mad_u32_u24 v9, v9, v3, v2
    v_lshrrev_b32 v1, 4, v0
    v_bfe_u32 v2, v0, 2, 2
    v_lshl_add_u32 v2, v1, 3, v2
    v_bfe_u32 v3, v0, 1, 1
    s_lshl_b32 s66, s51, 1
    v_add_u32 v3, s66, v3
    v_bfe_u32 v4, v2, 1, 3
    v_xor_b32 v4, v4, v3
    v_and_b32 v5, 1, v0
    v_lshlrev_b32 v5, 3, v5
    v_lshl_add_u32 v5, v2, 7, v5
    v_add_u32 v5, {slot_addr(0)}, v5
    v_xor_b32 v6, 2, v4
    v_lshl_add_u32 v4, v4, 4, v5
    v_lshl_add_u32 v5, v6, 4, v5
    v_bfe_u32 v6, v0, 1, 3
    v_lshlrev_b32 v6, 13, v6
    v_and_b32 v3, 1, v0
    v_lshl_add_u32 v6, v3, 6, v6
    v_lshl_add_u32 v6, v1, 4, v6
    s_lshl_b32 s60, {SX}, 18
    s_lshl_b32 s62, s51, 16
    s_add_u32 s60, s60, s62
    s_lshl_b32 s62, {SJ}, 8
    s_add_u32 s60, s60, s62
    s_add_u32 s60, s60, {XT}
    s_lshl_b32 s72, {SX}, 2
    s_add_u32 s61, s72, s51
    s_lshl_b32 s61, s61, 8
    s_lshl_b32 s62, {SJ}, 3
    s_add_u32 s61, s61, s62
    s_add_u32 s61, s61, {F_S1}
    s_lshr_b32 s62, {SJ}, 3
    s_add_u32 s72, s72, s62
    s_lshl_b32 s72, s72, 8
    s_add_u32 s72, s72, {F_S1}
    s_getreg_b32 s62, hwreg(HW_REG_XCC_ID)
    v_mov_b32 v{VX}, s62
    s_mov_b32 s66, {LOG2E}
    s_mov_b32 s68, 0xffff0000
    s_mov_b32 s69, {INV2PI}
    s_mov_b32 s62, 0x41000000
    s_mov_b32 s63, 0x43800000
    """)
    vm.wait(a, "par")
    lstamp(a, 31)
    a(f"""
    v_mul_f32 v14, s66, v14
    v_mul_f32 v10, s66, v10
    v_exp_f32 v14, v14
    v_exp_f32 v10, v10
    v_add_u32 v{VN}, 1, v{VN}
    v_cvt_pk_bf16_f32 v1, v14, v10
    v_lshlrev_b32 v14, 16, v1
    v_and_b32 v10, s68, v1
    v_mul_f32 v10, v10, v14
    v_mul_f32 v11, v11, v14
    v_mul_f32 v10, s66, v10
    v_mul_f32 v11, s69, v11
    """)
    L = lambda i: 76 + 2 * i
    H = lambda p: 40 + 2 * p if p < 8 else 28
    LF, HF, AK, HP = 96, 160, 224, 59
    cexp(a, [(L(1), "s62")])
    cmuls(a, [(L(2), L(1), L(1))])
    cmuls(a, [(L(3), L(2), L(1)), (84, L(2), L(2))])
    r = rows(a, [None, L(1), L(2), L(3)], 0, False, 72)
    cmuls(a, [(L(i), L(i), 84) for i in range(1, 4)])
    r = rows(a, [84, L(1), L(2), L(3)], r, False, 16)
    cmuls(a, [(L(0), 84, 84)] + [(L(i), L(i), 84) for i in range(1, 4)])
    for g in range(2, 8):
        r = rows(a, [L(i) for i in range(4)], r, False, 72 if g & 1 == 0 else 16)
        if g < 7: cmuls(a, [(L(i), L(i), 84) for i in range(4)])
    assert r == 32
    lstamp(a, 24)
    a("s_waitcnt lgkmcnt(0)\ns_barrier")
    a("""
    ds_read_b64_tr_b16 v[224:225], v4
    ds_read_b64_tr_b16 v[226:227], v5 offset:512
    ds_read_b64_tr_b16 v[228:229], v4 offset:4096
    ds_read_b64_tr_b16 v[230:231], v5 offset:4608
    """)
    lrd = [f"ds_read_b128 {vr(LF+4*ks,4)}, v7 offset:{TBS*(ks>>3) + 32*(ks&7)}" for ks in range(16)]
    for x in lrd[:8]: a(x)
    a("v_mul_f32 v40, v12, v14\nv_mul_f32 v41, v13, v14\nv_add_f32 v40, v40, v40\nv_add_f32 v41, v41, v41\ns_mov_b32 m0, s65")
    a(f"""
    s_waitcnt lgkmcnt(7)
    buffer_store_dwordx4 v[224:227], v6, {R_WS}, s60 offen {SC}
    buffer_store_dwordx4 v[228:231], v6, {R_WS}, s60 offen offset:128 {SC}
    """)
    vm.add("xt", 2)
    for x in lrd[8:]: a(x)
    cexp(a, [(20, None), (24, "s63")])
    hl = []; row = [0]
    def hm(ops): hl.extend(smul_list(ops))
    def hp(regs):
        for g in regs: hl.append(f"v_cvt_pk_bf16_f32 v{HP+row[0]}, v{g}, -v{g+1}"); row[0] += 1
    hm([(H(1), H(0), 20), (22, 20, 20)])
    hm([(H(2), H(0), 22), (H(3), H(1), 22), (26, 22, 22), (30, 24, 24)])
    hm([(H(4 + i), H(i), 26) for i in range(4)])
    hm([(H(8), H(4), 26)]); hp([H(p) for p in range(8)])
    for grp in ((0, 2, 4, 6, 8), (0, 4, 8), (0, 4, 8)):
        hm([(H(p), H(p), 24) for p in grp]); hp([H(p) for p in grp])
    hm([(42, H(0), 24), (46, H(8), 24)])
    hm([(50, 42, 24), (52, 46, 24), (H(0), 42, 30), (H(8), 46, 30)])
    hm([(44, 50, 30), (48, 52, 30)]); hp([42, 46, 50, 52, H(0), H(8), 44, 48])
    assert row[0] == 27
    cut = int(OPT.get("hcut", 64))
    for x in hl[:cut]: a(x)
    lstamp(a, 19)
    a("s_waitcnt lgkmcnt(0)\ns_barrier")
    done = 0
    for k, x in enumerate(hl[cut:]):
        a(x)
        n = sum("cvt" in y for y in hl[:cut + k + 1])
        if n - done >= 8 or (k == len(hl) - cut - 1):
            for j in range(done, n): a(f"ds_write_addtid_b32 v{HP+j} offset:{272*j}")
            done = n
    vm.wait(a, "xt"); signal(a, "s61", SC, 2); vm.add("f1")
    if not OPT.get("notouch"):
        a(f"""
        s_lshl_b32 s60, {SX}, 2
        s_lshl_b32 s61, s52, 1
        s_add_u32 s60, s60, s61
        s_lshl_b32 s60, s60, 6
        s_lshl_b32 s61, {SJ}, 1
        s_add_u32 s61, s61, s53
        s_add_u32 s60, s60, s61
        s_lshl_b32 s61, s60, 10
        s_add_u32 s61, s61, {QF}
        s_lshl_b32 s60, s60, 11
        s_add_u32 s60, s60, {KV}
        v_and_b32 v4, 15, v0
        v_lshlrev_b32 v4, 7, v4
        v_bfe_u32 v5, v0, 4, 1
        v_lshl_add_u32 v4, v5, 17, v4
        v_and_b32 v5, 7, v0
        v_lshlrev_b32 v5, 7, v5
        v_bfe_u32 v6, v0, 3, 1
        v_lshl_add_u32 v5, v6, 16, v5
        s_mov_b64 exec, 0xffffffff
        buffer_load_dword v92, v4, {R_WS}, s60 offen
        s_mov_b64 exec, 0xffff
        buffer_load_dword v93, v5, {R_WS}, s61 offen
        s_mov_b64 exec, -1
        """)
    lstamp(a, 20)
    a("s_waitcnt lgkmcnt(0)\ns_setprio 0\ns_barrier")
    hrd = [f"ds_read_b128 {vr(HF+4*ks,4)}, v9 offset:{HTS*(ks>>3) + 32*(ks&7)}" for ks in range(16)]
    for x in hrd[:12]: a(x)
    a(f"""
    v_lshlrev_b32 v1, 4, v0
    v_mov_b32 v60, 0
    v_mov_b32 v61, 0
    v_mov_b32 v62, 0
    v_mov_b32 v63, 0
    s_mul_i32 s67, s52, {KXD}
    s_add_u32 s67, s67, {KX0}
    v_mov_b32 v3, s67
    s_lshl_b32 s66, s53, 11
    s_add_u32 s66, s66, s67
    v_lshrrev_b32 v2, 5, v0
    v_and_b32 v4, 31, v0
    v_lshlrev_b32 v4, 4, v4
    v_lshl_add_u32 v2, v2, 9, v4
    v_add_u32 v2, s66, v2
    s_waitcnt lgkmcnt(4)
    """)
    for x in hrd[12:]: a(x)
    km = lambda ks: a(f"v_mfma_f32_32x32x16_bf16 {vr(AK,16)}, {vr(HF+4*ks,4)}, {vr(LF+4*ks,4)}, {'0' if ks == 0 else vr(AK,16)}")
    for ks in range(8): km(ks)
    lstamp(a, 21)
    a("s_waitcnt lgkmcnt(0)\ns_barrier")
    for ks in range(8, 16): km(ks)
    a("ds_write_b128 v3, v[60:63]")
    for rg in range(2): a(f"v_cndmask_b32 v{AK+8*rg+4}, v{AK+8*rg+4}, v{AK+8*rg+5}, s[70:71]")
    for i in range(8): a(f"v_cvt_pk_bf16_f32 v{40+i}, v{AK+2*i}, v{AK+2*i+1}")
    for rg in range(2): a(f"ds_write_b128 v2, {vr(40+4*rg,4)} offset:{16 + 1024*rg}")
    lstamp(a, 22)
    a("s_waitcnt lgkmcnt(0)\ns_barrier")
    a(f"""
    v_add_u32 v2, s66, v1
    ds_read_b64 v[40:41], v2 offset:8
    ds_read_b128 v[42:45], v2 offset:16
    ds_read_b64 v[46:47], v2 offset:{1024+8}
    ds_read_b128 v[48:51], v2 offset:{1024+16}
    s_cmp_eq_u32 s52, 0
    s_cselect_b32 s67, 0, {slot_addr(4)}
    v_bfe_u32 v2, v0, 2, 2
    v_mul_u32_u24 v2, {RE}, v2
    v_and_b32 v3, 3, v0
    v_min_u32 v3, 2, v3
    v_lshl_add_u32 v2, v3, 4, v2
    v_add_u32 v52, s67, v2
    s_lshl_b32 s69, s53, 11
    s_sub_u32 s66, s67, s69
    s_add_u32 s66, s66, {255*16 - 1024}
    v_sub_u32 v53, s66, v1
    v_min_u32 v2, 32, v0
    s_mul_i32 s66, s53, {US}
    s_add_u32 s66, s66, s67
    s_add_u32 s66, s66, {RSZ}
    v_lshl_add_u32 v54, v2, 4, s66
    s_mov_b32 s69, 0xffff
    s_waitcnt lgkmcnt(0)
    """)
    RG = 96
    for q in range(2):
        w = lambda i: 40 + 6 * q + 2 + i
        for e in range(4):
            o = RG + 16 * q + 4 * e
            for i in range(4):
                hi = 3 - i - (0 if e >= 2 else 1)
                if e & 1: a(f"v_alignbit_b32 v{o+i}, v{w(hi)}, v{w(hi)}, 16")
                else: a(f"v_bfi_b32 v{o+i}, s69, v{w(hi)}, v{w(hi-1)}")
    a(f"""
    v_and_b32 v55, 31, v0
    v_lshlrev_b32 v55, 3, v55
    s_lshl_b32 s66, s51, 2
    s_add_u32 s66, s66, 32000
    v_mov_b32 v59, s66
    ds_write_b32 v59, v60
    s_lshl_b32 s71, {SX}, 18
    s_lshl_b32 s69, {SJ}, 13
    s_add_u32 s71, s71, s69
    s_lshl_b32 s69, s52, 6
    s_add_u32 s71, s71, s69
    s_lshl_b32 s69, s53, 12
    s_add_u32 s71, s71, s69
    s_add_u32 s71, s71, {XT}
    v_lshrrev_b32 v2, 2, v0
    v_and_b32 v3, 3, v0
    v_lshlrev_b32 v3, 4, v3
    v_lshl_add_u32 v56, v2, 7, v3
    s_lshl_b32 s70, s53, 11
    s_add_u32 s69, s67, s70
    s_add_u32 s69, s69, {RSZ + 512}
    v_add_u32 v57, s69, v1
    s_lshl_b32 s73, s53, 8
    s_sub_u32 s73, s67, s73
    s_add_u32 s66, s73, {4128 - 64*7 - 512*7 + 256}
    v_and_b32 v4, 3, v0
    v_mul_u32_u24 v4, {RE}, v4
    v_lshrrev_b32 v2, 4, v0
    v_bfe_u32 v3, v0, 2, 2
    v_add_u32 v3, v3, v2
    v_lshlrev_b32 v3, 4, v3
    v_sub_u32 v4, v4, v3
    v_add_u32 v{CA}, s66, v4
    s_add_u32 s66, s73, {RSZ + US + 512 + 48 - 64*7 + 256}
    v_bfe_u32 v4, v0, 1, 3
    v_lshlrev_b32 v4, 6, v4
    v_lshlrev_b32 v3, 4, v2
    v_sub_u32 v5, v4, v3
    v_add_u32 v4, v4, v3
    v_and_b32 v3, 1, v0
    v_lshl_add_u32 v4, v3, 3, v4
    v_mul_u32_u24 v3, {US}, v3
    v_sub_u32 v5, v5, v3
    v_add_u32 v{CB}, s66, v5
    v_add_u32 v{CU}, s69, v4
    v_add_u32 v{DA}, s70, v4
    v_add_u32 v{DA+1}, 512, v{DA}
    v_add_u32 v{DA+2}, 1024, v{DA}
    v_add_u32 v{DA+3}, 1536, v{DA}
    s_lshl_b32 s66, s51, 12
    s_add_u32 s66, s66, {OS}
    v_add_u32 v{CE}, s66, v1
    s_lshl_b32 s66, s54, 12
    s_add_u32 s66, s66, {BT}
    """)
    lstamp(a, 23)
    a("s_waitcnt lgkmcnt(0)\ns_barrier")
    a(f"buffer_load_dword v{VT}, v55, {R_WS}, s72 offen {SC}")
    a("ds_write_b128 v52, v[60:63] offset:4096\nds_write_b128 v54, v[60:63]")
    for q in range(2):
        for e in range(4): a(f"ds_write_b128 v53, {vr(RG+16*q+4*e,4)} offset:{e*RE + 1024*(1-q)}")
    a("s_waitcnt lgkmcnt(0)\ns_barrier")
    a("s_waitcnt vmcnt(1)")
    att_consts(a)
    def uload():
        for q in range(2): a(f"buffer_load_dwordx4 {vr(32+4*q,4)}, v56, {R_WS}, s71 offen offset:{2048*q} {SC}")
    a(f"""
    s_waitcnt vmcnt(0)
    v_cmp_ne_u32 vcc, v{VT}, v{VN}
    s_nop 1
    s_cbranch_vccnz L_u_late
    """)
    uload()
    a("s_barrier\ns_branch L_u_have")
    a("L_u_late:\ns_barrier")
    poll(a, "s1", 55, "s72")
    uload()
    a("L_u_have:\ns_waitcnt vmcnt(0)")
    for q in range(2): a(f"ds_write_b128 v57, {vr(32+4*q,4)} offset:{1024*q}")
    for q in range(2):
        a(f"ds_write_b64 v57, {vr(32+4*q,2)} offset:{1024*q + US + 8}")
        a(f"ds_write_b64 v57, {vr(34+4*q,2)} offset:{1024*q + US + 16}")
    a(f"""
    ds_write_b32 v59, v59
    v_xor_b32 v59, 4, v59
    s_mov_b32 s92, {SPIN}
    L_pair:
    ds_read_b32 v58, v59
    s_waitcnt lgkmcnt(0)
    v_readfirstlane_b32 s93, v58
    s_sub_u32 s92, s92, 1
    s_cmp_eq_u32 s92, 0
    s_cbranch_scc1 L_pair_ok
    s_cmp_eq_u32 s93, 0
    s_cbranch_scc1 L_pair
    L_pair_ok:
    """)
    lstamp(a, 25)
    conv(a)
    lstamp(a, 3)

def att_finish2(a, tag):
    a(f"s_mov_b32 s84, 0x2b800000\ns_mov_b32 s85, 0x5d800000\nv_fma_f32 v8, v{AO}, 0, v{AO+8}")
    for r in range(1, 8): a(f"v_fma_f32 v8, v{AO+r}, 0, v8")
    a(f"""
    v_cmp_nge_f32 vcc, v8, s84
    v_cmp_nle_f32 s[86:87], v8, s85
    s_or_b64 vcc, vcc, s[86:87]
    s_cbranch_vccnz L_{tag}_slow
    L_{tag}_norm:
    v_rcp_f32 v8, v{AO+8}
    """)
    for r in range(8): a(f"v_mul_f32 v{AO+r}, v8, v{AO+r}")
    for r in range(4): a(f"v_cvt_pk_bf16_f32 v{12+r}, v{AO+2*r}, v{AO+2*r+1}")
    for r in range(4): a(f"v_min_u32 v{12+r}, -2, v{12+r}")
    a(f"buffer_store_dwordx4 v[12:15], v1, {R_WS}, s80 offen {SC}")

def out_gemm(a):
    a(f"""
    v_lshlrev_b32 v2, 9, v86
    v_lshl_add_u32 v2, v87, 4, v2
    v_add_u32 v2, {OS}, v2
    v_lshlrev_b32 v3, 10, v87
    v_lshl_add_u32 v3, v86, 3, v3
    s_lshl_b32 s84, s88, 15
    s_lshl_b32 s86, s89, 5
    s_add_u32 s84, s84, s86
    v_add_u32 v3, s84, v3
    v_add_u32 v4, 0x4000, v3
    """)
    def go():
        NB = 12; FB = 16
        rd = lambda i: a(f"ds_read_b128 {vr(FB+4*(i%NB),4)}, v2 offset:{2048*(i>>1) + 256*(i&1)}")
        for i in range(NB): rd(i)
        for g in range(8):
            a(f"s_waitcnt lgkmcnt({min(8, 28 - 4 * g)})")
            for i in range(4 * g, 4 * g + 4):
                acc = 8 + 4 * (i & 1)
                a(f"v_mfma_f32_16x16x32_bf16 {vr(acc,4)}, {vr(PW+4*(i>>1),4)}, {vr(FB+4*(i%NB),4)}, {'0' if i < 2 else vr(acc,4)}")
            for i in range(4 * g + NB, min(4 * g + NB + 4, 32)): rd(i)
        for nt in range(2):
            for i in range(4): a(f"v_fma_f32 v{8+4*nt+i}, v{8+4*nt+i}, v{PG+nt}, v{PB+4*nt+i}")
            a(f"v_cvt_pk_bf16_f32 v{16+2*nt}, v{8+4*nt}, v{9+4*nt}\nv_cvt_pk_bf16_f32 v{17+2*nt}, v{10+4*nt}, v{11+4*nt}")
            a(f"global_store_dwordx2 v{3+nt}, {vr(16+2*nt,2)}, {S_OUT} {OPT.get('outmod', '')}")
    return go

def build_fused():
    a = Asm()
    k = NAME + "_kernel"
    launches = f"; @launch grid=(256,1,1) block=(512,1,1) lds={LDS_BYTES}\n"
    if G.STAMPS:
        launches = f"; @launch kernel={k} grid=(256,1,1) block=(512,1,1) lds={LDS_BYTES}\n; @launch kernel=stamp_kernel grid=(1,1,1) block=(256,1,1) lds=1024\n"
    a.raw(header() + launches + '.amdgcn_target "amdgcn-amd-amdhsa--gfx950"\n.text')
    kernel_head(a, k)
    if "amp" in OPT: lstamp(a, "E")
    prologue(a, "L_end")
    lstamp(a, 0)
    a(f"s_cmp_lt_u32 {SW}, 4\ns_cbranch_scc1 L_gemm")
    a_params(a)
    a("s_barrier\ns_branch L_aux")
    a.reset(); a("L_gemm:")
    g_phase1(a)
    lg = list(G.LIGHT); G.LIGHT[:] = [s for s in lg if s == 0]
    a("s_branch L_att")
    a.reset(); a("L_aux:")
    a_phase1(a)
    la = list(G.LIGHT); G.LIGHT[:] = sorted(set(la) | set(lg))
    a.reset(); a("L_att:")
    for r in range(4): a(f"v_mov_b32 v{VS+r}, -1")
    a("s_barrier")
    a(f"ds_write_b32 v92, v{VZ}")
    lstamp(a, 4)
    KM = "" if OPT.get("kvplain") else SC
    a(f"buffer_load_dwordx4 {vr(AQ,4)}, v1, {R_WS}, s77 offen {KM}")
    kv_dma(a, range(16) if OPT.get("kvall") else [0], KM)
    lstamp(a, 26)
    conv_finish(a)
    a("s_waitcnt vmcnt(0) lgkmcnt(0)\ns_barrier"); lstamp(a, 27)
    sched = {0: [1, 2], 1: [3, 4, 5], 2: [6, 7], 3: [8, 9, 10], 4: [11, 12, 13], 5: [14, 15]}
    if OPT.get("kvall"): sched = {2: []}
    def hdma(t):
        def f():
            if t == 2 and not OPT.get("nob2"): a("s_waitcnt vmcnt(3)\ns_barrier")
            kv_dma(a, sched[t], KM)
        return f
    def h10():
        a("s_waitcnt vmcnt(0)\ns_barrier")
        deferred_stores(a)
        a(f"""
        s_lshl_b32 s80, s76, 5
        s_add_u32 s80, s80, s74
        s_lshl_b32 s80, s80, 10
        s_add_u32 s80, s80, {OF}
        buffer_store_dwordx4 {vr(VS,4)}, v1, {R_WS}, s80 offen {SC}
        """)
        lstamp(a, 28)
    def h_cnt():
        a(f"""
        s_waitcnt vmcnt(0)
        s_mov_b64 exec, 1
        ds_add_rtn_u32 v93, v92, v93
        s_mov_b64 exec, -1
        """)
    def h_s3sig():
        a(f"""
        v_readfirstlane_b32 s84, v93
        s_lshl_b32 s85, {SX}, 7
        s_lshl_b32 s86, {SJ}, 2
        s_add_u32 s85, s85, s86
        s_add_u32 s85, s85, {F_S3}
        s_cmp_lg_u32 s84, 7
        s_cbranch_scc1 L_s3_skip
        """)
        signal(a, "s85")
        a("L_s3_skip:")
    def h_s3ld():
        a(f"s_mov_b32 s84, {F_S3}\nbuffer_load_dwordx4 {vr(VT,4)}, v1, {R_WS}, s84 offen {SC}")
    def wof_dma(r):
        for i in range(4): a(f"buffer_load_dwordx4 v1, {R_WS}, s90 offen offset:{1024*i} {SC} lds")
        if r < 3: a("s_add_u32 s90, s90, 4096")
    def h_s3chk():
        a("s_waitcnt vmcnt(0)")
        poll(a, "s3", 1, "s84", True, 4)
        a(f"""
        s_lshl_b32 s88, s75, 3
        s_lshr_b32 s89, s74, 2
        s_add_u32 s88, s88, s89
        s_and_b32 s89, s74, 3
        s_lshl_b32 s89, s89, 3
        s_add_u32 s89, s89, {SW}
        s_lshl_b32 s90, s89, 14
        s_add_u32 s90, s90, {WOF}
        s_lshl_b32 s86, {SW}, 12
        s_add_u32 s86, s86, {OS}
        s_mov_b32 m0, s86
        v_add_u32 v92, s86, v1
        """)
        if OPT.get("nos3"): return
        wof_dma(0)
        a(f"""
        s_or_b32 s84, s2, {SW}
        s_cmp_lg_u32 s84, 0
        s_cbranch_scc1 L_n_skip
        s_mov_b32 s84, {F_N}
        """)
        signal(a, "s84")
        a("L_n_skip:")
    def h_wrd(r):
        def f():
            if OPT.get("nos3"): return
            a("s_waitcnt vmcnt(0)")
            for i in range(4): a(f"ds_read_b128 {vr(PW+16*r+4*i,4)}, v92 offset:{1024*i}")
        return f
    def h_wld(r):
        def f():
            if OPT.get("nos3"): return
            wof_dma(r)
        return f
    def h_side():
        if OPT.get("nos3"):
            a("v_lshrrev_b32 v86, 4, v0\nv_and_b32 v87, 15, v0"); return
        a(f"""
        v_lshrrev_b32 v86, 4, v0
        v_and_b32 v87, 15, v0
        v_lshlrev_b32 v88, 14, v86
        v_lshl_add_u32 v88, v87, 1, v88
        s_lshl_b32 s90, s89, 16
        s_lshl_b32 s91, s88, 6
        s_add_u32 s90, s90, s91
        s_add_u32 s90, s90, {BT}
        """)
        for i in range(4):
            if i: a("s_add_u32 s90, s90, 4096")
            for nt in range(2): a(f"buffer_load_short_d16_hi v{PB+4*nt+i}, v88, {R_WS}, s90 offen offset:{32*nt} {SC}")
        a(f"""
        v_lshlrev_b32 v88, 2, v87
        s_lshl_b32 s90, s88, 7
        s_add_u32 s90, s90, {GW}
        buffer_load_dword v{PG}, v88, {R_WS}, s90 offen {SC}
        buffer_load_dword v{PG+1}, v88, {R_WS}, s90 offen offset:64 {SC}
        """)
    hooks = {t: hdma(t) for t in sched}
    hooks.update({10: h10, 15: h_cnt, 16: h_s3sig, 34: h_s3ld, 38: h_s3chk, 58: h_side})
    for r in range(4):
        hooks[42 + 5 * r] = h_wrd(r)
        if r < 3: hooks[43 + 5 * r] = h_wld(r + 1)
    prios = {0: 1, 1: 0, 2: 3, 5: 2, 8: 1, 9: 0, 10: 3, 18: 2, 46: 1, 60: 0}
    if "prios" in OPT: prios = {int(x.split(":")[0]): int(x.split(":")[1]) for x in OPT["prios"].split(",")}
    att_main(a, hooks, prios)
    lstamp(a, 29)
    att_finish2(a, "at")
    lstamp(a, 5)
    a(f"""
    s_lshl_b32 s93, s88, 15
    s_lshl_b32 s86, {SW}, 12
    s_add_u32 s93, s93, s86
    s_add_u32 s93, s93, {OF}
    """)
    odma = lambda: [a(f"buffer_load_dwordx4 v1, {R_WS}, s93 offen offset:{1024*i} {SC} lds") for i in range(4)]
    odma()
    a("s_waitcnt vmcnt(5)")
    out_side_math(a)
    gemm = out_gemm(a)
    a(f"s_mov_b32 s92, {SPIN}\ns_branch L_o_chk\nL_o_again:")
    odma()
    a("L_o_chk:\ns_waitcnt vmcnt(0)")
    for i in range(4): a(f"ds_read_b128 {vr(16+4*i,4)}, v92 offset:{1024*i}")
    a("s_sub_u32 s92, s92, 1\ns_waitcnt lgkmcnt(2)")
    a("v_max3_u32 v5, v16, v17, v18\nv_max3_u32 v6, v19, v20, v21\nv_max3_u32 v5, v22, v23, v5\ns_waitcnt lgkmcnt(0)")
    a("v_max3_u32 v6, v24, v25, v6\nv_max3_u32 v5, v26, v27, v5\nv_max3_u32 v6, v28, v29, v6\nv_max3_u32 v5, v30, v31, v5\nv_max_u32 v5, v5, v6")
    a("""
    v_cmp_eq_u32 vcc, -1, v5
    s_cmp_eq_u32 s92, 0
    s_cbranch_scc1 L_o_ok
    s_cbranch_vccnz L_o_again
    L_o_ok:
    """)
    lstamp(a, 30)
    a("s_barrier")
    gemm()
    lstamp(a, 7)
    if G.STAMPS:
        lflush(a, range(8))
        for s in la:
            if s: G.STAMP_WAVES[s] = list(range(4, 8))
        for s in lg:
            if s: G.STAMP_WAVES[s] = list(range(4))
    if "amp" in OPT:
        w = OPT["amp"].split(",")[2]
        a(f"""
        s_cmp_lg_u32 s2, {OPT.get("ampwg", 0)}
        s_cbranch_scc1 L_end
        s_cmp_lg_u32 {SW}, {w}
        s_cbranch_scc1 L_end
        s_sub_u32 s98, s98, s96
        s_lshl_b32 s98, s98, 2
        s_min_u32 s98, s98, 40000
        s_memrealtime s[96:97]
        s_waitcnt lgkmcnt(0)
        L_amp:
        s_memrealtime s[100:101]
        s_waitcnt lgkmcnt(0)
        s_sub_u32 s100, s100, s96
        s_cmp_lt_u32 s100, s98
        s_cbranch_scc1 L_amp
        """)
    a("L_end:\ns_endpgm")
    att_slow(a, "at")
    a("L_codeend:\ns_endpgm")
    if G.STAMPS: stamp_reduce_kernel(a)
    a.raw('.section .rodata,"a"')
    if G.STAMPS: a.raw(descriptor("stamp_kernel", 32))
    a.raw(descriptor(k, 256))
    return a.text()

if __name__ == "__main__":
    out = sys.argv[1]
    for o in sys.argv[2:]:
        kk, _, v = o.partition("="); OPT[kk] = v or True
    G.STAMPS = bool(OPT.get("stamp"))
    OPT.setdefault("ones", "few")
    txt = build_fused()
    open(out, "w").write(txt)
    print("wrote", out, len(txt), "bytes")
```

```python
import sys
import gen as G
from gen import (Asm, OPT, NAME, vr, VM, prologue, aux_ids, kernel_head, descriptor, header, lstamp, lflush, stamp_reduce_kernel,
                 QF, KV, XT, BT, OF, WOF, GW, LDS_BYTES, LOG2E, INV2PI, QSCALE,
                 S_X, S_WO, S_LOGA, S_AIM, S_CR, S_CI, S_LDT, S_DSK, S_GWT, S_OUT, R_X, R_W, R_WS, SX, SJ, SW,
                 AQ, AKS, AV1, AV2, AS_, AO, PW, PB, PG, att_main, att_finish, att_slow, out_side_loads, out_side_math)
from gen2 import cmuls, RowWriter, cexp

SC = "sc1"
SPIN = 400000
FL = 0xC90000
F_N, F_S1, F_S2, F_S3, F_S4 = FL, FL + 0x1000, FL + 0x3000, FL + 0x4000, FL + 0x8000
SLOT = 32768
def slot_addr(t): return SLOT * (1 + ((t + 1) & 3))
TBS, HTS = 8704, 7344
EX0, KX0, KXD = 0, 16384, 4608
RE, RSZ = 4160, 16640
US = 4640
OS = 131072
VN, VX, VZ, VT, VS = 240, 241, 242, 244, 236
DB, DA = 224, 232
PRIOS = {0: 3, 38: 2, 54: 1, 61: 0}

def poll(a, tag, vaddr, soff, first_issued=False, n=1, ncmp=None, vt=VT, sleep=4):
    ld = f"buffer_load_dword{'' if n == 1 else 'x%d' % n} {vr(vt, n)}, v{vaddr}, {R_WS}, {soff} offen {SC}"
    ncmp = ncmp or n
    a(f"s_mov_b32 s92, {SPIN}")
    if first_issued: a(f"s_branch L_{tag}_chk")
    a(f"L_{tag}_poll:\n{ld}\ns_waitcnt vmcnt(0)")
    a(f"L_{tag}_chk:")
    a(f"v_cmp_ne_u32 vcc, v{vt}, v{VN}")
    for i in range(1, ncmp): a(f"v_cmp_ne_u32 s[90:91], v{vt+i}, v{VN}\ns_or_b64 vcc, vcc, s[90:91]")
    if ncmp == 1: a("s_nop 1")
    a(f"""
    s_cbranch_vccz L_{tag}_ok
    s_sleep {sleep}
    s_sub_u32 s92, s92, 1
    s_cmp_lg_u32 s92, 0
    s_cbranch_scc1 L_{tag}_poll
    L_{tag}_ok:
    """)

def signal(a, soff, mod=SC, n=1):
    a(f"""
    s_mov_b64 exec, 1
    buffer_store_dword{'' if n == 1 else 'x2'} {vr(VN, n)}, v{VZ}, {R_WS}, {soff} offen {mod}
    s_mov_b64 exec, -1
    """)

def epoch_load(a):
    a(f"v_mov_b32 v{VZ}, 0\ns_mov_b32 s56, {F_N}\nbuffer_load_dword v{VN}, v{VZ}, {R_WS}, s56 offen {SC}")

DX, DW = 94, 95
def dma_setup(a):
    a(f"""
    v_lshrrev_b32 v1, 3, v0
    v_lshrrev_b32 v2, 4, v0
    s_and_b32 s58, {SW}, 1
    s_lshl_b32 s56, s58, 2
    v_add_u32 v3, s56, v2
    v_and_b32 v{DW}, 7, v0
    v_xor_b32 v3, v3, v{DW}
    v_lshlrev_b32 v3, 4, v3
    v_lshl_add_u32 v{DX}, v1, 10, v3
    v_and_b32 v2, 1, v2
    v_lshlrev_b32 v2, 2, v2
    v_xor_b32 v2, v2, v{DW}
    v_lshlrev_b32 v2, 4, v2
    v_mov_b32 v3, 0xc00
    v_mad_u32_u24 v{DW}, v1, v3, v2
    s_lshl_b32 s44, {SJ}, 16
    s_lshl_b32 s45, {SW}, 13
    s_add_u32 s44, s44, s45
    s_mul_i32 s45, {SW}, {16*3072}
    s_lshl_b32 s56, {SX}, 7
    s_add_u32 s45, s45, s56
    s_lshl_b32 s46, {SW}, 10
    s_lshl_b32 s47, {SW}, 11
    """)

def dma_pieces(t, part="xw"):
    base = slot_addr(t); out = []
    head = f"s_add_u32 s56, {SX}, {t}\ns_and_b32 s56, s56, 7\n"
    if "x" in part:
        for i in range(2):
            p = (head + "s_lshl_b32 s57, s56, 7\ns_add_u32 s57, s57, s44\n") if i == 0 else "s_add_u32 s57, s57, 0x8000\n"
            out.append(p + f"s_add_u32 m0, s46, {base + i*4096}\nbuffer_load_dwordx4 v{DX}, {R_X}, s57 offen lds")
        head = ""
    if "w" in part:
        for i in range(2):
            for ty in range(3):
                p = ""
                if ty == 0: p = (head + f"s_mul_i32 s56, s56, {64*3072}\ns_add_u32 s56, s56, s45\n") if i == 0 else f"s_add_u32 s56, s56, {8*3072}\n"
                out.append(p + f"s_add_u32 m0, s47, {base + 8192 + ty*8192 + i*1024 - ty*1024}\nbuffer_load_dwordx4 v{DW}, {R_W}, s56 offen offset:{ty*1024} lds")
    return out

def dma(a, vm, t, part="xw", tag=None):
    for p in dma_pieces(t, part): a(p); vm.add(tag or f"s{t}")

def kv_dma(a, rounds, mod):
    for r in rounds:
        if OPT.get("norot"):
            a(f"s_add_u32 m0, s79, {8192*r}\ns_add_u32 s80, s78, {8192*r}")
        else:
            a(f"s_add_u32 s80, s81, {8192*r}\ns_and_b32 s80, s80, 0x1ffff\ns_add_u32 m0, s79, {8192*r}\ns_add_u32 s80, s80, s78")
        a(f"buffer_load_dwordx4 v1, {R_WS}, s80 offen {mod} lds")

def att_bulk():
    l = f"""
    s_lshr_b32 s74, {SJ}, 3
    s_lshl_b32 s75, {SX}, 2
    s_add_u32 s74, s74, s75
    s_and_b32 s75, {SJ}, 7
    s_lshl_b32 s76, s75, 3
    s_add_u32 s76, s76, {SW}
    s_lshl_b32 s77, s74, 6
    s_add_u32 s77, s77, s76
    s_lshl_b32 s77, s77, 10
    s_add_u32 s77, s77, {QF}
    s_lshl_b32 s78, s74, 17
    s_lshl_b32 s79, {SW}, 10
    s_add_u32 s78, s78, s79
    s_add_u32 s78, s78, {KV}
    s_lshl_b32 s81, s75, 14
    s_mov_b32 s82, 0xffff
    s_mov_b32 s83, 0xffff
    v_and_b32 v16, 27, v0
    v_cmp_eq_u32 vcc, 16, v16
    v_mov_b32 v17, 0x3f803f80
    v_mov_b32 v92, {LDS_BYTES - 4}
    v_cndmask_b32 v16, 0, v17, vcc
    v_mov_b32 v93, 1
    """.strip().split("\n")
    l += [f"v_mov_b32 v{r}, v16" for r in range(17, 32)] + [f"v_mov_b32 v{AO+r}, 0" for r in range(16)]
    return [x.strip() for x in l]

def att_addr():
    return [x.strip() for x in """
    v_lshlrev_b32 v1, 4, v0
    v_lshrrev_b32 v2, 5, v0
    v_lshlrev_b32 v2, 8, v2
    v_and_b32 v3, 15, v0
    v_lshl_add_u32 v2, v3, 4, v2
    v_add_u32 v2, 1024, v2
    v_add_u32 v80, 0x10000, v1
    v_add_u32 v81, 0x10000, v2
    v_mov_b32 v3, 0xdddddddd
    """.strip().split("\n")]

def g_phase1(a):
    vm = VM()
    ACC = (96, 112, 128); SETS = (144, 160, 176, 192)
    XA, WA = 4, 12
    GX, GG, GO = 32, 40, 44
    dma_setup(a)
    a("s_barrier")
    for t in range(2): dma(a, vm, t)
    lstamp(a, 18)
    a(f"""
    s_getreg_b32 s62, hwreg(HW_REG_XCC_ID)
    v_mov_b32 v{VX}, s62
    s_lshr_b32 s59, {SW}, 1
    v_and_b32 v1, 31, v0
    s_lshl_b32 s60, s58, 12
    s_add_u32 s60, s60, {SLOT}
    v_lshlrev_b32 v2, 7, v1
    v_add_u32 v2, s60, v2
    v_bfe_u32 v1, v0, 1, 3
    v_lshrrev_b32 v3, 5, v0
    v_xor_b32 v1, v1, v3
    """)
    for ks in range(4):
        a(f"v_xor_b32 v3, {2*ks}, v1\nv_lshl_add_u32 v{XA+ks}, v3, 4, v2\nv_add_u32 v{XA+4+ks}, 0x10000, v{XA+ks}")
    a(f"""
    v_lshrrev_b32 v1, 5, v0
    v_lshlrev_b32 v1, 10, v1
    v_bfe_u32 v2, v0, 2, 2
    v_lshl_add_u32 v1, v2, 7, v1
    v_bfe_u32 v2, v0, 3, 1
    v_xor_b32 v2, s59, v2
    v_lshl_add_u32 v1, v2, 6, v1
    v_bfe_u32 v2, v0, 4, 1
    v_lshl_add_u32 v1, v2, 5, v1
    v_and_b32 v2, 3, v0
    v_lshl_add_u32 v1, v2, 3, v1
    v_add_u32 v{WA}, {SLOT + 8192}, v1
    v_add_u32 v{WA+1}, {SLOT + 8192 + 65536}, v1
    """)
    epoch_load(a); vm.add("n")
    dma(a, vm, 2)
    lstamp(a, 1)
    fill = [x.strip() for x in f"""
    ; side-load addresses: v14 gate rows, v15 gate weights, v52/v57 wo gathers; s67 gate output, s69 wo fragment output
    s_lshl_b32 s67, {SJ}, 6
    s_lshl_b32 s62, {SX}, 3
    s_add_u32 s67, s67, s62
    s_lshl_b32 s62, {SW}, 1
    s_add_u32 s67, s67, s62
    v_lshlrev_b32 v15, 4, v0
    s_lshl_b32 s62, s67, 10
    v_add_u32 v14, s62, v15
    s_lshl_b32 s62, {SX}, 5
    s_add_u32 s62, s62, {SJ}
    s_lshr_b32 s69, s62, 3
    s_and_b32 s63, s62, 7
    s_lshl_b32 s63, s63, 1
    s_add_u32 s63, s63, s58
    s_lshl_b32 s64, s63, 15
    s_lshl_b32 s62, s69, 5
    s_add_u32 s64, s64, s62
    v_lshrrev_b32 v3, 5, v0
    v_lshlrev_b32 v3, 14, v3
    v_bfe_u32 v2, v0, 4, 1
    v_lshl_add_u32 v3, v2, 12, v3
    v_and_b32 v2, 15, v0
    v_lshl_add_u32 v3, v2, 1, v3
    v_add_u32 v52, s64, v3
    v_add_u32 v57, 0x2000, v52
    s_lshl_b32 s69, s69, 4
    s_add_u32 s69, s69, s63
    s_lshl_b32 s69, s69, 10
    s_add_u32 s69, s69, {WOF}
    s_lshl_b32 s67, s67, 2
    s_add_u32 s67, s67, {GW}
    ; hand-off words: s72 = die-id line, s70 = projection-done word, s71 = line polled before attention
    s_lshl_b32 s72, {SX}, 2
    s_add_u32 s72, s72, {SW}
    s_lshl_b32 s72, s72, 8
    s_add_u32 s72, s72, {F_S1}
    v_and_b32 v53, 31, v0
    v_lshlrev_b32 v53, 3, v53
    s_lshl_b32 s70, {SX}, 1
    s_lshr_b32 s71, {SJ}, 4
    s_add_u32 s71, s71, s70
    s_lshl_b32 s71, s71, 8
    s_add_u32 s71, s71, {F_S2}
    s_add_u32 s70, s70, s59
    s_lshl_b32 s70, s70, 8
    s_lshl_b32 s62, {SJ}, 3
    s_add_u32 s70, s70, s62
    s_lshl_b32 s62, s58, 2
    s_add_u32 s70, s70, s62
    s_add_u32 s70, s70, {F_S2}
    v_lshlrev_b32 v54, 2, v0
    ; epilogue addresses
    s_lshl_b32 s60, {SX}, 2
    s_lshl_b32 s61, s59, 1
    s_add_u32 s60, s60, s61
    s_lshl_b32 s60, s60, 6
    s_lshl_b32 s61, {SJ}, 1
    s_add_u32 s61, s61, s58
    s_add_u32 s60, s60, s61
    s_lshl_b32 s61, s60, 10
    s_add_u32 s61, s61, {QF}
    s_add_u32 s62, s61, 0x10000
    s_lshl_b32 s63, s60, 11
    s_add_u32 s63, s63, {KV}
    s_add_u32 s64, s63, 0x20000
    s_mov_b32 s65, {QSCALE}
    v_and_b32 v55, 0x33, v0
    v_bfe_u32 v3, v0, 2, 1
    v_lshl_or_b32 v55, v3, 3, v55
    v_bfe_u32 v3, v0, 3, 1
    v_lshl_or_b32 v55, v3, 2, v55
    v_lshlrev_b32 v55, 4, v55
    v_and_b32 v56, 15, v0
    v_lshlrev_b32 v56, 4, v56
    v_lshrrev_b32 v3, 5, v0
    v_lshl_add_u32 v56, v3, 8, v56
    v_bfe_u32 v3, v0, 4, 1
    v_lshl_add_u32 v56, v3, 17, v56
    """.strip().split("\n") if not x.strip().startswith(";")]
    fill += [f"v_mov_b32 v{r}, 0" for r in range(DA, DA + 4)] + att_bulk() + att_addr()
    def reads(t, ks):
        p = slot_addr(t) // SLOT - 1; s = SETS[ks]; hi = p >> 1; o0 = (p & 1) * SLOT
        l = [f"ds_read_b128 {vr(s,4)}, v{XA + 4*hi + ks} offset:{o0}"]
        for ty in (1, 2, 0):
            for ri in range(2):
                l.append(f"ds_read_b64_tr_b16 {vr(s+4+4*ty+2*ri,2)}, v{WA+hi} offset:{o0 + ty*8192 + ks*2048 + ri*512}")
        return l
    def mf(ks, i, first=False):
        s = SETS[ks]; c = "0" if first else vr(ACC[i], 16)
        ab = f"{vr(s,4)}, {vr(s+12,4)}" if i == 2 else f"{vr(s+4+4*i,4)}, {vr(s,4)}"
        a(f"v_mfma_f32_32x32x16_bf16 {vr(ACC[i],16)}, {ab}, {c}")
    pend = []
    def mm(ks, first, rd=(), nd=2):
        rd = list(rd)
        for i, r in zip((1, 2, 0), (rd[:4], rd[4:], [])):
            mf(ks, i, first)
            for x in r: a(x)
            for _ in range(3 if r else 5):
                if fill: a(fill.pop(0))
        for _ in range(nd):
            if pend:
                tag, p = pend.pop(0); a(p); vm.add(tag)
    side = [f"global_load_dwordx4 {vr(GX,4)}, v14, {S_X}", f"global_load_dwordx4 {vr(GX+4,4)}, v14, {S_X} offset:1024", f"global_load_dwordx4 {vr(GG,4)}, v15, {S_GWT}"]
    side += [f"global_load_short_d16{'_hi' if j & 1 else ''} v{GO+j}, v{57 if j >> 2 else 52}, {S_WO} offset:{1024*(j&3)}" for j in range(8)]
    for t in range(8):
        if OPT.get("gpos") == "pre": lstamp(a, 8 + t)
        vm.wait(a, f"s{t}")
        if t == 3: a(f"v_add_u32 v{VN}, 1, v{VN}")
        if OPT.get("gpos") == "mid": lstamp(a, 8 + t)
        a("s_barrier")
        if not OPT.get("gpos"): lstamp(a, 8 + t)
        nd = 2
        if t == 0: pend += [("s3w", p) for p in dma_pieces(3, "w")]; nd = 3
        if t == 1: pend += [("s3", p) for p in dma_pieces(3, "x")]; nd = 3
        if 1 <= t <= 4: pend += [(f"s{t+3}", p) for p in dma_pieces(t + 3)]
        if t == int(OPT.get("tt", 5)) and OPT.get("touch") == "g":
            pend += [("touch", f"s_mov_b32 exec_hi, 0xffff\nbuffer_load_dword v59, v58, {R_WS}, 0 offen\ns_mov_b32 exec_hi, -1")]; nd = 3
        if t == 5: assert not fill, len(fill)
        if t == 5: pend += [("f", f"buffer_load_dwordx2 {vr(VT,2)}, v53, {R_WS}, s72 offen {SC}")]
        if t == 5: pend += [("side", p) for p in side]; nd = 3
        if t == 0:
            for x in reads(0, 0) + reads(0, 1): a(x)
        else:
            mm(2, False, reads(t, 0), nd)
            mm(3, False, reads(t, 1), nd)
        a("s_waitcnt lgkmcnt(7)")
        mm(0, t == 0, reads(t, 2), nd)
        a("s_waitcnt lgkmcnt(7)")
        mm(1, False, reads(t, 3), nd)
        assert not pend
        if t == 7 and OPT.get("gprio"): a(f"s_setprio {OPT['gprio']}")
        if t == 7:
            vm.wait(a, "f")
            poll(a, "s1g", 53, "s72", True, 2, 1)
            a(f"v_cmp_ne_u32 s[94:95], v{VT+1}, v{VX}")
        a("s_waitcnt lgkmcnt(0)")
    a("s_cmp_eq_u64 s[94:95], 0")
    if OPT.get("nofast"): a("s_branch L_st_far")
    a("s_cbranch_scc0 L_st_far")
    cv = lambda d, s: [f"v_cvt_pk_bf16_f32 v{d+r}, v{s+2*r}, v{s+2*r+1}" for r in range(8)]
    for fmod in ("", SC):
        mod = fmod or OPT.get("qmod", "").replace("plain", "")
        if fmod: a.reset(); a("L_st_far:")
        for ks, i in ((2, 1), (3, 1), (2, 2), (3, 2), (2, 0)): mf(ks, i)
        a("s_nop 6")
        for x in cv(144, ACC[1])[:4]: a(x)
        mf(3, 0)
        for x in cv(144, ACC[1])[4:]: a(x)
        a(f"buffer_store_dwordx4 v[144:147], v55, {R_WS}, s63 offen {mod}\nbuffer_store_dwordx4 v[148:151], v55, {R_WS}, s64 offen {mod}")
        for x in cv(152, ACC[2]): a(x)
        a(f"buffer_store_dwordx4 v[152:155], v56, {R_WS}, s63 offen offset:1024 {mod}\nbuffer_store_dwordx4 v[156:159], v56, {R_WS}, s63 offen offset:1536 {mod}")
        for h in range(2):
            for r in range(8): a(f"v_mul_f32 v{ACC[0]+8*h+r}, s65, v{ACC[0]+8*h+r}")
            for x in cv(160, ACC[0])[4*h:4*h+4]: a(x)
            a(f"buffer_store_dwordx4 {vr(160+4*h,4)}, v1, {R_WS}, s{61+h} offen {mod}")
        if not fmod: lstamp(a, 16)
        a("s_mov_b32 s68, 0xffff0000\ns_waitcnt vmcnt(6)")
        for k in range(4): a(f"v_lshlrev_b32 v{168+2*k}, 16, v{GG+k}\nv_and_b32 v{169+2*k}, s68, v{GG+k}")
        for k in range(4):
            for r in range(2):
                x = GX + 4 * r + k; t = 180 + 2 * r
                a(f"v_lshlrev_b32 v{t}, 16, v{x}\nv_and_b32 v{t+1}, s68, v{x}\nv_mul_f32 v{t}, v{t}, v{168+2*k}\nv_mul_f32 v{t+1}, v{t+1}, v{169+2*k}")
                a(f"v_cvt_pk_bf16_f32 v{x}, v{t}, v{t+1}")
        a("s_waitcnt vmcnt(0)")
        signal(a, "s70", fmod)
        if not fmod: a("s_branch L_st_done")
    a.reset(); a("L_st_done:")
    lstamp(a, 17)
    a(f"buffer_load_dword v{VT}, v54, {R_WS}, s71 offen {SC}")
    for k in range(4):
        for r in range(2):
            x = GX + 4 * r + k; t = 180 + 2 * r
            a(f"v_and_b32 v{t+1}, s68, v{x}\nv_lshlrev_b32 v{t}, 16, v{x}")
            if k == 0: a(f"v_add_f32 v{176+r}, v{t}, v{t+1}")
            else: a(f"v_add_f32 v{176+r}, v{176+r}, v{t}\nv_add_f32 v{176+r}, v{176+r}, v{t+1}")
    wo_pack = [f"v_or_b32 v{DB+j}, v{GO+2*j}, v{GO+2*j+1}" for j in range(4)]
    for d in ("row_shr:1 row_mask:0xf bank_mask:0xf bound_ctrl:0", "row_shr:2 row_mask:0xf bank_mask:0xf bound_ctrl:0",
              "row_shr:4 row_mask:0xf bank_mask:0xf bound_ctrl:0", "row_shr:8 row_mask:0xf bank_mask:0xf bound_ctrl:0",
              "row_bcast:15 row_mask:0xa bank_mask:0xf", "row_bcast:31 row_mask:0xc bank_mask:0xf"):
        if wo_pack: a(wo_pack.pop())
        for r in range(2): a(f"v_add_f32_dpp v{176+r}, v{176+r}, v{176+r} {d}")
    a(f"""
    v_cvt_pk_bf16_f32 v178, v176, v177
    s_mov_b32 s60, {LOG2E}
    v_lshlrev_b32 v176, 16, v178
    v_and_b32 v177, s68, v178
    v_mul_f32 v176, s60, v176
    v_mul_f32 v177, s60, v177
    v_exp_f32 v176, -v176
    v_exp_f32 v177, -v177
    v_add_f32 v176, 1.0, v176
    v_add_f32 v177, 1.0, v177
    v_rcp_f32 v176, v176
    v_rcp_f32 v177, v177
    s_nop 0
    v_cvt_pk_bf16_f32 v178, v176, v177
    v_lshlrev_b32 v{DB+4}, 16, v178
    v_and_b32 v{DB+5}, s68, v178
    """)
    a(f"s_cmp_lg_u32 {SW}, 0\ns_cbranch_scc1 L_s2_skip\ns_waitcnt vmcnt(0)")
    poll(a, "s2", 54, "s71", True, sleep=1)
    a.reset(); a("L_s2_skip:")
    lstamp(a, 2)

def deferred_stores(a):
    a(f"s_cmp_lt_u32 {SW}, 4\ns_cbranch_scc1 L_df_g")
    for ci in range(4): a(f"buffer_store_dwordx2 {vr(DB+2*ci,2)}, v{DA+ci}, {R_WS}, s66 offen {SC}")
    a(f"""
    s_branch L_df_done
    L_df_g:
    buffer_store_dwordx4 {vr(DB,4)}, v1, {R_WS}, s69 offen {SC}
    s_mov_b32 exec_lo, 0
    s_mov_b32 exec_hi, 0x80000000
    buffer_store_dwordx2 {vr(DB+4,2)}, v{VZ}, {R_WS}, s67 offen {SC}
    s_mov_b64 exec, -1
    L_df_done:
    """)

CA, CB, CU, CD, CE = 86, 87, 88, 90, 91
CACC = 32
def conv(a):
    FA = (96, 160); FB = (128, 192)
    q = []
    def issue(key, txt):
        if len(q) >= 15:
            a("s_waitcnt lgkmcnt(14)"); del q[:len(q) - 14]
        a(txt); q.append(key)
    def need(keys):
        idx = [i for i, k in enumerate(q) if k in keys]
        if idx:
            a(f"s_waitcnt lgkmcnt({len(q) - 1 - max(idx)})"); del q[:max(idx) + 1]
    def rd_list(rho):
        s = rho & 1; l = []
        for i in range(8):
            l.append(((rho, "A", i), f"ds_read_b128 {vr(FA[s]+4*i,4)}, v{CA} offset:{512*(7-i) + 64*(3-rho)}"))
            l.append(((rho, "B", i), f"ds_read_b128 {vr(FB[s]+4*i,4)}, v{CB} offset:{512*i + 64*(3-rho)}"))
        return l
    for k, t in rd_list(0): issue(k, t)
    seen = set()
    mms = sorted([(sg, dl) for sg in range(8) for dl in range(8 - sg)], key=lambda m: max(2 * m[0], 2 * m[1] + 1))
    for rho in range(4):
        s = rho & 1
        nxt = rd_list(rho + 1) if rho < 3 else [(("u", i), f"ds_read_b64 {vr(DB+2*i,2)}, v{CU} offset:{512*i}") for i in range(4)]
        k0 = 14 if rho == 0 else 0
        for k, (sg, dl) in enumerate(mms):
            if rho == 0: need({(rho, "A", sg), (rho, "B", dl)})
            elif k == 0: need({(rho, "B", 7)})
            c = sg + dl; acc = vr(CACC + 4 * c, 4)
            a(f"v_mfma_f32_16x16x32_bf16 {acc}, {vr(FA[s]+4*sg,4)}, {vr(FB[s]+4*dl,4)}, {acc if c in seen else '0'}")
            seen.add(c)
            if k >= k0 and (k - k0) % 2 == 0:
                for x in nxt[k - k0:k - k0 + 2]: issue(*x)
    a("s_cmp_eq_u32 s53, 0\ns_cbranch_scc0 L_cv_hi\ns_nop 5")
    for i in range(4): a(f"ds_write_b128 v{CE}, {vr(CACC+16+4*i,4)} offset:{1024*i}")
    a("s_branch L_cv_sent\nL_cv_hi:\ns_nop 5")
    for i in range(4): a(f"ds_write_b128 v{CE}, {vr(CACC+4*i,4)} offset:{1024*i}")
    a("s_nop 1")
    for i in range(16): a(f"v_mov_b32 v{CACC+i}, v{CACC+16+i}")
    a(f"L_cv_sent:\nv_xor_b32 v{CE}, 0x1000, v{CE}\ns_waitcnt lgkmcnt(0)")

def conv_finish(a):
    a(f"s_cmp_lt_u32 {SW}, 4\ns_cbranch_scc1 L_cv_fin")
    for i in range(4): a(f"ds_read_b128 {vr(96+4*i,4)}, v{CE} offset:{1024*i}")
    a("s_mov_b32 s68, 0xffff0000")
    for i in range(8): a(f"v_lshlrev_b32 v{48+2*i}, 16, v{DB+i}\nv_and_b32 v{49+2*i}, s68, v{DB+i}")
    for i in range(16): a(f"v_fmac_f32 v{CACC+i}, v{48+i}, v{CD}")
    a("s_waitcnt lgkmcnt(0)")
    for i in range(16): a(f"v_add_f32 v{CACC+i}, v{CACC+i}, v{96+i}")
    for i in range(8): a(f"v_cvt_pk_bf16_f32 v{DB+i}, v{CACC+2*i}, v{CACC+2*i+1}")
    a("L_cv_fin:")

def a_params(a):
    aux_ids(a)
    a(f"""
    s_lshl_b32 s55, s54, 8
    s_lshl_b32 s56, s53, 7
    s_add_u32 s55, s55, s56
    v_lshlrev_b32 v1, 1, v0
    v_add_u32 v1, s55, v1
    s_lshl_b32 s56, s54, 1
    v_mov_b32 v2, s56
    global_load_short_d16_hi v10, v1, {S_LOGA}
    global_load_short_d16_hi v14, v2, {S_LDT}
    global_load_short_d16_hi v11, v1, {S_AIM}
    global_load_short_d16_hi v12, v1, {S_CR}
    global_load_short_d16_hi v13, v1, {S_CI}
    global_load_short_d16_hi v{CD}, v2, {S_DSK}
    """)
    epoch_load(a)
    if not OPT.get("nowpf"):
        a(f"""
        s_lshl_b32 s62, {SX}, 5
        s_add_u32 s62, s62, {SJ}
        s_lshr_b32 s63, s62, 3
        s_and_b32 s62, s62, 7
        s_lshl_b32 s62, s62, 16
        s_lshl_b32 s63, s63, 5
        s_add_u32 s62, s62, s63
        s_lshl_b32 s63, s51, 14
        s_add_u32 s62, s62, s63
        v_lshlrev_b32 v3, 10, v0
        v_add_u32 v3, s62, v3
        s_mov_b64 exec, 0xffff
        global_load_dword v92, v3, {S_WO}
        s_mov_b64 exec, -1
        """)
    if OPT.get("touch") == "start":
        a(f"""
        s_lshl_b32 s60, {SX}, 2
        s_lshl_b32 s61, s52, 1
        s_add_u32 s60, s60, s61
        s_lshl_b32 s60, s60, 6
        s_lshl_b32 s61, {SJ}, 1
        s_add_u32 s61, s61, s53
        s_add_u32 s60, s60, s61
        s_lshl_b32 s61, s60, 10
        s_add_u32 s61, s61, {QF}
        s_lshl_b32 s60, s60, 11
        s_add_u32 s60, s60, {KV}
        v_and_b32 v4, 15, v0
        v_lshlrev_b32 v4, 7, v4
        v_bfe_u32 v5, v0, 4, 1
        v_lshl_add_u32 v4, v5, 17, v4
        v_and_b32 v5, 7, v0
        v_lshlrev_b32 v5, 7, v5
        v_bfe_u32 v6, v0, 3, 1
        v_lshl_add_u32 v5, v6, 16, v5
        s_mov_b64 exec, 0xffffffff
        buffer_load_dword v9, v4, {R_WS}, s60 offen
        s_mov_b64 exec, 0xffff
        buffer_load_dword v8, v5, {R_WS}, s61 offen
        s_mov_b64 exec, -1
        """.replace("v9,", "v91,").replace("v8,", "v89,"))
    if not OPT.get("nocpf"):
        a(f"""
        s_getpc_b64 s[62:63]
        L_pc:
        s_and_b32 s64, {SJ}, 3
        s_lshl_b32 s64, s64, 2
        s_add_u32 s64, s64, s51
        s_lshl_b32 s64, s64, 11
        v_lshlrev_b32 v3, 7, v0
        v_add_u32 v3, s64, v3
        v_min_u32 v3, L_codeend - L_pc - 4, v3
        s_mov_b64 exec, 0xffff
        global_load_dword v93, v3, s[62:63]
        s_mov_b64 exec, -1
        """)

def rows(a, regs, row0, neg, tb):
    for k, r in enumerate(regs):
        if r is None: a(f"v_mov_b32 v{tb+k}, 0x3f80")
        else: a(f"v_cvt_pk_bf16_f32 v{tb+k}, v{r}, {'-' if neg else ''}v{r+1}")
    for k in range(len(regs)): a(f"ds_write_addtid_b32 v{tb+k} offset:{272*(row0+k)}")
    return row0 + len(regs)

def smul_list(ops):
    T = list(range(32, 40)) + [16, 17, 18, 19]; l = []
    for k, (d, x, w) in enumerate(ops): l += [f"v_mul_f32 v{T[2*k]}, v{x+1}, v{w+1}", f"v_mul_f32 v{T[2*k+1]}, v{x}, v{w+1}"]
    for k, (d, x, w) in enumerate(ops):
        if d == w:
            l += [f"v_fma_f32 v{d+1}, v{x+1}, v{w}, v{T[2*k+1]}", f"v_fma_f32 v{d}, v{x}, v{w}, -v{T[2*k]}"]
        else:
            l += [f"v_fma_f32 v{d}, v{x}, v{w}, -v{T[2*k]}", f"v_fma_f32 v{d+1}, v{x+1}, v{w}, v{T[2*k+1]}"]
    return l

def touch(a):
    a(f"""
    s_lshl_b32 s60, {SX}, 2
    s_lshl_b32 s61, s52, 1
    s_add_u32 s60, s60, s61
    s_lshl_b32 s60, s60, 6
    s_lshl_b32 s61, {SJ}, 1
    s_add_u32 s61, s61, s53
    s_add_u32 s60, s60, s61
    s_lshl_b32 s61, s60, 10
    s_add_u32 s61, s61, {QF}
    s_lshl_b32 s60, s60, 11
    s_add_u32 s60, s60, {KV}
    v_and_b32 v4, 15, v0
    v_lshlrev_b32 v4, 7, v4
    v_bfe_u32 v5, v0, 4, 1
    v_lshl_add_u32 v4, v5, 17, v4
    v_and_b32 v5, 7, v0
    v_lshlrev_b32 v5, 7, v5
    v_bfe_u32 v6, v0, 3, 1
    v_lshl_add_u32 v5, v6, 16, v5
    s_mov_b64 exec, 0xffffffff
    buffer_load_dword v82, v4, {R_WS}, s60 offen
    s_mov_b64 exec, 0xffff
    buffer_load_dword v83, v5, {R_WS}, s61 offen
    s_mov_b64 exec, -1
    """)

def a_phase1(a0):
    class Flt:
        on = False
        def __call__(self, txt):
            m = OPT.get("noA")
            if not (self.on and m): return a0(txt)
            for ln in txt.split("\n"):
                l = ln.strip()
                if "writelane" in l or f"v{VN}" in l or f"v{VX}" in l or "_tr_" in l: a0(ln); continue
                if "w" in m and l.startswith("ds_write"): continue
                if "r" in m and l.startswith("ds_read"): continue
                if "m" in m and l.startswith("v_mfma"): continue
                if "v" in m and l.startswith("v_") and not l.startswith("v_mfma"): continue
                a0(ln)
        def reset(self): a0.reset()
    a = Flt()
    vm = VM()
    vm.add("par", 7)
    if not OPT.get("nowpf"): vm.add("wpf")
    if OPT.get("touch") == "start": vm.add("touch", 2)
    if not OPT.get("nocpf"): vm.add("cpf")
    a("s_setprio 2")
    a(f"""
    s_mul_i32 s65, s51, {TBS}
    s_mov_b32 m0, s65
    v_and_b32 v1, 31, v0
    v_lshrrev_b32 v2, 5, v0
    v_lshlrev_b32 v2, 4, v2
    s_mul_i32 s66, s52, {2*TBS}
    v_add_u32 v18, s66, v2
    v_mov_b32 v3, 272
    v_mad_u32_u24 v7, v1, v3, v18
    s_mul_i32 s65, s51, {HTS}
    s_mul_i32 s66, s52, {2*HTS}
    v_add_u32 v2, s66, v2
    v_bfe_u32 v8, v0, 3, 1
    v_and_b32 v9, 3, v0
    v_lshl_add_u32 v8, v8, 2, v9
    v_cvt_f32_u32 v8, v8
    v_bfe_u32 v9, v0, 4, 1
    v_bfe_u32 v16, v0, 2, 1
    v_lshl_add_u32 v9, v9, 1, v16
    v_min_u32 v16, 2, v9
    v_sub_u32 v16, 0, v16
    v_ldexp_f32 v16, v8, v16
    v_rndne_f32 v16, v16
    v_cvt_u32_f32 v16, v16
    v_lshlrev_b32 v17, 3, v9
    s_mov_b32 s66, 0x100d0800
    v_lshrrev_b32 v17, v17, s66
    v_and_b32 v17, 0xff, v17
    v_add_u32 v16, v16, v17
    v_mul_f32 v8, 0.125, v8
    v_rndne_f32 v8, v8
    v_cvt_u32_f32 v8, v8
    v_lshl_add_u32 v8, v9, 1, v8
    v_add_u32 v8, 19, v8
    s_cmp_eq_u32 s53, 0
    s_cselect_b64 vcc, -1, 0
    s_cselect_b32 s70, 0, 0xaaaaaaaa
    s_mov_b32 s71, s70
    v_cndmask_b32 v9, v8, v16, vcc
    v_mad_u32_u24 v9, v9, v3, v2
    v_lshrrev_b32 v1, 4, v0
    v_bfe_u32 v2, v0, 2, 2
    v_lshl_add_u32 v2, v1, 3, v2
    v_bfe_u32 v3, v0, 1, 1
    s_lshl_b32 s66, s51, 1
    v_add_u32 v3, s66, v3
    v_bfe_u32 v4, v2, 1, 3
    v_xor_b32 v4, v4, v3
    v_and_b32 v5, 1, v0
    v_lshlrev_b32 v5, 3, v5
    v_lshl_add_u32 v5, v2, 7, v5
    v_add_u32 v5, {slot_addr(0)}, v5
    v_xor_b32 v6, 2, v4
    v_lshl_add_u32 v4, v4, 4, v5
    v_lshl_add_u32 v5, v6, 4, v5
    v_bfe_u32 v6, v0, 1, 3
    v_lshlrev_b32 v6, 13, v6
    v_and_b32 v3, 1, v0
    v_lshl_add_u32 v6, v3, 6, v6
    v_lshl_add_u32 v6, v1, 4, v6
    s_lshl_b32 s60, {SX}, 18
    s_lshl_b32 s62, s51, 16
    s_add_u32 s60, s60, s62
    s_lshl_b32 s62, {SJ}, 8
    s_add_u32 s60, s60, s62
    s_add_u32 s60, s60, {XT}
    s_lshl_b32 s72, {SX}, 2
    s_add_u32 s61, s72, s51
    s_lshl_b32 s61, s61, 8
    s_lshl_b32 s62, {SJ}, 3
    s_add_u32 s61, s61, s62
    s_add_u32 s61, s61, {F_S1}
    s_lshr_b32 s62, {SJ}, 3
    s_add_u32 s72, s72, s62
    s_lshl_b32 s72, s72, 8
    s_add_u32 s72, s72, {F_S1}
    s_getreg_b32 s62, hwreg(HW_REG_XCC_ID)
    v_mov_b32 v{VX}, s62
    s_mov_b32 s66, {LOG2E}
    s_mov_b32 s68, 0xffff0000
    s_mov_b32 s69, {INV2PI}
    s_mov_b32 s62, 0x41000000
    s_mov_b32 s63, 0x43800000
    """)
    vm.wait(a, "par")
    a.on = True
    lstamp(a, 31)
    a(f"""
    v_mul_f32 v14, s66, v14
    v_mul_f32 v10, s66, v10
    v_exp_f32 v14, v14
    v_exp_f32 v10, v10
    v_add_u32 v{VN}, 1, v{VN}
    v_cvt_pk_bf16_f32 v1, v14, v10
    v_lshlrev_b32 v14, 16, v1
    v_and_b32 v10, s68, v1
    v_mul_f32 v10, v10, v14
    v_mul_f32 v11, v11, v14
    v_mul_f32 v10, s66, v10
    v_mul_f32 v11, s69, v11
    """)
    L = lambda i: 76 + 2 * i
    H = lambda p: 40 + 2 * p if p < 8 else 28
    LF, HF, AK, HP = 96, 160, 224, 59
    cexp(a, [(L(1), "s62")])
    cmuls(a, [(L(2), L(1), L(1))])
    cmuls(a, [(L(3), L(2), L(1)), (84, L(2), L(2))])
    r = rows(a, [None, L(1), L(2), L(3)], 0, False, 72)
    cmuls(a, [(L(i), L(i), 84) for i in range(1, 4)])
    r = rows(a, [84, L(1), L(2), L(3)], r, False, 16)
    cmuls(a, [(L(0), 84, 84)] + [(L(i), L(i), 84) for i in range(1, 4)])
    for g in range(2, 8):
        r = rows(a, [L(i) for i in range(4)], r, False, 72 if g & 1 == 0 else 16)
        if g < 7: cmuls(a, [(L(i), L(i), 84) for i in range(4)])
    assert r == 32
    lstamp(a, 24)
    a("s_waitcnt lgkmcnt(0)\ns_barrier")
    a("""
    ds_read_b64_tr_b16 v[224:225], v4
    ds_read_b64_tr_b16 v[226:227], v5 offset:512
    ds_read_b64_tr_b16 v[228:229], v4 offset:4096
    ds_read_b64_tr_b16 v[230:231], v5 offset:4608
    """)
    lrd = [f"ds_read_b128 {vr(LF+4*ks,4)}, v7 offset:{TBS*(ks>>3) + 32*(ks&7)}" for ks in range(16)]
    for x in lrd[:8]: a(x)
    a("v_mul_f32 v40, v12, v14\nv_mul_f32 v41, v13, v14\nv_add_f32 v40, v40, v40\nv_add_f32 v41, v41, v41\ns_mov_b32 m0, s65")
    a(f"""
    s_waitcnt lgkmcnt(7)
    buffer_store_dwordx4 v[224:227], v6, {R_WS}, s60 offen {SC}
    buffer_store_dwordx4 v[228:231], v6, {R_WS}, s60 offen offset:128 {SC}
    """)
    vm.add("xt", 2)
    for x in lrd[8:]: a(x)
    cexp(a, [(20, None), (24, "s63")])
    hl = []; row = [0]
    def hm(ops): hl.extend(smul_list(ops))
    def hp(regs):
        for g in regs: hl.append(f"v_cvt_pk_bf16_f32 v{HP+row[0]}, v{g}, -v{g+1}"); row[0] += 1
    hm([(H(1), H(0), 20), (22, 20, 20)])
    hm([(H(2), H(0), 22), (H(3), H(1), 22), (26, 22, 22), (30, 24, 24)])
    hm([(H(4 + i), H(i), 26) for i in range(4)])
    hm([(H(8), H(4), 26)]); hp([H(p) for p in range(8)])
    for grp in ((0, 2, 4, 6, 8), (0, 4, 8), (0, 4, 8)):
        hm([(H(p), H(p), 24) for p in grp]); hp([H(p) for p in grp])
    hm([(42, H(0), 24), (46, H(8), 24)])
    hm([(50, 42, 24), (52, 46, 24), (H(0), 42, 30), (H(8), 46, 30)])
    hm([(44, 50, 30), (48, 52, 30)]); hp([42, 46, 50, 52, H(0), H(8), 44, 48])
    assert row[0] == 27
    cut = int(OPT.get("hcut", 64))
    for x in hl[:cut]: a(x)
    lstamp(a, 19)
    a("s_waitcnt lgkmcnt(0)\ns_barrier")
    done = 0
    for k, x in enumerate(hl[cut:]):
        a(x)
        n = sum("cvt" in y for y in hl[:cut + k + 1])
        if n - done >= 8 or (k == len(hl) - cut - 1):
            for j in range(done, n): a(f"ds_write_addtid_b32 v{HP+j} offset:{272*j}")
            done = n
    vm.wait(a, "xt"); signal(a, "s61", SC, 2); vm.add("f1")
    lstamp(a, 20)
    a("s_waitcnt lgkmcnt(0)\ns_setprio 0\ns_barrier")
    hrd = [f"ds_read_b128 {vr(HF+4*ks,4)}, v9 offset:{HTS*(ks>>3) + 32*(ks&7)}" for ks in range(16)]
    for x in hrd[:12]: a(x)
    a(f"""
    v_lshlrev_b32 v1, 4, v0
    v_mov_b32 v60, 0
    v_mov_b32 v61, 0
    v_mov_b32 v62, 0
    v_mov_b32 v63, 0
    s_mul_i32 s67, s52, {KXD}
    s_add_u32 s67, s67, {KX0}
    v_mov_b32 v3, s67
    s_lshl_b32 s66, s53, 11
    s_add_u32 s66, s66, s67
    v_lshrrev_b32 v2, 5, v0
    v_and_b32 v4, 31, v0
    v_lshlrev_b32 v4, 4, v4
    v_lshl_add_u32 v2, v2, 9, v4
    v_add_u32 v2, s66, v2
    s_waitcnt lgkmcnt(4)
    """)
    for x in hrd[12:]: a(x)
    km = lambda ks: a(f"v_mfma_f32_32x32x16_bf16 {vr(AK,16)}, {vr(HF+4*ks,4)}, {vr(LF+4*ks,4)}, {'0' if ks == 0 else vr(AK,16)}")
    for ks in range(8): km(ks)
    lstamp(a, 21)
    a("s_waitcnt lgkmcnt(0)\ns_barrier")
    bulk = att_bulk()
    for ks in range(8, 16):
        km(ks)
        for x in bulk[7 * (ks - 8):7 * (ks - 7)]: a(x)
    a("ds_write_b128 v3, v[60:63]")
    for rg in range(2): a(f"v_cndmask_b32 v{AK+8*rg+4}, v{AK+8*rg+4}, v{AK+8*rg+5}, s[70:71]")
    for i in range(8): a(f"v_cvt_pk_bf16_f32 v{40+i}, v{AK+2*i}, v{AK+2*i+1}")
    for rg in range(2): a(f"ds_write_b128 v2, {vr(40+4*rg,4)} offset:{16 + 1024*rg}")
    lstamp(a, 22)
    a("s_waitcnt lgkmcnt(0)\ns_barrier")
    a(f"v_and_b32 v55, 31, v0\nv_lshlrev_b32 v55, 3, v55\nbuffer_load_dword v{VT}, v55, {R_WS}, s72 offen {SC}")
    tp = OPT.get("tp", "b6")
    if tp == "b4": touch(a)
    a(f"""
    v_add_u32 v2, s66, v1
    ds_read_b64 v[40:41], v2 offset:8
    ds_read_b128 v[42:45], v2 offset:16
    ds_read_b64 v[46:47], v2 offset:{1024+8}
    ds_read_b128 v[48:51], v2 offset:{1024+16}
    s_cmp_eq_u32 s52, 0
    s_cselect_b32 s67, 0, {slot_addr(4)}
    v_bfe_u32 v2, v0, 2, 2
    v_mul_u32_u24 v2, {RE}, v2
    v_and_b32 v3, 3, v0
    v_min_u32 v3, 2, v3
    v_lshl_add_u32 v2, v3, 4, v2
    v_add_u32 v52, s67, v2
    s_lshl_b32 s69, s53, 11
    s_sub_u32 s66, s67, s69
    s_add_u32 s66, s66, {255*16 - 1024}
    v_sub_u32 v53, s66, v1
    v_min_u32 v2, 32, v0
    s_mul_i32 s66, s53, {US}
    s_add_u32 s66, s66, s67
    s_add_u32 s66, s66, {RSZ}
    v_lshl_add_u32 v54, v2, 4, s66
    s_mov_b32 s69, 0xffff
    s_waitcnt lgkmcnt(0)
    """)
    RG = 96
    for q in range(2):
        w = lambda i: 40 + 6 * q + 2 + i
        for e in range(4):
            o = RG + 16 * q + 4 * e
            for i in range(4):
                hi = 3 - i - (0 if e >= 2 else 1)
                if e & 1: a(f"v_alignbit_b32 v{o+i}, v{w(hi)}, v{w(hi)}, 16")
                else: a(f"v_bfi_b32 v{o+i}, s69, v{w(hi)}, v{w(hi-1)}")
    a.on = False
    a(f"""
    v_lshlrev_b32 v1, 4, v0
    v_mov_b32 v60, 0
    s_lshl_b32 s66, s51, 2
    s_add_u32 s66, s66, 32000
    v_mov_b32 v59, s66
    ds_write_b32 v59, v60
    s_lshl_b32 s71, {SX}, 18
    s_lshl_b32 s69, {SJ}, 13
    s_add_u32 s71, s71, s69
    s_lshl_b32 s69, s52, 6
    s_add_u32 s71, s71, s69
    s_lshl_b32 s69, s53, 12
    s_add_u32 s71, s71, s69
    s_add_u32 s71, s71, {XT}
    v_lshrrev_b32 v2, 2, v0
    v_and_b32 v3, 3, v0
    v_lshlrev_b32 v3, 4, v3
    v_lshl_add_u32 v56, v2, 7, v3
    s_lshl_b32 s70, s53, 11
    s_add_u32 s69, s67, s70
    s_add_u32 s69, s69, {RSZ + 512}
    v_add_u32 v57, s69, v1
    s_lshl_b32 s73, s53, 8
    s_sub_u32 s73, s67, s73
    s_add_u32 s66, s73, {4128 - 64*7 - 512*7 + 256}
    v_and_b32 v4, 3, v0
    v_mul_u32_u24 v4, {RE}, v4
    v_lshrrev_b32 v2, 4, v0
    v_bfe_u32 v3, v0, 2, 2
    v_add_u32 v3, v3, v2
    v_lshlrev_b32 v3, 4, v3
    v_sub_u32 v4, v4, v3
    v_add_u32 v{CA}, s66, v4
    s_add_u32 s66, s73, {RSZ + US + 512 + 48 - 64*7 + 256}
    v_bfe_u32 v4, v0, 1, 3
    v_lshlrev_b32 v4, 6, v4
    v_lshlrev_b32 v3, 4, v2
    v_sub_u32 v5, v4, v3
    v_add_u32 v4, v4, v3
    v_and_b32 v3, 1, v0
    v_lshl_add_u32 v4, v3, 3, v4
    v_mul_u32_u24 v3, {US}, v3
    v_sub_u32 v5, v5, v3
    v_add_u32 v{CB}, s66, v5
    v_add_u32 v{CU}, s69, v4
    v_add_u32 v{DA}, s70, v4
    v_add_u32 v{DA+1}, 512, v{DA}
    v_add_u32 v{DA+2}, 1024, v{DA}
    v_add_u32 v{DA+3}, 1536, v{DA}
    s_lshl_b32 s66, s51, 12
    s_add_u32 s66, s66, {OS}
    v_add_u32 v{CE}, s66, v1
    s_lshl_b32 s66, s54, 12
    s_add_u32 s66, s66, {BT}
    """)
    for x in att_addr(): a(x)
    lstamp(a, 23)
    a("s_waitcnt lgkmcnt(0)\ns_barrier")
    def uload():
        for q in range(2): a(f"buffer_load_dwordx4 {vr(32+4*q,4)}, v56, {R_WS}, s71 offen offset:{2048*q} {SC}")
    def ustore():
        for q in range(2): a(f"ds_write_b128 v57, {vr(32+4*q,4)} offset:{1024*q}")
        for q in range(2):
            a(f"ds_write_b64 v57, {vr(32+4*q,2)} offset:{1024*q + US + 8}")
            a(f"ds_write_b64 v57, {vr(34+4*q,2)} offset:{1024*q + US + 16}")
    nt = 0 if tp == "b4" else 2
    a(f"""
    s_waitcnt vmcnt({2 - nt})
    v_cmp_ne_u32 s[94:95], v{VT}, v{VN}
    s_cmp_lg_u64 s[94:95], 0
    s_cbranch_scc1 L_u_skip
    """)
    uload()
    a("L_u_skip:")
    if tp == "b5": touch(a)
    a.on = True
    a("ds_write_b128 v52, v[60:63] offset:4096\nds_write_b128 v54, v[60:63]")
    rw = [f"ds_write_b128 v53, {vr(RG+16*q+4*e,4)} offset:{e*RE + 1024*(1-q)}" for q in range(2) for e in range(4)]
    rcut = int(OPT.get("rcut", 5))
    for x in rw[:rcut]: a(x)
    a("s_waitcnt lgkmcnt(0)\ns_barrier")
    for x in rw[rcut:]: a(x)
    a.on = False
    if tp == "b6": touch(a)
    a("s_barrier")
    a(f"s_cmp_lg_u64 s[94:95], 0\ns_cbranch_scc0 L_u_have")
    poll(a, "s1", 55, "s72")
    uload()
    a(f"s_waitcnt vmcnt(0)\nL_u_have:\ns_waitcnt vmcnt({nt})")
    ustore()
    a(f"""
    ds_write_b32 v59, v59
    v_xor_b32 v59, 4, v59
    s_mov_b32 s92, {SPIN}
    L_pair:
    ds_read_b32 v58, v59
    s_waitcnt lgkmcnt(0)
    v_readfirstlane_b32 s93, v58
    s_sub_u32 s92, s92, 1
    s_cmp_eq_u32 s92, 0
    s_cbranch_scc1 L_pair_ok
    s_cmp_eq_u32 s93, 0
    s_cbranch_scc1 L_pair
    L_pair_ok:
    """)
    lstamp(a, 25)
    conv(a)
    lstamp(a, 3)

def att_finish2(a, tag):
    a(f"s_mov_b32 s84, 0x2b800000\ns_mov_b32 s85, 0x5d800000\nv_fma_f32 v8, v{AO}, 0, v{AO+8}")
    for r in range(1, 8): a(f"v_fma_f32 v8, v{AO+r}, 0, v8")
    a(f"""
    v_cmp_nge_f32 vcc, v8, s84
    v_cmp_nle_f32 s[86:87], v8, s85
    s_or_b64 vcc, vcc, s[86:87]
    s_cbranch_vccnz L_{tag}_slow
    L_{tag}_norm:
    v_rcp_f32 v8, v{AO+8}
    """)
    for r in range(8): a(f"v_mul_f32 v{AO+r}, v8, v{AO+r}")
    for r in range(4): a(f"v_cvt_pk_bf16_f32 v{12+r}, v{AO+2*r}, v{AO+2*r+1}")
    for r in range(4): a(f"v_min_u32 v{12+r}, -2, v{12+r}")
    a(f"buffer_store_dwordx4 v[12:15], v1, {R_WS}, s80 offen {SC}")

def out_gemm(a):
    a(f"""
    v_lshlrev_b32 v2, 9, v86
    v_lshl_add_u32 v2, v87, 4, v2
    v_add_u32 v2, {OS}, v2
    v_lshlrev_b32 v3, 10, v87
    v_lshl_add_u32 v3, v86, 3, v3
    s_lshl_b32 s84, s88, 15
    s_lshl_b32 s86, s89, 5
    s_add_u32 s84, s84, s86
    v_add_u32 v3, s84, v3
    v_add_u32 v4, 0x4000, v3
    """)
    def go():
        NB = 12; FB = 16
        rd = lambda i: a(f"ds_read_b128 {vr(FB+4*(i%NB),4)}, v2 offset:{2048*(i>>1) + 256*(i&1)}")
        for i in range(NB): rd(i)
        for g in range(8):
            a(f"s_waitcnt lgkmcnt({min(8, 28 - 4 * g)})")
            for i in range(4 * g, 4 * g + 4):
                acc = 8 + 4 * (i & 1)
                a(f"v_mfma_f32_16x16x32_bf16 {vr(acc,4)}, {vr(PW+4*(i>>1),4)}, {vr(FB+4*(i%NB),4)}, {'0' if i < 2 else vr(acc,4)}")
            for i in range(4 * g + NB, min(4 * g + NB + 4, 32)): rd(i)
        for nt in range(2):
            for i in range(4): a(f"v_fma_f32 v{8+4*nt+i}, v{8+4*nt+i}, v{PG+nt}, v{PB+4*nt+i}")
            a(f"v_cvt_pk_bf16_f32 v{16+2*nt}, v{8+4*nt}, v{9+4*nt}\nv_cvt_pk_bf16_f32 v{17+2*nt}, v{10+4*nt}, v{11+4*nt}")
            a(f"global_store_dwordx2 v{3+nt}, {vr(16+2*nt,2)}, {S_OUT} {OPT.get('outmod', '')}")
    return go

def build_fused():
    a = Asm()
    k = NAME + "_kernel"
    launches = f"; @launch grid=(256,1,1) block=(512,1,1) lds={LDS_BYTES}\n"
    if G.STAMPS:
        launches = f"; @launch kernel={k} grid=(256,1,1) block=(512,1,1) lds={LDS_BYTES}\n; @launch kernel=stamp_kernel grid=(1,1,1) block=(256,1,1) lds=1024\n"
    a.raw(header() + launches + '.amdgcn_target "amdgcn-amd-amdhsa--gfx950"\n.text')
    kernel_head(a, k)
    if "amp" in OPT: lstamp(a, "E")
    prologue(a, "L_end")
    lstamp(a, 0)
    a(f"s_cmp_lt_u32 {SW}, 4\ns_cbranch_scc1 L_gemm")
    a_params(a)
    a("s_barrier\ns_branch L_aux")
    a.reset(); a("L_gemm:")
    g_phase1(a)
    lg = list(G.LIGHT); G.LIGHT[:] = [s for s in lg if s == 0]
    a("s_branch L_att")
    a.reset(); a("L_aux:")
    a_phase1(a)
    la = list(G.LIGHT); G.LIGHT[:] = sorted(set(la) | set(lg))
    a.reset(); a("L_att:")
    for r in range(4): a(f"v_mov_b32 v{VS+r}, -1")
    a("s_barrier")
    a(f"ds_write_b32 v92, v{VZ}")
    lstamp(a, 4)
    KM = "" if OPT.get("kvplain") else SC
    a(f"buffer_load_dwordx4 {vr(AQ,4)}, v1, {R_WS}, s77 offen {KM}")
    kv_dma(a, range(16) if OPT.get("kvall") else [0], KM)
    lstamp(a, 26)
    conv_finish(a)
    a("s_waitcnt vmcnt(0) lgkmcnt(0)\ns_barrier"); lstamp(a, 27)
    sched = {0: [1, 2], 1: [3, 4, 5], 2: [6, 7], 3: [8, 9, 10], 4: [11, 12, 13], 5: [14, 15]}
    if OPT.get("kvall"): sched = {2: []}
    slow = OPT.get("sched") == "slow"
    if slow: sched = {0: [1, 2], 1: [3], **{t: [t + 2] for t in range(2, 14)}}
    def hdma(t):
        def f():
            if t == 2 and not OPT.get("nob2"): a(f"s_waitcnt vmcnt({1 if slow else 3})\ns_barrier")
            if t == 10: a("s_waitcnt vmcnt(1)\ns_barrier"); lstamp(a, 28)
            kv_dma(a, sched[t], KM)
        return f
    def h10():
        if not slow: a("s_waitcnt vmcnt(0)\ns_barrier")
        deferred_stores(a)
        a(f"""
        s_lshl_b32 s80, s76, 5
        s_add_u32 s80, s80, s74
        s_lshl_b32 s80, s80, 10
        s_add_u32 s80, s80, {OF}
        buffer_store_dwordx4 {vr(VS,4)}, v1, {R_WS}, s80 offen {SC}
        """)
        if not slow: lstamp(a, 28)
    def h_cnt():
        a(f"""
        s_waitcnt vmcnt(0)
        s_mov_b64 exec, 1
        ds_add_rtn_u32 v93, v92, v93
        s_mov_b64 exec, -1
        """)
    def h_s3sig():
        a(f"""
        v_readfirstlane_b32 s84, v93
        s_lshl_b32 s85, {SX}, 7
        s_lshl_b32 s86, {SJ}, 2
        s_add_u32 s85, s85, s86
        s_add_u32 s85, s85, {F_S3}
        s_cmp_lg_u32 s84, 7
        s_cbranch_scc1 L_s3_skip
        """)
        signal(a, "s85")
        a("L_s3_skip:")
    def h_s3ld():
        a(f"s_mov_b32 s84, {F_S3}\nbuffer_load_dwordx4 {vr(VT,4)}, v1, {R_WS}, s84 offen {SC}")
    def wof_dma(r):
        for i in range(4): a(f"buffer_load_dwordx4 v1, {R_WS}, s90 offen offset:{1024*i} {SC} lds")
        if r < 3: a("s_add_u32 s90, s90, 4096")
    def h_s3chk():
        a("s_waitcnt vmcnt(0)")
        poll(a, "s3", 1, "s84", True, 4)
        a(f"""
        s_lshl_b32 s88, s75, 3
        s_lshr_b32 s89, s74, 2
        s_add_u32 s88, s88, s89
        s_and_b32 s89, s74, 3
        s_lshl_b32 s89, s89, 3
        s_add_u32 s89, s89, {SW}
        s_lshl_b32 s90, s89, 14
        s_add_u32 s90, s90, {WOF}
        s_lshl_b32 s86, {SW}, 12
        s_add_u32 s86, s86, {OS}
        s_mov_b32 m0, s86
        v_add_u32 v92, s86, v1
        """)
        if OPT.get("nos3"): return
        wof_dma(0)
        a(f"""
        s_or_b32 s84, s2, {SW}
        s_cmp_lg_u32 s84, 0
        s_cbranch_scc1 L_n_skip
        s_mov_b32 s84, {F_N}
        """)
        signal(a, "s84")
        a("L_n_skip:")
    def h_wrd(r):
        def f():
            if OPT.get("nos3"): return
            a("s_waitcnt vmcnt(0)")
            for i in range(4): a(f"ds_read_b128 {vr(PW+16*r+4*i,4)}, v92 offset:{1024*i}")
        return f
    def h_wld(r):
        def f():
            if OPT.get("nos3"): return
            wof_dma(r)
        return f
    def h_side():
        if OPT.get("nos3"):
            a("v_lshrrev_b32 v86, 4, v0\nv_and_b32 v87, 15, v0"); return
        a(f"""
        v_lshrrev_b32 v86, 4, v0
        v_and_b32 v87, 15, v0
        v_lshlrev_b32 v88, 14, v86
        v_lshl_add_u32 v88, v87, 1, v88
        s_lshl_b32 s90, s89, 16
        s_lshl_b32 s91, s88, 6
        s_add_u32 s90, s90, s91
        s_add_u32 s90, s90, {BT}
        """)
        for i in range(4):
            if i: a("s_add_u32 s90, s90, 4096")
            for nt in range(2): a(f"buffer_load_short_d16_hi v{PB+4*nt+i}, v88, {R_WS}, s90 offen offset:{32*nt} {SC}")
        a(f"""
        v_lshlrev_b32 v88, 2, v87
        s_lshl_b32 s90, s88, 7
        s_add_u32 s90, s90, {GW}
        buffer_load_dword v{PG}, v88, {R_WS}, s90 offen {SC}
        buffer_load_dword v{PG+1}, v88, {R_WS}, s90 offen offset:64 {SC}
        """)
    hooks = {t: hdma(t) for t in sched}
    d0 = 14 if slow else 10
    hooks.update({d0: h10, d0 + 5: h_cnt, d0 + 6: h_s3sig, 34: h_s3ld, 38: h_s3chk, 58: h_side})
    for r in range(4):
        hooks[42 + 5 * r] = h_wrd(r)
        if r < 3: hooks[43 + 5 * r] = h_wld(r + 1)
    prios = {0: 1, 1: 0, 2: 3, 5: 2, 8: 1, 9: 0, 10: 3, 18: 2, 46: 1, 60: 0}
    if slow: prios = {0: 1, 1: 0, 2: 3, 5: 2, 8: 1, 9: 0, 10: 3, 22: 2, 48: 1, 60: 0}
    if "prios" in OPT: prios = {int(x.split(":")[0]): int(x.split(":")[1]) for x in OPT["prios"].split(",")}
    att_main(a, hooks, prios)
    lstamp(a, 29)
    att_finish2(a, "at")
    lstamp(a, 5)
    a(f"""
    s_lshl_b32 s93, s88, 15
    s_lshl_b32 s86, {SW}, 12
    s_add_u32 s93, s93, s86
    s_add_u32 s93, s93, {OF}
    """)
    odma = lambda: [a(f"buffer_load_dwordx4 v1, {R_WS}, s93 offen offset:{1024*i} {SC} lds") for i in range(4)]
    odma()
    a("s_waitcnt vmcnt(5)")
    out_side_math(a)
    gemm = out_gemm(a)
    a(f"s_mov_b32 s92, {SPIN}\ns_branch L_o_chk\nL_o_again:")
    odma()
    a("L_o_chk:\ns_waitcnt vmcnt(0)")
    for i in range(4): a(f"ds_read_b128 {vr(16+4*i,4)}, v92 offset:{1024*i}")
    a("s_sub_u32 s92, s92, 1\ns_waitcnt lgkmcnt(2)")
    a("v_max3_u32 v5, v16, v17, v18\nv_max3_u32 v6, v19, v20, v21\nv_max3_u32 v5, v22, v23, v5\ns_waitcnt lgkmcnt(0)")
    a("v_max3_u32 v6, v24, v25, v6\nv_max3_u32 v5, v26, v27, v5\nv_max3_u32 v6, v28, v29, v6\nv_max3_u32 v5, v30, v31, v5\nv_max_u32 v5, v5, v6")
    a("""
    v_cmp_eq_u32 vcc, -1, v5
    s_cmp_eq_u32 s92, 0
    s_cbranch_scc1 L_o_ok
    s_cbranch_vccnz L_o_again
    L_o_ok:
    """)
    lstamp(a, 30)
    a("s_barrier")
    gemm()
    lstamp(a, 7)
    if G.STAMPS:
        lflush(a, range(8))
        for s in la:
            if s: G.STAMP_WAVES[s] = list(range(4, 8))
        for s in lg:
            if s: G.STAMP_WAVES[s] = list(range(4))
    if "amp" in OPT:
        w = OPT["amp"].split(",")[2]
        a(f"""
        s_cmp_lg_u32 s2, {OPT.get("ampwg", 0)}
        s_cbranch_scc1 L_end
        s_cmp_lg_u32 {SW}, {w}
        s_cbranch_scc1 L_end
        s_sub_u32 s98, s98, s96
        s_lshl_b32 s98, s98, 2
        s_min_u32 s98, s98, 40000
        s_memrealtime s[96:97]
        s_waitcnt lgkmcnt(0)
        L_amp:
        s_memrealtime s[100:101]
        s_waitcnt lgkmcnt(0)
        s_sub_u32 s100, s100, s96
        s_cmp_lt_u32 s100, s98
        s_cbranch_scc1 L_amp
        """)
    a("L_end:\ns_endpgm")
    att_slow(a, "at")
    a("L_codeend:\ns_endpgm")
    if G.STAMPS: stamp_reduce_kernel(a)
    a.raw('.section .rodata,"a"')
    if G.STAMPS: a.raw(descriptor("stamp_kernel", 32))
    a.raw(descriptor(k, 256))
    return a.text()

if __name__ == "__main__":
    out = sys.argv[1]
    for o in sys.argv[2:]:
        kk, _, v = o.partition("="); OPT[kk] = v or True
    G.STAMPS = bool(OPT.get("stamp"))
    OPT.setdefault("ones", "few"); OPT.setdefault("nowpf", True); OPT.setdefault("qmod", "plain"); OPT.setdefault("touch", "a"); OPT.setdefault("sched", "slow")
    txt = build_fused()
    open(out, "w").write(txt)
    print("wrote", out, len(txt), "bytes")
```

```python
import sys
import gen as G
from gen import (Asm, OPT, NAME, vr, VM, prologue, aux_ids, kernel_head, descriptor, header, lstamp, lflush, stamp_reduce_kernel,
                 QF, KV, XT, BT, OF, WOF, GW, LDS_BYTES, LOG2E, INV2PI, QSCALE,
                 S_X, S_WO, S_LOGA, S_AIM, S_CR, S_CI, S_LDT, S_DSK, S_GWT, S_OUT, R_X, R_W, R_WS, SX, SJ, SW,
                 AQ, AKS, AV1, AV2, AS_, AO, PW, PB, PG, att_slow, out_side_loads, out_side_math)
from gen2 import cmuls, RowWriter, cexp

SC = "sc1"
SPIN = 400000
FL = 0xC90000
F_N, F_S1, F_S2, F_S3, F_S4 = FL, FL + 0x1000, FL + 0x3000, FL + 0x4000, FL + 0x8000
SLOT = 32768
def slot_addr(t): return SLOT * (1 + ((t + 1) & 3))
TBS, HTS = 8704, 7344
EX0, KX0, KXD = 0, 16384, 4608
RE, RSZ = 4160, 16640
US = 4640
OS = 131072
VN, VX, VZ, VT, VS = 240, 241, 242, 244, 236
DB, DA = 224, 232
PRIOS = {0: 3, 38: 2, 54: 1, 61: 0}

def poll(a, tag, vaddr, soff, first_issued=False, n=1, ncmp=None, vt=VT, sleep=4):
    ld = f"buffer_load_dword{'' if n == 1 else 'x%d' % n} {vr(vt, n)}, v{vaddr}, {R_WS}, {soff} offen {SC}"
    ncmp = ncmp or n
    a(f"s_mov_b32 s92, {SPIN}")
    if first_issued: a(f"s_branch L_{tag}_chk")
    a(f"L_{tag}_poll:\n{ld}\ns_waitcnt vmcnt(0)")
    a(f"L_{tag}_chk:")
    a(f"v_cmp_ne_u32 vcc, v{vt}, v{VN}")
    for i in range(1, ncmp): a(f"v_cmp_ne_u32 s[90:91], v{vt+i}, v{VN}\ns_or_b64 vcc, vcc, s[90:91]")
    if ncmp == 1: a("s_nop 1")
    a(f"""
    s_cbranch_vccz L_{tag}_ok
    s_sleep {sleep}
    s_sub_u32 s92, s92, 1
    s_cmp_lg_u32 s92, 0
    s_cbranch_scc1 L_{tag}_poll
    L_{tag}_ok:
    """)

def signal(a, soff, mod=SC, n=1):
    a(f"""
    s_mov_b64 exec, 1
    buffer_store_dword{'' if n == 1 else 'x2'} {vr(VN, n)}, v{VZ}, {R_WS}, {soff} offen {mod}
    s_mov_b64 exec, -1
    """)

def epoch_load(a):
    a(f"v_mov_b32 v{VZ}, 0\ns_mov_b32 s56, {F_N}\nbuffer_load_dword v{VN}, v{VZ}, {R_WS}, s56 offen {SC}")

DX, DW = 94, 95
def dma_setup(a):
    a(f"""
    v_lshrrev_b32 v1, 3, v0
    v_lshrrev_b32 v2, 4, v0
    s_and_b32 s58, {SW}, 1
    s_lshl_b32 s56, s58, 2
    v_add_u32 v3, s56, v2
    v_and_b32 v{DW}, 7, v0
    v_xor_b32 v3, v3, v{DW}
    v_lshlrev_b32 v3, 4, v3
    v_lshl_add_u32 v{DX}, v1, 10, v3
    v_and_b32 v2, 1, v2
    v_lshlrev_b32 v2, 2, v2
    v_xor_b32 v2, v2, v{DW}
    v_lshlrev_b32 v2, 4, v2
    v_mov_b32 v3, 0xc00
    v_mad_u32_u24 v{DW}, v1, v3, v2
    s_lshl_b32 s44, {SJ}, 16
    s_lshl_b32 s45, {SW}, 13
    s_add_u32 s44, s44, s45
    s_mul_i32 s45, {SW}, {16*3072}
    s_lshl_b32 s56, {SX}, 7
    s_add_u32 s45, s45, s56
    s_lshl_b32 s46, {SW}, 10
    s_lshl_b32 s47, {SW}, 11
    """)

def dma_pieces(t, part="xw"):
    base = slot_addr(t); out = []
    head = f"s_add_u32 s56, {SX}, {t}\ns_and_b32 s56, s56, 7\n"
    if "x" in part:
        for i in range(2):
            p = (head + "s_lshl_b32 s57, s56, 7\ns_add_u32 s57, s57, s44\n") if i == 0 else "s_add_u32 s57, s57, 0x8000\n"
            out.append(p + f"s_add_u32 m0, s46, {base + i*4096}\nbuffer_load_dwordx4 v{DX}, {R_X}, s57 offen lds")
        head = ""
    if "w" in part:
        for i in range(2):
            for ty in range(3):
                p = ""
                if ty == 0: p = (head + f"s_mul_i32 s56, s56, {64*3072}\ns_add_u32 s56, s56, s45\n") if i == 0 else f"s_add_u32 s56, s56, {8*3072}\n"
                out.append(p + f"s_add_u32 m0, s47, {base + 8192 + ty*8192 + i*1024 - ty*1024}\nbuffer_load_dwordx4 v{DW}, {R_W}, s56 offen offset:{ty*1024} lds")
    return out

def dma(a, vm, t, part="xw", tag=None):
    for p in dma_pieces(t, part): a(p); vm.add(tag or f"s{t}")

def kv_dma(a, rounds, mod):
    for r in rounds:
        if OPT.get("norot"):
            a(f"s_add_u32 m0, s79, {8192*r}\ns_add_u32 s80, s78, {8192*r}")
        else:
            a(f"s_add_u32 s80, s81, {8192*r}\ns_and_b32 s80, s80, 0x1ffff\ns_add_u32 m0, s79, {8192*r}\ns_add_u32 s80, s80, s78")
        a(f"buffer_load_dwordx4 v1, {R_WS}, s80 offen {mod} lds")

def att_bulk():
    l = f"""
    s_lshr_b32 s74, {SJ}, 3
    s_lshl_b32 s75, {SX}, 2
    s_add_u32 s74, s74, s75
    s_and_b32 s75, {SJ}, 7
    s_lshl_b32 s76, s75, 3
    s_add_u32 s76, s76, {SW}
    s_lshl_b32 s77, s74, 6
    s_add_u32 s77, s77, s76
    s_lshl_b32 s77, s77, 10
    s_add_u32 s77, s77, {QF}
    s_lshl_b32 s78, s74, 17
    s_lshl_b32 s79, {SW}, 10
    s_add_u32 s78, s78, s79
    s_add_u32 s78, s78, {KV}
    s_lshl_b32 s81, s75, 14
    s_mov_b32 s82, 0xffff
    s_mov_b32 s83, 0xffff
    v_and_b32 v16, 27, v0
    v_cmp_eq_u32 vcc, 16, v16
    v_mov_b32 v17, 0x3f803f80
    v_mov_b32 v92, {LDS_BYTES - 4}
    v_cndmask_b32 v16, 0, v17, vcc
    v_mov_b32 v93, 1
    """.strip().split("\n")
    l += [f"v_mov_b32 v{r}, v16" for r in range(17, 32)] + [f"v_mov_b32 v{AO+r}, 0" for r in range(16)]
    return [x.strip() for x in l]

def att_addr():
    return [x.strip() for x in """
    v_lshlrev_b32 v1, 4, v0
    v_lshrrev_b32 v2, 5, v0
    v_lshlrev_b32 v2, 8, v2
    v_and_b32 v3, 15, v0
    v_lshl_add_u32 v2, v3, 4, v2
    v_add_u32 v2, 1024, v2
    v_add_u32 v80, 0x10000, v1
    v_add_u32 v81, 0x10000, v2
    v_mov_b32 v3, 0xdddddddd
    """.strip().split("\n")]

def g_phase1(a):
    vm = VM()
    ACC = (96, 112, 128); SETS = (144, 160, 176, 192)
    XA, WA = 4, 12
    GX, GG, GO = 32, 40, 44
    dma_setup(a)
    a("s_barrier")
    for t in range(2): dma(a, vm, t)
    lstamp(a, 18)
    a(f"""
    s_getreg_b32 s62, hwreg(HW_REG_XCC_ID)
    v_mov_b32 v{VX}, s62
    s_lshr_b32 s59, {SW}, 1
    v_and_b32 v1, 31, v0
    s_lshl_b32 s60, s58, 12
    s_add_u32 s60, s60, {SLOT}
    v_lshlrev_b32 v2, 7, v1
    v_add_u32 v2, s60, v2
    v_bfe_u32 v1, v0, 1, 3
    v_lshrrev_b32 v3, 5, v0
    v_xor_b32 v1, v1, v3
    """)
    for ks in range(4):
        a(f"v_xor_b32 v3, {2*ks}, v1\nv_lshl_add_u32 v{XA+ks}, v3, 4, v2\nv_add_u32 v{XA+4+ks}, 0x10000, v{XA+ks}")
    a(f"""
    v_lshrrev_b32 v1, 5, v0
    v_lshlrev_b32 v1, 10, v1
    v_bfe_u32 v2, v0, 2, 2
    v_lshl_add_u32 v1, v2, 7, v1
    v_bfe_u32 v2, v0, 3, 1
    v_xor_b32 v2, s59, v2
    v_lshl_add_u32 v1, v2, 6, v1
    v_bfe_u32 v2, v0, 4, 1
    v_lshl_add_u32 v1, v2, 5, v1
    v_and_b32 v2, 3, v0
    v_lshl_add_u32 v1, v2, 3, v1
    v_add_u32 v{WA}, {SLOT + 8192}, v1
    v_add_u32 v{WA+1}, {SLOT + 8192 + 65536}, v1
    """)
    epoch_load(a); vm.add("n")
    dma(a, vm, 2)
    lstamp(a, 1)
    fill = [x.strip() for x in f"""
    ; side-load addresses: v14 gate rows, v15 gate weights, v52/v57 wo gathers; s67 gate output, s69 wo fragment output
    s_lshl_b32 s67, {SJ}, 6
    s_lshl_b32 s62, {SX}, 3
    s_add_u32 s67, s67, s62
    s_lshl_b32 s62, {SW}, 1
    s_add_u32 s67, s67, s62
    v_lshlrev_b32 v15, 4, v0
    s_lshl_b32 s62, s67, 10
    v_add_u32 v14, s62, v15
    s_lshl_b32 s62, {SX}, 5
    s_add_u32 s62, s62, {SJ}
    s_lshr_b32 s69, s62, 3
    s_and_b32 s63, s62, 7
    s_lshl_b32 s63, s63, 1
    s_add_u32 s63, s63, s58
    s_lshl_b32 s64, s63, 15
    s_lshl_b32 s62, s69, 5
    s_add_u32 s64, s64, s62
    v_lshrrev_b32 v3, 5, v0
    v_lshlrev_b32 v3, 14, v3
    v_bfe_u32 v2, v0, 4, 1
    v_lshl_add_u32 v3, v2, 12, v3
    v_and_b32 v2, 15, v0
    v_lshl_add_u32 v3, v2, 1, v3
    v_add_u32 v52, s64, v3
    v_add_u32 v57, 0x2000, v52
    s_lshl_b32 s69, s69, 4
    s_add_u32 s69, s69, s63
    s_lshl_b32 s69, s69, 10
    s_add_u32 s69, s69, {WOF}
    s_lshl_b32 s67, s67, 2
    s_add_u32 s67, s67, {GW}
    ; hand-off words: s72 = die-id line, s70 = projection-done word, s71 = line polled before attention
    s_lshl_b32 s72, {SX}, 2
    s_add_u32 s72, s72, {SW}
    s_lshl_b32 s72, s72, 8
    s_add_u32 s72, s72, {F_S1}
    v_and_b32 v53, 31, v0
    v_lshlrev_b32 v53, 3, v53
    s_lshl_b32 s70, {SX}, 1
    s_lshr_b32 s71, {SJ}, 4
    s_add_u32 s71, s71, s70
    s_lshl_b32 s71, s71, 8
    s_add_u32 s71, s71, {F_S2}
    s_add_u32 s70, s70, s59
    s_lshl_b32 s70, s70, 8
    s_lshl_b32 s62, {SJ}, 3
    s_add_u32 s70, s70, s62
    s_lshl_b32 s62, s58, 2
    s_add_u32 s70, s70, s62
    s_add_u32 s70, s70, {F_S2}
    v_lshlrev_b32 v54, 2, v0
    ; epilogue addresses
    s_lshl_b32 s60, {SX}, 2
    s_lshl_b32 s61, s59, 1
    s_add_u32 s60, s60, s61
    s_lshl_b32 s60, s60, 6
    s_lshl_b32 s61, {SJ}, 1
    s_add_u32 s61, s61, s58
    s_add_u32 s60, s60, s61
    s_lshl_b32 s61, s60, 10
    s_add_u32 s61, s61, {QF}
    s_add_u32 s62, s61, 0x10000
    s_lshl_b32 s63, s60, 11
    s_add_u32 s63, s63, {KV}
    s_add_u32 s64, s63, 0x20000
    s_mov_b32 s65, {QSCALE}
    v_and_b32 v55, 0x33, v0
    v_bfe_u32 v3, v0, 2, 1
    v_lshl_or_b32 v55, v3, 3, v55
    v_bfe_u32 v3, v0, 3, 1
    v_lshl_or_b32 v55, v3, 2, v55
    v_lshlrev_b32 v55, 4, v55
    v_and_b32 v56, 15, v0
    v_lshlrev_b32 v56, 4, v56
    v_lshrrev_b32 v3, 5, v0
    v_lshl_add_u32 v56, v3, 8, v56
    v_bfe_u32 v3, v0, 4, 1
    v_lshl_add_u32 v56, v3, 17, v56
    """.strip().split("\n") if not x.strip().startswith(";")]
    fill += [f"v_mov_b32 v{r}, 0" for r in range(DA, DA + 4)] + att_bulk() + att_addr()
    if OPT.get("fillpre"):
        while fill: a(fill.pop(0))
    def reads(t, ks):
        p = slot_addr(t) // SLOT - 1; s = SETS[ks]; hi = p >> 1; o0 = (p & 1) * SLOT
        l = [f"ds_read_b128 {vr(s,4)}, v{XA + 4*hi + ks} offset:{o0}"]
        for ty in (1, 2, 0):
            for ri in range(2):
                l.append(f"ds_read_b64_tr_b16 {vr(s+4+4*ty+2*ri,2)}, v{WA+hi} offset:{o0 + ty*8192 + ks*2048 + ri*512}")
        return l
    def mf(ks, i, first=False):
        s = SETS[ks]; c = "0" if first else vr(ACC[i], 16)
        ab = f"{vr(s,4)}, {vr(s+12,4)}" if i == 2 else f"{vr(s+4+4*i,4)}, {vr(s,4)}"
        a(f"v_mfma_f32_32x32x16_bf16 {vr(ACC[i],16)}, {ab}, {c}")
    pend = []
    def mm(ks, first, rd=(), nd=2):
        rd = list(rd)
        for i, r in zip((1, 2, 0), (rd[:4], rd[4:], [])):
            mf(ks, i, first)
            for x in r: a(x)
            for _ in range(3 if r else 5):
                if fill: a(fill.pop(0))
        for _ in range(nd):
            if pend:
                tag, p = pend.pop(0)
                if OPT.get("nodma") and tag[0] == "s" and tag != "side": p = "buffer_load_dword v59, v15, s[32:35], 0 offen"
                a(p); vm.add(tag)
    side = [f"global_load_dwordx4 {vr(GX,4)}, v14, {S_X}", f"global_load_dwordx4 {vr(GX+4,4)}, v14, {S_X} offset:1024", f"global_load_dwordx4 {vr(GG,4)}, v15, {S_GWT}"]
    side += [f"global_load_short_d16{'_hi' if j & 1 else ''} v{GO+j}, v{57 if j >> 2 else 52}, {S_WO} offset:{1024*(j&3)}" for j in range(8)]
    for t in range(8):
        if OPT.get("gpos") == "pre": lstamp(a, 8 + t)
        vm.wait(a, f"s{t}")
        if t == 3: a(f"v_add_u32 v{VN}, 1, v{VN}")
        if OPT.get("gpos") == "mid": lstamp(a, 8 + t)
        a("s_barrier")
        if not OPT.get("gpos"): lstamp(a, 8 + t)
        nd = 2
        if t == 0: pend += [("s3w", p) for p in dma_pieces(3, "w")]; nd = 3
        if t == 1: pend += [("s3", p) for p in dma_pieces(3, "x")]; nd = 3
        if 1 <= t <= 4: pend += [(f"s{t+3}", p) for p in dma_pieces(t + 3)]
        if t == int(OPT.get("tt", 5)) and OPT.get("touch") == "g":
            pend += [("touch", f"s_mov_b32 exec_hi, 0xffff\nbuffer_load_dword v59, v58, {R_WS}, 0 offen\ns_mov_b32 exec_hi, -1")]; nd = 3
        if t == 5: assert not fill, len(fill)
        if t == 5: pend += [("f", f"buffer_load_dwordx2 {vr(VT,2)}, v53, {R_WS}, s72 offen {SC}")]
        if t == 5: pend += [("side", p) for p in side]; nd = 3
        if t == 0:
            for x in reads(0, 0) + reads(0, 1): a(x)
        else:
            if OPT.get("burst"): nd = int(OPT["burst"])
            mm(2, False, reads(t, 0), nd)
            mm(3, False, reads(t, 1), nd)
        a("s_waitcnt lgkmcnt(7)")
        mm(0, t == 0, reads(t, 2), nd)
        a("s_waitcnt lgkmcnt(7)")
        mm(1, False, reads(t, 3), nd)
        assert not pend
        if t == 7 and OPT.get("gprio"): a(f"s_setprio {OPT['gprio']}")
        if t == 7:
            vm.wait(a, "f")
            poll(a, "s1g", 53, "s72", True, 2, 1)
            a(f"v_cmp_ne_u32 s[94:95], v{VT+1}, v{VX}")
        a("s_waitcnt lgkmcnt(0)")
    a("s_cmp_eq_u64 s[94:95], 0")
    if OPT.get("nofast"): a("s_branch L_st_far")
    a("s_cbranch_scc0 L_st_far")
    cv = lambda d, s: [f"v_cvt_pk_bf16_f32 v{d+r}, v{s+2*r}, v{s+2*r+1}" for r in range(8)]
    for fmod in ("", SC):
        mod = fmod or OPT.get("qmod", "").replace("plain", "")
        if fmod: a.reset(); a("L_st_far:")
        for ks, i in ((2, 1), (3, 1), (2, 2), (3, 2), (2, 0)): mf(ks, i)
        a("s_nop 6")
        for x in cv(144, ACC[1])[:4]: a(x)
        mf(3, 0)
        for x in cv(144, ACC[1])[4:]: a(x)
        a(f"buffer_store_dwordx4 v[144:147], v55, {R_WS}, s63 offen {mod}\nbuffer_store_dwordx4 v[148:151], v55, {R_WS}, s64 offen {mod}")
        for x in cv(152, ACC[2]): a(x)
        a(f"buffer_store_dwordx4 v[152:155], v56, {R_WS}, s63 offen offset:1024 {mod}\nbuffer_store_dwordx4 v[156:159], v56, {R_WS}, s63 offen offset:1536 {mod}")
        for h in range(2):
            for r in range(8): a(f"v_mul_f32 v{ACC[0]+8*h+r}, s65, v{ACC[0]+8*h+r}")
            for x in cv(160, ACC[0])[4*h:4*h+4]: a(x)
            a(f"buffer_store_dwordx4 {vr(160+4*h,4)}, v1, {R_WS}, s{61+h} offen {mod}")
        if not fmod: lstamp(a, 16)
        a("s_mov_b32 s68, 0xffff0000\ns_waitcnt vmcnt(6)")
        for k in range(4): a(f"v_lshlrev_b32 v{168+2*k}, 16, v{GG+k}\nv_and_b32 v{169+2*k}, s68, v{GG+k}")
        for k in range(4):
            for r in range(2):
                x = GX + 4 * r + k; t = 180 + 2 * r
                a(f"v_lshlrev_b32 v{t}, 16, v{x}\nv_and_b32 v{t+1}, s68, v{x}\nv_mul_f32 v{t}, v{t}, v{168+2*k}\nv_mul_f32 v{t+1}, v{t+1}, v{169+2*k}")
                a(f"v_cvt_pk_bf16_f32 v{x}, v{t}, v{t+1}")
        a("s_waitcnt vmcnt(0)")
        signal(a, "s70", fmod)
        if not fmod: a("s_branch L_st_done")
    a.reset(); a("L_st_done:")
    lstamp(a, 17)
    a(f"buffer_load_dword v{VT}, v54, {R_WS}, s71 offen {SC}")
    for k in range(4):
        for r in range(2):
            x = GX + 4 * r + k; t = 180 + 2 * r
            a(f"v_and_b32 v{t+1}, s68, v{x}\nv_lshlrev_b32 v{t}, 16, v{x}")
            if k == 0: a(f"v_add_f32 v{176+r}, v{t}, v{t+1}")
            else: a(f"v_add_f32 v{176+r}, v{176+r}, v{t}\nv_add_f32 v{176+r}, v{176+r}, v{t+1}")
    wo_pack = [f"v_or_b32 v{DB+j}, v{GO+2*j}, v{GO+2*j+1}" for j in range(4)]
    for d in ("row_shr:1 row_mask:0xf bank_mask:0xf bound_ctrl:0", "row_shr:2 row_mask:0xf bank_mask:0xf bound_ctrl:0",
              "row_shr:4 row_mask:0xf bank_mask:0xf bound_ctrl:0", "row_shr:8 row_mask:0xf bank_mask:0xf bound_ctrl:0",
              "row_bcast:15 row_mask:0xa bank_mask:0xf", "row_bcast:31 row_mask:0xc bank_mask:0xf"):
        if wo_pack: a(wo_pack.pop())
        for r in range(2): a(f"v_add_f32_dpp v{176+r}, v{176+r}, v{176+r} {d}")
    a(f"""
    v_cvt_pk_bf16_f32 v178, v176, v177
    s_mov_b32 s60, {LOG2E}
    v_lshlrev_b32 v176, 16, v178
    v_and_b32 v177, s68, v178
    v_mul_f32 v176, s60, v176
    v_mul_f32 v177, s60, v177
    v_exp_f32 v176, -v176
    v_exp_f32 v177, -v177
    v_add_f32 v176, 1.0, v176
    v_add_f32 v177, 1.0, v177
    v_rcp_f32 v176, v176
    v_rcp_f32 v177, v177
    s_nop 0
    v_cvt_pk_bf16_f32 v178, v176, v177
    v_lshlrev_b32 v{DB+4}, 16, v178
    v_and_b32 v{DB+5}, s68, v178
    """)
    a(f"s_cmp_lg_u32 {SW}, 0\ns_cbranch_scc1 L_s2_skip\ns_waitcnt vmcnt(0)")
    poll(a, "s2", 54, "s71", True, sleep=1)
    a.reset(); a("L_s2_skip:")
    lstamp(a, 2)

def deferred_stores(a):
    a(f"s_cmp_lt_u32 {SW}, 4\ns_cbranch_scc1 L_df_g")
    for ci in range(4): a(f"buffer_store_dwordx2 {vr(DB+2*ci,2)}, v{DA+ci}, {R_WS}, s66 offen {SC}")
    a(f"""
    s_branch L_df_done
    L_df_g:
    buffer_store_dwordx4 {vr(DB,4)}, v1, {R_WS}, s69 offen {SC}
    s_mov_b32 exec_lo, 0
    s_mov_b32 exec_hi, 0x80000000
    buffer_store_dwordx2 {vr(DB+4,2)}, v{VZ}, {R_WS}, s67 offen {SC}
    s_mov_b64 exec, -1
    L_df_done:
    """)

CA, CB, CU, CD, CE = 86, 87, 88, 90, 91
CACC = 32
def conv(a):
    FA = (96, 160); FB = (128, 192)
    q = []
    def issue(key, txt):
        if len(q) >= 15:
            a("s_waitcnt lgkmcnt(14)"); del q[:len(q) - 14]
        a(txt); q.append(key)
    def need(keys):
        idx = [i for i, k in enumerate(q) if k in keys]
        if idx:
            a(f"s_waitcnt lgkmcnt({len(q) - 1 - max(idx)})"); del q[:max(idx) + 1]
    def rd_list(rho):
        s = rho & 1; l = []
        for i in range(8):
            l.append(((rho, "A", i), f"ds_read_b128 {vr(FA[s]+4*i,4)}, v{CA} offset:{512*(7-i) + 64*(3-rho)}"))
            l.append(((rho, "B", i), f"ds_read_b128 {vr(FB[s]+4*i,4)}, v{CB} offset:{512*i + 64*(3-rho)}"))
        return l
    for k, t in rd_list(0): issue(k, t)
    seen = set()
    mms = sorted([(sg, dl) for sg in range(8) for dl in range(8 - sg)], key=lambda m: max(2 * m[0], 2 * m[1] + 1))
    for rho in range(4):
        s = rho & 1
        nxt = rd_list(rho + 1) if rho < 3 else [(("u", i), f"ds_read_b64 {vr(DB+2*i,2)}, v{CU} offset:{512*i}") for i in range(4)]
        k0 = 14 if rho == 0 else 0
        for k, (sg, dl) in enumerate(mms):
            if rho == 0: need({(rho, "A", sg), (rho, "B", dl)})
            elif k == 0: need({(rho, "B", 7)})
            c = sg + dl; acc = vr(CACC + 4 * c, 4)
            a(f"v_mfma_f32_16x16x32_bf16 {acc}, {vr(FA[s]+4*sg,4)}, {vr(FB[s]+4*dl,4)}, {acc if c in seen else '0'}")
            seen.add(c)
            if k >= k0 and (k - k0) % 2 == 0:
                for x in nxt[k - k0:k - k0 + 2]: issue(*x)
    a("s_cmp_eq_u32 s53, 0\ns_cbranch_scc0 L_cv_hi\ns_nop 5")
    for i in range(4): a(f"ds_write_b128 v{CE}, {vr(CACC+16+4*i,4)} offset:{1024*i}")
    a("s_branch L_cv_sent\nL_cv_hi:\ns_nop 5")
    for i in range(4): a(f"ds_write_b128 v{CE}, {vr(CACC+4*i,4)} offset:{1024*i}")
    a("s_nop 1")
    for i in range(16): a(f"v_mov_b32 v{CACC+i}, v{CACC+16+i}")
    a(f"L_cv_sent:\nv_xor_b32 v{CE}, 0x1000, v{CE}\ns_waitcnt lgkmcnt(0)")

def conv_finish(a):
    a(f"s_cmp_lt_u32 {SW}, 4\ns_cbranch_scc1 L_cv_fin")
    for i in range(4): a(f"ds_read_b128 {vr(96+4*i,4)}, v{CE} offset:{1024*i}")
    a("s_mov_b32 s68, 0xffff0000")
    for i in range(8): a(f"v_lshlrev_b32 v{48+2*i}, 16, v{DB+i}\nv_and_b32 v{49+2*i}, s68, v{DB+i}")
    for i in range(16): a(f"v_fmac_f32 v{CACC+i}, v{48+i}, v{CD}")
    a("s_waitcnt lgkmcnt(0)")
    for i in range(16): a(f"v_add_f32 v{CACC+i}, v{CACC+i}, v{96+i}")
    for i in range(8): a(f"v_cvt_pk_bf16_f32 v{DB+i}, v{CACC+2*i}, v{CACC+2*i+1}")
    a("L_cv_fin:")

def a_params(a):
    aux_ids(a)
    a(f"""
    s_lshl_b32 s55, s54, 8
    s_lshl_b32 s56, s53, 7
    s_add_u32 s55, s55, s56
    v_lshlrev_b32 v1, 1, v0
    v_add_u32 v1, s55, v1
    s_lshl_b32 s56, s54, 1
    v_mov_b32 v2, s56
    global_load_short_d16_hi v10, v1, {S_LOGA}
    global_load_short_d16_hi v14, v2, {S_LDT}
    global_load_short_d16_hi v11, v1, {S_AIM}
    global_load_short_d16_hi v12, v1, {S_CR}
    global_load_short_d16_hi v13, v1, {S_CI}
    global_load_short_d16_hi v{CD}, v2, {S_DSK}
    """)
    epoch_load(a)
    if not OPT.get("nowpf"):
        a(f"""
        s_lshl_b32 s62, {SX}, 5
        s_add_u32 s62, s62, {SJ}
        s_lshr_b32 s63, s62, 3
        s_and_b32 s62, s62, 7
        s_lshl_b32 s62, s62, 16
        s_lshl_b32 s63, s63, 5
        s_add_u32 s62, s62, s63
        s_lshl_b32 s63, s51, 14
        s_add_u32 s62, s62, s63
        v_lshlrev_b32 v3, 10, v0
        v_add_u32 v3, s62, v3
        s_mov_b64 exec, 0xffff
        global_load_dword v92, v3, {S_WO}
        s_mov_b64 exec, -1
        """)
    if OPT.get("touch") == "start":
        a(f"""
        s_lshl_b32 s60, {SX}, 2
        s_lshl_b32 s61, s52, 1
        s_add_u32 s60, s60, s61
        s_lshl_b32 s60, s60, 6
        s_lshl_b32 s61, {SJ}, 1
        s_add_u32 s61, s61, s53
        s_add_u32 s60, s60, s61
        s_lshl_b32 s61, s60, 10
        s_add_u32 s61, s61, {QF}
        s_lshl_b32 s60, s60, 11
        s_add_u32 s60, s60, {KV}
        v_and_b32 v4, 15, v0
        v_lshlrev_b32 v4, 7, v4
        v_bfe_u32 v5, v0, 4, 1
        v_lshl_add_u32 v4, v5, 17, v4
        v_and_b32 v5, 7, v0
        v_lshlrev_b32 v5, 7, v5
        v_bfe_u32 v6, v0, 3, 1
        v_lshl_add_u32 v5, v6, 16, v5
        s_mov_b64 exec, 0xffffffff
        buffer_load_dword v9, v4, {R_WS}, s60 offen
        s_mov_b64 exec, 0xffff
        buffer_load_dword v8, v5, {R_WS}, s61 offen
        s_mov_b64 exec, -1
        """.replace("v9,", "v91,").replace("v8,", "v89,"))
    if not OPT.get("nocpf"):
        a(f"""
        s_getpc_b64 s[62:63]
        L_pc:
        s_and_b32 s64, {SJ}, 3
        s_lshl_b32 s64, s64, 2
        s_add_u32 s64, s64, s51
        s_lshl_b32 s64, s64, 11
        v_lshlrev_b32 v3, 7, v0
        v_add_u32 v3, s64, v3
        v_min_u32 v3, L_codeend - L_pc - 4, v3
        s_mov_b64 exec, 0xffff
        global_load_dword v93, v3, s[62:63]
        s_mov_b64 exec, -1
        """)

def rows(a, regs, row0, neg, tb):
    for k, r in enumerate(regs):
        if r is None: a(f"v_mov_b32 v{tb+k}, 0x3f80")
        else: a(f"v_cvt_pk_bf16_f32 v{tb+k}, v{r}, {'-' if neg else ''}v{r+1}")
    for k in range(len(regs)): a(f"ds_write_addtid_b32 v{tb+k} offset:{272*(row0+k)}")
    return row0 + len(regs)

def smul_list(ops):
    T = list(range(32, 40)) + [16, 17, 18, 19]; l = []
    for k, (d, x, w) in enumerate(ops): l += [f"v_mul_f32 v{T[2*k]}, v{x+1}, v{w+1}", f"v_mul_f32 v{T[2*k+1]}, v{x}, v{w+1}"]
    for k, (d, x, w) in enumerate(ops):
        if d == w:
            l += [f"v_fma_f32 v{d+1}, v{x+1}, v{w}, v{T[2*k+1]}", f"v_fma_f32 v{d}, v{x}, v{w}, -v{T[2*k]}"]
        else:
            l += [f"v_fma_f32 v{d}, v{x}, v{w}, -v{T[2*k]}", f"v_fma_f32 v{d+1}, v{x+1}, v{w}, v{T[2*k+1]}"]
    return l

def touch(a):
    a(f"""
    s_lshl_b32 s60, {SX}, 2
    s_lshl_b32 s61, s52, 1
    s_add_u32 s60, s60, s61
    s_lshl_b32 s60, s60, 6
    s_lshl_b32 s61, {SJ}, 1
    s_add_u32 s61, s61, s53
    s_add_u32 s60, s60, s61
    s_lshl_b32 s61, s60, 10
    s_add_u32 s61, s61, {QF}
    s_lshl_b32 s60, s60, 11
    s_add_u32 s60, s60, {KV}
    v_and_b32 v4, 15, v0
    v_lshlrev_b32 v4, 7, v4
    v_bfe_u32 v5, v0, 4, 1
    v_lshl_add_u32 v4, v5, 17, v4
    v_and_b32 v5, 7, v0
    v_lshlrev_b32 v5, 7, v5
    v_bfe_u32 v6, v0, 3, 1
    v_lshl_add_u32 v5, v6, 16, v5
    s_mov_b64 exec, 0xffffffff
    buffer_load_dword v82, v4, {R_WS}, s60 offen
    s_mov_b64 exec, 0xffff
    buffer_load_dword v83, v5, {R_WS}, s61 offen
    s_mov_b64 exec, -1
    """)

def a_phase1(a0):
    class Flt:
        on = False
        def __call__(self, txt):
            m = OPT.get("noA")
            if not (self.on and m): return a0(txt)
            for ln in txt.split("\n"):
                l = ln.strip()
                if "w" in m and l.startswith(("ds_write_addtid", "ds_write_b128")): continue
                if "r" in m and l.startswith(("ds_read_b128", "ds_read_b64 ")): continue
                if "m" in m and l.startswith("v_mfma"): continue
                if "v" in m and l.startswith(("v_pk_", "v_fma_f32", "v_mul_f32", "v_cvt_pk", "v_sin", "v_cos", "v_exp", "v_fract", "v_alignbit", "v_bfi", "v_add_f32")): continue
                a0(ln)
        def reset(self): a0.reset()
    a = Flt()
    vm = VM()
    vm.add("par", 7)
    if not OPT.get("nowpf"): vm.add("wpf")
    if OPT.get("touch") == "start": vm.add("touch", 2)
    if not OPT.get("nocpf"): vm.add("cpf")
    a("s_setprio 2")
    a(f"""
    s_mul_i32 s65, s51, {TBS}
    s_mov_b32 m0, s65
    v_and_b32 v1, 31, v0
    v_lshrrev_b32 v2, 5, v0
    v_lshlrev_b32 v2, 4, v2
    s_mul_i32 s66, s52, {2*TBS}
    v_add_u32 v18, s66, v2
    v_mov_b32 v3, 272
    v_mad_u32_u24 v7, v1, v3, v18
    s_mul_i32 s65, s51, {HTS}
    s_mul_i32 s66, s52, {2*HTS}
    v_add_u32 v2, s66, v2
    v_bfe_u32 v8, v0, 3, 1
    v_and_b32 v9, 3, v0
    v_lshl_add_u32 v8, v8, 2, v9
    v_cvt_f32_u32 v8, v8
    v_bfe_u32 v9, v0, 4, 1
    v_bfe_u32 v16, v0, 2, 1
    v_lshl_add_u32 v9, v9, 1, v16
    v_min_u32 v16, 2, v9
    v_sub_u32 v16, 0, v16
    v_ldexp_f32 v16, v8, v16
    v_rndne_f32 v16, v16
    v_cvt_u32_f32 v16, v16
    v_lshlrev_b32 v17, 3, v9
    s_mov_b32 s66, 0x100d0800
    v_lshrrev_b32 v17, v17, s66
    v_and_b32 v17, 0xff, v17
    v_add_u32 v16, v16, v17
    v_mul_f32 v8, 0.125, v8
    v_rndne_f32 v8, v8
    v_cvt_u32_f32 v8, v8
    v_lshl_add_u32 v8, v9, 1, v8
    v_add_u32 v8, 19, v8
    s_cmp_eq_u32 s53, 0
    s_cselect_b64 vcc, -1, 0
    s_cselect_b32 s70, 0, 0xaaaaaaaa
    s_mov_b32 s71, s70
    v_cndmask_b32 v9, v8, v16, vcc
    v_mad_u32_u24 v9, v9, v3, v2
    v_lshrrev_b32 v1, 4, v0
    v_bfe_u32 v2, v0, 2, 2
    v_lshl_add_u32 v2, v1, 3, v2
    v_bfe_u32 v3, v0, 1, 1
    s_lshl_b32 s66, s51, 1
    v_add_u32 v3, s66, v3
    v_bfe_u32 v4, v2, 1, 3
    v_xor_b32 v4, v4, v3
    v_and_b32 v5, 1, v0
    v_lshlrev_b32 v5, 3, v5
    v_lshl_add_u32 v5, v2, 7, v5
    v_add_u32 v5, {slot_addr(0)}, v5
    v_xor_b32 v6, 2, v4
    v_lshl_add_u32 v4, v4, 4, v5
    v_lshl_add_u32 v5, v6, 4, v5
    v_bfe_u32 v6, v0, 1, 3
    v_lshlrev_b32 v6, 13, v6
    v_and_b32 v3, 1, v0
    v_lshl_add_u32 v6, v3, 6, v6
    v_lshl_add_u32 v6, v1, 4, v6
    s_lshl_b32 s60, {SX}, 18
    s_lshl_b32 s62, s51, 16
    s_add_u32 s60, s60, s62
    s_lshl_b32 s62, {SJ}, 8
    s_add_u32 s60, s60, s62
    s_add_u32 s60, s60, {XT}
    s_lshl_b32 s72, {SX}, 2
    s_add_u32 s61, s72, s51
    s_lshl_b32 s61, s61, 8
    s_lshl_b32 s62, {SJ}, 3
    s_add_u32 s61, s61, s62
    s_add_u32 s61, s61, {F_S1}
    s_lshr_b32 s62, {SJ}, 3
    s_add_u32 s72, s72, s62
    s_lshl_b32 s72, s72, 8
    s_add_u32 s72, s72, {F_S1}
    s_getreg_b32 s62, hwreg(HW_REG_XCC_ID)
    v_mov_b32 v{VX}, s62
    s_mov_b32 s66, {LOG2E}
    s_mov_b32 s68, 0xffff0000
    s_mov_b32 s69, {INV2PI}
    s_mov_b32 s62, 0x41000000
    s_mov_b32 s63, 0x43800000
    """)
    vm.wait(a, "par")
    a.on = True
    lstamp(a, 31)
    a(f"""
    v_mul_f32 v14, s66, v14
    v_mul_f32 v10, s66, v10
    v_exp_f32 v14, v14
    v_exp_f32 v10, v10
    v_add_u32 v{VN}, 1, v{VN}
    v_cvt_pk_bf16_f32 v1, v14, v10
    v_lshlrev_b32 v14, 16, v1
    v_and_b32 v10, s68, v1
    v_mul_f32 v10, v10, v14
    v_mul_f32 v11, v11, v14
    v_mul_f32 v10, s66, v10
    v_mul_f32 v11, s69, v11
    """)
    L = lambda i: 76 + 2 * i
    H = lambda p: 40 + 2 * p if p < 8 else 28
    LF, HF, AK, HP = 96, 160, 224, 59
    cexp(a, [(L(1), "s62")])
    cmuls(a, [(L(2), L(1), L(1))])
    cmuls(a, [(L(3), L(2), L(1)), (84, L(2), L(2))])
    r = rows(a, [None, L(1), L(2), L(3)], 0, False, 72)
    cmuls(a, [(L(i), L(i), 84) for i in range(1, 4)])
    r = rows(a, [84, L(1), L(2), L(3)], r, False, 16)
    cmuls(a, [(L(0), 84, 84)] + [(L(i), L(i), 84) for i in range(1, 4)])
    for g in range(2, 8):
        r = rows(a, [L(i) for i in range(4)], r, False, 72 if g & 1 == 0 else 16)
        if g < 7: cmuls(a, [(L(i), L(i), 84) for i in range(4)])
    assert r == 32
    lstamp(a, 24)
    a("s_waitcnt lgkmcnt(0)\ns_barrier")
    a("""
    ds_read_b64_tr_b16 v[224:225], v4
    ds_read_b64_tr_b16 v[226:227], v5 offset:512
    ds_read_b64_tr_b16 v[228:229], v4 offset:4096
    ds_read_b64_tr_b16 v[230:231], v5 offset:4608
    """)
    lrd = [f"ds_read_b128 {vr(LF+4*ks,4)}, v7 offset:{TBS*(ks>>3) + 32*(ks&7)}" for ks in range(16)]
    for x in lrd[:8]: a(x)
    a("v_mul_f32 v40, v12, v14\nv_mul_f32 v41, v13, v14\nv_add_f32 v40, v40, v40\nv_add_f32 v41, v41, v41\ns_mov_b32 m0, s65")
    a(f"""
    s_waitcnt lgkmcnt(7)
    buffer_store_dwordx4 v[224:227], v6, {R_WS}, s60 offen {SC}
    buffer_store_dwordx4 v[228:231], v6, {R_WS}, s60 offen offset:128 {SC}
    """)
    vm.add("xt", 2)
    for x in lrd[8:]: a(x)
    cexp(a, [(20, None), (24, "s63")])
    hl = []; row = [0]
    def hm(ops): hl.extend(smul_list(ops))
    def hp(regs):
        for g in regs: hl.append(f"v_cvt_pk_bf16_f32 v{HP+row[0]}, v{g}, -v{g+1}"); row[0] += 1
    hm([(H(1), H(0), 20), (22, 20, 20)])
    hm([(H(2), H(0), 22), (H(3), H(1), 22), (26, 22, 22), (30, 24, 24)])
    hm([(H(4 + i), H(i), 26) for i in range(4)])
    hm([(H(8), H(4), 26)]); hp([H(p) for p in range(8)])
    for grp in ((0, 2, 4, 6, 8), (0, 4, 8), (0, 4, 8)):
        hm([(H(p), H(p), 24) for p in grp]); hp([H(p) for p in grp])
    hm([(42, H(0), 24), (46, H(8), 24)])
    hm([(50, 42, 24), (52, 46, 24), (H(0), 42, 30), (H(8), 46, 30)])
    hm([(44, 50, 30), (48, 52, 30)]); hp([42, 46, 50, 52, H(0), H(8), 44, 48])
    assert row[0] == 27
    cut = int(OPT.get("hcut", 64))
    for x in hl[:cut]: a(x)
    lstamp(a, 19)
    a("s_waitcnt lgkmcnt(0)\ns_barrier")
    done = 0
    for k, x in enumerate(hl[cut:]):
        a(x)
        n = sum("cvt" in y for y in hl[:cut + k + 1])
        if n - done >= 8 or (k == len(hl) - cut - 1):
            for j in range(done, n): a(f"ds_write_addtid_b32 v{HP+j} offset:{272*j}")
            done = n
    vm.wait(a, "xt"); signal(a, "s61", SC, 2); vm.add("f1")
    lstamp(a, 20)
    a("s_waitcnt lgkmcnt(0)\ns_setprio 0\ns_barrier")
    hrd = [f"ds_read_b128 {vr(HF+4*ks,4)}, v9 offset:{HTS*(ks>>3) + 32*(ks&7)}" for ks in range(16)]
    for x in hrd[:12]: a(x)
    a(f"""
    v_lshlrev_b32 v1, 4, v0
    v_mov_b32 v60, 0
    v_mov_b32 v61, 0
    v_mov_b32 v62, 0
    v_mov_b32 v63, 0
    s_mul_i32 s67, s52, {KXD}
    s_add_u32 s67, s67, {KX0}
    v_mov_b32 v3, s67
    s_lshl_b32 s66, s53, 11
    s_add_u32 s66, s66, s67
    v_lshrrev_b32 v2, 5, v0
    v_and_b32 v4, 31, v0
    v_lshlrev_b32 v4, 4, v4
    v_lshl_add_u32 v2, v2, 9, v4
    v_add_u32 v2, s66, v2
    s_waitcnt lgkmcnt(4)
    """)
    for x in hrd[12:]: a(x)
    km = lambda ks: a(f"v_mfma_f32_32x32x16_bf16 {vr(AK,16)}, {vr(HF+4*ks,4)}, {vr(LF+4*ks,4)}, {'0' if ks == 0 else vr(AK,16)}")
    for ks in range(8): km(ks)
    lstamp(a, 21)
    a("s_waitcnt lgkmcnt(0)\ns_barrier")
    bulk = att_bulk()
    for ks in range(8, 16):
        km(ks)
        for x in bulk[7 * (ks - 8):7 * (ks - 7)]: a(x)
    a("ds_write_b128 v3, v[60:63]")
    for rg in range(2): a(f"v_cndmask_b32 v{AK+8*rg+4}, v{AK+8*rg+4}, v{AK+8*rg+5}, s[70:71]")
    for i in range(8): a(f"v_cvt_pk_bf16_f32 v{40+i}, v{AK+2*i}, v{AK+2*i+1}")
    for rg in range(2): a(f"ds_write_b128 v2, {vr(40+4*rg,4)} offset:{16 + 1024*rg}")
    lstamp(a, 22)
    a("s_waitcnt lgkmcnt(0)\ns_barrier")
    a(f"v_and_b32 v55, 31, v0\nv_lshlrev_b32 v55, 3, v55\nbuffer_load_dword v{VT}, v55, {R_WS}, s72 offen {SC}")
    tp = OPT.get("tp", "b6")
    if tp == "b4": touch(a)
    a(f"""
    v_add_u32 v2, s66, v1
    ds_read_b64 v[40:41], v2 offset:8
    ds_read_b128 v[42:45], v2 offset:16
    ds_read_b64 v[46:47], v2 offset:{1024+8}
    ds_read_b128 v[48:51], v2 offset:{1024+16}
    s_cmp_eq_u32 s52, 0
    s_cselect_b32 s67, 0, {slot_addr(4)}
    v_bfe_u32 v2, v0, 2, 2
    v_mul_u32_u24 v2, {RE}, v2
    v_and_b32 v3, 3, v0
    v_min_u32 v3, 2, v3
    v_lshl_add_u32 v2, v3, 4, v2
    v_add_u32 v52, s67, v2
    s_lshl_b32 s69, s53, 11
    s_sub_u32 s66, s67, s69
    s_add_u32 s66, s66, {255*16 - 1024}
    v_sub_u32 v53, s66, v1
    v_min_u32 v2, 32, v0
    s_mul_i32 s66, s53, {US}
    s_add_u32 s66, s66, s67
    s_add_u32 s66, s66, {RSZ}
    v_lshl_add_u32 v54, v2, 4, s66
    s_mov_b32 s69, 0xffff
    s_waitcnt lgkmcnt(0)
    """)
    RG = 96
    for q in range(2):
        w = lambda i: 40 + 6 * q + 2 + i
        for e in range(4):
            o = RG + 16 * q + 4 * e
            for i in range(4):
                hi = 3 - i - (0 if e >= 2 else 1)
                if e & 1: a(f"v_alignbit_b32 v{o+i}, v{w(hi)}, v{w(hi)}, 16")
                else: a(f"v_bfi_b32 v{o+i}, s69, v{w(hi)}, v{w(hi-1)}")
    a.on = False
    a(f"""
    v_lshlrev_b32 v1, 4, v0
    v_mov_b32 v60, 0
    s_lshl_b32 s66, s51, 2
    s_add_u32 s66, s66, 32000
    v_mov_b32 v59, s66
    ds_write_b32 v59, v60
    s_lshl_b32 s71, {SX}, 18
    s_lshl_b32 s69, {SJ}, 13
    s_add_u32 s71, s71, s69
    s_lshl_b32 s69, s52, 6
    s_add_u32 s71, s71, s69
    s_lshl_b32 s69, s53, 12
    s_add_u32 s71, s71, s69
    s_add_u32 s71, s71, {XT}
    v_lshrrev_b32 v2, 2, v0
    v_and_b32 v3, 3, v0
    v_lshlrev_b32 v3, 4, v3
    v_lshl_add_u32 v56, v2, 7, v3
    s_lshl_b32 s70, s53, 11
    s_add_u32 s69, s67, s70
    s_add_u32 s69, s69, {RSZ + 512}
    v_add_u32 v57, s69, v1
    s_lshl_b32 s73, s53, 8
    s_sub_u32 s73, s67, s73
    s_add_u32 s66, s73, {4128 - 64*7 - 512*7 + 256}
    v_and_b32 v4, 3, v0
    v_mul_u32_u24 v4, {RE}, v4
    v_lshrrev_b32 v2, 4, v0
    v_bfe_u32 v3, v0, 2, 2
    v_add_u32 v3, v3, v2
    v_lshlrev_b32 v3, 4, v3
    v_sub_u32 v4, v4, v3
    v_add_u32 v{CA}, s66, v4
    s_add_u32 s66, s73, {RSZ + US + 512 + 48 - 64*7 + 256}
    v_bfe_u32 v4, v0, 1, 3
    v_lshlrev_b32 v4, 6, v4
    v_lshlrev_b32 v3, 4, v2
    v_sub_u32 v5, v4, v3
    v_add_u32 v4, v4, v3
    v_and_b32 v3, 1, v0
    v_lshl_add_u32 v4, v3, 3, v4
    v_mul_u32_u24 v3, {US}, v3
    v_sub_u32 v5, v5, v3
    v_add_u32 v{CB}, s66, v5
    v_add_u32 v{CU}, s69, v4
    v_add_u32 v{DA}, s70, v4
    v_add_u32 v{DA+1}, 512, v{DA}
    v_add_u32 v{DA+2}, 1024, v{DA}
    v_add_u32 v{DA+3}, 1536, v{DA}
    s_lshl_b32 s66, s51, 12
    s_add_u32 s66, s66, {OS}
    v_add_u32 v{CE}, s66, v1
    s_lshl_b32 s66, s54, 12
    s_add_u32 s66, s66, {BT}
    """)
    for x in att_addr(): a(x)
    lstamp(a, 23)
    a("s_waitcnt lgkmcnt(0)\ns_barrier")
    def uload():
        for q in range(2): a(f"buffer_load_dwordx4 {vr(32+4*q,4)}, v56, {R_WS}, s71 offen offset:{2048*q} {SC}")
    def ustore():
        for q in range(2): a(f"ds_write_b128 v57, {vr(32+4*q,4)} offset:{1024*q}")
        for q in range(2):
            a(f"ds_write_b64 v57, {vr(32+4*q,2)} offset:{1024*q + US + 8}")
            a(f"ds_write_b64 v57, {vr(34+4*q,2)} offset:{1024*q + US + 16}")
    nt = 0 if tp == "b4" else 2
    a(f"""
    s_waitcnt vmcnt({2 - nt})
    v_cmp_ne_u32 s[94:95], v{VT}, v{VN}
    s_cmp_lg_u64 s[94:95], 0
    s_cbranch_scc1 L_u_skip
    """)
    uload()
    a("L_u_skip:")
    if tp == "b5": touch(a)
    a.on = True
    a("ds_write_b128 v52, v[60:63] offset:4096\nds_write_b128 v54, v[60:63]")
    rw = [f"ds_write_b128 v53, {vr(RG+16*q+4*e,4)} offset:{e*RE + 1024*(1-q)}" for q in range(2) for e in range(4)]
    rcut = int(OPT.get("rcut", 5))
    for x in rw[:rcut]: a(x)
    a("s_waitcnt lgkmcnt(0)\ns_barrier")
    for x in rw[rcut:]: a(x)
    a.on = False
    if tp == "b6": touch(a)
    a("s_barrier")
    a(f"s_cmp_lg_u64 s[94:95], 0\ns_cbranch_scc0 L_u_have")
    poll(a, "s1", 55, "s72")
    uload()
    a(f"s_waitcnt vmcnt(0)\nL_u_have:\ns_waitcnt vmcnt({nt})")
    ustore()
    a(f"""
    ds_write_b32 v59, v59
    v_xor_b32 v59, 4, v59
    s_mov_b32 s92, {SPIN}
    L_pair:
    ds_read_b32 v58, v59
    s_waitcnt lgkmcnt(0)
    v_readfirstlane_b32 s93, v58
    s_sub_u32 s92, s92, 1
    s_cmp_eq_u32 s92, 0
    s_cbranch_scc1 L_pair_ok
    s_cmp_eq_u32 s93, 0
    s_cbranch_scc1 L_pair
    L_pair_ok:
    """)
    lstamp(a, 25)
    conv(a)
    lstamp(a, 3)

def att_main(a, hooks, prios):
    p2, pr, pq, p1 = [int(x) for x in OPT.get("ord", "2,2,5,10").split(",")]
    def rdk(t):
        b, o = (1, 2048 * t) if t < 32 else (80, 2048 * (t - 32))
        a(f"ds_read_b128 {vr(AKS[t&1],4)}, v{b} offset:{o}")
    def rdv(t):
        b, o = (2, 2048 * t) if t < 32 else (81, 2048 * (t - 32))
        a("s_mov_b64 exec, s[82:83]")
        a(f"ds_read_b128 {vr(AV1[t&1],4)}, v{b} offset:{o}")
        a(f"ds_read_b128 {vr(AV2[t&1],4)}, v{b} offset:{o+512}")
        a("s_mov_b64 exec, -1")
    rdk(0); rdk(1); rdv(0)
    a("s_waitcnt lgkmcnt(3)")
    a(f"v_mfma_f32_32x32x16_bf16 {vr(AS_[0],16)}, {vr(AKS[0],4)}, {vr(AQ,4)}, 0")
    for t in range(64):
        c, n = AS_[t & 1], AS_[(t + 1) & 1]
        if t in prios: a(f"s_setprio {prios[t]}")
        k = 0
        for e in range(17):
            if e == p2 and t: a(f"v_smfmac_f32_32x32x32_bf16 {vr(AO,16)}, {vr(AV2[(t-1)&1],4)}, {vr(n+8,8)}, v3")
            if e == pq and pq < pr: a("s_waitcnt lgkmcnt(0)")
            if e == pq and pq < pr and t + 1 < 64: a(f"v_mfma_f32_32x32x16_bf16 {vr(n,16)}, {vr(AKS[(t+1)&1],4)}, {vr(AQ,4)}, 0")
            if e == pr:
                if t in hooks: hooks[t]()
                if OPT.get("kfirst") and t + 2 < 64: rdk(t + 2); k += 1
                if t + 1 < 64: rdv(t + 1); k += 2
                if not OPT.get("kfirst") and t + 2 < 64: rdk(t + 2); k += 1
            if e == pq and pq >= pr:
                a(f"s_waitcnt lgkmcnt({k})")
                if t + 1 < 64: a(f"v_mfma_f32_32x32x16_bf16 {vr(n,16)}, {vr(AKS[(t+1)&1],4)}, {vr(AQ,4)}, 0")
            if e == p1: a(f"v_smfmac_f32_32x32x32_bf16 {vr(AO,16)}, {vr(AV1[t&1],4)}, {vr(c,8)}, v3")
            if e < 16: a(f"v_exp_f32 v{c+e}, v{c+e}")
    a(f"v_smfmac_f32_32x32x32_bf16 {vr(AO,16)}, {vr(AV2[1],4)}, {vr(AS_[1]+8,8)}, v3")

def att_finish2(a, tag):
    a(f"s_mov_b32 s84, 0x2b800000\ns_mov_b32 s85, 0x5d800000\nv_fma_f32 v8, v{AO}, 0, v{AO+8}")
    for r in range(1, 8): a(f"v_fma_f32 v8, v{AO+r}, 0, v8")
    a(f"""
    v_cmp_nge_f32 vcc, v8, s84
    v_cmp_nle_f32 s[90:91], v8, s85
    s_or_b64 vcc, vcc, s[90:91]
    s_cbranch_vccnz L_{tag}_slow
    L_{tag}_norm:
    v_rcp_f32 v8, v{AO+8}
    """)
    for r in range(8): a(f"v_mul_f32 v{AO+r}, v8, v{AO+r}")
    for r in range(4): a(f"v_cvt_pk_bf16_f32 v{12+r}, v{AO+2*r}, v{AO+2*r+1}")
    for r in range(4): a(f"v_min_u32 v{12+r}, -2, v{12+r}")
    a(f"buffer_store_dwordx4 v[12:15], v1, {R_WS}, s87 offen {OPT.get('ostm', SC).replace('_', ' ')}")

def out_gemm(a):
    a(f"""
    v_lshlrev_b32 v2, 9, v86
    v_lshl_add_u32 v2, v87, 4, v2
    v_add_u32 v2, {OS}, v2
    v_lshlrev_b32 v3, 10, v87
    v_lshl_add_u32 v3, v86, 3, v3
    s_lshl_b32 s84, s88, 15
    s_lshl_b32 s86, s89, 5
    s_add_u32 s84, s84, s86
    v_add_u32 v3, s84, v3
    v_add_u32 v4, 0x4000, v3
    """)
    def go():
        NB = 12; FB = 16
        rd = lambda i: a(f"ds_read_b128 {vr(FB+4*(i%NB),4)}, v2 offset:{2048*(i>>1) + 256*(i&1)}")
        for i in range(NB): rd(i)
        for g in range(8):
            a(f"s_waitcnt lgkmcnt({min(8, 28 - 4 * g)})")
            for i in range(4 * g, 4 * g + 4):
                acc = 8 + 4 * (i & 1)
                a(f"v_mfma_f32_16x16x32_bf16 {vr(acc,4)}, {vr(PW+4*(i>>1),4)}, {vr(FB+4*(i%NB),4)}, {'0' if i < 2 else vr(acc,4)}")
            for i in range(4 * g + NB, min(4 * g + NB + 4, 32)): rd(i)
        for nt in range(2):
            for i in range(4): a(f"v_fma_f32 v{8+4*nt+i}, v{8+4*nt+i}, v{PG+nt}, v{PB+4*nt+i}")
            a(f"v_cvt_pk_bf16_f32 v{16+2*nt}, v{8+4*nt}, v{9+4*nt}\nv_cvt_pk_bf16_f32 v{17+2*nt}, v{10+4*nt}, v{11+4*nt}")
            a(f"global_store_dwordx2 v{3+nt}, {vr(16+2*nt,2)}, {S_OUT} {OPT.get('outmod', '')}")
    return go

def build_fused():
    a = Asm()
    k = NAME + "_kernel"
    launches = f"; @launch grid=(256,1,1) block=(512,1,1) lds={LDS_BYTES}\n"
    if G.STAMPS:
        launches = f"; @launch kernel={k} grid=(256,1,1) block=(512,1,1) lds={LDS_BYTES}\n; @launch kernel=stamp_kernel grid=(1,1,1) block=(256,1,1) lds=1024\n"
    a.raw(header() + launches + '.amdgcn_target "amdgcn-amd-amdhsa--gfx950"\n.text')
    kernel_head(a, k)
    if "amp" in OPT: lstamp(a, "E")
    prologue(a, "L_end")
    lstamp(a, 0)
    a(f"s_cmp_lt_u32 {SW}, 4\ns_cbranch_scc1 L_gemm")
    a_params(a)
    a("s_barrier\ns_branch L_aux")
    a.reset(); a("L_gemm:")
    g_phase1(a)
    lg = list(G.LIGHT); G.LIGHT[:] = [s for s in lg if s == 0]
    a("s_branch L_att")
    a.reset(); a("L_aux:")
    a_phase1(a)
    la = list(G.LIGHT); G.LIGHT[:] = sorted(set(la) | set(lg))
    a.reset(); a("L_att:")
    for r in range(4): a(f"v_mov_b32 v{VS+r}, -1")
    a("s_barrier")
    a(f"ds_write_b32 v92, v{VZ}")
    lstamp(a, 4)
    KM = "" if OPT.get("kvplain") else SC
    a(f"buffer_load_dwordx4 {vr(AQ,4)}, v1, {R_WS}, s77 offen {KM}")
    kv_dma(a, range(16) if OPT.get("kvall") else [0], KM)
    lstamp(a, 26)
    conv_finish(a)
    a("s_waitcnt vmcnt(0) lgkmcnt(0)\ns_barrier"); lstamp(a, 27)
    mode = OPT.get("sched", "slow"); TB2 = int(OPT.get("tb2", 10))
    if mode == "slow": sched = {0: [1, 2], 1: [3], **{t: [t + 2] for t in range(2, 14)}}
    else: sched = {0: [1, 2], 1: [3], **{t: [2 * t, 2 * t + 1] for t in range(2, 8)}}
    def early_stores():
        deferred_stores(a)
        a(f"""
        s_lshl_b32 s87, s76, 5
        s_add_u32 s87, s87, s74
        s_lshl_b32 s87, s87, 10
        s_add_u32 s87, s87, {OF}
        buffer_store_dwordx4 {vr(VS,4)}, v1, {R_WS}, s87 offen {SC}
        """)
    def hdma(t):
        def f():
            if t == 2: a("s_waitcnt vmcnt(1)\ns_barrier")
            if t == 2 and mode == "mid": early_stores()
            if t == 10: a("s_waitcnt vmcnt(1)\ns_barrier"); lstamp(a, 28)
            kv_dma(a, sched[t], KM)
        return f
    def s3_addr(): a(f"s_lshl_b32 s85, {SX}, 7\ns_lshl_b32 s86, {SJ}, 2\ns_add_u32 s85, s85, s86\ns_add_u32 s85, s85, {F_S3}")
    def h_bar():
        a("s_waitcnt vmcnt(0)\ns_barrier"); s3_addr()
        a(f"s_cmp_lg_u32 {SW}, 0\ns_cbranch_scc1 L_s3_skip")
        signal(a, "s85")
        a("L_s3_skip:"); lstamp(a, 28)
    def h_cnt():
        a(f"""
        s_waitcnt vmcnt(0)
        s_mov_b64 exec, 1
        ds_add_rtn_u32 v93, v92, v93
        s_mov_b64 exec, -1
        """)
    def h_s3sig():
        a("v_readfirstlane_b32 s84, v93"); s3_addr()
        a("s_cmp_lg_u32 s84, 7\ns_cbranch_scc1 L_s3_skip")
        signal(a, "s85")
        a("L_s3_skip:")
    def h_s3ld():
        a(f"s_mov_b32 s84, {F_S3}\nbuffer_load_dwordx4 {vr(VT,4)}, v1, {R_WS}, s84 offen {SC}")
    def wof_dma(r):
        for i in range(4): a(f"buffer_load_dwordx4 v1, {R_WS}, s90 offen offset:{1024*i} {SC} lds")
        if r < 3: a("s_add_u32 s90, s90, 4096")
    def h_s3chk():
        a("s_waitcnt vmcnt(0)")
        poll(a, "s3", 1, "s84", True, 4)
        a(f"""
        s_lshl_b32 s88, s75, 3
        s_lshr_b32 s89, s74, 2
        s_add_u32 s88, s88, s89
        s_and_b32 s89, s74, 3
        s_lshl_b32 s89, s89, 3
        s_add_u32 s89, s89, {SW}
        s_lshl_b32 s90, s89, 14
        s_add_u32 s90, s90, {WOF}
        s_lshl_b32 s86, {SW}, 12
        s_add_u32 s86, s86, {OS}
        s_mov_b32 m0, s86
        v_add_u32 v92, s86, v1
        """)
        if OPT.get("nos3"): return
        wof_dma(0)
        a(f"""
        s_or_b32 s84, s2, {SW}
        s_cmp_lg_u32 s84, 0
        s_cbranch_scc1 L_n_skip
        s_mov_b32 s84, {F_N}
        """)
        signal(a, "s84")
        a("L_n_skip:")
    def h_wrd(r):
        def f():
            if OPT.get("nos3"): return
            a("s_waitcnt vmcnt(0)")
            for i in range(4): a(f"ds_read_b128 {vr(PW+16*r+4*i,4)}, v92 offset:{1024*i}")
        return f
    def h_wld(r):
        def f():
            if OPT.get("nos3"): return
            wof_dma(r)
        return f
    def h_side():
        if OPT.get("nos3"):
            a("v_lshrrev_b32 v86, 4, v0\nv_and_b32 v87, 15, v0"); return
        a(f"""
        v_lshrrev_b32 v86, 4, v0
        v_and_b32 v87, 15, v0
        v_lshlrev_b32 v88, 14, v86
        v_lshl_add_u32 v88, v87, 1, v88
        s_lshl_b32 s90, s89, 16
        s_lshl_b32 s91, s88, 6
        s_add_u32 s90, s90, s91
        s_add_u32 s90, s90, {BT}
        """)
        for i in range(4):
            if i: a("s_add_u32 s90, s90, 4096")
            for nt in range(2): a(f"buffer_load_short_d16_hi v{PB+4*nt+i}, v88, {R_WS}, s90 offen offset:{32*nt} {SC}")
        a(f"""
        v_lshlrev_b32 v88, 2, v87
        s_lshl_b32 s90, s88, 7
        s_add_u32 s90, s90, {GW}
        buffer_load_dword v{PG}, v88, {R_WS}, s90 offen {SC}
        buffer_load_dword v{PG+1}, v88, {R_WS}, s90 offen offset:64 {SC}
        """)
    hooks = {t: hdma(t) for t in sched}
    if mode == "slow": hooks.update({14: early_stores, 19: h_cnt, 20: h_s3sig})
    else: hooks.update({TB2: h_bar})
    if OPT.get("wbl2"):
        def h_wb(): a(f"s_or_b32 s84, {SJ}, {SW}\ns_cmp_lg_u32 s84, 0\ns_cbranch_scc1 L_wb_skip\nbuffer_wbl2 sc1\nL_wb_skip:")
        hooks[24] = h_wb
    hooks.update({34: h_s3ld, 38: h_s3chk, 58: h_side})
    for r in range(4):
        hooks[42 + 5 * r] = h_wrd(r)
        if r < 3: hooks[43 + 5 * r] = h_wld(r + 1)
    prios = {0: 1, 1: 0, 2: 3, 5: 2, 8: 1, 9: 0, 10: 3, 22: 2, 48: 1, 60: 0}
    if "prios" in OPT: prios = {int(x.split(":")[0]): int(x.split(":")[1]) for x in OPT["prios"].split(",")}
    att_main(a, hooks, prios)
    lstamp(a, 29)
    att_finish2(a, "at")
    lstamp(a, 5)
    a(f"""
    s_lshl_b32 s93, s88, 15
    s_lshl_b32 s86, {SW}, 12
    s_add_u32 s93, s93, s86
    s_add_u32 s93, s93, {OF}
    """)
    OM = OPT.get("omod", SC).replace("_", " ")
    odma = lambda: [a(f"buffer_load_dwordx4 v1, {R_WS}, s93 offen offset:{1024*i} {OM} lds") for i in range(4)]
    odma()
    a("s_waitcnt vmcnt(5)")
    out_side_math(a)
    gemm = out_gemm(a)
    a(f"s_mov_b32 s92, {SPIN}\ns_branch L_o_chk\nL_o_again:")
    if OPT.get("osleep"): a(f"s_sleep {OPT['osleep']}")
    odma()
    a("L_o_chk:\ns_waitcnt vmcnt(0)")
    for i in range(4): a(f"ds_read_b128 {vr(16+4*i,4)}, v92 offset:{1024*i}")
    a("s_sub_u32 s92, s92, 1\ns_waitcnt lgkmcnt(2)")
    a("v_max3_u32 v5, v16, v17, v18\nv_max3_u32 v6, v19, v20, v21\nv_max3_u32 v5, v22, v23, v5\ns_waitcnt lgkmcnt(0)")
    a("v_max3_u32 v6, v24, v25, v6\nv_max3_u32 v5, v26, v27, v5\nv_max3_u32 v6, v28, v29, v6\nv_max3_u32 v5, v30, v31, v5\nv_max_u32 v5, v5, v6")
    a("""
    v_cmp_eq_u32 vcc, -1, v5
    s_cmp_eq_u32 s92, 0
    s_cbranch_scc1 L_o_ok
    s_cbranch_vccnz L_o_again
    L_o_ok:
    """)
    lstamp(a, 30)
    a("s_barrier")
    gemm()
    lstamp(a, 7)
    if G.STAMPS:
        lflush(a, range(8))
        for s in la:
            if s: G.STAMP_WAVES[s] = list(range(4, 8))
        for s in lg:
            if s: G.STAMP_WAVES[s] = list(range(4))
    if "amp" in OPT:
        w = OPT["amp"].split(",")[2]
        a(f"""
        s_cmp_lg_u32 s2, {OPT.get("ampwg", 0)}
        s_cbranch_scc1 L_end
        s_cmp_lg_u32 {SW}, {w}
        s_cbranch_scc1 L_end
        s_sub_u32 s98, s98, s96
        s_lshl_b32 s98, s98, 2
        s_min_u32 s98, s98, 40000
        s_memrealtime s[96:97]
        s_waitcnt lgkmcnt(0)
        L_amp:
        s_memrealtime s[100:101]
        s_waitcnt lgkmcnt(0)
        s_sub_u32 s100, s100, s96
        s_cmp_lt_u32 s100, s98
        s_cbranch_scc1 L_amp
        """)
    a("L_end:\ns_endpgm")
    att_slow(a, "at")
    a("L_codeend:\ns_endpgm")
    if G.STAMPS: stamp_reduce_kernel(a)
    a.raw('.section .rodata,"a"')
    if G.STAMPS: a.raw(descriptor("stamp_kernel", 32))
    a.raw(descriptor(k, 256))
    return a.text()

if __name__ == "__main__":
    out = sys.argv[1]
    for o in sys.argv[2:]:
        kk, _, v = o.partition("="); OPT[kk] = v or True
    G.STAMPS = bool(OPT.get("stamp"))
    OPT.setdefault("ones", "few"); OPT.setdefault("nowpf", True); OPT.setdefault("qmod", "plain"); OPT.setdefault("touch", "a"); OPT.setdefault("sched", "slow"); OPT.setdefault("omod", "sc0_sc1"); OPT.setdefault("ostm", "sc0_sc1")
    txt = build_fused()
    open(out, "w").write(txt)
    print("wrote", out, len(txt), "bytes")
```

```python
import sys
import gen as G
from gen import (Asm, OPT, NAME, vr, VM, prologue, aux_ids, kernel_head, descriptor, header, lstamp, lflush, stamp_reduce_kernel,
                 QF, KV, XT, BT, OF, WOF, GW, LDS_BYTES, LOG2E, INV2PI, QSCALE,
                 S_X, S_WO, S_LOGA, S_AIM, S_CR, S_CI, S_LDT, S_DSK, S_GWT, S_OUT, R_X, R_W, R_WS, SX, SJ, SW,
                 AQ, AKS, AV1, AV2, AS_, AO, PW, PB, PG, att_slow, out_side_loads, out_side_math)
from gen2 import cmuls, RowWriter, cexp

SC = "sc1"
SPIN = 400000
FL = 0xC90000
F_N, F_S1, F_S2, F_S3, F_S4 = FL, FL + 0x1000, FL + 0x3000, FL + 0x4000, FL + 0x8000
SLOT = 32768
def slot_addr(t): return SLOT * (1 + ((t + 1) & 3))
TBS, HTS = 8704, 7344
EX0, KX0, KXD = 0, 16384, 4608
RE, RSZ = 4160, 16640
US = 4640
OS = 131072
VN, VX, VZ, VT, VS = 240, 241, 242, 244, 236
DB, DA = 224, 232
PRIOS = {0: 3, 38: 2, 54: 1, 61: 0}

def poll(a, tag, vaddr, soff, first_issued=False, n=1, ncmp=None, vt=VT, sleep=4):
    ld = f"buffer_load_dword{'' if n == 1 else 'x%d' % n} {vr(vt, n)}, v{vaddr}, {R_WS}, {soff} offen {SC}"
    ncmp = ncmp or n
    a(f"s_mov_b32 s92, {SPIN}")
    if first_issued: a(f"s_branch L_{tag}_chk")
    a(f"L_{tag}_poll:\n{ld}\ns_waitcnt vmcnt(0)")
    a(f"L_{tag}_chk:")
    a(f"v_cmp_ne_u32 vcc, v{vt}, v{VN}")
    for i in range(1, ncmp): a(f"v_cmp_ne_u32 s[90:91], v{vt+i}, v{VN}\ns_or_b64 vcc, vcc, s[90:91]")
    if ncmp == 1: a("s_nop 1")
    a(f"""
    s_cbranch_vccz L_{tag}_ok
    s_sleep {sleep}
    s_sub_u32 s92, s92, 1
    s_cmp_lg_u32 s92, 0
    s_cbranch_scc1 L_{tag}_poll
    L_{tag}_ok:
    """)

def signal(a, soff, mod=SC, n=1):
    a(f"""
    s_mov_b64 exec, 1
    buffer_store_dword{'' if n == 1 else 'x2'} {vr(VN, n)}, v{VZ}, {R_WS}, {soff} offen {mod}
    s_mov_b64 exec, -1
    """)

def epoch_load(a):
    a(f"v_mov_b32 v{VZ}, 0\ns_mov_b32 s56, {F_N}\nbuffer_load_dword v{VN}, v{VZ}, {R_WS}, s56 offen {SC}")

DX, DW = 94, 95
def dma_setup(a):
    a(f"""
    v_lshrrev_b32 v1, 3, v0
    v_lshrrev_b32 v2, 4, v0
    s_and_b32 s58, {SW}, 1
    s_lshl_b32 s56, s58, 2
    v_add_u32 v3, s56, v2
    v_and_b32 v{DW}, 7, v0
    v_xor_b32 v3, v3, v{DW}
    v_lshlrev_b32 v3, 4, v3
    v_lshl_add_u32 v{DX}, v1, 10, v3
    v_and_b32 v2, 1, v2
    v_lshlrev_b32 v2, 2, v2
    v_xor_b32 v2, v2, v{DW}
    v_lshlrev_b32 v2, 4, v2
    v_mov_b32 v3, 0xc00
    v_mad_u32_u24 v{DW}, v1, v3, v2
    s_lshl_b32 s44, {SJ}, 16
    s_lshl_b32 s45, {SW}, 13
    s_add_u32 s44, s44, s45
    s_mul_i32 s45, {SW}, {16*3072}
    s_lshl_b32 s56, {SX}, 7
    s_add_u32 s45, s45, s56
    s_lshl_b32 s46, {SW}, 10
    s_lshl_b32 s47, {SW}, 11
    """)

def dma_pieces(t, part="xw"):
    base = slot_addr(t); out = []
    head = f"s_add_u32 s56, {SX}, {t}\ns_and_b32 s56, s56, 7\n"
    if "x" in part:
        for i in range(2):
            p = (head + "s_lshl_b32 s57, s56, 7\ns_add_u32 s57, s57, s44\n") if i == 0 else "s_add_u32 s57, s57, 0x8000\n"
            out.append(p + f"s_add_u32 m0, s46, {base + i*4096}\nbuffer_load_dwordx4 v{DX}, {R_X}, s57 offen lds")
        head = ""
    if "w" in part:
        for i in range(2):
            for ty in range(3):
                p = ""
                if ty == 0: p = (head + f"s_mul_i32 s56, s56, {64*3072}\ns_add_u32 s56, s56, s45\n") if i == 0 else f"s_add_u32 s56, s56, {8*3072}\n"
                out.append(p + f"s_add_u32 m0, s47, {base + 8192 + ty*8192 + i*1024 - ty*1024}\nbuffer_load_dwordx4 v{DW}, {R_W}, s56 offen offset:{ty*1024} lds")
    return out

def dma(a, vm, t, part="xw", tag=None):
    for p in dma_pieces(t, part): a(p); vm.add(tag or f"s{t}")

def kv_dma(a, rounds, mod):
    for r in rounds:
        if OPT.get("norot"):
            a(f"s_add_u32 m0, s79, {8192*r}\ns_add_u32 s80, s78, {8192*r}")
        else:
            a(f"s_add_u32 s80, s81, {8192*r}\ns_and_b32 s80, s80, 0x1ffff\ns_add_u32 m0, s79, {8192*r}\ns_add_u32 s80, s80, s78")
        a(f"buffer_load_dwordx4 v1, {R_WS}, s80 offen {mod} lds")

def att_bulk():
    l = f"""
    s_lshr_b32 s74, {SJ}, 3
    s_lshl_b32 s75, {SX}, 2
    s_add_u32 s74, s74, s75
    s_and_b32 s75, {SJ}, 7
    s_lshl_b32 s76, s75, 3
    s_add_u32 s76, s76, {SW}
    s_lshl_b32 s77, s74, 6
    s_add_u32 s77, s77, s76
    s_lshl_b32 s77, s77, 10
    s_add_u32 s77, s77, {QF}
    s_lshl_b32 s78, s74, 17
    s_lshl_b32 s79, {SW}, 10
    s_add_u32 s78, s78, s79
    s_add_u32 s78, s78, {KV}
    s_lshl_b32 s81, s75, 14
    s_mov_b32 s82, 0xffff
    s_mov_b32 s83, 0xffff
    v_and_b32 v16, 27, v0
    v_cmp_eq_u32 vcc, 16, v16
    v_mov_b32 v17, 0x3f803f80
    v_mov_b32 v92, {LDS_BYTES - 4}
    v_cndmask_b32 v16, 0, v17, vcc
    v_mov_b32 v93, 1
    """.strip().split("\n")
    l += [f"v_mov_b32 v{r}, v16" for r in range(17, 32)] + [f"v_mov_b32 v{AO+r}, 0" for r in range(16)]
    return [x.strip() for x in l]

def att_addr():
    return [x.strip() for x in """
    v_lshlrev_b32 v1, 4, v0
    v_lshrrev_b32 v2, 5, v0
    v_lshlrev_b32 v2, 8, v2
    v_and_b32 v3, 15, v0
    v_lshl_add_u32 v2, v3, 4, v2
    v_add_u32 v2, 1024, v2
    v_add_u32 v80, 0x10000, v1
    v_add_u32 v81, 0x10000, v2
    v_mov_b32 v3, 0xdddddddd
    """.strip().split("\n")]

def g_phase1(a):
    vm = VM()
    ACC = (96, 112, 128); SETS = (144, 160, 176, 192)
    XA, WA = 4, 12
    GX, GG, GO = 32, 40, 44
    dma_setup(a)
    a("s_barrier")
    for t in range(2): dma(a, vm, t)
    lstamp(a, 18)
    a(f"""
    s_getreg_b32 s62, hwreg(HW_REG_XCC_ID)
    v_mov_b32 v{VX}, s62
    s_lshr_b32 s59, {SW}, 1
    v_and_b32 v1, 31, v0
    s_lshl_b32 s60, s58, 12
    s_add_u32 s60, s60, {SLOT}
    v_lshlrev_b32 v2, 7, v1
    v_add_u32 v2, s60, v2
    v_bfe_u32 v1, v0, 1, 3
    v_lshrrev_b32 v3, 5, v0
    v_xor_b32 v1, v1, v3
    """)
    for ks in range(4):
        a(f"v_xor_b32 v3, {2*ks}, v1\nv_lshl_add_u32 v{XA+ks}, v3, 4, v2\nv_add_u32 v{XA+4+ks}, 0x10000, v{XA+ks}")
    a(f"""
    v_lshrrev_b32 v1, 5, v0
    v_lshlrev_b32 v1, 10, v1
    v_bfe_u32 v2, v0, 2, 2
    v_lshl_add_u32 v1, v2, 7, v1
    v_bfe_u32 v2, v0, 3, 1
    v_xor_b32 v2, s59, v2
    v_lshl_add_u32 v1, v2, 6, v1
    v_bfe_u32 v2, v0, 4, 1
    v_lshl_add_u32 v1, v2, 5, v1
    v_and_b32 v2, 3, v0
    v_lshl_add_u32 v1, v2, 3, v1
    v_add_u32 v{WA}, {SLOT + 8192}, v1
    v_add_u32 v{WA+1}, {SLOT + 8192 + 65536}, v1
    """)
    epoch_load(a); vm.add("n")
    dma(a, vm, 2)
    lstamp(a, 1)
    fill = [x.strip() for x in f"""
    ; side-load addresses: v14 gate rows, v15 gate weights, v52/v57 wo gathers; s67 gate output, s69 wo fragment output
    s_lshl_b32 s67, {SJ}, 6
    s_lshl_b32 s62, {SX}, 3
    s_add_u32 s67, s67, s62
    s_lshl_b32 s62, {SW}, 1
    s_add_u32 s67, s67, s62
    v_lshlrev_b32 v15, 4, v0
    s_lshl_b32 s62, s67, 10
    v_add_u32 v14, s62, v15
    s_lshl_b32 s62, {SX}, 5
    s_add_u32 s62, s62, {SJ}
    s_lshr_b32 s69, s62, 3
    s_and_b32 s63, s62, 7
    s_lshl_b32 s63, s63, 1
    s_add_u32 s63, s63, s58
    s_lshl_b32 s64, s63, 15
    s_lshl_b32 s62, s69, 5
    s_add_u32 s64, s64, s62
    v_lshrrev_b32 v3, 5, v0
    v_lshlrev_b32 v3, 14, v3
    v_bfe_u32 v2, v0, 4, 1
    v_lshl_add_u32 v3, v2, 12, v3
    v_and_b32 v2, 15, v0
    v_lshl_add_u32 v3, v2, 1, v3
    v_add_u32 v52, s64, v3
    v_add_u32 v57, 0x2000, v52
    s_lshl_b32 s69, s69, 4
    s_add_u32 s69, s69, s63
    s_lshl_b32 s69, s69, 10
    s_add_u32 s69, s69, {WOF}
    s_lshl_b32 s67, s67, 2
    s_add_u32 s67, s67, {GW}
    ; hand-off words: s72 = die-id line, s70 = projection-done word, s71 = line polled before attention
    s_lshl_b32 s72, {SX}, 2
    s_add_u32 s72, s72, {SW}
    s_lshl_b32 s72, s72, 8
    s_add_u32 s72, s72, {F_S1}
    v_and_b32 v53, 31, v0
    v_lshlrev_b32 v53, 3, v53
    s_lshl_b32 s70, {SX}, 1
    s_lshr_b32 s71, {SJ}, 4
    s_add_u32 s71, s71, s70
    s_lshl_b32 s71, s71, 8
    s_add_u32 s71, s71, {F_S2}
    s_add_u32 s70, s70, s59
    s_lshl_b32 s70, s70, 8
    s_lshl_b32 s62, {SJ}, 3
    s_add_u32 s70, s70, s62
    s_lshl_b32 s62, s58, 2
    s_add_u32 s70, s70, s62
    s_add_u32 s70, s70, {F_S2}
    v_lshlrev_b32 v54, 2, v0
    ; epilogue addresses
    s_lshl_b32 s60, {SX}, 2
    s_lshl_b32 s61, s59, 1
    s_add_u32 s60, s60, s61
    s_lshl_b32 s60, s60, 6
    s_lshl_b32 s61, {SJ}, 1
    s_add_u32 s61, s61, s58
    s_add_u32 s60, s60, s61
    s_lshl_b32 s61, s60, 10
    s_add_u32 s61, s61, {QF}
    s_add_u32 s62, s61, 0x10000
    s_lshl_b32 s63, s60, 11
    s_add_u32 s63, s63, {KV}
    s_add_u32 s64, s63, 0x20000
    s_mov_b32 s65, {QSCALE}
    v_and_b32 v55, 0x33, v0
    v_bfe_u32 v3, v0, 2, 1
    v_lshl_or_b32 v55, v3, 3, v55
    v_bfe_u32 v3, v0, 3, 1
    v_lshl_or_b32 v55, v3, 2, v55
    v_lshlrev_b32 v55, 4, v55
    v_and_b32 v56, 15, v0
    v_lshlrev_b32 v56, 4, v56
    v_lshrrev_b32 v3, 5, v0
    v_lshl_add_u32 v56, v3, 8, v56
    v_bfe_u32 v3, v0, 4, 1
    v_lshl_add_u32 v56, v3, 17, v56
    """.strip().split("\n") if not x.strip().startswith(";")]
    fill += [f"v_mov_b32 v{r}, 0" for r in range(DA, DA + 4)] + att_bulk() + att_addr()
    if OPT.get("fillpre"):
        while fill: a(fill.pop(0))
    def reads(t, ks):
        p = slot_addr(t) // SLOT - 1; s = SETS[ks]; hi = p >> 1; o0 = (p & 1) * SLOT
        l = [f"ds_read_b128 {vr(s,4)}, v{XA + 4*hi + ks} offset:{o0}"]
        for ty in (1, 2, 0):
            for ri in range(2):
                l.append(f"ds_read_b64_tr_b16 {vr(s+4+4*ty+2*ri,2)}, v{WA+hi} offset:{o0 + ty*8192 + ks*2048 + ri*512}")
        return l
    def mf(ks, i, first=False):
        s = SETS[ks]; c = "0" if first else vr(ACC[i], 16)
        ab = f"{vr(s,4)}, {vr(s+12,4)}" if i == 2 else f"{vr(s+4+4*i,4)}, {vr(s,4)}"
        a(f"v_mfma_f32_32x32x16_bf16 {vr(ACC[i],16)}, {ab}, {c}")
    pend = []
    def mm(ks, first, rd=(), nd=2):
        rd = list(rd)
        for i, r in zip((1, 2, 0), (rd[:4], rd[4:], [])):
            mf(ks, i, first)
            for x in r: a(x)
            for _ in range(3 if r else 5):
                if fill: a(fill.pop(0))
        for _ in range(nd):
            if pend:
                tag, p = pend.pop(0)
                if OPT.get("nodma") and tag[0] == "s" and tag != "side": p = "buffer_load_dword v59, v15, s[32:35], 0 offen"
                a(p); vm.add(tag)
    side = [f"global_load_dwordx4 {vr(GX,4)}, v14, {S_X}", f"global_load_dwordx4 {vr(GX+4,4)}, v14, {S_X} offset:1024", f"global_load_dwordx4 {vr(GG,4)}, v15, {S_GWT}"]
    side += [f"global_load_short_d16{'_hi' if j & 1 else ''} v{GO+j}, v{57 if j >> 2 else 52}, {S_WO} offset:{1024*(j&3)}" for j in range(8)]
    for t in range(8):
        if OPT.get("gpos") == "pre": lstamp(a, 8 + t)
        vm.wait(a, f"s{t}")
        if t == 3: a(f"v_add_u32 v{VN}, 1, v{VN}")
        if OPT.get("gpos") == "mid": lstamp(a, 8 + t)
        a("s_barrier")
        if not OPT.get("gpos"): lstamp(a, 8 + t)
        nd = 2
        if t == 0: pend += [("s3w", p) for p in dma_pieces(3, "w")]; nd = 3
        if t == 1: pend += [("s3", p) for p in dma_pieces(3, "x")]; nd = 3
        if 1 <= t <= 4: pend += [(f"s{t+3}", p) for p in dma_pieces(t + 3)]
        if t == int(OPT.get("tt", 5)) and OPT.get("touch") == "g":
            pend += [("touch", f"s_mov_b32 exec_hi, 0xffff\nbuffer_load_dword v59, v58, {R_WS}, 0 offen\ns_mov_b32 exec_hi, -1")]; nd = 3
        if t == 5: assert not fill, len(fill)
        if t == 5: pend += [("f", f"buffer_load_dwordx2 {vr(VT,2)}, v53, {R_WS}, s72 offen {SC}")]
        if t == 5: pend += [("side", p) for p in side]; nd = 3
        if t == 0:
            for x in reads(0, 0) + reads(0, 1): a(x)
        else:
            if OPT.get("burst"): nd = int(OPT["burst"])
            mm(2, False, reads(t, 0), nd)
            mm(3, False, reads(t, 1), nd)
        a("s_waitcnt lgkmcnt(7)")
        mm(0, t == 0, reads(t, 2), nd)
        a("s_waitcnt lgkmcnt(7)")
        mm(1, False, reads(t, 3), nd)
        assert not pend
        if t == 7 and OPT.get("gprio"): a(f"s_setprio {OPT['gprio']}")
        if t == 7:
            vm.wait(a, "f")
            poll(a, "s1g", 53, "s72", True, 2, 1)
            a(f"v_cmp_ne_u32 s[94:95], v{VT+1}, v{VX}")
        a("s_waitcnt lgkmcnt(0)")
    a("s_cmp_eq_u64 s[94:95], 0")
    if OPT.get("nofast"): a("s_branch L_st_far")
    a("s_cbranch_scc0 L_st_far")
    cv = lambda d, s: [f"v_cvt_pk_bf16_f32 v{d+r}, v{s+2*r}, v{s+2*r+1}" for r in range(8)]
    for fmod in ("", SC):
        mod = fmod or OPT.get("qmod", "").replace("plain", "")
        if fmod: a.reset(); a("L_st_far:")
        for ks, i in ((2, 1), (3, 1), (2, 2), (3, 2), (2, 0)): mf(ks, i)
        a("s_nop 6")
        for x in cv(144, ACC[1])[:4]: a(x)
        mf(3, 0)
        for x in cv(144, ACC[1])[4:]: a(x)
        a(f"buffer_store_dwordx4 v[144:147], v55, {R_WS}, s63 offen {mod}\nbuffer_store_dwordx4 v[148:151], v55, {R_WS}, s64 offen {mod}")
        for x in cv(152, ACC[2]): a(x)
        a(f"buffer_store_dwordx4 v[152:155], v56, {R_WS}, s63 offen offset:1024 {mod}\nbuffer_store_dwordx4 v[156:159], v56, {R_WS}, s63 offen offset:1536 {mod}")
        for h in range(2):
            for r in range(8): a(f"v_mul_f32 v{ACC[0]+8*h+r}, s65, v{ACC[0]+8*h+r}")
            for x in cv(160, ACC[0])[4*h:4*h+4]: a(x)
            a(f"buffer_store_dwordx4 {vr(160+4*h,4)}, v1, {R_WS}, s{61+h} offen {mod}")
        if not fmod: lstamp(a, 16)
        a("s_mov_b32 s68, 0xffff0000\ns_waitcnt vmcnt(6)")
        for k in range(4): a(f"v_lshlrev_b32 v{168+2*k}, 16, v{GG+k}\nv_and_b32 v{169+2*k}, s68, v{GG+k}")
        for k in range(4):
            for r in range(2):
                x = GX + 4 * r + k; t = 180 + 2 * r
                a(f"v_lshlrev_b32 v{t}, 16, v{x}\nv_and_b32 v{t+1}, s68, v{x}\nv_mul_f32 v{t}, v{t}, v{168+2*k}\nv_mul_f32 v{t+1}, v{t+1}, v{169+2*k}")
                a(f"v_cvt_pk_bf16_f32 v{x}, v{t}, v{t+1}")
        a("s_waitcnt vmcnt(0)")
        signal(a, "s70", fmod)
        if not fmod: a("s_branch L_st_done")
    a.reset(); a("L_st_done:")
    lstamp(a, 17)
    a(f"buffer_load_dword v{VT}, v54, {R_WS}, s71 offen {SC}")
    for k in range(4):
        for r in range(2):
            x = GX + 4 * r + k; t = 180 + 2 * r
            a(f"v_and_b32 v{t+1}, s68, v{x}\nv_lshlrev_b32 v{t}, 16, v{x}")
            if k == 0: a(f"v_add_f32 v{176+r}, v{t}, v{t+1}")
            else: a(f"v_add_f32 v{176+r}, v{176+r}, v{t}\nv_add_f32 v{176+r}, v{176+r}, v{t+1}")
    wo_pack = [f"v_or_b32 v{DB+j}, v{GO+2*j}, v{GO+2*j+1}" for j in range(4)]
    for d in ("row_shr:1 row_mask:0xf bank_mask:0xf bound_ctrl:0", "row_shr:2 row_mask:0xf bank_mask:0xf bound_ctrl:0",
              "row_shr:4 row_mask:0xf bank_mask:0xf bound_ctrl:0", "row_shr:8 row_mask:0xf bank_mask:0xf bound_ctrl:0",
              "row_bcast:15 row_mask:0xa bank_mask:0xf", "row_bcast:31 row_mask:0xc bank_mask:0xf"):
        if wo_pack: a(wo_pack.pop())
        for r in range(2): a(f"v_add_f32_dpp v{176+r}, v{176+r}, v{176+r} {d}")
    a(f"""
    v_cvt_pk_bf16_f32 v178, v176, v177
    s_mov_b32 s60, {LOG2E}
    v_lshlrev_b32 v176, 16, v178
    v_and_b32 v177, s68, v178
    v_mul_f32 v176, s60, v176
    v_mul_f32 v177, s60, v177
    v_exp_f32 v176, -v176
    v_exp_f32 v177, -v177
    v_add_f32 v176, 1.0, v176
    v_add_f32 v177, 1.0, v177
    v_rcp_f32 v176, v176
    v_rcp_f32 v177, v177
    s_nop 0
    v_cvt_pk_bf16_f32 v178, v176, v177
    v_lshlrev_b32 v{DB+4}, 16, v178
    v_and_b32 v{DB+5}, s68, v178
    """)
    a(f"s_cmp_lg_u32 {SW}, 0\ns_cbranch_scc1 L_s2_skip\ns_waitcnt vmcnt(0)")
    poll(a, "s2", 54, "s71", True, sleep=1)
    a.reset(); a("L_s2_skip:")
    lstamp(a, 2)

def deferred_stores(a):
    a(f"s_cmp_lt_u32 {SW}, 4\ns_cbranch_scc1 L_df_g")
    for ci in range(4): a(f"buffer_store_dwordx2 {vr(DB+2*ci,2)}, v{DA+ci}, {R_WS}, s66 offen {SC}")
    a(f"""
    s_branch L_df_done
    L_df_g:
    buffer_store_dwordx4 {vr(DB,4)}, v1, {R_WS}, s69 offen {SC}
    s_mov_b32 exec_lo, 0
    s_mov_b32 exec_hi, 0x80000000
    buffer_store_dwordx2 {vr(DB+4,2)}, v{VZ}, {R_WS}, s67 offen {SC}
    s_mov_b64 exec, -1
    L_df_done:
    """)

CA, CB, CU, CD, CE = 86, 87, 88, 90, 91
CACC = 32
def conv(a):
    FA = (96, 160); FB = (128, 192)
    q = []
    def issue(key, txt):
        if len(q) >= 15:
            a("s_waitcnt lgkmcnt(14)"); del q[:len(q) - 14]
        a(txt); q.append(key)
    def need(keys):
        idx = [i for i, k in enumerate(q) if k in keys]
        if idx:
            a(f"s_waitcnt lgkmcnt({len(q) - 1 - max(idx)})"); del q[:max(idx) + 1]
    def rd_list(rho):
        s = rho & 1; l = []
        for i in range(8):
            l.append(((rho, "A", i), f"ds_read_b128 {vr(FA[s]+4*i,4)}, v{CA} offset:{512*(7-i) + 64*(3-rho)}"))
            l.append(((rho, "B", i), f"ds_read_b128 {vr(FB[s]+4*i,4)}, v{CB} offset:{512*i + 64*(3-rho)}"))
        return l
    for k, t in rd_list(0): issue(k, t)
    seen = set()
    mms = sorted([(sg, dl) for sg in range(8) for dl in range(8 - sg)], key=lambda m: max(2 * m[0], 2 * m[1] + 1))
    for rho in range(4):
        s = rho & 1
        nxt = rd_list(rho + 1) if rho < 3 else [(("u", i), f"ds_read_b64 {vr(DB+2*i,2)}, v{CU} offset:{512*i}") for i in range(4)]
        k0 = 14 if rho == 0 else 0
        for k, (sg, dl) in enumerate(mms):
            if rho == 0: need({(rho, "A", sg), (rho, "B", dl)})
            elif k == 0: need({(rho, "B", 7)})
            c = sg + dl; acc = vr(CACC + 4 * c, 4)
            a(f"v_mfma_f32_16x16x32_bf16 {acc}, {vr(FA[s]+4*sg,4)}, {vr(FB[s]+4*dl,4)}, {acc if c in seen else '0'}")
            seen.add(c)
            if k >= k0 and (k - k0) % 2 == 0:
                for x in nxt[k - k0:k - k0 + 2]: issue(*x)
    a("s_cmp_eq_u32 s53, 0\ns_cbranch_scc0 L_cv_hi\ns_nop 5")
    for i in range(4): a(f"ds_write_b128 v{CE}, {vr(CACC+16+4*i,4)} offset:{1024*i}")
    a("s_branch L_cv_sent\nL_cv_hi:\ns_nop 5")
    for i in range(4): a(f"ds_write_b128 v{CE}, {vr(CACC+4*i,4)} offset:{1024*i}")
    a("s_nop 1")
    for i in range(16): a(f"v_mov_b32 v{CACC+i}, v{CACC+16+i}")
    a(f"L_cv_sent:\nv_xor_b32 v{CE}, 0x1000, v{CE}\ns_waitcnt lgkmcnt(0)")

def conv_finish(a):
    a(f"s_cmp_lt_u32 {SW}, 4\ns_cbranch_scc1 L_cv_fin")
    for i in range(4): a(f"ds_read_b128 {vr(96+4*i,4)}, v{CE} offset:{1024*i}")
    a("s_mov_b32 s68, 0xffff0000")
    for i in range(8): a(f"v_lshlrev_b32 v{48+2*i}, 16, v{DB+i}\nv_and_b32 v{49+2*i}, s68, v{DB+i}")
    for i in range(16): a(f"v_fmac_f32 v{CACC+i}, v{48+i}, v{CD}")
    a("s_waitcnt lgkmcnt(0)")
    for i in range(16): a(f"v_add_f32 v{CACC+i}, v{CACC+i}, v{96+i}")
    for i in range(8): a(f"v_cvt_pk_bf16_f32 v{DB+i}, v{CACC+2*i}, v{CACC+2*i+1}")
    a("L_cv_fin:")

def a_params(a):
    aux_ids(a)
    a(f"""
    s_lshl_b32 s55, s54, 8
    s_lshl_b32 s56, s53, 7
    s_add_u32 s55, s55, s56
    v_lshlrev_b32 v1, 1, v0
    v_add_u32 v1, s55, v1
    s_lshl_b32 s56, s54, 1
    v_mov_b32 v2, s56
    global_load_short_d16_hi v10, v1, {S_LOGA}
    global_load_short_d16_hi v14, v2, {S_LDT}
    global_load_short_d16_hi v11, v1, {S_AIM}
    global_load_short_d16_hi v12, v1, {S_CR}
    global_load_short_d16_hi v13, v1, {S_CI}
    global_load_short_d16_hi v{CD}, v2, {S_DSK}
    """)
    epoch_load(a)
    if not OPT.get("nowpf"):
        a(f"""
        s_lshl_b32 s62, {SX}, 5
        s_add_u32 s62, s62, {SJ}
        s_lshr_b32 s63, s62, 3
        s_and_b32 s62, s62, 7
        s_lshl_b32 s62, s62, 16
        s_lshl_b32 s63, s63, 5
        s_add_u32 s62, s62, s63
        s_lshl_b32 s63, s51, 14
        s_add_u32 s62, s62, s63
        v_lshlrev_b32 v3, 10, v0
        v_add_u32 v3, s62, v3
        s_mov_b64 exec, 0xffff
        global_load_dword v92, v3, {S_WO}
        s_mov_b64 exec, -1
        """)
    if OPT.get("touch") == "start":
        a(f"""
        s_lshl_b32 s60, {SX}, 2
        s_lshl_b32 s61, s52, 1
        s_add_u32 s60, s60, s61
        s_lshl_b32 s60, s60, 6
        s_lshl_b32 s61, {SJ}, 1
        s_add_u32 s61, s61, s53
        s_add_u32 s60, s60, s61
        s_lshl_b32 s61, s60, 10
        s_add_u32 s61, s61, {QF}
        s_lshl_b32 s60, s60, 11
        s_add_u32 s60, s60, {KV}
        v_and_b32 v4, 15, v0
        v_lshlrev_b32 v4, 7, v4
        v_bfe_u32 v5, v0, 4, 1
        v_lshl_add_u32 v4, v5, 17, v4
        v_and_b32 v5, 7, v0
        v_lshlrev_b32 v5, 7, v5
        v_bfe_u32 v6, v0, 3, 1
        v_lshl_add_u32 v5, v6, 16, v5
        s_mov_b64 exec, 0xffffffff
        buffer_load_dword v9, v4, {R_WS}, s60 offen
        s_mov_b64 exec, 0xffff
        buffer_load_dword v8, v5, {R_WS}, s61 offen
        s_mov_b64 exec, -1
        """.replace("v9,", "v91,").replace("v8,", "v89,"))
    if not OPT.get("nocpf"):
        a(f"""
        s_getpc_b64 s[62:63]
        L_pc:
        s_and_b32 s64, {SJ}, 3
        s_lshl_b32 s64, s64, 2
        s_add_u32 s64, s64, s51
        s_lshl_b32 s64, s64, 11
        v_lshlrev_b32 v3, 7, v0
        v_add_u32 v3, s64, v3
        v_min_u32 v3, L_codeend - L_pc - 4, v3
        s_mov_b64 exec, 0xffff
        global_load_dword v93, v3, s[62:63]
        s_mov_b64 exec, -1
        """)

def rows(a, regs, row0, neg, tb):
    for k, r in enumerate(regs):
        if r is None: a(f"v_mov_b32 v{tb+k}, 0x3f80")
        else: a(f"v_cvt_pk_bf16_f32 v{tb+k}, v{r}, {'-' if neg else ''}v{r+1}")
    for k in range(len(regs)): a(f"ds_write_addtid_b32 v{tb+k} offset:{272*(row0+k)}")
    return row0 + len(regs)

def smul_list(ops):
    T = list(range(32, 40)) + [16, 17, 18, 19]; l = []
    for k, (d, x, w) in enumerate(ops): l += [f"v_mul_f32 v{T[2*k]}, v{x+1}, v{w+1}", f"v_mul_f32 v{T[2*k+1]}, v{x}, v{w+1}"]
    for k, (d, x, w) in enumerate(ops):
        if d == w:
            l += [f"v_fma_f32 v{d+1}, v{x+1}, v{w}, v{T[2*k+1]}", f"v_fma_f32 v{d}, v{x}, v{w}, -v{T[2*k]}"]
        else:
            l += [f"v_fma_f32 v{d}, v{x}, v{w}, -v{T[2*k]}", f"v_fma_f32 v{d+1}, v{x+1}, v{w}, v{T[2*k+1]}"]
    return l

def touch(a):
    a(f"""
    s_lshl_b32 s60, {SX}, 2
    s_lshl_b32 s61, s52, 1
    s_add_u32 s60, s60, s61
    s_lshl_b32 s60, s60, 6
    s_lshl_b32 s61, {SJ}, 1
    s_add_u32 s61, s61, s53
    s_add_u32 s60, s60, s61
    s_lshl_b32 s61, s60, 10
    s_add_u32 s61, s61, {QF}
    s_lshl_b32 s60, s60, 11
    s_add_u32 s60, s60, {KV}
    v_and_b32 v4, 15, v0
    v_lshlrev_b32 v4, 7, v4
    v_bfe_u32 v5, v0, 4, 1
    v_lshl_add_u32 v4, v5, 17, v4
    v_and_b32 v5, 7, v0
    v_lshlrev_b32 v5, 7, v5
    v_bfe_u32 v6, v0, 3, 1
    v_lshl_add_u32 v5, v6, 16, v5
    s_mov_b64 exec, 0xffffffff
    buffer_load_dword v82, v4, {R_WS}, s60 offen
    s_mov_b64 exec, 0xffff
    buffer_load_dword v83, v5, {R_WS}, s61 offen
    s_mov_b64 exec, -1
    """)

def a_phase1(a0):
    class Flt:
        on = False
        def __call__(self, txt):
            m = OPT.get("noA")
            if not (self.on and m): return a0(txt)
            for ln in txt.split("\n"):
                l = ln.strip()
                if "w" in m and l.startswith(("ds_write_addtid", "ds_write_b128")): continue
                if "r" in m and l.startswith(("ds_read_b128", "ds_read_b64 ")): continue
                if "m" in m and l.startswith("v_mfma"): continue
                if "v" in m and l.startswith(("v_pk_", "v_fma_f32", "v_mul_f32", "v_cvt_pk", "v_sin", "v_cos", "v_exp", "v_fract", "v_alignbit", "v_bfi", "v_add_f32")): continue
                a0(ln)
        def reset(self): a0.reset()
    a = Flt()
    vm = VM()
    vm.add("par", 7)
    if not OPT.get("nowpf"): vm.add("wpf")
    if OPT.get("touch") == "start": vm.add("touch", 2)
    if not OPT.get("nocpf"): vm.add("cpf")
    a("s_setprio 2")
    a(f"""
    s_mul_i32 s65, s51, {TBS}
    s_mov_b32 m0, s65
    v_and_b32 v1, 31, v0
    v_lshrrev_b32 v2, 5, v0
    v_lshlrev_b32 v2, 4, v2
    s_mul_i32 s66, s52, {2*TBS}
    v_add_u32 v18, s66, v2
    v_mov_b32 v3, 272
    v_mad_u32_u24 v7, v1, v3, v18
    s_mul_i32 s65, s51, {HTS}
    s_mul_i32 s66, s52, {2*HTS}
    v_add_u32 v2, s66, v2
    v_bfe_u32 v8, v0, 3, 1
    v_and_b32 v9, 3, v0
    v_lshl_add_u32 v8, v8, 2, v9
    v_cvt_f32_u32 v8, v8
    v_bfe_u32 v9, v0, 4, 1
    v_bfe_u32 v16, v0, 2, 1
    v_lshl_add_u32 v9, v9, 1, v16
    v_min_u32 v16, 2, v9
    v_sub_u32 v16, 0, v16
    v_ldexp_f32 v16, v8, v16
    v_rndne_f32 v16, v16
    v_cvt_u32_f32 v16, v16
    v_lshlrev_b32 v17, 3, v9
    s_mov_b32 s66, 0x100d0800
    v_lshrrev_b32 v17, v17, s66
    v_and_b32 v17, 0xff, v17
    v_add_u32 v16, v16, v17
    v_mul_f32 v8, 0.125, v8
    v_rndne_f32 v8, v8
    v_cvt_u32_f32 v8, v8
    v_lshl_add_u32 v8, v9, 1, v8
    v_add_u32 v8, 19, v8
    s_cmp_eq_u32 s53, 0
    s_cselect_b64 vcc, -1, 0
    s_cselect_b32 s70, 0, 0xaaaaaaaa
    s_mov_b32 s71, s70
    v_cndmask_b32 v9, v8, v16, vcc
    v_mad_u32_u24 v9, v9, v3, v2
    v_lshrrev_b32 v1, 4, v0
    v_bfe_u32 v2, v0, 2, 2
    v_lshl_add_u32 v2, v1, 3, v2
    v_bfe_u32 v3, v0, 1, 1
    s_lshl_b32 s66, s51, 1
    v_add_u32 v3, s66, v3
    v_bfe_u32 v4, v2, 1, 3
    v_xor_b32 v4, v4, v3
    v_and_b32 v5, 1, v0
    v_lshlrev_b32 v5, 3, v5
    v_lshl_add_u32 v5, v2, 7, v5
    v_add_u32 v5, {slot_addr(0)}, v5
    v_xor_b32 v6, 2, v4
    v_lshl_add_u32 v4, v4, 4, v5
    v_lshl_add_u32 v5, v6, 4, v5
    v_bfe_u32 v6, v0, 1, 3
    v_lshlrev_b32 v6, 13, v6
    v_and_b32 v3, 1, v0
    v_lshl_add_u32 v6, v3, 6, v6
    v_lshl_add_u32 v6, v1, 4, v6
    s_lshl_b32 s60, {SX}, 18
    s_lshl_b32 s62, s51, 16
    s_add_u32 s60, s60, s62
    s_lshl_b32 s62, {SJ}, 8
    s_add_u32 s60, s60, s62
    s_add_u32 s60, s60, {XT}
    s_lshl_b32 s72, {SX}, 2
    s_add_u32 s61, s72, s51
    s_lshl_b32 s61, s61, 8
    s_lshl_b32 s62, {SJ}, 3
    s_add_u32 s61, s61, s62
    s_add_u32 s61, s61, {F_S1}
    s_lshr_b32 s62, {SJ}, 3
    s_add_u32 s72, s72, s62
    s_lshl_b32 s72, s72, 8
    s_add_u32 s72, s72, {F_S1}
    s_getreg_b32 s62, hwreg(HW_REG_XCC_ID)
    v_mov_b32 v{VX}, s62
    s_mov_b32 s66, {LOG2E}
    s_mov_b32 s68, 0xffff0000
    s_mov_b32 s69, {INV2PI}
    s_mov_b32 s62, 0x41000000
    s_mov_b32 s63, 0x43800000
    """)
    vm.wait(a, "par")
    a.on = True
    lstamp(a, 31)
    a(f"""
    v_mul_f32 v14, s66, v14
    v_mul_f32 v10, s66, v10
    v_exp_f32 v14, v14
    v_exp_f32 v10, v10
    v_add_u32 v{VN}, 1, v{VN}
    v_cvt_pk_bf16_f32 v1, v14, v10
    v_lshlrev_b32 v14, 16, v1
    v_and_b32 v10, s68, v1
    v_mul_f32 v10, v10, v14
    v_mul_f32 v11, v11, v14
    v_mul_f32 v10, s66, v10
    v_mul_f32 v11, s69, v11
    """)
    L = lambda i: 76 + 2 * i
    H = lambda p: 40 + 2 * p if p < 8 else 28
    LF, HF, AK, HP = 96, 160, 224, 59
    cexp(a, [(L(1), "s62")])
    cmuls(a, [(L(2), L(1), L(1))])
    cmuls(a, [(L(3), L(2), L(1)), (84, L(2), L(2))])
    r = rows(a, [None, L(1), L(2), L(3)], 0, False, 72)
    cmuls(a, [(L(i), L(i), 84) for i in range(1, 4)])
    r = rows(a, [84, L(1), L(2), L(3)], r, False, 16)
    cmuls(a, [(L(0), 84, 84)] + [(L(i), L(i), 84) for i in range(1, 4)])
    for g in range(2, 8):
        r = rows(a, [L(i) for i in range(4)], r, False, 72 if g & 1 == 0 else 16)
        if g < 7: cmuls(a, [(L(i), L(i), 84) for i in range(4)])
    assert r == 32
    lstamp(a, 24)
    a("s_waitcnt lgkmcnt(0)\ns_barrier")
    a("""
    ds_read_b64_tr_b16 v[224:225], v4
    ds_read_b64_tr_b16 v[226:227], v5 offset:512
    ds_read_b64_tr_b16 v[228:229], v4 offset:4096
    ds_read_b64_tr_b16 v[230:231], v5 offset:4608
    """)
    lrd = [f"ds_read_b128 {vr(LF+4*ks,4)}, v7 offset:{TBS*(ks>>3) + 32*(ks&7)}" for ks in range(16)]
    for x in lrd[:8]: a(x)
    a("v_mul_f32 v40, v12, v14\nv_mul_f32 v41, v13, v14\nv_add_f32 v40, v40, v40\nv_add_f32 v41, v41, v41\ns_mov_b32 m0, s65")
    a(f"""
    s_waitcnt lgkmcnt(7)
    buffer_store_dwordx4 v[224:227], v6, {R_WS}, s60 offen {SC}
    buffer_store_dwordx4 v[228:231], v6, {R_WS}, s60 offen offset:128 {SC}
    """)
    vm.add("xt", 2)
    for x in lrd[8:]: a(x)
    cexp(a, [(20, None), (24, "s63")])
    hl = []; row = [0]
    def hm(ops): hl.extend(smul_list(ops))
    def hp(regs):
        for g in regs: hl.append(f"v_cvt_pk_bf16_f32 v{HP+row[0]}, v{g}, -v{g+1}"); row[0] += 1
    hm([(H(1), H(0), 20), (22, 20, 20)])
    hm([(H(2), H(0), 22), (H(3), H(1), 22), (26, 22, 22), (30, 24, 24)])
    hm([(H(4 + i), H(i), 26) for i in range(4)])
    hm([(H(8), H(4), 26)]); hp([H(p) for p in range(8)])
    for grp in ((0, 2, 4, 6, 8), (0, 4, 8), (0, 4, 8)):
        hm([(H(p), H(p), 24) for p in grp]); hp([H(p) for p in grp])
    hm([(42, H(0), 24), (46, H(8), 24)])
    hm([(50, 42, 24), (52, 46, 24), (H(0), 42, 30), (H(8), 46, 30)])
    hm([(44, 50, 30), (48, 52, 30)]); hp([42, 46, 50, 52, H(0), H(8), 44, 48])
    assert row[0] == 27
    cut = int(OPT.get("hcut", 64))
    for x in hl[:cut]: a(x)
    lstamp(a, 19)
    a("s_waitcnt lgkmcnt(0)\ns_barrier")
    done = 0
    for k, x in enumerate(hl[cut:]):
        a(x)
        n = sum("cvt" in y for y in hl[:cut + k + 1])
        if n - done >= 8 or (k == len(hl) - cut - 1):
            for j in range(done, n): a(f"ds_write_addtid_b32 v{HP+j} offset:{272*j}")
            done = n
    vm.wait(a, "xt"); signal(a, "s61", SC, 2); vm.add("f1")
    lstamp(a, 20)
    a("s_waitcnt lgkmcnt(0)\ns_setprio 0\ns_barrier")
    hrd = [f"ds_read_b128 {vr(HF+4*ks,4)}, v9 offset:{HTS*(ks>>3) + 32*(ks&7)}" for ks in range(16)]
    for x in hrd[:12]: a(x)
    a(f"""
    v_lshlrev_b32 v1, 4, v0
    v_mov_b32 v60, 0
    v_mov_b32 v61, 0
    v_mov_b32 v62, 0
    v_mov_b32 v63, 0
    s_mul_i32 s67, s52, {KXD}
    s_add_u32 s67, s67, {KX0}
    v_mov_b32 v3, s67
    s_lshl_b32 s66, s53, 11
    s_add_u32 s66, s66, s67
    v_lshrrev_b32 v2, 5, v0
    v_and_b32 v4, 31, v0
    v_lshlrev_b32 v4, 4, v4
    v_lshl_add_u32 v2, v2, 9, v4
    v_add_u32 v2, s66, v2
    s_waitcnt lgkmcnt(4)
    """)
    for x in hrd[12:]: a(x)
    km = lambda ks: a(f"v_mfma_f32_32x32x16_bf16 {vr(AK,16)}, {vr(HF+4*ks,4)}, {vr(LF+4*ks,4)}, {'0' if ks == 0 else vr(AK,16)}")
    for ks in range(8): km(ks)
    lstamp(a, 21)
    a("s_waitcnt lgkmcnt(0)\ns_barrier")
    bulk = att_bulk()
    for ks in range(8, 16):
        km(ks)
        for x in bulk[7 * (ks - 8):7 * (ks - 7)]: a(x)
    a("ds_write_b128 v3, v[60:63]")
    for rg in range(2): a(f"v_cndmask_b32 v{AK+8*rg+4}, v{AK+8*rg+4}, v{AK+8*rg+5}, s[70:71]")
    for i in range(8): a(f"v_cvt_pk_bf16_f32 v{40+i}, v{AK+2*i}, v{AK+2*i+1}")
    for rg in range(2): a(f"ds_write_b128 v2, {vr(40+4*rg,4)} offset:{16 + 1024*rg}")
    lstamp(a, 22)
    a("s_waitcnt lgkmcnt(0)\ns_barrier")
    a(f"v_and_b32 v55, 31, v0\nv_lshlrev_b32 v55, 3, v55\nbuffer_load_dword v{VT}, v55, {R_WS}, s72 offen {SC}")
    tp = OPT.get("tp", "b6")
    if tp == "b4": touch(a)
    a(f"""
    v_add_u32 v2, s66, v1
    ds_read_b64 v[40:41], v2 offset:8
    ds_read_b128 v[42:45], v2 offset:16
    ds_read_b64 v[46:47], v2 offset:{1024+8}
    ds_read_b128 v[48:51], v2 offset:{1024+16}
    s_cmp_eq_u32 s52, 0
    s_cselect_b32 s67, 0, {slot_addr(4)}
    v_bfe_u32 v2, v0, 2, 2
    v_mul_u32_u24 v2, {RE}, v2
    v_and_b32 v3, 3, v0
    v_min_u32 v3, 2, v3
    v_lshl_add_u32 v2, v3, 4, v2
    v_add_u32 v52, s67, v2
    s_lshl_b32 s69, s53, 11
    s_sub_u32 s66, s67, s69
    s_add_u32 s66, s66, {255*16 - 1024}
    v_sub_u32 v53, s66, v1
    v_min_u32 v2, 32, v0
    s_mul_i32 s66, s53, {US}
    s_add_u32 s66, s66, s67
    s_add_u32 s66, s66, {RSZ}
    v_lshl_add_u32 v54, v2, 4, s66
    s_mov_b32 s69, 0xffff
    s_waitcnt lgkmcnt(0)
    """)
    RG = 96
    for q in range(2):
        w = lambda i: 40 + 6 * q + 2 + i
        for e in range(4):
            o = RG + 16 * q + 4 * e
            for i in range(4):
                hi = 3 - i - (0 if e >= 2 else 1)
                if e & 1: a(f"v_alignbit_b32 v{o+i}, v{w(hi)}, v{w(hi)}, 16")
                else: a(f"v_bfi_b32 v{o+i}, s69, v{w(hi)}, v{w(hi-1)}")
    a.on = False
    a(f"""
    v_lshlrev_b32 v1, 4, v0
    v_mov_b32 v60, 0
    s_lshl_b32 s66, s51, 2
    s_add_u32 s66, s66, 32000
    v_mov_b32 v59, s66
    ds_write_b32 v59, v60
    s_lshl_b32 s71, {SX}, 18
    s_lshl_b32 s69, {SJ}, 13
    s_add_u32 s71, s71, s69
    s_lshl_b32 s69, s52, 6
    s_add_u32 s71, s71, s69
    s_lshl_b32 s69, s53, 12
    s_add_u32 s71, s71, s69
    s_add_u32 s71, s71, {XT}
    v_lshrrev_b32 v2, 2, v0
    v_and_b32 v3, 3, v0
    v_lshlrev_b32 v3, 4, v3
    v_lshl_add_u32 v56, v2, 7, v3
    s_lshl_b32 s70, s53, 11
    s_add_u32 s69, s67, s70
    s_add_u32 s69, s69, {RSZ + 512}
    v_add_u32 v57, s69, v1
    s_lshl_b32 s73, s53, 8
    s_sub_u32 s73, s67, s73
    s_add_u32 s66, s73, {4128 - 64*7 - 512*7 + 256}
    v_and_b32 v4, 3, v0
    v_mul_u32_u24 v4, {RE}, v4
    v_lshrrev_b32 v2, 4, v0
    v_bfe_u32 v3, v0, 2, 2
    v_add_u32 v3, v3, v2
    v_lshlrev_b32 v3, 4, v3
    v_sub_u32 v4, v4, v3
    v_add_u32 v{CA}, s66, v4
    s_add_u32 s66, s73, {RSZ + US + 512 + 48 - 64*7 + 256}
    v_bfe_u32 v4, v0, 1, 3
    v_lshlrev_b32 v4, 6, v4
    v_lshlrev_b32 v3, 4, v2
    v_sub_u32 v5, v4, v3
    v_add_u32 v4, v4, v3
    v_and_b32 v3, 1, v0
    v_lshl_add_u32 v4, v3, 3, v4
    v_mul_u32_u24 v3, {US}, v3
    v_sub_u32 v5, v5, v3
    v_add_u32 v{CB}, s66, v5
    v_add_u32 v{CU}, s69, v4
    v_add_u32 v{DA}, s70, v4
    v_add_u32 v{DA+1}, 512, v{DA}
    v_add_u32 v{DA+2}, 1024, v{DA}
    v_add_u32 v{DA+3}, 1536, v{DA}
    s_lshl_b32 s66, s51, 12
    s_add_u32 s66, s66, {OS}
    v_add_u32 v{CE}, s66, v1
    s_lshl_b32 s66, s54, 12
    s_add_u32 s66, s66, {BT}
    """)
    for x in att_addr(): a(x)
    lstamp(a, 23)
    a("s_waitcnt lgkmcnt(0)\ns_barrier")
    def uload():
        for q in range(2): a(f"buffer_load_dwordx4 {vr(32+4*q,4)}, v56, {R_WS}, s71 offen offset:{2048*q} {SC}")
    def ustore():
        for q in range(2): a(f"ds_write_b128 v57, {vr(32+4*q,4)} offset:{1024*q}")
        for q in range(2):
            a(f"ds_write_b64 v57, {vr(32+4*q,2)} offset:{1024*q + US + 8}")
            a(f"ds_write_b64 v57, {vr(34+4*q,2)} offset:{1024*q + US + 16}")
    nt = 0 if tp == "b4" else 2
    a(f"""
    s_waitcnt vmcnt({2 - nt})
    v_cmp_ne_u32 s[94:95], v{VT}, v{VN}
    s_cmp_lg_u64 s[94:95], 0
    s_cbranch_scc1 L_u_skip
    """)
    uload()
    a("L_u_skip:")
    if tp == "b5": touch(a)
    a.on = True
    a("ds_write_b128 v52, v[60:63] offset:4096\nds_write_b128 v54, v[60:63]")
    rw = [f"ds_write_b128 v53, {vr(RG+16*q+4*e,4)} offset:{e*RE + 1024*(1-q)}" for q in range(2) for e in range(4)]
    rcut = int(OPT.get("rcut", 5))
    for x in rw[:rcut]: a(x)
    a("s_waitcnt lgkmcnt(0)\ns_barrier")
    for x in rw[rcut:]: a(x)
    a.on = False
    if tp == "b6": touch(a)
    a("s_barrier")
    a(f"s_cmp_lg_u64 s[94:95], 0\ns_cbranch_scc0 L_u_have")
    poll(a, "s1", 55, "s72")
    uload()
    a(f"s_waitcnt vmcnt(0)\nL_u_have:\ns_waitcnt vmcnt({nt})")
    ustore()
    a(f"""
    ds_write_b32 v59, v59
    v_xor_b32 v59, 4, v59
    s_mov_b32 s92, {SPIN}
    L_pair:
    ds_read_b32 v58, v59
    s_waitcnt lgkmcnt(0)
    v_readfirstlane_b32 s93, v58
    s_sub_u32 s92, s92, 1
    s_cmp_eq_u32 s92, 0
    s_cbranch_scc1 L_pair_ok
    s_cmp_eq_u32 s93, 0
    s_cbranch_scc1 L_pair
    L_pair_ok:
    """)
    lstamp(a, 25)
    conv(a)
    lstamp(a, 3)

def att_main(a, hooks, prios):
    p2, pr, pq, p1 = [int(x) for x in OPT.get("ord", "2,2,5,10").split(",")]
    def rdk(t):
        b, o = (1, 2048 * t) if t < 32 else (80, 2048 * (t - 32))
        a(f"ds_read_b128 {vr(AKS[t&1],4)}, v{b} offset:{o}")
    def rdv(t):
        b, o = (2, 2048 * t) if t < 32 else (81, 2048 * (t - 32))
        a("s_mov_b64 exec, s[82:83]")
        a(f"ds_read_b128 {vr(AV1[t&1],4)}, v{b} offset:{o}")
        a(f"ds_read_b128 {vr(AV2[t&1],4)}, v{b} offset:{o+512}")
        a("s_mov_b64 exec, -1")
    rdk(0); rdk(1); rdv(0)
    a("s_waitcnt lgkmcnt(3)")
    a(f"v_mfma_f32_32x32x16_bf16 {vr(AS_[0],16)}, {vr(AKS[0],4)}, {vr(AQ,4)}, 0")
    for t in range(64):
        c, n = AS_[t & 1], AS_[(t + 1) & 1]
        if t in prios: a(f"s_setprio {prios[t]}")
        k = 0
        for e in range(17):
            if e == p2 and t: a(f"v_smfmac_f32_32x32x32_bf16 {vr(AO,16)}, {vr(AV2[(t-1)&1],4)}, {vr(n+8,8)}, v3")
            if e == pq and pq < pr: a("s_waitcnt lgkmcnt(0)")
            if e == pq and pq < pr and t + 1 < 64: a(f"v_mfma_f32_32x32x16_bf16 {vr(n,16)}, {vr(AKS[(t+1)&1],4)}, {vr(AQ,4)}, 0")
            if e == pr:
                if t in hooks: hooks[t]()
                if OPT.get("kfirst") and t + 2 < 64: rdk(t + 2); k += 1
                if t + 1 < 64: rdv(t + 1); k += 2
                if not OPT.get("kfirst") and t + 2 < 64: rdk(t + 2); k += 1
            if e == pq and pq >= pr:
                a(f"s_waitcnt lgkmcnt({k})")
                if t + 1 < 64: a(f"v_mfma_f32_32x32x16_bf16 {vr(n,16)}, {vr(AKS[(t+1)&1],4)}, {vr(AQ,4)}, 0")
            if e == p1: a(f"v_smfmac_f32_32x32x32_bf16 {vr(AO,16)}, {vr(AV1[t&1],4)}, {vr(c,8)}, v3")
            if e < 16: a(f"v_exp_f32 v{c+e}, v{c+e}")
    a(f"v_smfmac_f32_32x32x32_bf16 {vr(AO,16)}, {vr(AV2[1],4)}, {vr(AS_[1]+8,8)}, v3")

def att_finish2(a, tag):
    a(f"s_mov_b32 s84, 0x2b800000\ns_mov_b32 s85, 0x5d800000\nv_fma_f32 v8, v{AO}, 0, v{AO+8}")
    for r in range(1, 8): a(f"v_fma_f32 v8, v{AO+r}, 0, v8")
    a(f"""
    v_cmp_nge_f32 vcc, v8, s84
    v_cmp_nle_f32 s[90:91], v8, s85
    s_or_b64 vcc, vcc, s[90:91]
    s_cbranch_vccnz L_{tag}_slow
    L_{tag}_norm:
    v_rcp_f32 v8, v{AO+8}
    """)
    for r in range(8): a(f"v_mul_f32 v{AO+r}, v8, v{AO+r}")
    for r in range(4): a(f"v_cvt_pk_bf16_f32 v{12+r}, v{AO+2*r}, v{AO+2*r+1}")
    for r in range(4): a(f"v_min_u32 v{12+r}, -2, v{12+r}")
    a(f"buffer_store_dwordx4 v[12:15], v1, {R_WS}, s87 offen {OPT.get('ostm', SC).replace('_', ' ')}")

def out_gemm(a):
    a(f"""
    v_lshlrev_b32 v2, 9, v86
    v_lshl_add_u32 v2, v87, 4, v2
    v_add_u32 v2, {OS}, v2
    v_lshlrev_b32 v3, 10, v87
    v_lshl_add_u32 v3, v86, 3, v3
    s_lshl_b32 s84, s88, 15
    s_lshl_b32 s86, s89, 5
    s_add_u32 s84, s84, s86
    v_add_u32 v3, s84, v3
    v_add_u32 v4, 0x4000, v3
    """)
    def go():
        NB = 12; FB = 16
        rd = lambda i: a(f"ds_read_b128 {vr(FB+4*(i%NB),4)}, v2 offset:{2048*(i>>1) + 256*(i&1)}")
        for i in range(NB): rd(i)
        for g in range(8):
            a(f"s_waitcnt lgkmcnt({min(8, 28 - 4 * g)})")
            for i in range(4 * g, 4 * g + 4):
                acc = 8 + 4 * (i & 1)
                a(f"v_mfma_f32_16x16x32_bf16 {vr(acc,4)}, {vr(PW+4*(i>>1),4)}, {vr(FB+4*(i%NB),4)}, {'0' if i < 2 else vr(acc,4)}")
            for i in range(4 * g + NB, min(4 * g + NB + 4, 32)): rd(i)
        for nt in range(2):
            for i in range(4): a(f"v_fma_f32 v{8+4*nt+i}, v{8+4*nt+i}, v{PG+nt}, v{PB+4*nt+i}")
            a(f"v_cvt_pk_bf16_f32 v{16+2*nt}, v{8+4*nt}, v{9+4*nt}\nv_cvt_pk_bf16_f32 v{17+2*nt}, v{10+4*nt}, v{11+4*nt}")
            a(f"global_store_dwordx2 v{3+nt}, {vr(16+2*nt,2)}, {S_OUT} {OPT.get('outmod', '')}")
    return go

def build_fused():
    a = Asm()
    k = NAME + "_kernel"
    launches = f"; @launch grid=(256,1,1) block=(512,1,1) lds={LDS_BYTES}\n"
    if G.STAMPS:
        launches = f"; @launch kernel={k} grid=(256,1,1) block=(512,1,1) lds={LDS_BYTES}\n; @launch kernel=stamp_kernel grid=(1,1,1) block=(256,1,1) lds=1024\n"
    a.raw(header() + launches + '.amdgcn_target "amdgcn-amd-amdhsa--gfx950"\n.text')
    kernel_head(a, k)
    if "amp" in OPT: lstamp(a, "E")
    prologue(a, "L_end")
    lstamp(a, 0)
    a(f"s_cmp_lt_u32 {SW}, 4\ns_cbranch_scc1 L_gemm")
    a_params(a)
    a("s_barrier\ns_branch L_aux")
    a.reset(); a("L_gemm:")
    g_phase1(a)
    lg = list(G.LIGHT); G.LIGHT[:] = [s for s in lg if s == 0]
    a("s_branch L_att")
    a.reset(); a("L_aux:")
    a_phase1(a)
    la = list(G.LIGHT); G.LIGHT[:] = sorted(set(la) | set(lg))
    a.reset(); a("L_att:")
    for r in range(4): a(f"v_mov_b32 v{VS+r}, -1")
    a("s_barrier")
    a(f"ds_write_b32 v92, v{VZ}")
    lstamp(a, 4)
    KM = "" if OPT.get("kvplain") else SC
    a(f"buffer_load_dwordx4 {vr(AQ,4)}, v1, {R_WS}, s77 offen {KM}")
    kv_dma(a, range(16) if OPT.get("kvall") else [0], KM)
    lstamp(a, 26)
    conv_finish(a)
    a("s_waitcnt vmcnt(0) lgkmcnt(0)\ns_barrier"); lstamp(a, 27)
    mode = OPT.get("sched", "slow"); TB2 = int(OPT.get("tb2", 10))
    if mode == "slow": sched = {0: [1, 2], 1: [3], **{t: [t + 2] for t in range(2, 14)}}
    else: sched = {0: [1, 2], 1: [3], **{t: [2 * t, 2 * t + 1] for t in range(2, 8)}}
    def early_stores():
        deferred_stores(a)
        a(f"""
        s_lshl_b32 s87, s76, 5
        s_add_u32 s87, s87, s74
        s_lshl_b32 s87, s87, 10
        s_add_u32 s87, s87, {OF}
        buffer_store_dwordx4 {vr(VS,4)}, v1, {R_WS}, s87 offen {SC}
        """)
    def hdma(t):
        def f():
            if t == 2: a("s_waitcnt vmcnt(1)\ns_barrier")
            if t == 2 and mode == "mid": early_stores()
            if t == 10: a("s_waitcnt vmcnt(1)\ns_barrier"); lstamp(a, 28)
            kv_dma(a, sched[t], KM)
        return f
    def s3_addr(): a(f"s_lshl_b32 s85, {SX}, 7\ns_lshl_b32 s86, {SJ}, 2\ns_add_u32 s85, s85, s86\ns_add_u32 s85, s85, {F_S3}")
    def h_bar():
        a("s_waitcnt vmcnt(0)\ns_barrier"); s3_addr()
        a(f"s_cmp_lg_u32 {SW}, 0\ns_cbranch_scc1 L_s3_skip")
        signal(a, "s85")
        a("L_s3_skip:")
        if mode != "slow": lstamp(a, 28)
    def h_cnt():
        a(f"""
        s_waitcnt vmcnt(0)
        s_mov_b64 exec, 1
        ds_add_rtn_u32 v93, v92, v93
        s_mov_b64 exec, -1
        """)
    def h_s3sig():
        a("v_readfirstlane_b32 s84, v93"); s3_addr()
        a("s_cmp_lg_u32 s84, 7\ns_cbranch_scc1 L_s3_skip")
        signal(a, "s85")
        a("L_s3_skip:")
    def h_s3ld():
        a(f"s_mov_b32 s84, {F_S3}\nbuffer_load_dwordx4 {vr(VT,4)}, v1, {R_WS}, s84 offen {SC}")
    def wof_dma(r):
        for i in range(4): a(f"buffer_load_dwordx4 v1, {R_WS}, s90 offen offset:{1024*i} {SC} lds")
        if r < 3: a("s_add_u32 s90, s90, 4096")
    def h_s3chk():
        a("s_waitcnt vmcnt(0)")
        poll(a, "s3", 1, "s84", True, 4)
        a(f"""
        s_lshl_b32 s88, s75, 3
        s_lshr_b32 s89, s74, 2
        s_add_u32 s88, s88, s89
        s_and_b32 s89, s74, 3
        s_lshl_b32 s89, s89, 3
        s_add_u32 s89, s89, {SW}
        s_lshl_b32 s90, s89, 14
        s_add_u32 s90, s90, {WOF}
        s_lshl_b32 s86, {SW}, 12
        s_add_u32 s86, s86, {OS}
        s_mov_b32 m0, s86
        v_add_u32 v92, s86, v1
        """)
        if OPT.get("nos3"): return
        wof_dma(0)
        a(f"""
        s_or_b32 s84, s2, {SW}
        s_cmp_lg_u32 s84, 0
        s_cbranch_scc1 L_n_skip
        s_mov_b32 s84, {F_N}
        """)
        signal(a, "s84")
        a("L_n_skip:")
    def h_wrd(r):
        def f():
            if OPT.get("nos3"): return
            a("s_waitcnt vmcnt(0)")
            for i in range(4): a(f"ds_read_b128 {vr(PW+16*r+4*i,4)}, v92 offset:{1024*i}")
        return f
    def h_wld(r):
        def f():
            if OPT.get("nos3"): return
            wof_dma(r)
        return f
    def h_side():
        if OPT.get("nos3"):
            a("v_lshrrev_b32 v86, 4, v0\nv_and_b32 v87, 15, v0"); return
        a(f"""
        v_lshrrev_b32 v86, 4, v0
        v_and_b32 v87, 15, v0
        v_lshlrev_b32 v88, 14, v86
        v_lshl_add_u32 v88, v87, 1, v88
        s_lshl_b32 s90, s89, 16
        s_lshl_b32 s91, s88, 6
        s_add_u32 s90, s90, s91
        s_add_u32 s90, s90, {BT}
        """)
        for i in range(4):
            if i: a("s_add_u32 s90, s90, 4096")
            for nt in range(2): a(f"buffer_load_short_d16_hi v{PB+4*nt+i}, v88, {R_WS}, s90 offen offset:{32*nt} {SC}")
        a(f"""
        v_lshlrev_b32 v88, 2, v87
        s_lshl_b32 s90, s88, 7
        s_add_u32 s90, s90, {GW}
        buffer_load_dword v{PG}, v88, {R_WS}, s90 offen {SC}
        buffer_load_dword v{PG+1}, v88, {R_WS}, s90 offen offset:64 {SC}
        """)
    hooks = {t: hdma(t) for t in sched}
    if mode == "slow" and OPT.get("bar3"): hooks.update({14: early_stores, int(OPT["bar3"]): h_bar})
    elif mode == "slow": hooks.update({14: early_stores, 19: h_cnt, 20: h_s3sig})
    else: hooks.update({TB2: h_bar})
    if OPT.get("wbl2"):
        def h_wb(): a(f"s_or_b32 s84, {SJ}, {SW}\ns_cmp_lg_u32 s84, 0\ns_cbranch_scc1 L_wb_skip\nbuffer_wbl2 sc1\nL_wb_skip:")
        hooks[24] = h_wb
    hooks.update({34: h_s3ld, 38: h_s3chk, 58: h_side})
    for r in range(4):
        hooks[42 + 5 * r] = h_wrd(r)
        if r < 3: hooks[43 + 5 * r] = h_wld(r + 1)
    prios = {0: 1, 1: 0, 2: 3, 5: 2, 8: 1, 9: 0, 10: 3, 22: 2, 48: 1, 60: 0}
    if "prios" in OPT: prios = {int(x.split(":")[0]): int(x.split(":")[1]) for x in OPT["prios"].split(",")}
    att_main(a, hooks, prios)
    lstamp(a, 29)
    att_finish2(a, "at")
    lstamp(a, 5)
    a(f"""
    s_lshl_b32 s93, s88, 15
    s_lshl_b32 s86, {SW}, 12
    s_add_u32 s93, s93, s86
    s_add_u32 s93, s93, {OF}
    """)
    OM = OPT.get("omod", SC).replace("_", " ")
    odma = lambda: [a(f"buffer_load_dwordx4 v1, {R_WS}, s93 offen offset:{1024*i} {OM} lds") for i in range(4)]
    odma()
    a("s_waitcnt vmcnt(5)")
    out_side_math(a)
    gemm = out_gemm(a)
    a(f"s_mov_b32 s92, {SPIN}\ns_branch L_o_chk\nL_o_again:")
    if OPT.get("osleep"): a(f"s_sleep {OPT['osleep']}")
    odma()
    a("L_o_chk:\ns_waitcnt vmcnt(0)")
    for i in range(4): a(f"ds_read_b128 {vr(16+4*i,4)}, v92 offset:{1024*i}")
    a("s_sub_u32 s92, s92, 1\ns_waitcnt lgkmcnt(2)")
    a("v_max3_u32 v5, v16, v17, v18\nv_max3_u32 v6, v19, v20, v21\nv_max3_u32 v5, v22, v23, v5\ns_waitcnt lgkmcnt(0)")
    a("v_max3_u32 v6, v24, v25, v6\nv_max3_u32 v5, v26, v27, v5\nv_max3_u32 v6, v28, v29, v6\nv_max3_u32 v5, v30, v31, v5\nv_max_u32 v5, v5, v6")
    a("""
    v_cmp_eq_u32 vcc, -1, v5
    s_cmp_eq_u32 s92, 0
    s_cbranch_scc1 L_o_ok
    s_cbranch_vccnz L_o_again
    L_o_ok:
    """)
    lstamp(a, 30)
    a("s_barrier")
    gemm()
    lstamp(a, 7)
    if G.STAMPS:
        lflush(a, range(8))
        for s in la:
            if s: G.STAMP_WAVES[s] = list(range(4, 8))
        for s in lg:
            if s: G.STAMP_WAVES[s] = list(range(4))
    if "amp" in OPT:
        w = OPT["amp"].split(",")[2]
        a(f"""
        s_cmp_lg_u32 s2, {OPT.get("ampwg", 0)}
        s_cbranch_scc1 L_end
        s_cmp_lg_u32 {SW}, {w}
        s_cbranch_scc1 L_end
        s_sub_u32 s98, s98, s96
        s_lshl_b32 s98, s98, 2
        s_min_u32 s98, s98, 40000
        s_memrealtime s[96:97]
        s_waitcnt lgkmcnt(0)
        L_amp:
        s_memrealtime s[100:101]
        s_waitcnt lgkmcnt(0)
        s_sub_u32 s100, s100, s96
        s_cmp_lt_u32 s100, s98
        s_cbranch_scc1 L_amp
        """)
    a("L_end:\ns_endpgm")
    att_slow(a, "at")
    a("L_codeend:\ns_endpgm")
    if G.STAMPS: stamp_reduce_kernel(a)
    a.raw('.section .rodata,"a"')
    if G.STAMPS: a.raw(descriptor("stamp_kernel", 32))
    a.raw(descriptor(k, 256))
    return a.text()

if __name__ == "__main__":
    out = sys.argv[1]
    for o in sys.argv[2:]:
        kk, _, v = o.partition("="); OPT[kk] = v or True
    G.STAMPS = bool(OPT.get("stamp"))
    OPT.setdefault("ones", "few"); OPT.setdefault("nowpf", True); OPT.setdefault("qmod", "plain"); OPT.setdefault("touch", "a"); OPT.setdefault("sched", "slow"); OPT.setdefault("wbl2", True); OPT.setdefault("omod", "sc0_sc1"); OPT.setdefault("ostm", "sc0_sc1")
    txt = build_fused()
    open(out, "w").write(txt)
    print("wrote", out, len(txt), "bytes")
```

```python
import sys
import gen as G
from gen import (Asm, OPT, NAME, vr, VM, prologue, aux_ids, kernel_head, descriptor, header, lstamp, lflush, stamp_reduce_kernel,
                 QF, KV, XT, BT, OF, WOF, GW, LDS_BYTES, LOG2E, INV2PI, QSCALE,
                 S_X, S_WO, S_LOGA, S_AIM, S_CR, S_CI, S_LDT, S_DSK, S_GWT, S_OUT, R_X, R_W, R_WS, SX, SJ, SW,
                 AQ, AKS, AV1, AV2, AS_, AO, PW, PB, PG, att_slow, out_side_loads, out_side_math)
from gen2 import cmuls, RowWriter, cexp

SC = "sc1"
SPIN = 400000
FL = 0xC90000
F_N, F_S1, F_S2, F_S3, F_S4 = FL, FL + 0x1000, FL + 0x3000, FL + 0x4000, FL + 0x8000
SLOT = 32768
def slot_addr(t): return SLOT * (1 + ((t + 1) & 3))
TBS, HTS = 8704, 7344
EX0, KX0, KXD = 0, 16384, 4608
RE, RSZ = 4160, 16640
US = 4640
OS = 131072
VN, VX, VZ, VT, VS = 240, 241, 242, 244, 236
DB, DA = 224, 232
PRIOS = {0: 3, 38: 2, 54: 1, 61: 0}

def poll(a, tag, vaddr, soff, first_issued=False, n=1, ncmp=None, vt=VT, sleep=4):
    ld = f"buffer_load_dword{'' if n == 1 else 'x%d' % n} {vr(vt, n)}, v{vaddr}, {R_WS}, {soff} offen {SC}"
    ncmp = ncmp or n
    a(f"s_mov_b32 s92, {SPIN}")
    if first_issued: a(f"s_branch L_{tag}_chk")
    a(f"L_{tag}_poll:\n{ld}\ns_waitcnt vmcnt(0)")
    a(f"L_{tag}_chk:")
    a(f"v_cmp_ne_u32 vcc, v{vt}, v{VN}")
    for i in range(1, ncmp): a(f"v_cmp_ne_u32 s[90:91], v{vt+i}, v{VN}\ns_or_b64 vcc, vcc, s[90:91]")
    if ncmp == 1: a("s_nop 1")
    a(f"""
    s_cbranch_vccz L_{tag}_ok
    s_sleep {sleep}
    s_sub_u32 s92, s92, 1
    s_cmp_lg_u32 s92, 0
    s_cbranch_scc1 L_{tag}_poll
    L_{tag}_ok:
    """)

def signal(a, soff, mod=SC, n=1):
    a(f"""
    s_mov_b64 exec, 1
    buffer_store_dword{'' if n == 1 else 'x2'} {vr(VN, n)}, v{VZ}, {R_WS}, {soff} offen {mod}
    s_mov_b64 exec, -1
    """)

def epoch_load(a):
    a(f"v_mov_b32 v{VZ}, 0\ns_mov_b32 s56, {F_N}\nbuffer_load_dword v{VN}, v{VZ}, {R_WS}, s56 offen {SC}")

def epoch_next(a):
    a(f"s_mov_b32 s55, 1664525\nv_mul_lo_u32 v{VN}, v{VN}, s55\nv_add_u32 v{VN}, 1013904223, v{VN}")

DX, DW = 94, 95
def dma_setup(a):
    a(f"""
    v_lshrrev_b32 v1, 3, v0
    v_lshrrev_b32 v2, 4, v0
    s_and_b32 s58, {SW}, 1
    s_lshl_b32 s56, s58, 2
    v_add_u32 v3, s56, v2
    v_and_b32 v{DW}, 7, v0
    v_xor_b32 v3, v3, v{DW}
    v_lshlrev_b32 v3, 4, v3
    v_lshl_add_u32 v{DX}, v1, 10, v3
    v_and_b32 v2, 1, v2
    v_lshlrev_b32 v2, 2, v2
    v_xor_b32 v2, v2, v{DW}
    v_lshlrev_b32 v2, 4, v2
    v_mov_b32 v3, 0xc00
    v_mad_u32_u24 v{DW}, v1, v3, v2
    s_lshl_b32 s44, {SJ}, 16
    s_lshl_b32 s45, {SW}, 13
    s_add_u32 s44, s44, s45
    s_mul_i32 s45, {SW}, {16*3072}
    s_lshl_b32 s56, {SX}, 7
    s_add_u32 s45, s45, s56
    s_lshl_b32 s46, {SW}, 10
    s_lshl_b32 s47, {SW}, 11
    """)

def dma_pieces(t, part="xw"):
    base = slot_addr(t); out = []
    head = f"s_add_u32 s56, {SX}, {t}\ns_and_b32 s56, s56, 7\n"
    if "x" in part:
        for i in range(2):
            p = (head + "s_lshl_b32 s57, s56, 7\ns_add_u32 s57, s57, s44\n") if i == 0 else "s_add_u32 s57, s57, 0x8000\n"
            out.append(p + f"s_add_u32 m0, s46, {base + i*4096}\nbuffer_load_dwordx4 v{DX}, {R_X}, s57 offen lds")
        head = ""
    if "w" in part:
        for i in range(2):
            for ty in range(3):
                p = ""
                if ty == 0: p = (head + f"s_mul_i32 s56, s56, {64*3072}\ns_add_u32 s56, s56, s45\n") if i == 0 else f"s_add_u32 s56, s56, {8*3072}\n"
                out.append(p + f"s_add_u32 m0, s47, {base + 8192 + ty*8192 + i*1024 - ty*1024}\nbuffer_load_dwordx4 v{DW}, {R_W}, s56 offen offset:{ty*1024} lds")
    return out

def dma(a, vm, t, part="xw", tag=None):
    for p in dma_pieces(t, part): a(p); vm.add(tag or f"s{t}")

T0 = 48
QS = 147456
def kv_dma(a, rounds, mod, both=False):
    for r in rounds:
        o = 8192 * ((r + T0 // 4) & 15)
        a(f"s_add_u32 m0, s79, {o}\ns_add_u32 s80, s78, {o}\nbuffer_load_dwordx4 v1, {R_WS}, s80 offen {mod} lds")
        if both: a(f"s_add_u32 m0, s79, {o + 4096}\ns_add_u32 s80, s78, {o + 4096}\nbuffer_load_dwordx4 v1, {R_WS}, s80 offen {mod} lds")

def att_bulk():
    l = f"""
    s_lshr_b32 s74, {SJ}, 3
    s_lshl_b32 s75, {SX}, 2
    s_add_u32 s74, s74, s75
    s_and_b32 s75, {SJ}, 7
    s_lshl_b32 s76, s75, 3
    s_add_u32 s76, s76, {SW}
    s_lshl_b32 s77, s74, 6
    s_add_u32 s77, s77, s76
    s_lshl_b32 s77, s77, 10
    s_add_u32 s77, s77, {QF}
    s_lshl_b32 s78, s74, 17
    s_lshl_b32 s79, {SW}, 10
    s_add_u32 s78, s78, s79
    s_add_u32 s78, s78, {KV}
    s_mov_b32 s82, 0xffff
    s_mov_b32 s83, 0xffff
    v_and_b32 v16, 27, v0
    v_cmp_eq_u32 vcc, 16, v16
    v_mov_b32 v17, 0x3f803f80
    v_mov_b32 v92, {LDS_BYTES - 4}
    v_cndmask_b32 v16, 0, v17, vcc
    v_mov_b32 v93, 1
    """.strip().split("\n")
    l += [f"v_mov_b32 v{r}, v16" for r in range(17, 32)] + [f"v_mov_b32 v{AO+r}, 0" for r in range(16)]
    return [x.strip() for x in l]

def att_addr():
    return [x.strip() for x in """
    v_lshlrev_b32 v1, 4, v0
    v_lshrrev_b32 v2, 5, v0
    v_lshlrev_b32 v2, 8, v2
    v_and_b32 v3, 15, v0
    v_lshl_add_u32 v2, v3, 4, v2
    v_add_u32 v2, 1024, v2
    v_add_u32 v80, 0x10000, v1
    v_add_u32 v81, 0x10000, v2
    v_mov_b32 v3, 0xdddddddd
    """.strip().split("\n")]

def g_phase1(a):
    vm = VM()
    ACC = (96, 112, 128); SETS = (144, 160, 176, 192)
    XA, WA = 4, 12
    GX, GG, GO = 32, 40, 44
    dma_setup(a)
    a("s_barrier")
    for t in range(2): dma(a, vm, t)
    lstamp(a, 18)
    a(f"""
    s_getreg_b32 s62, hwreg(HW_REG_XCC_ID)
    v_mov_b32 v{VX}, s62
    s_lshr_b32 s59, {SW}, 1
    v_and_b32 v1, 31, v0
    s_lshl_b32 s60, s58, 12
    s_add_u32 s60, s60, {SLOT}
    v_lshlrev_b32 v2, 7, v1
    v_add_u32 v2, s60, v2
    v_bfe_u32 v1, v0, 1, 3
    v_lshrrev_b32 v3, 5, v0
    v_xor_b32 v1, v1, v3
    """)
    for ks in range(4):
        a(f"v_xor_b32 v3, {2*ks}, v1\nv_lshl_add_u32 v{XA+ks}, v3, 4, v2\nv_add_u32 v{XA+4+ks}, 0x10000, v{XA+ks}")
    a(f"""
    v_lshrrev_b32 v1, 5, v0
    v_lshlrev_b32 v1, 10, v1
    v_bfe_u32 v2, v0, 2, 2
    v_lshl_add_u32 v1, v2, 7, v1
    v_bfe_u32 v2, v0, 3, 1
    v_xor_b32 v2, s59, v2
    v_lshl_add_u32 v1, v2, 6, v1
    v_bfe_u32 v2, v0, 4, 1
    v_lshl_add_u32 v1, v2, 5, v1
    v_and_b32 v2, 3, v0
    v_lshl_add_u32 v1, v2, 3, v1
    v_add_u32 v{WA}, {SLOT + 8192}, v1
    v_add_u32 v{WA+1}, {SLOT + 8192 + 65536}, v1
    """)
    epoch_load(a); vm.add("n")
    dma(a, vm, 2)
    if OPT.get("s3pre") != "0": dma(a, vm, 3, "w", "s3w")
    lstamp(a, 1)
    fill = [x.strip() for x in f"""
    ; side-load addresses: v14 gate rows, v15 gate weights, v52/v57 wo gathers; s67 gate output, s69 wo fragment output
    s_lshl_b32 s67, {SJ}, 6
    s_lshl_b32 s62, {SX}, 3
    s_add_u32 s67, s67, s62
    s_lshl_b32 s62, {SW}, 1
    s_add_u32 s67, s67, s62
    v_lshlrev_b32 v15, 4, v0
    s_lshl_b32 s62, s67, 10
    v_add_u32 v14, s62, v15
    s_lshl_b32 s62, {SX}, 5
    s_add_u32 s62, s62, {SJ}
    s_lshr_b32 s69, s62, 3
    s_and_b32 s63, s62, 7
    s_lshl_b32 s63, s63, 1
    s_add_u32 s63, s63, s58
    s_lshl_b32 s64, s63, 15
    s_lshl_b32 s62, s69, 5
    s_add_u32 s64, s64, s62
    v_lshrrev_b32 v3, 5, v0
    v_lshlrev_b32 v3, 14, v3
    v_bfe_u32 v2, v0, 4, 1
    v_lshl_add_u32 v3, v2, 12, v3
    v_and_b32 v2, 15, v0
    v_lshl_add_u32 v3, v2, 1, v3
    v_add_u32 v52, s64, v3
    v_add_u32 v57, 0x2000, v52
    s_lshl_b32 s69, s69, 4
    s_add_u32 s69, s69, s63
    s_lshl_b32 s69, s69, 10
    s_add_u32 s69, s69, {WOF}
    s_lshl_b32 s67, s67, 2
    s_add_u32 s67, s67, {GW}
    ; hand-off words: s72 = die-id line, s70 = projection-done word, s71 = line polled before attention
    s_lshl_b32 s72, {SX}, 2
    s_add_u32 s72, s72, {SW}
    s_lshl_b32 s72, s72, 8
    s_add_u32 s72, s72, {F_S1}
    v_and_b32 v53, 31, v0
    v_lshlrev_b32 v53, 3, v53
    s_lshl_b32 s70, {SX}, 1
    s_lshr_b32 s71, {SJ}, 4
    s_add_u32 s71, s71, s70
    s_lshl_b32 s71, s71, 8
    s_add_u32 s71, s71, {F_S2}
    s_add_u32 s70, s70, s59
    s_lshl_b32 s70, s70, 8
    s_lshl_b32 s62, {SJ}, 3
    s_add_u32 s70, s70, s62
    s_lshl_b32 s62, s58, 2
    s_add_u32 s70, s70, s62
    s_add_u32 s70, s70, {F_S2}
    v_lshlrev_b32 v54, 2, v0
    ; epilogue addresses
    s_lshl_b32 s60, {SX}, 2
    s_lshl_b32 s61, s59, 1
    s_add_u32 s60, s60, s61
    s_lshl_b32 s60, s60, 6
    s_lshl_b32 s61, {SJ}, 1
    s_add_u32 s61, s61, s58
    s_add_u32 s60, s60, s61
    s_lshl_b32 s61, s60, 10
    s_add_u32 s61, s61, {QF}
    s_add_u32 s62, s61, 0x10000
    s_lshl_b32 s63, s60, 11
    s_add_u32 s63, s63, {KV}
    s_add_u32 s64, s63, 0x20000
    s_mov_b32 s65, {QSCALE}
    v_and_b32 v55, 0x33, v0
    v_bfe_u32 v3, v0, 2, 1
    v_lshl_or_b32 v55, v3, 3, v55
    v_bfe_u32 v3, v0, 3, 1
    v_lshl_or_b32 v55, v3, 2, v55
    v_lshlrev_b32 v55, 4, v55
    v_and_b32 v56, 15, v0
    v_lshlrev_b32 v56, 4, v56
    v_lshrrev_b32 v3, 5, v0
    v_lshl_add_u32 v56, v3, 8, v56
    v_bfe_u32 v3, v0, 4, 1
    v_lshl_add_u32 v56, v3, 17, v56
    """.strip().split("\n") if not x.strip().startswith(";")]
    fill += [f"v_mov_b32 v{r}, 0" for r in range(DA, DA + 4)] + att_bulk() + att_addr()
    if OPT.get("fillpre"):
        while fill: a(fill.pop(0))
    def reads(t, ks):
        p = slot_addr(t) // SLOT - 1; s = SETS[ks]; hi = p >> 1; o0 = (p & 1) * SLOT
        l = [f"ds_read_b128 {vr(s,4)}, v{XA + 4*hi + ks} offset:{o0}"]
        for ty in (1, 2, 0):
            for ri in range(2):
                l.append(f"ds_read_b64_tr_b16 {vr(s+4+4*ty+2*ri,2)}, v{WA+hi} offset:{o0 + ty*8192 + ks*2048 + ri*512}")
        return l
    def mf(ks, i, first=False):
        s = SETS[ks]; c = "0" if first else vr(ACC[i], 16)
        ab = f"{vr(s,4)}, {vr(s+12,4)}" if i == 2 else f"{vr(s+4+4*i,4)}, {vr(s,4)}"
        a(f"v_mfma_f32_32x32x16_bf16 {vr(ACC[i],16)}, {ab}, {c}")
    pend = []
    def mm(ks, first, rd=(), nd=2):
        rd = list(rd)
        for i, r in zip((1, 2, 0), (rd[:4], rd[4:], [])):
            mf(ks, i, first)
            for x in r: a(x)
            for _ in range(3 if r else 5):
                if fill: a(fill.pop(0))
        for _ in range(nd):
            if pend:
                tag, p = pend.pop(0)
                if OPT.get("nodma") and tag[0] == "s" and tag != "side": p = "buffer_load_dword v59, v15, s[32:35], 0 offen"
                a(p); vm.add(tag)
    side = [f"global_load_dwordx4 {vr(GX,4)}, v14, {S_X}", f"global_load_dwordx4 {vr(GX+4,4)}, v14, {S_X} offset:1024", f"global_load_dwordx4 {vr(GG,4)}, v15, {S_GWT}"]
    side += [f"global_load_short_d16{'_hi' if j & 1 else ''} v{GO+j}, v{57 if j >> 2 else 52}, {S_WO} offset:{1024*(j&3)}" for j in range(8)]
    for t in range(8):
        if OPT.get("gpos") == "pre": lstamp(a, 8 + t)
        vm.wait(a, f"s{t}")
        if t == 3: epoch_next(a)
        if OPT.get("gpos") == "mid": lstamp(a, 8 + t)
        a("s_barrier")
        if not OPT.get("gpos"): lstamp(a, 8 + t)
        nd = 2
        if t == 0 and OPT.get("s3pre") == "0": pend += [("s3w", p) for p in dma_pieces(3, "w")]; nd = 3
        if t == 1: pend += [("s3", p) for p in dma_pieces(3, "x")]; nd = 3
        if 1 <= t <= 4: pend += [(f"s{t+3}", p) for p in dma_pieces(t + 3)]
        if t == int(OPT.get("tt", 5)) and OPT.get("touch") == "g":
            pend += [("touch", f"s_mov_b32 exec_hi, 0xffff\nbuffer_load_dword v59, v58, {R_WS}, 0 offen\ns_mov_b32 exec_hi, -1")]; nd = 3
        if t == 5: assert not fill, len(fill)
        if t == 5: pend += [("f", f"buffer_load_dwordx2 {vr(VT,2)}, v53, {R_WS}, s72 offen {SC}")]
        if t == 5: pend += [("side", p) for p in side]; nd = 3
        if t == 0:
            for x in reads(0, 0) + reads(0, 1): a(x)
        else:
            if OPT.get("burst"): nd = int(OPT["burst"])
            mm(2, False, reads(t, 0), nd)
            mm(3, False, reads(t, 1), nd)
        a("s_waitcnt lgkmcnt(7)")
        mm(0, t == 0, reads(t, 2), nd)
        a("s_waitcnt lgkmcnt(7)")
        mm(1, False, reads(t, 3), nd)
        assert not pend
        if t == 7 and OPT.get("gprio"): a(f"s_setprio {OPT['gprio']}")
        if t == 7:
            lstamp(a, 6)
            vm.wait(a, "f")
            poll(a, "s1g", 53, "s72", True, 2, 1)
            a(f"v_cmp_ne_u32 s[94:95], v{VT+1}, v{VX}")
        a("s_waitcnt lgkmcnt(0)")
    a("s_cmp_eq_u64 s[94:95], 0")
    if OPT.get("nofast"): a("s_branch L_st_far")
    a("s_cbranch_scc0 L_st_far")
    cv = lambda d, s: [f"v_cvt_pk_bf16_f32 v{d+r}, v{s+2*r}, v{s+2*r+1}" for r in range(8)]
    for fmod in ("", SC):
        mod = fmod or OPT.get("qmod", "").replace("plain", "")
        if fmod: a.reset(); a("L_st_far:")
        for ks, i in ((2, 1), (3, 1), (2, 2), (3, 2), (2, 0)): mf(ks, i)
        a("s_nop 6")
        if not fmod: lstamp(a, 20) if OPT.get("gst") else None
        for x in cv(144, ACC[1])[:4]: a(x)
        mf(3, 0)
        for x in cv(144, ACC[1])[4:]: a(x)
        a(f"buffer_store_dwordx4 v[144:147], v55, {R_WS}, s63 offen {mod}\nbuffer_store_dwordx4 v[148:151], v55, {R_WS}, s64 offen {mod}")
        if not fmod: lstamp(a, 19) if OPT.get("gst") else None
        for x in cv(152, ACC[2]): a(x)
        a(f"buffer_store_dwordx4 v[152:155], v56, {R_WS}, s63 offen offset:1024 {mod}\nbuffer_store_dwordx4 v[156:159], v56, {R_WS}, s63 offen offset:1536 {mod}")
        for h in range(2):
            for r in range(8): a(f"v_mul_f32 v{ACC[0]+8*h+r}, s65, v{ACC[0]+8*h+r}")
            for x in cv(160, ACC[0])[4*h:4*h+4]: a(x)
            a(f"buffer_store_dwordx4 {vr(160+4*h,4)}, v1, {R_WS}, s{61+h} offen {mod}")
        if not fmod: lstamp(a, 16)
        a("s_mov_b32 s68, 0xffff0000\ns_waitcnt vmcnt(6)")
        for k in range(4): a(f"v_lshlrev_b32 v{168+2*k}, 16, v{GG+k}\nv_and_b32 v{169+2*k}, s68, v{GG+k}")
        for k in range(4):
            for r in range(2):
                x = GX + 4 * r + k; t = 180 + 2 * r
                a(f"v_lshlrev_b32 v{t}, 16, v{x}\nv_and_b32 v{t+1}, s68, v{x}\nv_mul_f32 v{t}, v{t}, v{168+2*k}\nv_mul_f32 v{t+1}, v{t+1}, v{169+2*k}")
                a(f"v_cvt_pk_bf16_f32 v{x}, v{t}, v{t+1}")
        a("s_waitcnt vmcnt(0)")
        signal(a, "s70", fmod)
        if not fmod: a("s_branch L_st_done")
    a.reset(); a("L_st_done:")
    lstamp(a, 17)
    a(f"buffer_load_dword v{VT}, v54, {R_WS}, s71 offen {SC}")
    for k in range(4):
        for r in range(2):
            x = GX + 4 * r + k; t = 180 + 2 * r
            a(f"v_and_b32 v{t+1}, s68, v{x}\nv_lshlrev_b32 v{t}, 16, v{x}")
            if k == 0: a(f"v_add_f32 v{176+r}, v{t}, v{t+1}")
            else: a(f"v_add_f32 v{176+r}, v{176+r}, v{t}\nv_add_f32 v{176+r}, v{176+r}, v{t+1}")
    wo_pack = [f"v_or_b32 v{DB+j}, v{GO+2*j}, v{GO+2*j+1}" for j in range(4)]
    for d in ("row_shr:1 row_mask:0xf bank_mask:0xf bound_ctrl:0", "row_shr:2 row_mask:0xf bank_mask:0xf bound_ctrl:0",
              "row_shr:4 row_mask:0xf bank_mask:0xf bound_ctrl:0", "row_shr:8 row_mask:0xf bank_mask:0xf bound_ctrl:0",
              "row_bcast:15 row_mask:0xa bank_mask:0xf", "row_bcast:31 row_mask:0xc bank_mask:0xf"):
        if wo_pack: a(wo_pack.pop())
        for r in range(2): a(f"v_add_f32_dpp v{176+r}, v{176+r}, v{176+r} {d}")
    a(f"""
    v_cvt_pk_bf16_f32 v178, v176, v177
    s_mov_b32 s60, {LOG2E}
    v_lshlrev_b32 v176, 16, v178
    v_and_b32 v177, s68, v178
    v_mul_f32 v176, s60, v176
    v_mul_f32 v177, s60, v177
    v_exp_f32 v176, -v176
    v_exp_f32 v177, -v177
    v_add_f32 v176, 1.0, v176
    v_add_f32 v177, 1.0, v177
    v_rcp_f32 v176, v176
    v_rcp_f32 v177, v177
    s_nop 0
    v_cvt_pk_bf16_f32 v178, v176, v177
    v_lshlrev_b32 v{DB+4}, 16, v178
    v_and_b32 v{DB+5}, s68, v178
    """)
    a("s_waitcnt vmcnt(0)")
    poll(a, "s2", 54, "s71", True, sleep=1)
    lstamp(a, 2)
    a(f"""
    buffer_load_dwordx4 {vr(AQ,4)}, v1, {R_WS}, s77 offen {SC}
    s_add_u32 m0, s79, {QS}
    s_add_u32 s80, s77, 4096
    buffer_load_dwordx4 v1, {R_WS}, s80 offen {SC} lds
    """)
    kv_dma(a, range(3), SC, True)
    a("s_waitcnt vmcnt(4)")

def deferred_stores(a):
    a(f"s_cmp_lt_u32 {SW}, 4\ns_cbranch_scc1 L_df_g")
    for ci in range(4): a(f"buffer_store_dwordx2 {vr(DB+2*ci,2)}, v{DA+ci}, {R_WS}, s66 offen {SC}")
    a(f"""
    s_branch L_df_done
    L_df_g:
    buffer_store_dwordx4 {vr(DB,4)}, v1, {R_WS}, s69 offen {SC}
    s_mov_b32 exec_lo, 0
    s_mov_b32 exec_hi, 0x80000000
    buffer_store_dwordx2 {vr(DB+4,2)}, v{VZ}, {R_WS}, s67 offen {SC}
    s_mov_b64 exec, -1
    L_df_done:
    """)

CA, CB, CU, CD, CE = 86, 87, 88, 90, 91
CACC = 32
def conv(a):
    FA = (96, 160); FB = (128, 192)
    q = []
    def issue(key, txt):
        if len(q) >= 15:
            a("s_waitcnt lgkmcnt(14)"); del q[:len(q) - 14]
        a(txt); q.append(key)
    def need(keys):
        idx = [i for i, k in enumerate(q) if k in keys]
        if idx:
            a(f"s_waitcnt lgkmcnt({len(q) - 1 - max(idx)})"); del q[:max(idx) + 1]
    def rd_list(rho):
        s = rho & 1; l = []
        for i in range(8):
            l.append(((rho, "A", i), f"ds_read_b128 {vr(FA[s]+4*i,4)}, v{CA} offset:{512*(7-i) + 64*(3-rho)}"))
            l.append(((rho, "B", i), f"ds_read_b128 {vr(FB[s]+4*i,4)}, v{CB} offset:{512*i + 64*(3-rho)}"))
        return l
    for k, t in rd_list(0): issue(k, t)
    seen = set()
    mms = sorted([(sg, dl) for sg in range(8) for dl in range(8 - sg)], key=lambda m: max(2 * m[0], 2 * m[1] + 1))
    for rho in range(4):
        s = rho & 1
        nxt = rd_list(rho + 1) if rho < 3 else [(("u", i), f"ds_read_b64 {vr(DB+2*i,2)}, v{CU} offset:{512*i}") for i in range(4)]
        k0 = 14 if rho == 0 else 0
        for k, (sg, dl) in enumerate(mms):
            if rho == 0: need({(rho, "A", sg), (rho, "B", dl)})
            elif k == 0: need({(rho, "B", 7)})
            c = sg + dl; acc = vr(CACC + 4 * c, 4)
            a(f"v_mfma_f32_16x16x32_bf16 {acc}, {vr(FA[s]+4*sg,4)}, {vr(FB[s]+4*dl,4)}, {acc if c in seen else '0'}")
            seen.add(c)
            if k >= k0 and (k - k0) % 2 == 0:
                for x in nxt[k - k0:k - k0 + 2]: issue(*x)
    a("s_cmp_eq_u32 s53, 0\ns_cbranch_scc0 L_cv_hi\ns_nop 5")
    for i in range(4): a(f"ds_write_b128 v{CE}, {vr(CACC+16+4*i,4)} offset:{1024*i}")
    a("s_branch L_cv_sent\nL_cv_hi:\ns_nop 5")
    for i in range(4): a(f"ds_write_b128 v{CE}, {vr(CACC+4*i,4)} offset:{1024*i}")
    a("s_nop 1")
    for i in range(16): a(f"v_mov_b32 v{CACC+i}, v{CACC+16+i}")
    a(f"L_cv_sent:\nv_xor_b32 v{CE}, 0x1000, v{CE}\ns_waitcnt lgkmcnt(0)")

def conv_finish(a):
    a(f"s_cmp_lt_u32 {SW}, 4\ns_cbranch_scc1 L_cv_fin")
    for i in range(4): a(f"ds_read_b128 {vr(96+4*i,4)}, v{CE} offset:{1024*i}")
    a(f"s_add_u32 s68, s79, {QS - 4096}\nv_add_u32 v4, s68, v1\nds_read_b128 {vr(AQ,4)}, v4")
    a("s_mov_b32 s68, 0xffff0000")
    for i in range(8): a(f"v_lshlrev_b32 v{48+2*i}, 16, v{DB+i}\nv_and_b32 v{49+2*i}, s68, v{DB+i}")
    for i in range(16): a(f"v_fmac_f32 v{CACC+i}, v{48+i}, v{CD}")
    a("s_waitcnt lgkmcnt(0)")
    for i in range(16): a(f"v_add_f32 v{CACC+i}, v{CACC+i}, v{96+i}")
    for i in range(8): a(f"v_cvt_pk_bf16_f32 v{DB+i}, v{CACC+2*i}, v{CACC+2*i+1}")
    a("L_cv_fin:")

def a_params(a):
    aux_ids(a)
    a(f"""
    s_lshl_b32 s55, s54, 8
    s_lshl_b32 s56, s53, 7
    s_add_u32 s55, s55, s56
    v_lshlrev_b32 v1, 1, v0
    v_add_u32 v1, s55, v1
    s_lshl_b32 s56, s54, 1
    v_mov_b32 v2, s56
    global_load_short_d16_hi v10, v1, {S_LOGA}
    global_load_short_d16_hi v14, v2, {S_LDT}
    global_load_short_d16_hi v11, v1, {S_AIM}
    global_load_short_d16_hi v12, v1, {S_CR}
    global_load_short_d16_hi v13, v1, {S_CI}
    global_load_short_d16_hi v{CD}, v2, {S_DSK}
    """)
    epoch_load(a)
    if not OPT.get("nowpf"):
        a(f"""
        s_lshl_b32 s62, {SX}, 5
        s_add_u32 s62, s62, {SJ}
        s_lshr_b32 s63, s62, 3
        s_and_b32 s62, s62, 7
        s_lshl_b32 s62, s62, 16
        s_lshl_b32 s63, s63, 5
        s_add_u32 s62, s62, s63
        s_lshl_b32 s63, s51, 14
        s_add_u32 s62, s62, s63
        v_lshlrev_b32 v3, 10, v0
        v_add_u32 v3, s62, v3
        s_mov_b64 exec, 0xffff
        global_load_dword v92, v3, {S_WO}
        s_mov_b64 exec, -1
        """)
    if OPT.get("touch") == "start":
        a(f"""
        s_lshl_b32 s60, {SX}, 2
        s_lshl_b32 s61, s52, 1
        s_add_u32 s60, s60, s61
        s_lshl_b32 s60, s60, 6
        s_lshl_b32 s61, {SJ}, 1
        s_add_u32 s61, s61, s53
        s_add_u32 s60, s60, s61
        s_lshl_b32 s61, s60, 10
        s_add_u32 s61, s61, {QF}
        s_lshl_b32 s60, s60, 11
        s_add_u32 s60, s60, {KV}
        v_and_b32 v4, 15, v0
        v_lshlrev_b32 v4, 7, v4
        v_bfe_u32 v5, v0, 4, 1
        v_lshl_add_u32 v4, v5, 17, v4
        v_and_b32 v5, 7, v0
        v_lshlrev_b32 v5, 7, v5
        v_bfe_u32 v6, v0, 3, 1
        v_lshl_add_u32 v5, v6, 16, v5
        s_mov_b64 exec, 0xffffffff
        buffer_load_dword v9, v4, {R_WS}, s60 offen
        s_mov_b64 exec, 0xffff
        buffer_load_dword v8, v5, {R_WS}, s61 offen
        s_mov_b64 exec, -1
        """.replace("v9,", "v91,").replace("v8,", "v89,"))
    if OPT.get("nocpf") == "0":
        a(f"""
        s_getpc_b64 s[62:63]
        L_pc:
        s_and_b32 s64, {SJ}, 3
        s_lshl_b32 s64, s64, 2
        s_add_u32 s64, s64, s51
        s_lshl_b32 s64, s64, 11
        v_lshlrev_b32 v3, 7, v0
        v_add_u32 v3, s64, v3
        v_min_u32 v3, L_codeend - L_pc - 4, v3
        s_mov_b64 exec, 0xffff
        global_load_dword v93, v3, s[62:63]
        s_mov_b64 exec, -1
        """)

def rows(a, regs, row0, neg, tb):
    for k, r in enumerate(regs):
        if r is None: a(f"v_mov_b32 v{tb+k}, 0x3f80")
        else: a(f"v_cvt_pk_bf16_f32 v{tb+k}, v{r}, {'-' if neg else ''}v{r+1}")
    for k in range(len(regs)): a(f"ds_write_addtid_b32 v{tb+k} offset:{272*(row0+k)}")
    return row0 + len(regs)

def smul_list(ops):
    T = list(range(32, 40)) + [16, 17, 18, 19]; l = []
    for k, (d, x, w) in enumerate(ops): l += [f"v_mul_f32 v{T[2*k]}, v{x+1}, v{w+1}", f"v_mul_f32 v{T[2*k+1]}, v{x}, v{w+1}"]
    for k, (d, x, w) in enumerate(ops):
        if d == w:
            l += [f"v_fma_f32 v{d+1}, v{x+1}, v{w}, v{T[2*k+1]}", f"v_fma_f32 v{d}, v{x}, v{w}, -v{T[2*k]}"]
        else:
            l += [f"v_fma_f32 v{d}, v{x}, v{w}, -v{T[2*k]}", f"v_fma_f32 v{d+1}, v{x+1}, v{w}, v{T[2*k+1]}"]
    return l

def touch(a, where):
    tps = OPT.get("tps", "b5,b5,b6").split(","); mod = OPT.get("tmod", ""); n = 0
    if where == min(tps):
        a(f"""
        s_lshl_b32 s60, {SX}, 2
        s_lshl_b32 s61, s52, 1
        s_add_u32 s60, s60, s61
        s_lshl_b32 s60, s60, 6
        s_lshl_b32 s61, {SJ}, 1
        s_add_u32 s61, s61, s53
        s_add_u32 s60, s60, s61
        s_lshl_b32 s61, s60, 10
        s_add_u32 s61, s61, {QF}
        s_lshl_b32 s60, s60, 11
        s_add_u32 s60, s60, {KV}
        v_and_b32 v85, 7, v0
        v_lshlrev_b32 v85, 7, v85
        v_bfe_u32 v84, v0, 3, 1
        v_lshl_add_u32 v58, v84, 16, v85
        v_lshl_add_u32 v85, v84, 17, v85
        """)
    for k, p in enumerate(tps):
        if p != where: continue
        if n == 0: a("s_mov_b64 exec, 0xffff")
        a(f"buffer_load_dword v{82+k}, v{58 if k == 2 else 85}, {R_WS}, {'s61' if k == 2 else 's60'} offen offset:{1024 if k == 1 else 0} {mod}"); n += 1
    if n: a("s_mov_b64 exec, -1")
    return n

def a_phase1(a0):
    class Flt:
        on = False
        def __call__(self, txt):
            m = OPT.get("noA")
            if not (self.on and m): return a0(txt)
            for ln in txt.split("\n"):
                l = ln.strip()
                if "w" in m and l.startswith(("ds_write_addtid", "ds_write_b128")): continue
                if "r" in m and l.startswith(("ds_read_b128", "ds_read_b64 ")): continue
                if "m" in m and l.startswith("v_mfma"): continue
                if "v" in m and l.startswith(("v_pk_", "v_fma_f32", "v_mul_f32", "v_cvt_pk", "v_sin", "v_cos", "v_exp", "v_fract", "v_alignbit", "v_bfi", "v_add_f32")): continue
                a0(ln)
        def reset(self): a0.reset()
    a = Flt()
    vm = VM()
    vm.add("par", 7)
    if not OPT.get("nowpf"): vm.add("wpf")
    if OPT.get("touch") == "start": vm.add("touch", 2)
    if OPT.get("nocpf") == "0": vm.add("cpf")
    a("s_setprio 2")
    a(f"""
    s_mul_i32 s65, s51, {TBS}
    s_mov_b32 m0, s65
    s_mov_b32 s66, {LOG2E}
    s_mov_b32 s68, 0xffff0000
    s_mov_b32 s69, {INV2PI}
    s_mov_b32 s62, 0x41000000
    s_mov_b32 s63, 0x43800000
    
    """)
    late = [x.strip() for x in f"""
    v_and_b32 v1, 31, v0
    v_lshrrev_b32 v2, 5, v0
    v_lshlrev_b32 v2, 4, v2
    s_mul_i32 s73, s52, {2*TBS}
    v_add_u32 v54, s73, v2
    v_mov_b32 v3, 272
    v_mad_u32_u24 v7, v1, v3, v54
    s_mul_i32 s65, s51, {HTS}
    s_mul_i32 s73, s52, {2*HTS}
    v_add_u32 v2, s73, v2
    v_bfe_u32 v8, v0, 3, 1
    v_and_b32 v9, 3, v0
    v_lshl_add_u32 v8, v8, 2, v9
    v_cvt_f32_u32 v8, v8
    v_bfe_u32 v9, v0, 4, 1
    v_bfe_u32 v52, v0, 2, 1
    v_lshl_add_u32 v9, v9, 1, v52
    v_min_u32 v52, 2, v9
    v_sub_u32 v52, 0, v52
    v_ldexp_f32 v52, v8, v52
    v_rndne_f32 v52, v52
    v_cvt_u32_f32 v52, v52
    v_lshlrev_b32 v53, 3, v9
    s_mov_b32 s73, 0x100d0800
    v_lshrrev_b32 v53, v53, s73
    v_and_b32 v53, 0xff, v53
    v_add_u32 v52, v52, v53
    v_mul_f32 v8, 0.125, v8
    v_rndne_f32 v8, v8
    v_cvt_u32_f32 v8, v8
    v_lshl_add_u32 v8, v9, 1, v8
    v_add_u32 v8, 19, v8
    s_cmp_eq_u32 s53, 0
    s_cselect_b64 vcc, -1, 0
    s_cselect_b32 s70, 0, 0xaaaaaaaa
    s_mov_b32 s71, s70
    v_cndmask_b32 v9, v8, v52, vcc
    v_mad_u32_u24 v9, v9, v3, v2
    ; transpose addresses: v4/v5 LDS, v6 + s60 workspace; s61 = hand-off word, s72 = line this wave waits on
    v_lshrrev_b32 v1, 4, v0
    v_bfe_u32 v2, v0, 2, 2
    v_lshl_add_u32 v2, v1, 3, v2
    v_bfe_u32 v3, v0, 1, 1
    s_lshl_b32 s73, s51, 1
    v_add_u32 v3, s73, v3
    v_bfe_u32 v4, v2, 1, 3
    v_xor_b32 v4, v4, v3
    v_and_b32 v5, 1, v0
    v_lshlrev_b32 v5, 3, v5
    v_lshl_add_u32 v5, v2, 7, v5
    v_add_u32 v5, {slot_addr(0)}, v5
    v_xor_b32 v6, 2, v4
    v_lshl_add_u32 v4, v4, 4, v5
    v_lshl_add_u32 v5, v6, 4, v5
    v_bfe_u32 v6, v0, 1, 3
    v_lshlrev_b32 v6, 13, v6
    v_and_b32 v3, 1, v0
    v_lshl_add_u32 v6, v3, 6, v6
    v_lshl_add_u32 v6, v1, 4, v6
    s_lshl_b32 s60, {SX}, 18
    s_lshl_b32 s64, s51, 16
    s_add_u32 s60, s60, s64
    s_lshl_b32 s64, {SJ}, 8
    s_add_u32 s60, s60, s64
    s_add_u32 s60, s60, {XT}
    s_lshl_b32 s72, {SX}, 2
    s_add_u32 s61, s72, s51
    s_lshl_b32 s61, s61, 8
    s_lshl_b32 s64, {SJ}, 3
    s_add_u32 s61, s61, s64
    s_add_u32 s61, s61, {F_S1}
    s_lshr_b32 s64, {SJ}, 3
    s_add_u32 s72, s72, s64
    s_lshl_b32 s72, s72, 8
    s_add_u32 s72, s72, {F_S1}
    s_getreg_b32 s64, hwreg(HW_REG_XCC_ID)
    v_mov_b32 v{VX}, s64
    """.strip().split("\n") if not x.strip().startswith(";")]
    for _ in range(int(OPT.get("asetup", 25))):
        if late: a(late.pop(0))
    vm.wait(a, "par")
    a.on = True
    lstamp(a, 31)
    a(f"""
    v_mul_f32 v14, s66, v14
    v_mul_f32 v10, s66, v10
    v_exp_f32 v14, v14
    v_exp_f32 v10, v10
    s_mov_b32 s56, 1664525
    v_mul_lo_u32 v{VN}, v{VN}, s56
    v_add_u32 v{VN}, 1013904223, v{VN}
    v_cvt_pk_bf16_f32 v15, v14, v10
    v_lshlrev_b32 v14, 16, v15
    v_and_b32 v10, s68, v15
    v_mul_f32 v10, v10, v14
    v_mul_f32 v11, v11, v14
    v_mul_f32 v10, s66, v10
    v_mul_f32 v11, s69, v11
    """)
    L = lambda i: 76 + 2 * i
    H = lambda p: 40 + 2 * p if p < 8 else 28
    LF, HF, AK, HP = 96, 160, 224, 59
    cexp(a, [(L(1), "s62")])
    cmuls(a, [(L(2), L(1), L(1))])
    cmuls(a, [(L(3), L(2), L(1)), (84, L(2), L(2))])
    r = rows(a, [None, L(1), L(2), L(3)], 0, False, 72)
    cmuls(a, [(L(i), L(i), 84) for i in range(1, 4)])
    r = rows(a, [84, L(1), L(2), L(3)], r, False, 16)
    cmuls(a, [(L(0), 84, 84)] + [(L(i), L(i), 84) for i in range(1, 4)])
    for g in range(2, 8):
        r = rows(a, [L(i) for i in range(4)], r, False, 72 if g & 1 == 0 else 16)
        if g < 7: cmuls(a, [(L(i), L(i), 84) for i in range(4)])
        for _ in range(12):
            if late: a(late.pop(0))
    while late: a(late.pop(0))
    assert r == 32
    lstamp(a, 24)
    a("s_waitcnt lgkmcnt(0)\ns_barrier")
    a("""
    ds_read_b64_tr_b16 v[224:225], v4
    ds_read_b64_tr_b16 v[226:227], v5 offset:512
    ds_read_b64_tr_b16 v[228:229], v4 offset:4096
    ds_read_b64_tr_b16 v[230:231], v5 offset:4608
    """)
    lrd = [f"ds_read_b128 {vr(LF+4*ks,4)}, v7 offset:{TBS*(ks>>3) + 32*(ks&7)}" for ks in range(16)]
    for x in lrd[:8]: a(x)
    a("v_mul_f32 v40, v12, v14\nv_mul_f32 v41, v13, v14\nv_add_f32 v40, v40, v40\nv_add_f32 v41, v41, v41\ns_mov_b32 m0, s65")
    a(f"""
    s_waitcnt lgkmcnt(7)
    buffer_store_dwordx4 v[224:227], v6, {R_WS}, s60 offen {SC}
    buffer_store_dwordx4 v[228:231], v6, {R_WS}, s60 offen offset:128 {SC}
    """)
    vm.add("xt", 2)
    for x in lrd[8:]: a(x)
    cexp(a, [(20, None), (24, "s63")])
    hl = []; row = [0]
    def hm(ops): hl.extend(smul_list(ops))
    def hp(regs):
        for g in regs: hl.append(f"v_cvt_pk_bf16_f32 v{HP+row[0]}, v{g}, -v{g+1}"); row[0] += 1
    hm([(H(1), H(0), 20), (22, 20, 20)])
    hm([(H(2), H(0), 22), (H(3), H(1), 22), (26, 22, 22), (30, 24, 24)])
    hm([(H(4 + i), H(i), 26) for i in range(4)])
    hm([(H(8), H(4), 26)]); hp([H(p) for p in range(8)])
    for grp in ((0, 2, 4, 6, 8), (0, 4, 8), (0, 4, 8)):
        hm([(H(p), H(p), 24) for p in grp]); hp([H(p) for p in grp])
    hm([(42, H(0), 24), (46, H(8), 24)])
    hm([(50, 42, 24), (52, 46, 24), (H(0), 42, 30), (H(8), 46, 30)])
    hm([(44, 50, 30), (48, 52, 30)]); hp([42, 46, 50, 52, H(0), H(8), 44, 48])
    assert row[0] == 27
    cut = int(OPT.get("hcut", 64))
    for x in hl[:cut]: a(x)
    lstamp(a, 19)
    a("s_waitcnt lgkmcnt(0)\ns_barrier")
    done = 0
    for k, x in enumerate(hl[cut:]):
        a(x)
        n = sum("cvt" in y for y in hl[:cut + k + 1])
        if n - done >= 8 or (k == len(hl) - cut - 1):
            for j in range(done, n): a(f"ds_write_addtid_b32 v{HP+j} offset:{272*j}")
            done = n
    vm.wait(a, "xt"); signal(a, "s61", SC, 2); vm.add("f1")
    lstamp(a, 20)
    a("s_waitcnt lgkmcnt(0)\ns_setprio 0\ns_barrier")
    hrd = [f"ds_read_b128 {vr(HF+4*ks,4)}, v9 offset:{HTS*(ks>>3) + 32*(ks&7)}" for ks in range(16)]
    for x in hrd[:12]: a(x)
    a(f"""
    v_lshlrev_b32 v1, 4, v0
    v_mov_b32 v60, 0
    v_mov_b32 v61, 0
    v_mov_b32 v62, 0
    v_mov_b32 v63, 0
    s_mul_i32 s67, s52, {KXD}
    s_add_u32 s67, s67, {KX0}
    v_mov_b32 v3, s67
    s_lshl_b32 s66, s53, 11
    s_add_u32 s66, s66, s67
    v_lshrrev_b32 v2, 5, v0
    v_and_b32 v4, 31, v0
    v_lshlrev_b32 v4, 4, v4
    v_lshl_add_u32 v2, v2, 9, v4
    v_add_u32 v2, s66, v2
    s_waitcnt lgkmcnt(4)
    """)
    for x in hrd[12:]: a(x)
    km = lambda ks: a(f"v_mfma_f32_32x32x16_bf16 {vr(AK,16)}, {vr(HF+4*ks,4)}, {vr(LF+4*ks,4)}, {'0' if ks == 0 else vr(AK,16)}")
    for ks in range(8): km(ks)
    lstamp(a, 21)
    a("s_waitcnt lgkmcnt(0)\ns_barrier")
    bulk = att_bulk()
    for ks in range(8, 16):
        km(ks)
        for x in bulk[7 * (ks - 8):7 * (ks - 7)]: a(x)
    a("ds_write_b128 v3, v[60:63]")
    for rg in range(2): a(f"v_cndmask_b32 v{AK+8*rg+4}, v{AK+8*rg+4}, v{AK+8*rg+5}, s[70:71]")
    for i in range(8): a(f"v_cvt_pk_bf16_f32 v{40+i}, v{AK+2*i}, v{AK+2*i+1}")
    for rg in range(2): a(f"ds_write_b128 v2, {vr(40+4*rg,4)} offset:{16 + 1024*rg}")
    lstamp(a, 22)
    a("s_waitcnt lgkmcnt(0)\ns_barrier")
    a(f"v_and_b32 v55, 31, v0\nv_lshlrev_b32 v55, 3, v55\nbuffer_load_dword v{VT}, v55, {R_WS}, s72 offen {SC}")
    n4 = touch(a, "b4")
    a(f"""
    v_add_u32 v2, s66, v1
    ds_read_b64 v[40:41], v2 offset:8
    ds_read_b128 v[42:45], v2 offset:16
    ds_read_b64 v[46:47], v2 offset:{1024+8}
    ds_read_b128 v[48:51], v2 offset:{1024+16}
    s_cmp_eq_u32 s52, 0
    s_cselect_b32 s67, 0, {slot_addr(4)}
    v_bfe_u32 v2, v0, 2, 2
    v_mul_u32_u24 v2, {RE}, v2
    v_and_b32 v3, 3, v0
    v_min_u32 v3, 2, v3
    v_lshl_add_u32 v2, v3, 4, v2
    v_add_u32 v52, s67, v2
    s_lshl_b32 s69, s53, 11
    s_sub_u32 s66, s67, s69
    s_add_u32 s66, s66, {255*16 - 1024}
    v_sub_u32 v53, s66, v1
    v_min_u32 v2, 32, v0
    s_mul_i32 s66, s53, {US}
    s_add_u32 s66, s66, s67
    s_add_u32 s66, s66, {RSZ}
    v_lshl_add_u32 v54, v2, 4, s66
    s_mov_b32 s69, 0xffff
    s_waitcnt lgkmcnt(0)
    """)
    RG = 96
    for q in range(2):
        w = lambda i: 40 + 6 * q + 2 + i
        for e in range(4):
            o = RG + 16 * q + 4 * e
            for i in range(4):
                hi = 3 - i - (0 if e >= 2 else 1)
                if e & 1: a(f"v_alignbit_b32 v{o+i}, v{w(hi)}, v{w(hi)}, 16")
                else: a(f"v_bfi_b32 v{o+i}, s69, v{w(hi)}, v{w(hi-1)}")
    a.on = False
    a(f"""
    v_lshlrev_b32 v1, 4, v0
    v_mov_b32 v60, 0
    s_lshl_b32 s66, s51, 2
    s_add_u32 s66, s66, 32000
    v_mov_b32 v59, s66
    ds_write_b32 v59, v60
    s_lshl_b32 s71, {SX}, 18
    s_lshl_b32 s69, {SJ}, 13
    s_add_u32 s71, s71, s69
    s_lshl_b32 s69, s52, 6
    s_add_u32 s71, s71, s69
    s_lshl_b32 s69, s53, 12
    s_add_u32 s71, s71, s69
    s_add_u32 s71, s71, {XT}
    v_lshrrev_b32 v2, 2, v0
    v_and_b32 v3, 3, v0
    v_lshlrev_b32 v3, 4, v3
    v_lshl_add_u32 v56, v2, 7, v3
    s_lshl_b32 s70, s53, 11
    s_add_u32 s69, s67, s70
    s_add_u32 s69, s69, {RSZ + 512}
    v_add_u32 v57, s69, v1
    s_lshl_b32 s73, s53, 8
    s_sub_u32 s73, s67, s73
    s_add_u32 s66, s73, {4128 - 64*7 - 512*7 + 256}
    v_and_b32 v4, 3, v0
    v_mul_u32_u24 v4, {RE}, v4
    v_lshrrev_b32 v2, 4, v0
    v_bfe_u32 v3, v0, 2, 2
    v_add_u32 v3, v3, v2
    v_lshlrev_b32 v3, 4, v3
    v_sub_u32 v4, v4, v3
    v_add_u32 v{CA}, s66, v4
    s_add_u32 s66, s73, {RSZ + US + 512 + 48 - 64*7 + 256}
    v_bfe_u32 v4, v0, 1, 3
    v_lshlrev_b32 v4, 6, v4
    v_lshlrev_b32 v3, 4, v2
    v_sub_u32 v5, v4, v3
    v_add_u32 v4, v4, v3
    v_and_b32 v3, 1, v0
    v_lshl_add_u32 v4, v3, 3, v4
    v_mul_u32_u24 v3, {US}, v3
    v_sub_u32 v5, v5, v3
    v_add_u32 v{CB}, s66, v5
    v_add_u32 v{CU}, s69, v4
    v_add_u32 v{DA}, s70, v4
    v_add_u32 v{DA+1}, 512, v{DA}
    v_add_u32 v{DA+2}, 1024, v{DA}
    v_add_u32 v{DA+3}, 1536, v{DA}
    s_lshl_b32 s66, s51, 12
    s_add_u32 s66, s66, {OS}
    v_add_u32 v{CE}, s66, v1
    s_lshl_b32 s66, s54, 12
    s_add_u32 s66, s66, {BT}
    """)
    for x in att_addr(): a(x)
    lstamp(a, 23)
    a("s_waitcnt lgkmcnt(0)\ns_barrier")
    def uload():
        for q in range(2): a(f"buffer_load_dwordx4 {vr(32+4*q,4)}, v56, {R_WS}, s71 offen offset:{2048*q} {SC}")
    def ustore():
        for q in range(2): a(f"ds_write_b128 v57, {vr(32+4*q,4)} offset:{1024*q}")
        for q in range(2):
            a(f"ds_write_b64 v57, {vr(32+4*q,2)} offset:{1024*q + US + 8}")
            a(f"ds_write_b64 v57, {vr(34+4*q,2)} offset:{1024*q + US + 16}")
    a(f"""
    s_waitcnt vmcnt({n4})
    v_cmp_ne_u32 s[94:95], v{VT}, v{VN}
    s_cmp_lg_u64 s[94:95], 0
    s_cbranch_scc1 L_u_skip
    """)
    uload()
    a("L_u_skip:")
    nt = touch(a, "b5")
    a.on = True
    a("ds_write_b128 v52, v[60:63] offset:4096\nds_write_b128 v54, v[60:63]")
    rw = [f"ds_write_b128 v53, {vr(RG+16*q+4*e,4)} offset:{e*RE + 1024*(1-q)}" for q in range(2) for e in range(4)]
    rcut = int(OPT.get("rcut", 5))
    for x in rw[:rcut]: a(x)
    a("s_waitcnt lgkmcnt(0)\ns_barrier")
    for x in rw[rcut:]: a(x)
    a.on = False
    if OPT.get("uearly"):
        a(f"s_cmp_lg_u64 s[94:95], 0\ns_cbranch_scc1 L_u_late\ns_waitcnt vmcnt({nt})")
        ustore()
        a("ds_write_b32 v59, v59")
        touch(a, "b6")
        a("s_barrier\ns_branch L_u_have\nL_u_late:")
        touch(a, "b6")
        a("s_barrier")
        poll(a, "s1", 55, "s72")
        uload()
        a("s_waitcnt vmcnt(0)")
        ustore()
        a("ds_write_b32 v59, v59\nL_u_have:")
    else:
        nt += touch(a, "b6")
        a("s_barrier")
        a(f"s_cmp_lg_u64 s[94:95], 0\ns_cbranch_scc0 L_u_have")
        poll(a, "s1", 55, "s72")
        uload()
        a(f"s_waitcnt vmcnt(0)\nL_u_have:\ns_waitcnt vmcnt({nt})")
        ustore()
        a("ds_write_b32 v59, v59")
    a(f"""
    v_xor_b32 v59, 4, v59
    s_mov_b32 s92, {SPIN}
    L_pair:
    ds_read_b32 v57, v59
    s_waitcnt lgkmcnt(0)
    v_readfirstlane_b32 s93, v57
    s_sub_u32 s92, s92, 1
    s_cmp_eq_u32 s92, 0
    s_cbranch_scc1 L_pair_ok
    s_cmp_eq_u32 s93, 0
    s_cbranch_scc1 L_pair
    L_pair_ok:
    """)
    lstamp(a, 25)
    conv(a)
    lstamp(a, 3)

def att_main(a, hooks, prios):
    p2, pr, pq, p1 = [int(x) for x in OPT.get("ord", "2,2,5,10").split(",")]
    def rdk(t):
        p = (t + T0) & 63; b, o = (1, 2048 * p) if p < 32 else (80, 2048 * (p - 32))
        a(f"ds_read_b128 {vr(AKS[t&1],4)}, v{b} offset:{o}")
    def rdv(t):
        p = (t + T0) & 63; b, o = (2, 2048 * p) if p < 32 else (81, 2048 * (p - 32))
        a("s_mov_b64 exec, s[82:83]")
        a(f"ds_read_b128 {vr(AV1[t&1],4)}, v{b} offset:{o}")
        a(f"ds_read_b128 {vr(AV2[t&1],4)}, v{b} offset:{o+512}")
        a("s_mov_b64 exec, -1")
    rdk(0); rdk(1); rdv(0)
    a("s_waitcnt lgkmcnt(3)")
    a(f"v_mfma_f32_32x32x16_bf16 {vr(AS_[0],16)}, {vr(AKS[0],4)}, {vr(AQ,4)}, 0")
    for t in range(64):
        c, n = AS_[t & 1], AS_[(t + 1) & 1]
        if t in prios: a(f"s_setprio {prios[t]}")
        k = 0
        for e in range(17):
            if e == p2 and t: a(f"v_smfmac_f32_32x32x32_bf16 {vr(AO,16)}, {vr(AV2[(t-1)&1],4)}, {vr(n+8,8)}, v3")
            if e == pq and pq < pr: a("s_waitcnt lgkmcnt(0)")
            if e == pq and pq < pr and t + 1 < 64: a(f"v_mfma_f32_32x32x16_bf16 {vr(n,16)}, {vr(AKS[(t+1)&1],4)}, {vr(AQ,4)}, 0")
            if e == pr:
                if t in hooks: hooks[t]()
                if OPT.get("kfirst") and t + 2 < 64: rdk(t + 2); k += 1
                if t + 1 < 64: rdv(t + 1); k += 2
                if not OPT.get("kfirst") and t + 2 < 64: rdk(t + 2); k += 1
            if e == pq and pq >= pr:
                a(f"s_waitcnt lgkmcnt({k})")
                if t + 1 < 64: a(f"v_mfma_f32_32x32x16_bf16 {vr(n,16)}, {vr(AKS[(t+1)&1],4)}, {vr(AQ,4)}, 0")
            if e == p1: a(f"v_smfmac_f32_32x32x32_bf16 {vr(AO,16)}, {vr(AV1[t&1],4)}, {vr(c,8)}, v3")
            if e < 16: a(f"v_exp_f32 v{c+e}, v{c+e}")
    a(f"v_smfmac_f32_32x32x32_bf16 {vr(AO,16)}, {vr(AV2[1],4)}, {vr(AS_[1]+8,8)}, v3")

def att_finish2(a, tag):
    a(f"s_mov_b32 s84, 0x2b800000\ns_mov_b32 s85, 0x5d800000\nv_fma_f32 v8, v{AO}, 0, v{AO+8}")
    for r in range(1, 8): a(f"v_fma_f32 v8, v{AO+r}, 0, v8")
    a(f"""
    v_cmp_nge_f32 vcc, v8, s84
    v_cmp_nle_f32 s[90:91], v8, s85
    s_or_b64 vcc, vcc, s[90:91]
    s_cbranch_vccnz L_{tag}_slow
    L_{tag}_norm:
    v_rcp_f32 v8, v{AO+8}
    """)
    for r in range(8): a(f"v_mul_f32 v{AO+r}, v8, v{AO+r}")
    for r in range(4): a(f"v_cvt_pk_bf16_f32 v{12+r}, v{AO+2*r}, v{AO+2*r+1}")
    for r in range(4): a(f"v_min_u32 v{12+r}, -2, v{12+r}")
    a(f"buffer_store_dwordx4 v[12:15], v1, {R_WS}, s87 offen {OPT.get('ostm', SC).replace('_', ' ')}")

def out_gemm(a):
    a(f"""
    v_lshlrev_b32 v2, 9, v86
    v_lshl_add_u32 v2, v87, 4, v2
    v_add_u32 v2, {OS}, v2
    v_lshlrev_b32 v3, 10, v87
    v_lshl_add_u32 v3, v86, 3, v3
    s_lshl_b32 s84, s88, 15
    s_lshl_b32 s86, s89, 5
    s_add_u32 s84, s84, s86
    v_add_u32 v3, s84, v3
    v_add_u32 v4, 0x4000, v3
    """)
    def go():
        NB = 12; FB = 16
        rd = lambda i: a(f"ds_read_b128 {vr(FB+4*(i%NB),4)}, v2 offset:{2048*(i>>1) + 256*(i&1)}")
        for i in range(NB): rd(i)
        for g in range(8):
            a(f"s_waitcnt lgkmcnt({min(8, 28 - 4 * g)})")
            for i in range(4 * g, 4 * g + 4):
                acc = 8 + 4 * (i & 1)
                a(f"v_mfma_f32_16x16x32_bf16 {vr(acc,4)}, {vr(PW+4*(i>>1),4)}, {vr(FB+4*(i%NB),4)}, {'0' if i < 2 else vr(acc,4)}")
            for i in range(4 * g + NB, min(4 * g + NB + 4, 32)): rd(i)
        for nt in range(2):
            for i in range(4): a(f"v_fma_f32 v{8+4*nt+i}, v{8+4*nt+i}, v{PG+nt}, v{PB+4*nt+i}")
            a(f"v_cvt_pk_bf16_f32 v{16+2*nt}, v{8+4*nt}, v{9+4*nt}\nv_cvt_pk_bf16_f32 v{17+2*nt}, v{10+4*nt}, v{11+4*nt}")
            a(f"global_store_dwordx2 v{3+nt}, {vr(16+2*nt,2)}, {S_OUT} {OPT.get('outmod', '')}")
    return go

def build_fused():
    a = Asm()
    k = NAME + "_kernel"
    launches = f"; @launch grid=(256,1,1) block=(512,1,1) lds={LDS_BYTES}\n"
    if G.STAMPS:
        launches = f"; @launch kernel={k} grid=(256,1,1) block=(512,1,1) lds={LDS_BYTES}\n; @launch kernel=stamp_kernel grid=(1,1,1) block=(256,1,1) lds=1024\n"
    a.raw(header() + launches + '.amdgcn_target "amdgcn-amd-amdhsa--gfx950"\n.text')
    kernel_head(a, k)
    if "amp" in OPT: lstamp(a, "E")
    prologue(a, "L_end")
    lstamp(a, 0)
    if OPT.get("idle0"): a(f"s_sleep {OPT['idle0']}")
    a(f"s_cmp_lt_u32 {SW}, 4\ns_cbranch_scc1 L_gemm")
    a_params(a)
    a("s_barrier\ns_branch L_aux")
    a.reset(); a("L_gemm:")
    g_phase1(a)
    lg = list(G.LIGHT); G.LIGHT[:] = [s for s in lg if s == 0]
    a("s_branch L_att")
    a.reset(); a("L_aux:")
    a_phase1(a)
    la = list(G.LIGHT); G.LIGHT[:] = sorted(set(la) | set(lg))
    a.reset(); a("L_att:")
    for r in range(4): a(f"v_mov_b32 v{VS+r}, -1")
    a("s_barrier")
    a(f"ds_write_b32 v92, v{VZ}")
    lstamp(a, 4)
    KM = SC
    if OPT.get("idle"): a(f"s_sleep {OPT['idle']}")
    conv_finish(a)
    lstamp(a, 27)
    mode = "slow"
    sched = {t: [t + 3] for t in range(13)}
    def early_stores():
        deferred_stores(a)
        a(f"""
        s_lshl_b32 s87, s76, 5
        s_add_u32 s87, s87, s74
        s_lshl_b32 s87, s87, 10
        s_add_u32 s87, s87, {OF}
        buffer_store_dwordx4 {vr(VS,4)}, v1, {R_WS}, s87 offen {SC}
        """)
    def hdma(t):
        def f():
            if t == 2: a("s_waitcnt vmcnt(2)\ns_barrier")
            if t == 2 and OPT.get("late3"): early_stores()
            if t == 10:
                a("s_waitcnt vmcnt(1)\ns_barrier"); lstamp(a, 28)
                if OPT.get("late3"):
                    s3_addr(); a(f"s_cmp_lg_u32 {SW}, 0\ns_cbranch_scc1 L_s3_skip"); signal(a, "s85"); a("L_s3_skip:")
            kv_dma(a, sched[t], KM)
        return f
    def s3_addr(): a(f"s_lshl_b32 s85, {SX}, 7\ns_lshl_b32 s86, {SJ}, 2\ns_add_u32 s85, s85, s86\ns_add_u32 s85, s85, {F_S3}")
    def h_bar():
        a("s_waitcnt vmcnt(0)\ns_barrier"); s3_addr()
        a(f"s_cmp_lg_u32 {SW}, 0\ns_cbranch_scc1 L_s3_skip")
        signal(a, "s85")
        a("L_s3_skip:")
        if mode != "slow": lstamp(a, 28)
    def h_cnt():
        a(f"""
        s_waitcnt vmcnt(0)
        s_mov_b64 exec, 1
        ds_add_rtn_u32 v93, v92, v93
        s_mov_b64 exec, -1
        """)
    def h_s3sig():
        a("v_readfirstlane_b32 s84, v93"); s3_addr()
        a("s_cmp_lg_u32 s84, 7\ns_cbranch_scc1 L_s3_skip")
        signal(a, "s85")
        a("L_s3_skip:")
    def h_s3ld():
        a(f"s_mov_b32 s84, {F_S3}\nbuffer_load_dwordx4 {vr(VT,4)}, v1, {R_WS}, s84 offen {SC}")
    def wof_dma(r):
        for i in range(4): a(f"buffer_load_dwordx4 v1, {R_WS}, s90 offen offset:{1024*i} {SC} lds")
        if r < 3: a("s_add_u32 s90, s90, 4096")
    def h_s3chk():
        a("s_waitcnt vmcnt(0)")
        poll(a, "s3", 1, "s84", True, 4)
        a(f"""
        s_lshl_b32 s88, s75, 3
        s_lshr_b32 s89, s74, 2
        s_add_u32 s88, s88, s89
        s_and_b32 s89, s74, 3
        s_lshl_b32 s89, s89, 3
        s_add_u32 s89, s89, {SW}
        s_lshl_b32 s90, s89, 14
        s_add_u32 s90, s90, {WOF}
        s_lshl_b32 s86, {SW}, 12
        s_add_u32 s86, s86, {OS}
        s_mov_b32 m0, s86
        v_add_u32 v92, s86, v1
        """)
        if OPT.get("nos3"): return
        wof_dma(0)
        a(f"""
        s_or_b32 s84, s2, {SW}
        s_cmp_lg_u32 s84, 0
        s_cbranch_scc1 L_n_skip
        s_mov_b32 s84, {F_N}
        """)
        signal(a, "s84")
        a("L_n_skip:")
    def h_wrd(r):
        def f():
            if OPT.get("nos3"): return
            a("s_waitcnt vmcnt(0)")
            for i in range(4): a(f"ds_read_b128 {vr(PW+16*r+4*i,4)}, v92 offset:{1024*i}")
        return f
    def h_wld(r):
        def f():
            if OPT.get("nos3"): return
            wof_dma(r)
        return f
    def h_side():
        if OPT.get("nos3"):
            a("v_lshrrev_b32 v86, 4, v0\nv_and_b32 v87, 15, v0"); return
        a(f"""
        v_lshrrev_b32 v86, 4, v0
        v_and_b32 v87, 15, v0
        v_lshlrev_b32 v88, 14, v86
        v_lshl_add_u32 v88, v87, 1, v88
        s_lshl_b32 s90, s89, 16
        s_lshl_b32 s91, s88, 6
        s_add_u32 s90, s90, s91
        s_add_u32 s90, s90, {BT}
        """)
        for i in range(4):
            if i: a("s_add_u32 s90, s90, 4096")
            for nt in range(2): a(f"buffer_load_short_d16_hi v{PB+4*nt+i}, v88, {R_WS}, s90 offen offset:{32*nt} {SC}")
        a(f"""
        v_lshlrev_b32 v88, 2, v87
        s_lshl_b32 s90, s88, 7
        s_add_u32 s90, s90, {GW}
        buffer_load_dword v{PG}, v88, {R_WS}, s90 offen {SC}
        buffer_load_dword v{PG+1}, v88, {R_WS}, s90 offen offset:64 {SC}
        """)
    hooks = {t: hdma(t) for t in sched}
    def h_kvadd(): a("s_waitcnt vmcnt(0)\ns_mov_b64 exec, 1\nds_add_u32 v92, v93\ns_mov_b64 exec, -1")
    def h_kvrd(): a("ds_read_b32 v93, v92")
    def h_kvchk():
        a(f"""
        s_mov_b32 s92, {SPIN}
        L_kv:
        v_readfirstlane_b32 s84, v93
        s_sub_u32 s92, s92, 1
        s_cmp_eq_u32 s92, 0
        s_cbranch_scc1 L_kv_ok
        s_cmp_eq_u32 s84, 8
        s_cbranch_scc1 L_kv_ok
        ds_read_b32 v93, v92
        s_waitcnt lgkmcnt(0)
        s_branch L_kv
        L_kv_ok:
        """)
    if OPT.get("late3"): hooks.update({15: h_kvadd, 32: h_kvrd, 33: h_kvchk})
    elif mode == "slow" and OPT.get("bar3"): hooks.update({14: early_stores, int(OPT["bar3"]): h_bar})
    elif mode == "slow": hooks.update({14: early_stores, 19: h_cnt, 20: h_s3sig})
    else: hooks.update({TB2: h_bar})
    if OPT.get("wbl2"):
        def h_wb(): a(f"s_or_b32 s84, {SJ}, {SW}\ns_cmp_lg_u32 s84, 0\ns_cbranch_scc1 L_wb_skip\nbuffer_wbl2 sc1\nL_wb_skip:")
        hooks[24] = h_wb
    hooks.update({34: h_s3ld, 38: h_s3chk, 58: h_side})
    for r in range(4):
        hooks[42 + 5 * r] = h_wrd(r)
        if r < 3: hooks[43 + 5 * r] = h_wld(r + 1)
    prios = {0: 1, 1: 0, 2: 3, 5: 2, 8: 1, 9: 0, 10: 3, 22: 2, 44: 1, 58: 0}
    if "prios" in OPT: prios = {int(x.split(":")[0]): int(x.split(":")[1]) for x in OPT["prios"].split(",")}
    att_main(a, hooks, prios)
    lstamp(a, 29)
    att_finish2(a, "at")
    lstamp(a, 5)
    a(f"""
    s_lshl_b32 s93, s88, 15
    s_lshl_b32 s86, {SW}, 12
    s_add_u32 s93, s93, s86
    s_add_u32 s93, s93, {OF}
    """)
    OM = OPT.get("omod", SC).replace("_", " ")
    odma = lambda: [a(f"buffer_load_dwordx4 v1, {R_WS}, s93 offen offset:{1024*i} {OM} lds") for i in range(4)]
    if OPT.get("oack"):
        a("s_waitcnt vmcnt(1)")
        out_side_math(a)
        gemm = out_gemm(a)
        a(f"s_mov_b32 s92, {SPIN}\ns_waitcnt vmcnt(0)")
        if OPT.get("obar"): a("s_barrier")
        if OPT.get("opre"): a(f"s_sleep {OPT['opre']}")
        a("s_branch L_o_go\nL_o_again:")
    else:
        odma()
        a("s_waitcnt vmcnt(5)")
        out_side_math(a)
        gemm = out_gemm(a)
        a(f"s_mov_b32 s92, {SPIN}\ns_branch L_o_chk\nL_o_again:")
    if OPT.get("osleep"): a(f"s_sleep {OPT['osleep']}")
    a("L_o_go:")
    odma()
    a("L_o_chk:\ns_waitcnt vmcnt(0)")
    for i in range(4): a(f"ds_read_b128 {vr(16+4*i,4)}, v92 offset:{1024*i}")
    a("s_sub_u32 s92, s92, 1\ns_waitcnt lgkmcnt(2)")
    a("v_max3_u32 v5, v16, v17, v18\nv_max3_u32 v6, v19, v20, v21\nv_max3_u32 v5, v22, v23, v5\ns_waitcnt lgkmcnt(0)")
    a("v_max3_u32 v6, v24, v25, v6\nv_max3_u32 v5, v26, v27, v5\nv_max3_u32 v6, v28, v29, v6\nv_max3_u32 v5, v30, v31, v5\nv_max_u32 v5, v5, v6")
    a("""
    v_cmp_eq_u32 vcc, -1, v5
    s_cmp_eq_u32 s92, 0
    s_cbranch_scc1 L_o_ok
    s_cbranch_vccnz L_o_again
    L_o_ok:
    """)
    lstamp(a, 30)
    a("s_barrier")
    gemm()
    lstamp(a, 7)
    if G.STAMPS:
        lflush(a, range(8))
        for s in la:
            if s: G.STAMP_WAVES[s] = list(range(4, 8))
        for s in lg:
            if s: G.STAMP_WAVES[s] = list(range(4))
    if "amp" in OPT:
        w = OPT["amp"].split(",")[2]
        a(f"""
        s_cmp_lg_u32 s2, {OPT.get("ampwg", 0)}
        s_cbranch_scc1 L_end
        s_cmp_lg_u32 {SW}, {w}
        s_cbranch_scc1 L_end
        s_sub_u32 s98, s98, s96
        s_lshl_b32 s98, s98, 2
        s_min_u32 s98, s98, 40000
        s_memrealtime s[96:97]
        s_waitcnt lgkmcnt(0)
        L_amp:
        s_memrealtime s[100:101]
        s_waitcnt lgkmcnt(0)
        s_sub_u32 s100, s100, s96
        s_cmp_lt_u32 s100, s98
        s_cbranch_scc1 L_amp
        """)
    a("L_end:\ns_endpgm")
    att_slow(a, "at")
    a("L_codeend:\ns_endpgm")
    if G.STAMPS: stamp_reduce_kernel(a)
    a.raw('.section .rodata,"a"')
    if G.STAMPS: a.raw(descriptor("stamp_kernel", 32))
    a.raw(descriptor(k, 256))
    return a.text()

if __name__ == "__main__":
    out = sys.argv[1]
    for o in sys.argv[2:]:
        kk, _, v = o.partition("="); OPT[kk] = v or True
    G.STAMPS = bool(OPT.get("stamp"))
    OPT.setdefault("ones", "few"); OPT.setdefault("nowpf", True); OPT.setdefault("qmod", "plain"); OPT.setdefault("touch", "a"); OPT.setdefault("sched", "slow"); OPT.setdefault("wbl2", True); OPT.setdefault("nocpf", "0"); OPT.setdefault("oack", True); OPT.setdefault("s3pre", True); OPT.setdefault("tmod", "sc1"); OPT.setdefault("omod", "sc1"); OPT.setdefault("ostm", "sc1"); OPT.setdefault("obar", True); OPT.setdefault("osleep", "2")
    txt = build_fused()
    open(out, "w").write(txt)
    print("wrote", out, len(txt), "bytes")
```

```python
import sys
import gen as G
from gen import (Asm, OPT, NAME, vr, VM, prologue, aux_ids, kernel_head, descriptor, header, lstamp, lflush, stamp_reduce_kernel,
                 QF, KV, XT, BT, OF, WOF, GW, LDS_BYTES, LOG2E, INV2PI, QSCALE,
                 S_X, S_WO, S_LOGA, S_AIM, S_CR, S_CI, S_LDT, S_DSK, S_GWT, S_OUT, R_X, R_W, R_WS, SX, SJ, SW,
                 AQ, AKS, AV1, AV2, AS_, AO, PW, PB, PG, att_slow, out_side_loads, out_side_math)
from gen2 import cmuls, RowWriter, cexp

SC = "sc1"
SPIN = 400000
FL = 0xC90000
F_N, F_S1, F_S2, F_S3, F_S4 = FL, FL + 0x1000, FL + 0x3000, FL + 0x4000, FL + 0x8000
SLOT = 32768
def slot_addr(t): return SLOT * (1 + ((t + 1) & 3))
TBS, HTS = 8704, 7344
EX0, KX0, KXD = 0, 16384, 4608
RE, RSZ = 4160, 16640
US = 4640
OS = 131072
VN, VX, VZ, VT, VS = 240, 241, 242, 244, 236
DB, DA = 224, 232
PRIOS = {0: 3, 38: 2, 54: 1, 61: 0}

def poll(a, tag, vaddr, soff, first_issued=False, n=1, ncmp=None, vt=VT, sleep=4):
    ld = f"buffer_load_dword{'' if n == 1 else 'x%d' % n} {vr(vt, n)}, v{vaddr}, {R_WS}, {soff} offen {SC}"
    ncmp = ncmp or n
    a(f"s_mov_b32 s92, {SPIN}")
    if first_issued: a(f"s_branch L_{tag}_chk")
    a(f"L_{tag}_poll:\n{ld}\ns_waitcnt vmcnt(0)")
    a(f"L_{tag}_chk:")
    a(f"v_cmp_ne_u32 vcc, v{vt}, v{VN}")
    for i in range(1, ncmp): a(f"v_cmp_ne_u32 s[90:91], v{vt+i}, v{VN}\ns_or_b64 vcc, vcc, s[90:91]")
    if ncmp == 1: a("s_nop 1")
    a(f"""
    s_cbranch_vccz L_{tag}_ok
    s_sleep {sleep}
    s_sub_u32 s92, s92, 1
    s_cmp_lg_u32 s92, 0
    s_cbranch_scc1 L_{tag}_poll
    L_{tag}_ok:
    """)

def signal(a, soff, mod=SC, n=1):
    a(f"""
    s_mov_b64 exec, 1
    buffer_store_dword{'' if n == 1 else 'x2'} {vr(VN, n)}, v{VZ}, {R_WS}, {soff} offen {mod}
    s_mov_b64 exec, -1
    """)

def epoch_load(a):
    a(f"v_mov_b32 v{VZ}, 0\ns_mov_b32 s56, {F_N}\nbuffer_load_dword v{VN}, v{VZ}, {R_WS}, s56 offen {SC}")

def epoch_next(a):
    a(f"s_mov_b32 s55, 1664525\nv_mul_lo_u32 v{VN}, v{VN}, s55\nv_add_u32 v{VN}, 1013904223, v{VN}")

DX, DW = 94, 95
def dma_setup(a):
    a(f"""
    v_lshrrev_b32 v1, 3, v0
    v_lshrrev_b32 v2, 4, v0
    s_and_b32 s58, {SW}, 1
    s_lshl_b32 s56, s58, 2
    v_add_u32 v3, s56, v2
    v_and_b32 v{DW}, 7, v0
    v_xor_b32 v3, v3, v{DW}
    v_lshlrev_b32 v3, 4, v3
    v_lshl_add_u32 v{DX}, v1, 10, v3
    v_and_b32 v2, 1, v2
    v_lshlrev_b32 v2, 2, v2
    v_xor_b32 v2, v2, v{DW}
    v_lshlrev_b32 v2, 4, v2
    v_mov_b32 v3, 0xc00
    v_mad_u32_u24 v{DW}, v1, v3, v2
    s_lshl_b32 s44, {SJ}, 16
    s_lshl_b32 s45, {SW}, 13
    s_add_u32 s44, s44, s45
    s_mul_i32 s45, {SW}, {16*3072}
    s_lshl_b32 s56, {SX}, 7
    s_add_u32 s45, s45, s56
    s_lshl_b32 s46, {SW}, 10
    s_lshl_b32 s47, {SW}, 11
    s_mul_i32 s54, {SJ}, 37
    s_lshr_b32 s54, s54, 8
    s_mul_i32 s54, s54, 7
    s_sub_u32 s54, {SJ}, s54
    """)

def dma_pieces(t, part="xw"):
    base = slot_addr(t); out = []
    head = f"s_add_u32 s56, {SX}, {t}\ns_and_b32 s56, s56, 7\n"
    if OPT.get("rot7") and t:
        head = f"s_add_u32 s56, s54, {t - 1}\ns_cmp_ge_u32 s56, 7\ns_cselect_b32 s57, 6, -1\ns_sub_u32 s56, s56, s57\ns_add_u32 s56, s56, {SX}\ns_and_b32 s56, s56, 7\n"
    if "x" in part:
        for i in range(2):
            p = (head + "s_lshl_b32 s57, s56, 7\ns_add_u32 s57, s57, s44\n") if i == 0 else "s_add_u32 s57, s57, 0x8000\n"
            out.append(p + f"s_add_u32 m0, s46, {base + i*4096}\nbuffer_load_dwordx4 v{DX}, {R_X}, s57 offen lds")
        head = ""
    if "w" in part:
        for i in range(2):
            for ty in range(3):
                p = ""
                if ty == 0: p = (head + f"s_mul_i32 s56, s56, {64*3072}\ns_add_u32 s56, s56, s45\n") if i == 0 else f"s_add_u32 s56, s56, {8*3072}\n"
                out.append(p + f"s_add_u32 m0, s47, {base + 8192 + ty*8192 + i*1024 - ty*1024}\nbuffer_load_dwordx4 v{DW}, {R_W}, s56 offen offset:{ty*1024} lds")
    return out

def dma(a, vm, t, part="xw", tag=None):
    for p in dma_pieces(t, part): a(p); vm.add(tag or f"s{t}")

T0 = 48
QS = 147456
def kv_dma(a, rounds, mod, both=False):
    for r in rounds:
        o = 8192 * ((r + T0 // 4) & 15)
        a(f"s_add_u32 m0, s79, {o}\ns_add_u32 s80, s78, {o}\nbuffer_load_dwordx4 v1, {R_WS}, s80 offen {mod} lds")
        if both: a(f"s_add_u32 m0, s79, {o + 4096}\ns_add_u32 s80, s78, {o + 4096}\nbuffer_load_dwordx4 v1, {R_WS}, s80 offen {mod} lds")

def att_bulk():
    l = f"""
    s_lshr_b32 s74, {SJ}, 3
    s_lshl_b32 s75, {SX}, 2
    s_add_u32 s74, s74, s75
    s_and_b32 s75, {SJ}, 7
    s_lshl_b32 s76, s75, 3
    s_add_u32 s76, s76, {SW}
    s_lshl_b32 s77, s74, 6
    s_add_u32 s77, s77, s76
    s_lshl_b32 s77, s77, 10
    s_add_u32 s77, s77, {QF}
    s_lshl_b32 s78, s74, 17
    s_lshl_b32 s79, {SW}, 10
    s_add_u32 s78, s78, s79
    s_add_u32 s78, s78, {KV}
    s_mov_b32 s82, 0xffff
    s_mov_b32 s83, 0xffff
    v_and_b32 v16, 27, v0
    v_cmp_eq_u32 vcc, 16, v16
    v_mov_b32 v17, 0x3f803f80
    v_mov_b32 v92, {LDS_BYTES - 4}
    v_cndmask_b32 v16, 0, v17, vcc
    v_mov_b32 v93, 1
    """.strip().split("\n")
    l += [f"v_mov_b32 v{r}, v16" for r in range(17, 32)] + [f"v_mov_b32 v{AO+r}, 0" for r in range(16)]
    return [x.strip() for x in l]

def att_addr():
    return [x.strip() for x in """
    v_lshlrev_b32 v1, 4, v0
    v_lshrrev_b32 v2, 5, v0
    v_lshlrev_b32 v2, 8, v2
    v_and_b32 v3, 15, v0
    v_lshl_add_u32 v2, v3, 4, v2
    v_add_u32 v2, 1024, v2
    v_add_u32 v80, 0x10000, v1
    v_add_u32 v81, 0x10000, v2
    v_mov_b32 v3, 0xdddddddd
    """.strip().split("\n")]

def g_phase1(a):
    vm = VM()
    ACC = (96, 112, 128); SETS = (144, 160, 176, 192)
    XA, WA = 4, 12
    GX, GG, GO = 32, 40, 44
    dma_setup(a)
    a("s_barrier")
    for t in range(2): dma(a, vm, t)
    lstamp(a, 18)
    a(f"""
    s_getreg_b32 s62, hwreg(HW_REG_XCC_ID)
    v_mov_b32 v{VX}, s62
    s_lshr_b32 s59, {SW}, 1
    v_and_b32 v1, 31, v0
    s_lshl_b32 s60, s58, 12
    s_add_u32 s60, s60, {SLOT}
    v_lshlrev_b32 v2, 7, v1
    v_add_u32 v2, s60, v2
    v_bfe_u32 v1, v0, 1, 3
    v_lshrrev_b32 v3, 5, v0
    v_xor_b32 v1, v1, v3
    """)
    for ks in range(4):
        a(f"v_xor_b32 v3, {2*ks}, v1\nv_lshl_add_u32 v{XA+ks}, v3, 4, v2\nv_add_u32 v{XA+4+ks}, 0x10000, v{XA+ks}")
    a(f"""
    v_lshrrev_b32 v1, 5, v0
    v_lshlrev_b32 v1, 10, v1
    v_bfe_u32 v2, v0, 2, 2
    v_lshl_add_u32 v1, v2, 7, v1
    v_bfe_u32 v2, v0, 3, 1
    v_xor_b32 v2, s59, v2
    v_lshl_add_u32 v1, v2, 6, v1
    v_bfe_u32 v2, v0, 4, 1
    v_lshl_add_u32 v1, v2, 5, v1
    v_and_b32 v2, 3, v0
    v_lshl_add_u32 v1, v2, 3, v1
    v_add_u32 v{WA}, {SLOT + 8192}, v1
    v_add_u32 v{WA+1}, {SLOT + 8192 + 65536}, v1
    """)
    epoch_load(a); vm.add("n")
    dma(a, vm, 2)
    if OPT.get("s3pre") != "0": dma(a, vm, 3, "w", "s3w")
    lstamp(a, 1)
    fill = [x.strip() for x in f"""
    ; side-load addresses: v14 gate rows, v15 gate weights, v52/v57 wo gathers; s67 gate output, s69 wo fragment output
    s_lshl_b32 s67, {SJ}, 6
    s_lshl_b32 s62, {SX}, 3
    s_add_u32 s67, s67, s62
    s_lshl_b32 s62, {SW}, 1
    s_add_u32 s67, s67, s62
    v_lshlrev_b32 v15, 4, v0
    s_lshl_b32 s62, s67, 10
    v_add_u32 v14, s62, v15
    s_lshl_b32 s62, {SX}, 5
    s_add_u32 s62, s62, {SJ}
    s_lshr_b32 s69, s62, 3
    s_and_b32 s63, s62, 7
    s_lshl_b32 s63, s63, 1
    s_add_u32 s63, s63, s58
    s_lshl_b32 s64, s63, 15
    s_lshl_b32 s62, s69, 5
    s_add_u32 s64, s64, s62
    v_lshrrev_b32 v3, 5, v0
    v_lshlrev_b32 v3, 14, v3
    v_bfe_u32 v2, v0, 4, 1
    v_lshl_add_u32 v3, v2, 12, v3
    v_and_b32 v2, 15, v0
    v_lshl_add_u32 v3, v2, 1, v3
    v_add_u32 v52, s64, v3
    v_add_u32 v57, 0x2000, v52
    s_lshl_b32 s69, s69, 4
    s_add_u32 s69, s69, s63
    s_lshl_b32 s69, s69, 10
    s_add_u32 s69, s69, {WOF}
    s_lshl_b32 s67, s67, 2
    s_add_u32 s67, s67, {GW}
    ; hand-off words: s72 = die-id line, s70 = projection-done word, s71 = line polled before attention
    s_lshl_b32 s72, {SX}, 2
    s_add_u32 s72, s72, {SW}
    s_lshl_b32 s72, s72, 8
    s_add_u32 s72, s72, {F_S1}
    v_and_b32 v53, 31, v0
    v_lshlrev_b32 v53, 3, v53
    s_lshl_b32 s70, {SX}, 1
    s_lshr_b32 s71, {SJ}, 4
    s_add_u32 s71, s71, s70
    s_lshl_b32 s71, s71, 8
    s_add_u32 s71, s71, {F_S2}
    s_add_u32 s70, s70, s59
    s_lshl_b32 s70, s70, 8
    s_lshl_b32 s62, {SJ}, 3
    s_add_u32 s70, s70, s62
    s_lshl_b32 s62, s58, 2
    s_add_u32 s70, s70, s62
    s_add_u32 s70, s70, {F_S2}
    v_lshlrev_b32 v54, 2, v0
    ; epilogue addresses
    s_lshl_b32 s60, {SX}, 2
    s_lshl_b32 s61, s59, 1
    s_add_u32 s60, s60, s61
    s_lshl_b32 s60, s60, 6
    s_lshl_b32 s61, {SJ}, 1
    s_add_u32 s61, s61, s58
    s_add_u32 s60, s60, s61
    s_lshl_b32 s61, s60, 10
    s_add_u32 s61, s61, {QF}
    s_add_u32 s62, s61, 0x10000
    s_lshl_b32 s63, s60, 11
    s_add_u32 s63, s63, {KV}
    s_add_u32 s64, s63, 0x20000
    s_mov_b32 s65, {QSCALE}
    v_and_b32 v55, 0x33, v0
    v_bfe_u32 v3, v0, 2, 1
    v_lshl_or_b32 v55, v3, 3, v55
    v_bfe_u32 v3, v0, 3, 1
    v_lshl_or_b32 v55, v3, 2, v55
    v_lshlrev_b32 v55, 4, v55
    v_and_b32 v56, 15, v0
    v_lshlrev_b32 v56, 4, v56
    v_lshrrev_b32 v3, 5, v0
    v_lshl_add_u32 v56, v3, 8, v56
    v_bfe_u32 v3, v0, 4, 1
    v_lshl_add_u32 v56, v3, 17, v56
    """.strip().split("\n") if not x.strip().startswith(";")]
    fill += [f"v_mov_b32 v{r}, 0" for r in range(DA, DA + 4)] + att_bulk() + att_addr()
    if OPT.get("fillpre"):
        while fill: a(fill.pop(0))
    def reads(t, ks):
        p = slot_addr(t) // SLOT - 1; s = SETS[ks]; hi = p >> 1; o0 = (p & 1) * SLOT
        l = [f"ds_read_b128 {vr(s,4)}, v{XA + 4*hi + ks} offset:{o0}"]
        for ty in (1, 2, 0):
            for ri in range(2):
                l.append(f"ds_read_b64_tr_b16 {vr(s+4+4*ty+2*ri,2)}, v{WA+hi} offset:{o0 + ty*8192 + ks*2048 + ri*512}")
        return l
    def mf(ks, i, first=False):
        s = SETS[ks]; c = "0" if first else vr(ACC[i], 16)
        ab = f"{vr(s,4)}, {vr(s+12,4)}" if i == 2 else f"{vr(s+4+4*i,4)}, {vr(s,4)}"
        a(f"v_mfma_f32_32x32x16_bf16 {vr(ACC[i],16)}, {ab}, {c}")
    pend = []
    def mm(ks, first, rd=(), nd=2):
        rd = list(rd)
        for i, r in zip((1, 2, 0), (rd[:4], rd[4:], [])):
            mf(ks, i, first)
            for x in r: a(x)
            for _ in range(3 if r else 5):
                if fill: a(fill.pop(0))
        for _ in range(nd):
            if pend:
                tag, p = pend.pop(0)
                if OPT.get("nodma") and tag[0] == "s" and tag != "side": p = "buffer_load_dword v59, v15, s[32:35], 0 offen"
                a(p); vm.add(tag)
    side = [f"global_load_dwordx4 {vr(GX,4)}, v14, {S_X}", f"global_load_dwordx4 {vr(GX+4,4)}, v14, {S_X} offset:1024", f"global_load_dwordx4 {vr(GG,4)}, v15, {S_GWT}"]
    side += [f"global_load_short_d16{'_hi' if j & 1 else ''} v{GO+j}, v{57 if j >> 2 else 52}, {S_WO} offset:{1024*(j&3)}" for j in range(8)]
    for t in range(8):
        if OPT.get("gpos") == "pre": lstamp(a, 8 + t)
        vm.wait(a, f"s{t}")
        if t == 3: epoch_next(a)
        if OPT.get("gpos") == "mid": lstamp(a, 8 + t)
        a("s_barrier")
        if not OPT.get("gpos"): lstamp(a, 8 + t)
        nd = 2
        if t == 0 and OPT.get("s3pre") == "0": pend += [("s3w", p) for p in dma_pieces(3, "w")]; nd = 3
        if t == 1: pend += [("s3", p) for p in dma_pieces(3, "x")]; nd = 3
        if 1 <= t <= 4: pend += [(f"s{t+3}", p) for p in dma_pieces(t + 3)]
        if t == int(OPT.get("tt", 5)) and OPT.get("touch") == "g":
            pend += [("touch", f"s_mov_b32 exec_hi, 0xffff\nbuffer_load_dword v59, v58, {R_WS}, 0 offen\ns_mov_b32 exec_hi, -1")]; nd = 3
        if t == 5: assert not fill, len(fill)
        if t == 5: pend += [("f", f"buffer_load_dwordx2 {vr(VT,2)}, v53, {R_WS}, s72 offen {SC}")]
        if t == 5: pend += [("side", p) for p in side]; nd = 3
        if t == 0:
            for x in reads(0, 0) + reads(0, 1): a(x)
        else:
            if OPT.get("burst"): nd = int(OPT["burst"])
            mm(2, False, reads(t, 0), nd)
            mm(3, False, reads(t, 1), nd)
        a("s_waitcnt lgkmcnt(7)")
        mm(0, t == 0, reads(t, 2), nd)
        a("s_waitcnt lgkmcnt(7)")
        mm(1, False, reads(t, 3), nd)
        assert not pend
        if t == 7 and OPT.get("gprio"): a(f"s_setprio {OPT['gprio']}")
        if t == 7:
            lstamp(a, 6)
            vm.wait(a, "f")
            poll(a, "s1g", 53, "s72", True, 2, 1)
            a(f"v_cmp_ne_u32 s[94:95], v{VT+1}, v{VX}")
        a("s_waitcnt lgkmcnt(0)")
    a("s_cmp_eq_u64 s[94:95], 0")
    if OPT.get("nofast"): a("s_branch L_st_far")
    a("s_cbranch_scc0 L_st_far")
    cv = lambda d, s: [f"v_cvt_pk_bf16_f32 v{d+r}, v{s+2*r}, v{s+2*r+1}" for r in range(8)]
    for fmod in ("", SC):
        mod = fmod or OPT.get("qmod", "").replace("plain", "")
        if fmod: a.reset(); a("L_st_far:")
        for ks, i in ((2, 1), (3, 1), (2, 2), (3, 2), (2, 0)): mf(ks, i)
        a("s_nop 6")
        if not fmod: lstamp(a, 20) if OPT.get("gst") else None
        for x in cv(144, ACC[1])[:4]: a(x)
        mf(3, 0)
        for x in cv(144, ACC[1])[4:]: a(x)
        a(f"buffer_store_dwordx4 v[144:147], v55, {R_WS}, s63 offen {mod}\nbuffer_store_dwordx4 v[148:151], v55, {R_WS}, s64 offen {mod}")
        if not fmod: lstamp(a, 19) if OPT.get("gst") else None
        for x in cv(152, ACC[2]): a(x)
        a(f"buffer_store_dwordx4 v[152:155], v56, {R_WS}, s63 offen offset:1024 {mod}\nbuffer_store_dwordx4 v[156:159], v56, {R_WS}, s63 offen offset:1536 {mod}")
        for h in range(2):
            for r in range(8): a(f"v_mul_f32 v{ACC[0]+8*h+r}, s65, v{ACC[0]+8*h+r}")
            for x in cv(160, ACC[0])[4*h:4*h+4]: a(x)
            a(f"buffer_store_dwordx4 {vr(160+4*h,4)}, v1, {R_WS}, s{61+h} offen {mod}")
        if not fmod: lstamp(a, 16)
        a("s_mov_b32 s68, 0xffff0000\ns_waitcnt vmcnt(6)")
        for k in range(4): a(f"v_lshlrev_b32 v{168+2*k}, 16, v{GG+k}\nv_and_b32 v{169+2*k}, s68, v{GG+k}")
        for k in range(4):
            for r in range(2):
                x = GX + 4 * r + k; t = 180 + 2 * r
                a(f"v_lshlrev_b32 v{t}, 16, v{x}\nv_and_b32 v{t+1}, s68, v{x}\nv_mul_f32 v{t}, v{t}, v{168+2*k}\nv_mul_f32 v{t+1}, v{t+1}, v{169+2*k}")
                a(f"v_cvt_pk_bf16_f32 v{x}, v{t}, v{t+1}")
        a("s_waitcnt vmcnt(0)")
        signal(a, "s70", fmod)
        if not fmod: a("s_branch L_st_done")
    a.reset(); a("L_st_done:")
    lstamp(a, 17)
    a(f"buffer_load_dword v{VT}, v54, {R_WS}, s71 offen {SC}")
    for k in range(4):
        for r in range(2):
            x = GX + 4 * r + k; t = 180 + 2 * r
            a(f"v_and_b32 v{t+1}, s68, v{x}\nv_lshlrev_b32 v{t}, 16, v{x}")
            if k == 0: a(f"v_add_f32 v{176+r}, v{t}, v{t+1}")
            else: a(f"v_add_f32 v{176+r}, v{176+r}, v{t}\nv_add_f32 v{176+r}, v{176+r}, v{t+1}")
    wo_pack = [f"v_or_b32 v{DB+j}, v{GO+2*j}, v{GO+2*j+1}" for j in range(4)]
    for d in ("row_shr:1 row_mask:0xf bank_mask:0xf bound_ctrl:0", "row_shr:2 row_mask:0xf bank_mask:0xf bound_ctrl:0",
              "row_shr:4 row_mask:0xf bank_mask:0xf bound_ctrl:0", "row_shr:8 row_mask:0xf bank_mask:0xf bound_ctrl:0",
              "row_bcast:15 row_mask:0xa bank_mask:0xf", "row_bcast:31 row_mask:0xc bank_mask:0xf"):
        if wo_pack: a(wo_pack.pop())
        for r in range(2): a(f"v_add_f32_dpp v{176+r}, v{176+r}, v{176+r} {d}")
    a(f"""
    v_cvt_pk_bf16_f32 v178, v176, v177
    s_mov_b32 s60, {LOG2E}
    v_lshlrev_b32 v176, 16, v178
    v_and_b32 v177, s68, v178
    v_mul_f32 v176, s60, v176
    v_mul_f32 v177, s60, v177
    v_exp_f32 v176, -v176
    v_exp_f32 v177, -v177
    v_add_f32 v176, 1.0, v176
    v_add_f32 v177, 1.0, v177
    v_rcp_f32 v176, v176
    v_rcp_f32 v177, v177
    s_nop 0
    v_cvt_pk_bf16_f32 v178, v176, v177
    v_lshlrev_b32 v{DB+4}, 16, v178
    v_and_b32 v{DB+5}, s68, v178
    """)
    a("s_waitcnt vmcnt(0)")
    poll(a, "s2", 54, "s71", True, sleep=1)
    lstamp(a, 2)
    a(f"""
    buffer_load_dwordx4 {vr(AQ,4)}, v1, {R_WS}, s77 offen {SC}
    s_add_u32 m0, s79, {QS}
    s_add_u32 s80, s77, 4096
    buffer_load_dwordx4 v1, {R_WS}, s80 offen {SC} lds
    """)
    kv_dma(a, range(3), SC, True)
    a("s_waitcnt vmcnt(4)")

def deferred_stores(a):
    a(f"s_cmp_lt_u32 {SW}, 4\ns_cbranch_scc1 L_df_g")
    for ci in range(4): a(f"buffer_store_dwordx2 {vr(DB+2*ci,2)}, v{DA+ci}, {R_WS}, s66 offen {SC}")
    a(f"""
    s_branch L_df_done
    L_df_g:
    buffer_store_dwordx4 {vr(DB,4)}, v1, {R_WS}, s69 offen {SC}
    s_mov_b32 exec_lo, 0
    s_mov_b32 exec_hi, 0x80000000
    buffer_store_dwordx2 {vr(DB+4,2)}, v{VZ}, {R_WS}, s67 offen {SC}
    s_mov_b64 exec, -1
    L_df_done:
    """)

CA, CB, CU, CD, CE = 86, 87, 88, 90, 91
CACC = 32
def conv(a):
    FA = (96, 160); FB = (128, 192)
    q = []
    def issue(key, txt):
        if len(q) >= 15:
            a("s_waitcnt lgkmcnt(14)"); del q[:len(q) - 14]
        a(txt); q.append(key)
    def need(keys):
        idx = [i for i, k in enumerate(q) if k in keys]
        if idx:
            a(f"s_waitcnt lgkmcnt({len(q) - 1 - max(idx)})"); del q[:max(idx) + 1]
    def rd_list(rho):
        s = rho & 1; l = []
        for i in range(8):
            l.append(((rho, "A", i), f"ds_read_b128 {vr(FA[s]+4*i,4)}, v{CA} offset:{512*(7-i) + 64*(3-rho)}"))
            l.append(((rho, "B", i), f"ds_read_b128 {vr(FB[s]+4*i,4)}, v{CB} offset:{512*i + 64*(3-rho)}"))
        return l
    for k, t in rd_list(0): issue(k, t)
    seen = set()
    mms = sorted([(sg, dl) for sg in range(8) for dl in range(8 - sg)], key=lambda m: max(2 * m[0], 2 * m[1] + 1))
    for rho in range(4):
        s = rho & 1
        nxt = rd_list(rho + 1) if rho < 3 else [(("u", i), f"ds_read_b64 {vr(DB+2*i,2)}, v{CU} offset:{512*i}") for i in range(4)]
        k0 = 14 if rho == 0 else 0
        for k, (sg, dl) in enumerate(mms):
            if rho == 0: need({(rho, "A", sg), (rho, "B", dl)})
            elif k == 0: need({(rho, "B", 7)})
            c = sg + dl; acc = vr(CACC + 4 * c, 4)
            a(f"v_mfma_f32_16x16x32_bf16 {acc}, {vr(FA[s]+4*sg,4)}, {vr(FB[s]+4*dl,4)}, {acc if c in seen else '0'}")
            seen.add(c)
            if k >= k0 and (k - k0) % 2 == 0:
                for x in nxt[k - k0:k - k0 + 2]: issue(*x)
    a("s_cmp_eq_u32 s53, 0\ns_cbranch_scc0 L_cv_hi\ns_nop 5")
    for i in range(4): a(f"ds_write_b128 v{CE}, {vr(CACC+16+4*i,4)} offset:{1024*i}")
    a("s_branch L_cv_sent\nL_cv_hi:\ns_nop 5")
    for i in range(4): a(f"ds_write_b128 v{CE}, {vr(CACC+4*i,4)} offset:{1024*i}")
    a("s_nop 1")
    for i in range(16): a(f"v_mov_b32 v{CACC+i}, v{CACC+16+i}")
    a(f"L_cv_sent:\nv_xor_b32 v{CE}, 0x1000, v{CE}\ns_waitcnt lgkmcnt(0)")

def conv_finish(a):
    a(f"s_cmp_lt_u32 {SW}, 4\ns_cbranch_scc1 L_cv_fin")
    for i in range(4): a(f"ds_read_b128 {vr(96+4*i,4)}, v{CE} offset:{1024*i}")
    a(f"s_add_u32 s68, s79, {QS - 4096}\nv_add_u32 v4, s68, v1\nds_read_b128 {vr(AQ,4)}, v4")
    a("s_mov_b32 s68, 0xffff0000")
    for i in range(8): a(f"v_lshlrev_b32 v{48+2*i}, 16, v{DB+i}\nv_and_b32 v{49+2*i}, s68, v{DB+i}")
    for i in range(16): a(f"v_fmac_f32 v{CACC+i}, v{48+i}, v{CD}")
    a("s_waitcnt lgkmcnt(0)")
    for i in range(16): a(f"v_add_f32 v{CACC+i}, v{CACC+i}, v{96+i}")
    for i in range(8): a(f"v_cvt_pk_bf16_f32 v{DB+i}, v{CACC+2*i}, v{CACC+2*i+1}")
    a("L_cv_fin:")

def a_params(a):
    aux_ids(a)
    a(f"""
    s_lshl_b32 s55, s54, 8
    s_lshl_b32 s56, s53, 7
    s_add_u32 s55, s55, s56
    v_lshlrev_b32 v1, 1, v0
    v_add_u32 v1, s55, v1
    s_lshl_b32 s56, s54, 1
    v_mov_b32 v2, s56
    global_load_short_d16_hi v10, v1, {S_LOGA}
    global_load_short_d16_hi v14, v2, {S_LDT}
    global_load_short_d16_hi v11, v1, {S_AIM}
    global_load_short_d16_hi v12, v1, {S_CR}
    global_load_short_d16_hi v13, v1, {S_CI}
    global_load_short_d16_hi v{CD}, v2, {S_DSK}
    """)
    epoch_load(a)
    if not OPT.get("nowpf"):
        a(f"""
        s_lshl_b32 s62, {SX}, 5
        s_add_u32 s62, s62, {SJ}
        s_lshr_b32 s63, s62, 3
        s_and_b32 s62, s62, 7
        s_lshl_b32 s62, s62, 16
        s_lshl_b32 s63, s63, 5
        s_add_u32 s62, s62, s63
        s_lshl_b32 s63, s51, 14
        s_add_u32 s62, s62, s63
        v_lshlrev_b32 v3, 10, v0
        v_add_u32 v3, s62, v3
        s_mov_b64 exec, 0xffff
        global_load_dword v92, v3, {S_WO}
        s_mov_b64 exec, -1
        """)
    if OPT.get("touch") == "start":
        a(f"""
        s_lshl_b32 s60, {SX}, 2
        s_lshl_b32 s61, s52, 1
        s_add_u32 s60, s60, s61
        s_lshl_b32 s60, s60, 6
        s_lshl_b32 s61, {SJ}, 1
        s_add_u32 s61, s61, s53
        s_add_u32 s60, s60, s61
        s_lshl_b32 s61, s60, 10
        s_add_u32 s61, s61, {QF}
        s_lshl_b32 s60, s60, 11
        s_add_u32 s60, s60, {KV}
        v_and_b32 v4, 15, v0
        v_lshlrev_b32 v4, 7, v4
        v_bfe_u32 v5, v0, 4, 1
        v_lshl_add_u32 v4, v5, 17, v4
        v_and_b32 v5, 7, v0
        v_lshlrev_b32 v5, 7, v5
        v_bfe_u32 v6, v0, 3, 1
        v_lshl_add_u32 v5, v6, 16, v5
        s_mov_b64 exec, 0xffffffff
        buffer_load_dword v9, v4, {R_WS}, s60 offen
        s_mov_b64 exec, 0xffff
        buffer_load_dword v8, v5, {R_WS}, s61 offen
        s_mov_b64 exec, -1
        """.replace("v9,", "v91,").replace("v8,", "v89,"))
    if OPT.get("nocpf") == "0":
        a(f"""
        s_getpc_b64 s[62:63]
        L_pc:
        s_and_b32 s64, {SJ}, 3
        s_lshl_b32 s64, s64, 2
        s_add_u32 s64, s64, s51
        s_lshl_b32 s64, s64, 11
        v_lshlrev_b32 v3, 7, v0
        v_add_u32 v3, s64, v3
        v_min_u32 v3, L_codeend - L_pc - 4, v3
        s_mov_b64 exec, 0xffff
        global_load_dword v93, v3, s[62:63]
        s_mov_b64 exec, -1
        """)

def rows(a, regs, row0, neg, tb):
    for k, r in enumerate(regs):
        if r is None: a(f"v_mov_b32 v{tb+k}, 0x3f80")
        else: a(f"v_cvt_pk_bf16_f32 v{tb+k}, v{r}, {'-' if neg else ''}v{r+1}")
    for k in range(len(regs)): a(f"ds_write_addtid_b32 v{tb+k} offset:{272*(row0+k)}")
    return row0 + len(regs)

def smul_list(ops):
    T = list(range(32, 40)) + [16, 17, 18, 19]; l = []
    for k, (d, x, w) in enumerate(ops): l += [f"v_mul_f32 v{T[2*k]}, v{x+1}, v{w+1}", f"v_mul_f32 v{T[2*k+1]}, v{x}, v{w+1}"]
    for k, (d, x, w) in enumerate(ops):
        if d == w:
            l += [f"v_fma_f32 v{d+1}, v{x+1}, v{w}, v{T[2*k+1]}", f"v_fma_f32 v{d}, v{x}, v{w}, -v{T[2*k]}"]
        else:
            l += [f"v_fma_f32 v{d}, v{x}, v{w}, -v{T[2*k]}", f"v_fma_f32 v{d+1}, v{x+1}, v{w}, v{T[2*k+1]}"]
    return l

def touch(a, where):
    tps = OPT.get("tps", "b5,b5,b6").split(","); mod = OPT.get("tmod", ""); n = 0
    if where == min(tps):
        a(f"""
        s_lshl_b32 s60, {SX}, 2
        s_lshl_b32 s61, s52, 1
        s_add_u32 s60, s60, s61
        s_lshl_b32 s60, s60, 6
        s_lshl_b32 s61, {SJ}, 1
        s_add_u32 s61, s61, s53
        s_add_u32 s60, s60, s61
        s_lshl_b32 s61, s60, 10
        s_add_u32 s61, s61, {QF}
        s_lshl_b32 s60, s60, 11
        s_add_u32 s60, s60, {KV}
        v_and_b32 v85, 7, v0
        v_lshlrev_b32 v85, 7, v85
        v_bfe_u32 v84, v0, 3, 1
        v_lshl_add_u32 v58, v84, 16, v85
        v_lshl_add_u32 v85, v84, 17, v85
        """)
    for k, p in enumerate(tps):
        if p != where: continue
        if n == 0: a("s_mov_b64 exec, 0xffff")
        a(f"buffer_load_dword v{82+k}, v{58 if k == 2 else 85}, {R_WS}, {'s61' if k == 2 else 's60'} offen offset:{1024 if k == 1 else 0} {mod}"); n += 1
    if n: a("s_mov_b64 exec, -1")
    return n

def a_phase1(a0):
    class Flt:
        on = False
        def __call__(self, txt):
            m = OPT.get("noA")
            if not (self.on and m): return a0(txt)
            for ln in txt.split("\n"):
                l = ln.strip()
                if "w" in m and l.startswith(("ds_write_addtid", "ds_write_b128")): continue
                if "r" in m and l.startswith(("ds_read_b128", "ds_read_b64 ")): continue
                if "m" in m and l.startswith("v_mfma"): continue
                if "v" in m and l.startswith(("v_pk_", "v_fma_f32", "v_mul_f32", "v_cvt_pk", "v_sin", "v_cos", "v_exp", "v_fract", "v_alignbit", "v_bfi", "v_add_f32")): continue
                a0(ln)
        def reset(self): a0.reset()
    a = Flt()
    vm = VM()
    vm.add("par", 7)
    if not OPT.get("nowpf"): vm.add("wpf")
    if OPT.get("touch") == "start": vm.add("touch", 2)
    if OPT.get("nocpf") == "0": vm.add("cpf")
    a("s_setprio 2")
    a(f"""
    s_mul_i32 s65, s51, {TBS}
    s_mov_b32 m0, s65
    s_mov_b32 s66, {LOG2E}
    s_mov_b32 s68, 0xffff0000
    s_mov_b32 s69, {INV2PI}
    s_mov_b32 s62, 0x41000000
    s_mov_b32 s63, 0x43800000
    
    """)
    late = [x.strip() for x in f"""
    v_and_b32 v1, 31, v0
    v_lshrrev_b32 v2, 5, v0
    v_lshlrev_b32 v2, 4, v2
    s_mul_i32 s73, s52, {2*TBS}
    v_add_u32 v54, s73, v2
    v_mov_b32 v3, 272
    v_mad_u32_u24 v7, v1, v3, v54
    s_mul_i32 s65, s51, {HTS}
    s_mul_i32 s73, s52, {2*HTS}
    v_add_u32 v2, s73, v2
    v_bfe_u32 v8, v0, 3, 1
    v_and_b32 v9, 3, v0
    v_lshl_add_u32 v8, v8, 2, v9
    v_cvt_f32_u32 v8, v8
    v_bfe_u32 v9, v0, 4, 1
    v_bfe_u32 v52, v0, 2, 1
    v_lshl_add_u32 v9, v9, 1, v52
    v_min_u32 v52, 2, v9
    v_sub_u32 v52, 0, v52
    v_ldexp_f32 v52, v8, v52
    v_rndne_f32 v52, v52
    v_cvt_u32_f32 v52, v52
    v_lshlrev_b32 v53, 3, v9
    s_mov_b32 s73, 0x100d0800
    v_lshrrev_b32 v53, v53, s73
    v_and_b32 v53, 0xff, v53
    v_add_u32 v52, v52, v53
    v_mul_f32 v8, 0.125, v8
    v_rndne_f32 v8, v8
    v_cvt_u32_f32 v8, v8
    v_lshl_add_u32 v8, v9, 1, v8
    v_add_u32 v8, 19, v8
    s_cmp_eq_u32 s53, 0
    s_cselect_b64 vcc, -1, 0
    s_cselect_b32 s70, 0, 0xaaaaaaaa
    s_mov_b32 s71, s70
    v_cndmask_b32 v9, v8, v52, vcc
    v_mad_u32_u24 v9, v9, v3, v2
    ; transpose addresses: v4/v5 LDS, v6 + s60 workspace; s61 = hand-off word, s72 = line this wave waits on
    v_lshrrev_b32 v1, 4, v0
    v_bfe_u32 v2, v0, 2, 2
    v_lshl_add_u32 v2, v1, 3, v2
    v_bfe_u32 v3, v0, 1, 1
    s_lshl_b32 s73, s51, 1
    v_add_u32 v3, s73, v3
    v_bfe_u32 v4, v2, 1, 3
    v_xor_b32 v4, v4, v3
    v_and_b32 v5, 1, v0
    v_lshlrev_b32 v5, 3, v5
    v_lshl_add_u32 v5, v2, 7, v5
    v_add_u32 v5, {slot_addr(0)}, v5
    v_xor_b32 v6, 2, v4
    v_lshl_add_u32 v4, v4, 4, v5
    v_lshl_add_u32 v5, v6, 4, v5
    v_bfe_u32 v6, v0, 1, 3
    v_lshlrev_b32 v6, 13, v6
    v_and_b32 v3, 1, v0
    v_lshl_add_u32 v6, v3, 6, v6
    v_lshl_add_u32 v6, v1, 4, v6
    s_lshl_b32 s60, {SX}, 18
    s_lshl_b32 s64, s51, 16
    s_add_u32 s60, s60, s64
    s_lshl_b32 s64, {SJ}, 8
    s_add_u32 s60, s60, s64
    s_add_u32 s60, s60, {XT}
    s_lshl_b32 s72, {SX}, 2
    s_add_u32 s61, s72, s51
    s_lshl_b32 s61, s61, 8
    s_lshl_b32 s64, {SJ}, 3
    s_add_u32 s61, s61, s64
    s_add_u32 s61, s61, {F_S1}
    s_lshr_b32 s64, {SJ}, 3
    s_add_u32 s72, s72, s64
    s_lshl_b32 s72, s72, 8
    s_add_u32 s72, s72, {F_S1}
    s_getreg_b32 s64, hwreg(HW_REG_XCC_ID)
    v_mov_b32 v{VX}, s64
    """.strip().split("\n") if not x.strip().startswith(";")]
    for _ in range(int(OPT.get("asetup", 25))):
        if late: a(late.pop(0))
    vm.wait(a, "par")
    a.on = True
    lstamp(a, 31)
    a(f"""
    v_mul_f32 v14, s66, v14
    v_mul_f32 v10, s66, v10
    v_exp_f32 v14, v14
    v_exp_f32 v10, v10
    s_mov_b32 s56, 1664525
    v_mul_lo_u32 v{VN}, v{VN}, s56
    v_add_u32 v{VN}, 1013904223, v{VN}
    v_cvt_pk_bf16_f32 v15, v14, v10
    v_lshlrev_b32 v14, 16, v15
    v_and_b32 v10, s68, v15
    v_mul_f32 v10, v10, v14
    v_mul_f32 v11, v11, v14
    v_mul_f32 v10, s66, v10
    v_mul_f32 v11, s69, v11
    """)
    L = lambda i: 76 + 2 * i
    H = lambda p: 40 + 2 * p if p < 8 else 28
    LF, HF, AK, HP = 96, 160, 224, 59
    cexp(a, [(L(1), "s62")])
    cmuls(a, [(L(2), L(1), L(1))])
    cmuls(a, [(L(3), L(2), L(1)), (84, L(2), L(2))])
    r = rows(a, [None, L(1), L(2), L(3)], 0, False, 72)
    cmuls(a, [(L(i), L(i), 84) for i in range(1, 4)])
    r = rows(a, [84, L(1), L(2), L(3)], r, False, 16)
    cmuls(a, [(L(0), 84, 84)] + [(L(i), L(i), 84) for i in range(1, 4)])
    for g in range(2, 8):
        r = rows(a, [L(i) for i in range(4)], r, False, 72 if g & 1 == 0 else 16)
        if g < 7: cmuls(a, [(L(i), L(i), 84) for i in range(4)])
        for _ in range(12):
            if late: a(late.pop(0))
    while late: a(late.pop(0))
    assert r == 32
    lstamp(a, 24)
    a("s_waitcnt lgkmcnt(0)\ns_barrier")
    a("""
    ds_read_b64_tr_b16 v[224:225], v4
    ds_read_b64_tr_b16 v[226:227], v5 offset:512
    ds_read_b64_tr_b16 v[228:229], v4 offset:4096
    ds_read_b64_tr_b16 v[230:231], v5 offset:4608
    """)
    lrd = [f"ds_read_b128 {vr(LF+4*ks,4)}, v7 offset:{TBS*(ks>>3) + 32*(ks&7)}" for ks in range(16)]
    for x in lrd[:8]: a(x)
    a("v_mul_f32 v40, v12, v14\nv_mul_f32 v41, v13, v14\nv_add_f32 v40, v40, v40\nv_add_f32 v41, v41, v41\ns_mov_b32 m0, s65")
    a(f"""
    s_waitcnt lgkmcnt(7)
    buffer_store_dwordx4 v[224:227], v6, {R_WS}, s60 offen {SC}
    buffer_store_dwordx4 v[228:231], v6, {R_WS}, s60 offen offset:128 {SC}
    """)
    vm.add("xt", 2)
    for x in lrd[8:]: a(x)
    cexp(a, [(20, None), (24, "s63")])
    hl = []; row = [0]
    def hm(ops): hl.extend(smul_list(ops))
    def hp(regs):
        for g in regs: hl.append(f"v_cvt_pk_bf16_f32 v{HP+row[0]}, v{g}, -v{g+1}"); row[0] += 1
    hm([(H(1), H(0), 20), (22, 20, 20)])
    hm([(H(2), H(0), 22), (H(3), H(1), 22), (26, 22, 22), (30, 24, 24)])
    hm([(H(4 + i), H(i), 26) for i in range(4)])
    hm([(H(8), H(4), 26)]); hp([H(p) for p in range(8)])
    for grp in ((0, 2, 4, 6, 8), (0, 4, 8), (0, 4, 8)):
        hm([(H(p), H(p), 24) for p in grp]); hp([H(p) for p in grp])
    hm([(42, H(0), 24), (46, H(8), 24)])
    hm([(50, 42, 24), (52, 46, 24), (H(0), 42, 30), (H(8), 46, 30)])
    hm([(44, 50, 30), (48, 52, 30)]); hp([42, 46, 50, 52, H(0), H(8), 44, 48])
    assert row[0] == 27
    cut = int(OPT.get("hcut", 64))
    for x in hl[:cut]: a(x)
    lstamp(a, 19)
    a("s_waitcnt lgkmcnt(0)\ns_barrier")
    done = 0
    for k, x in enumerate(hl[cut:]):
        a(x)
        n = sum("cvt" in y for y in hl[:cut + k + 1])
        if n - done >= 8 or (k == len(hl) - cut - 1):
            for j in range(done, n): a(f"ds_write_addtid_b32 v{HP+j} offset:{272*j}")
            done = n
    vm.wait(a, "xt"); signal(a, "s61", SC, 2); vm.add("f1")
    lstamp(a, 20)
    a("s_waitcnt lgkmcnt(0)\ns_setprio 0\ns_barrier")
    hrd = [f"ds_read_b128 {vr(HF+4*ks,4)}, v9 offset:{HTS*(ks>>3) + 32*(ks&7)}" for ks in range(16)]
    for x in hrd[:12]: a(x)
    a(f"""
    v_lshlrev_b32 v1, 4, v0
    v_mov_b32 v60, 0
    v_mov_b32 v61, 0
    v_mov_b32 v62, 0
    v_mov_b32 v63, 0
    s_mul_i32 s67, s52, {KXD}
    s_add_u32 s67, s67, {KX0}
    v_mov_b32 v3, s67
    s_lshl_b32 s66, s53, 11
    s_add_u32 s66, s66, s67
    v_lshrrev_b32 v2, 5, v0
    v_and_b32 v4, 31, v0
    v_lshlrev_b32 v4, 4, v4
    v_lshl_add_u32 v2, v2, 9, v4
    v_add_u32 v2, s66, v2
    s_waitcnt lgkmcnt(4)
    """)
    for x in hrd[12:]: a(x)
    km = lambda ks: a(f"v_mfma_f32_32x32x16_bf16 {vr(AK,16)}, {vr(HF+4*ks,4)}, {vr(LF+4*ks,4)}, {'0' if ks == 0 else vr(AK,16)}")
    for ks in range(8): km(ks)
    lstamp(a, 21)
    a("s_waitcnt lgkmcnt(0)\ns_barrier")
    bulk = att_bulk()
    for ks in range(8, 16):
        km(ks)
        for x in bulk[7 * (ks - 8):7 * (ks - 7)]: a(x)
    a("ds_write_b128 v3, v[60:63]")
    for rg in range(2): a(f"v_cndmask_b32 v{AK+8*rg+4}, v{AK+8*rg+4}, v{AK+8*rg+5}, s[70:71]")
    for i in range(8): a(f"v_cvt_pk_bf16_f32 v{40+i}, v{AK+2*i}, v{AK+2*i+1}")
    for rg in range(2): a(f"ds_write_b128 v2, {vr(40+4*rg,4)} offset:{16 + 1024*rg}")
    lstamp(a, 22)
    a("s_waitcnt lgkmcnt(0)\ns_barrier")
    a(f"v_and_b32 v55, 31, v0\nv_lshlrev_b32 v55, 3, v55\nbuffer_load_dword v{VT}, v55, {R_WS}, s72 offen {SC}")
    n4 = touch(a, "b4")
    a(f"""
    v_add_u32 v2, s66, v1
    ds_read_b64 v[40:41], v2 offset:8
    ds_read_b128 v[42:45], v2 offset:16
    ds_read_b64 v[46:47], v2 offset:{1024+8}
    ds_read_b128 v[48:51], v2 offset:{1024+16}
    s_cmp_eq_u32 s52, 0
    s_cselect_b32 s67, 0, {slot_addr(4)}
    v_bfe_u32 v2, v0, 2, 2
    v_mul_u32_u24 v2, {RE}, v2
    v_and_b32 v3, 3, v0
    v_min_u32 v3, 2, v3
    v_lshl_add_u32 v2, v3, 4, v2
    v_add_u32 v52, s67, v2
    s_lshl_b32 s69, s53, 11
    s_sub_u32 s66, s67, s69
    s_add_u32 s66, s66, {255*16 - 1024}
    v_sub_u32 v53, s66, v1
    v_min_u32 v2, 32, v0
    s_mul_i32 s66, s53, {US}
    s_add_u32 s66, s66, s67
    s_add_u32 s66, s66, {RSZ}
    v_lshl_add_u32 v54, v2, 4, s66
    s_mov_b32 s69, 0xffff
    s_waitcnt lgkmcnt(0)
    """)
    RG = 96
    for q in range(2):
        w = lambda i: 40 + 6 * q + 2 + i
        for e in range(4):
            o = RG + 16 * q + 4 * e
            for i in range(4):
                hi = 3 - i - (0 if e >= 2 else 1)
                if e & 1: a(f"v_alignbit_b32 v{o+i}, v{w(hi)}, v{w(hi)}, 16")
                else: a(f"v_bfi_b32 v{o+i}, s69, v{w(hi)}, v{w(hi-1)}")
    a.on = False
    a(f"""
    v_lshlrev_b32 v1, 4, v0
    v_mov_b32 v60, 0
    s_lshl_b32 s66, s51, 2
    s_add_u32 s66, s66, 32000
    v_mov_b32 v59, s66
    ds_write_b32 v59, v60
    s_lshl_b32 s71, {SX}, 18
    s_lshl_b32 s69, {SJ}, 13
    s_add_u32 s71, s71, s69
    s_lshl_b32 s69, s52, 6
    s_add_u32 s71, s71, s69
    s_lshl_b32 s69, s53, 12
    s_add_u32 s71, s71, s69
    s_add_u32 s71, s71, {XT}
    v_lshrrev_b32 v2, 2, v0
    v_and_b32 v3, 3, v0
    v_lshlrev_b32 v3, 4, v3
    v_lshl_add_u32 v56, v2, 7, v3
    s_lshl_b32 s70, s53, 11
    s_add_u32 s69, s67, s70
    s_add_u32 s69, s69, {RSZ + 512}
    v_add_u32 v57, s69, v1
    s_lshl_b32 s73, s53, 8
    s_sub_u32 s73, s67, s73
    s_add_u32 s66, s73, {4128 - 64*7 - 512*7 + 256}
    v_and_b32 v4, 3, v0
    v_mul_u32_u24 v4, {RE}, v4
    v_lshrrev_b32 v2, 4, v0
    v_bfe_u32 v3, v0, 2, 2
    v_add_u32 v3, v3, v2
    v_lshlrev_b32 v3, 4, v3
    v_sub_u32 v4, v4, v3
    v_add_u32 v{CA}, s66, v4
    s_add_u32 s66, s73, {RSZ + US + 512 + 48 - 64*7 + 256}
    v_bfe_u32 v4, v0, 1, 3
    v_lshlrev_b32 v4, 6, v4
    v_lshlrev_b32 v3, 4, v2
    v_sub_u32 v5, v4, v3
    v_add_u32 v4, v4, v3
    v_and_b32 v3, 1, v0
    v_lshl_add_u32 v4, v3, 3, v4
    v_mul_u32_u24 v3, {US}, v3
    v_sub_u32 v5, v5, v3
    v_add_u32 v{CB}, s66, v5
    v_add_u32 v{CU}, s69, v4
    v_add_u32 v{DA}, s70, v4
    v_add_u32 v{DA+1}, 512, v{DA}
    v_add_u32 v{DA+2}, 1024, v{DA}
    v_add_u32 v{DA+3}, 1536, v{DA}
    s_lshl_b32 s66, s51, 12
    s_add_u32 s66, s66, {OS}
    v_add_u32 v{CE}, s66, v1
    s_lshl_b32 s66, s54, 12
    s_add_u32 s66, s66, {BT}
    """)
    for x in att_addr(): a(x)
    lstamp(a, 23)
    a("s_waitcnt lgkmcnt(0)\ns_barrier")
    def uload():
        for q in range(2): a(f"buffer_load_dwordx4 {vr(32+4*q,4)}, v56, {R_WS}, s71 offen offset:{2048*q} {SC}")
    def ustore():
        for q in range(2): a(f"ds_write_b128 v57, {vr(32+4*q,4)} offset:{1024*q}")
        for q in range(2):
            a(f"ds_write_b64 v57, {vr(32+4*q,2)} offset:{1024*q + US + 8}")
            a(f"ds_write_b64 v57, {vr(34+4*q,2)} offset:{1024*q + US + 16}")
    a(f"""
    s_waitcnt vmcnt({n4})
    v_cmp_ne_u32 s[94:95], v{VT}, v{VN}
    s_cmp_lg_u64 s[94:95], 0
    s_cbranch_scc1 L_u_skip
    """)
    uload()
    a("L_u_skip:")
    nt = touch(a, "b5")
    a.on = True
    a("ds_write_b128 v52, v[60:63] offset:4096\nds_write_b128 v54, v[60:63]")
    rw = [f"ds_write_b128 v53, {vr(RG+16*q+4*e,4)} offset:{e*RE + 1024*(1-q)}" for q in range(2) for e in range(4)]
    rcut = int(OPT.get("rcut", 5))
    for x in rw[:rcut]: a(x)
    a("s_waitcnt lgkmcnt(0)\ns_barrier")
    for x in rw[rcut:]: a(x)
    a.on = False
    if OPT.get("uearly"):
        a(f"s_cmp_lg_u64 s[94:95], 0\ns_cbranch_scc1 L_u_late\ns_waitcnt vmcnt({nt})")
        ustore()
        a("ds_write_b32 v59, v59")
        touch(a, "b6")
        a("s_barrier\ns_branch L_u_have\nL_u_late:")
        touch(a, "b6")
        a("s_barrier")
        poll(a, "s1", 55, "s72")
        uload()
        a("s_waitcnt vmcnt(0)")
        ustore()
        a("ds_write_b32 v59, v59\nL_u_have:")
    else:
        nt += touch(a, "b6")
        a("s_barrier")
        a(f"s_cmp_lg_u64 s[94:95], 0\ns_cbranch_scc0 L_u_have")
        poll(a, "s1", 55, "s72")
        uload()
        a(f"s_waitcnt vmcnt(0)\nL_u_have:\ns_waitcnt vmcnt({nt})")
        ustore()
        a("ds_write_b32 v59, v59")
    a(f"""
    v_xor_b32 v59, 4, v59
    s_mov_b32 s92, {SPIN}
    L_pair:
    ds_read_b32 v57, v59
    s_waitcnt lgkmcnt(0)
    v_readfirstlane_b32 s93, v57
    s_sub_u32 s92, s92, 1
    s_cmp_eq_u32 s92, 0
    s_cbranch_scc1 L_pair_ok
    s_cmp_eq_u32 s93, 0
    s_cbranch_scc1 L_pair
    L_pair_ok:
    """)
    lstamp(a, 25)
    conv(a)
    lstamp(a, 3)

def att_main(a, hooks, prios):
    p2, pr, pq, p1 = [int(x) for x in OPT.get("ord", "2,2,5,10").split(",")]
    def rdk(t):
        p = (t + T0) & 63; b, o = (1, 2048 * p) if p < 32 else (80, 2048 * (p - 32))
        a(f"ds_read_b128 {vr(AKS[t&1],4)}, v{b} offset:{o}")
    def rdv(t):
        p = (t + T0) & 63; b, o = (2, 2048 * p) if p < 32 else (81, 2048 * (p - 32))
        a("s_mov_b64 exec, s[82:83]")
        a(f"ds_read_b128 {vr(AV1[t&1],4)}, v{b} offset:{o}")
        a(f"ds_read_b128 {vr(AV2[t&1],4)}, v{b} offset:{o+512}")
        a("s_mov_b64 exec, -1")
    rdk(0); rdk(1); rdv(0)
    a("s_waitcnt lgkmcnt(3)")
    a(f"v_mfma_f32_32x32x16_bf16 {vr(AS_[0],16)}, {vr(AKS[0],4)}, {vr(AQ,4)}, 0")
    for t in range(64):
        c, n = AS_[t & 1], AS_[(t + 1) & 1]
        if t in prios: a(f"s_setprio {prios[t]}")
        k = 0
        for e in range(17):
            if e == p2 and t: a(f"v_smfmac_f32_32x32x32_bf16 {vr(AO,16)}, {vr(AV2[(t-1)&1],4)}, {vr(n+8,8)}, v3")
            if e == pq and pq < pr: a("s_waitcnt lgkmcnt(0)")
            if e == pq and pq < pr and t + 1 < 64: a(f"v_mfma_f32_32x32x16_bf16 {vr(n,16)}, {vr(AKS[(t+1)&1],4)}, {vr(AQ,4)}, 0")
            if e == pr:
                if t in hooks: hooks[t]()
                if OPT.get("kfirst") and t + 2 < 64: rdk(t + 2); k += 1
                if t + 1 < 64: rdv(t + 1); k += 2
                if not OPT.get("kfirst") and t + 2 < 64: rdk(t + 2); k += 1
            if e == pq and pq >= pr:
                a(f"s_waitcnt lgkmcnt({k})")
                if t + 1 < 64: a(f"v_mfma_f32_32x32x16_bf16 {vr(n,16)}, {vr(AKS[(t+1)&1],4)}, {vr(AQ,4)}, 0")
            if e == p1: a(f"v_smfmac_f32_32x32x32_bf16 {vr(AO,16)}, {vr(AV1[t&1],4)}, {vr(c,8)}, v3")
            if e < 16: a(f"v_exp_f32 v{c+e}, v{c+e}")
    a(f"v_smfmac_f32_32x32x32_bf16 {vr(AO,16)}, {vr(AV2[1],4)}, {vr(AS_[1]+8,8)}, v3")

def att_finish2(a, tag):
    a(f"s_mov_b32 s84, 0x2b800000\ns_mov_b32 s85, 0x5d800000\nv_fma_f32 v8, v{AO}, 0, v{AO+8}")
    for r in range(1, 8): a(f"v_fma_f32 v8, v{AO+r}, 0, v8")
    a(f"""
    v_cmp_nge_f32 vcc, v8, s84
    v_cmp_nle_f32 s[90:91], v8, s85
    s_or_b64 vcc, vcc, s[90:91]
    s_cbranch_vccnz L_{tag}_slow
    L_{tag}_norm:
    v_rcp_f32 v8, v{AO+8}
    """)
    for r in range(8): a(f"v_mul_f32 v{AO+r}, v8, v{AO+r}")
    for r in range(4): a(f"v_cvt_pk_bf16_f32 v{12+r}, v{AO+2*r}, v{AO+2*r+1}")
    for r in range(4): a(f"v_min_u32 v{12+r}, -2, v{12+r}")
    a(f"buffer_store_dwordx4 v[12:15], v1, {R_WS}, s87 offen {OPT.get('ostm', SC).replace('_', ' ')}")

def out_gemm(a):
    a(f"""
    v_lshlrev_b32 v2, 9, v86
    v_lshl_add_u32 v2, v87, 4, v2
    v_add_u32 v2, {OS}, v2
    v_lshlrev_b32 v3, 10, v87
    v_lshl_add_u32 v3, v86, 3, v3
    s_lshl_b32 s84, s88, 15
    s_lshl_b32 s86, s89, 5
    s_add_u32 s84, s84, s86
    v_add_u32 v3, s84, v3
    v_add_u32 v4, 0x4000, v3
    """)
    def go():
        NB = 12; FB = 16
        rd = lambda i: a(f"ds_read_b128 {vr(FB+4*(i%NB),4)}, v2 offset:{2048*(i>>1) + 256*(i&1)}")
        for i in range(NB): rd(i)
        for g in range(8):
            a(f"s_waitcnt lgkmcnt({min(8, 28 - 4 * g)})")
            for i in range(4 * g, 4 * g + 4):
                acc = 8 + 4 * (i & 1)
                a(f"v_mfma_f32_16x16x32_bf16 {vr(acc,4)}, {vr(PW+4*(i>>1),4)}, {vr(FB+4*(i%NB),4)}, {'0' if i < 2 else vr(acc,4)}")
            for i in range(4 * g + NB, min(4 * g + NB + 4, 32)): rd(i)
        for nt in range(2):
            for i in range(4): a(f"v_fma_f32 v{8+4*nt+i}, v{8+4*nt+i}, v{PG+nt}, v{PB+4*nt+i}")
            a(f"v_cvt_pk_bf16_f32 v{16+2*nt}, v{8+4*nt}, v{9+4*nt}\nv_cvt_pk_bf16_f32 v{17+2*nt}, v{10+4*nt}, v{11+4*nt}")
            a(f"global_store_dwordx2 v{3+nt}, {vr(16+2*nt,2)}, {S_OUT} {OPT.get('outmod', '')}")
    return go

def build_fused():
    a = Asm()
    k = NAME + "_kernel"
    launches = f"; @launch grid=(256,1,1) block=(512,1,1) lds={LDS_BYTES}\n"
    if G.STAMPS:
        launches = f"; @launch kernel={k} grid=(256,1,1) block=(512,1,1) lds={LDS_BYTES}\n; @launch kernel=stamp_kernel grid=(1,1,1) block=(256,1,1) lds=1024\n"
    a.raw(header() + launches + '.amdgcn_target "amdgcn-amd-amdhsa--gfx950"\n.text')
    kernel_head(a, k)
    if "amp" in OPT: lstamp(a, "E")
    prologue(a, "L_end")
    lstamp(a, 0)
    if OPT.get("idle0"): a(f"s_sleep {OPT['idle0']}")
    a(f"s_cmp_lt_u32 {SW}, 4\ns_cbranch_scc1 L_gemm")
    a_params(a)
    a("s_barrier\ns_branch L_aux")
    a.reset(); a("L_gemm:")
    g_phase1(a)
    lg = list(G.LIGHT); G.LIGHT[:] = [s for s in lg if s == 0]
    a("s_branch L_att")
    a.reset(); a("L_aux:")
    a_phase1(a)
    la = list(G.LIGHT); G.LIGHT[:] = sorted(set(la) | set(lg))
    a.reset(); a("L_att:")
    for r in range(4): a(f"v_mov_b32 v{VS+r}, -1")
    a("s_barrier")
    a(f"ds_write_b32 v92, v{VZ}")
    lstamp(a, 4)
    KM = SC
    if OPT.get("idle"): a(f"s_sleep {OPT['idle']}")
    conv_finish(a)
    lstamp(a, 27)
    mode = "slow"
    sched = {t: [t + 3] for t in range(13)}
    def early_stores():
        deferred_stores(a)
        a(f"""
        s_lshl_b32 s87, s76, 5
        s_add_u32 s87, s87, s74
        s_lshl_b32 s87, s87, 10
        s_add_u32 s87, s87, {OF}
        buffer_store_dwordx4 {vr(VS,4)}, v1, {R_WS}, s87 offen {SC}
        """)
    def hdma(t):
        def f():
            if t == 2: a("s_waitcnt vmcnt(2)\ns_barrier")
            if t == 2 and OPT.get("late3"): early_stores()
            if t == 10:
                a("s_waitcnt vmcnt(1)\ns_barrier"); lstamp(a, 28)
                if OPT.get("late3"):
                    s3_addr(); a(f"s_cmp_lg_u32 {SW}, 0\ns_cbranch_scc1 L_s3_skip"); signal(a, "s85"); a("L_s3_skip:")
            kv_dma(a, sched[t], KM)
        return f
    def s3_addr(): a(f"s_lshl_b32 s85, {SX}, 7\ns_lshl_b32 s86, {SJ}, 2\ns_add_u32 s85, s85, s86\ns_add_u32 s85, s85, {F_S3}")
    def h_bar():
        a("s_waitcnt vmcnt(0)\ns_barrier"); s3_addr()
        a(f"s_cmp_lg_u32 {SW}, 0\ns_cbranch_scc1 L_s3_skip")
        signal(a, "s85")
        a("L_s3_skip:")
        if mode != "slow": lstamp(a, 28)
    def h_cnt():
        a(f"""
        s_waitcnt vmcnt(0)
        s_mov_b64 exec, 1
        ds_add_rtn_u32 v93, v92, v93
        s_mov_b64 exec, -1
        """)
    def h_s3sig():
        a("v_readfirstlane_b32 s84, v93"); s3_addr()
        a("s_cmp_lg_u32 s84, 7\ns_cbranch_scc1 L_s3_skip")
        signal(a, "s85")
        a("L_s3_skip:")
    def h_s3ld():
        a(f"s_mov_b32 s84, {F_S3}\nbuffer_load_dwordx4 {vr(VT,4)}, v1, {R_WS}, s84 offen {SC}")
    def wof_dma(r):
        for i in range(4): a(f"buffer_load_dwordx4 v1, {R_WS}, s90 offen offset:{1024*i} {SC} lds")
        if r < 3: a("s_add_u32 s90, s90, 4096")
    def h_s3chk():
        a("s_waitcnt vmcnt(0)")
        poll(a, "s3", 1, "s84", True, 4)
        a(f"""
        s_lshl_b32 s88, s75, 3
        s_lshr_b32 s89, s74, 2
        s_add_u32 s88, s88, s89
        s_and_b32 s89, s74, 3
        s_lshl_b32 s89, s89, 3
        s_add_u32 s89, s89, {SW}
        s_lshl_b32 s90, s89, 14
        s_add_u32 s90, s90, {WOF}
        s_lshl_b32 s86, {SW}, 12
        s_add_u32 s86, s86, {OS}
        s_mov_b32 m0, s86
        v_add_u32 v92, s86, v1
        """)
        if OPT.get("nos3"): return
        wof_dma(0)
        a(f"""
        s_or_b32 s84, s2, {SW}
        s_cmp_lg_u32 s84, 0
        s_cbranch_scc1 L_n_skip
        s_mov_b32 s84, {F_N}
        """)
        signal(a, "s84")
        a("L_n_skip:")
    def h_wrd(r):
        def f():
            if OPT.get("nos3"): return
            a("s_waitcnt vmcnt(0)")
            for i in range(4): a(f"ds_read_b128 {vr(PW+16*r+4*i,4)}, v92 offset:{1024*i}")
        return f
    def h_wld(r):
        def f():
            if OPT.get("nos3"): return
            wof_dma(r)
        return f
    def h_side():
        if OPT.get("nos3"):
            a("v_lshrrev_b32 v86, 4, v0\nv_and_b32 v87, 15, v0"); return
        a(f"""
        v_lshrrev_b32 v86, 4, v0
        v_and_b32 v87, 15, v0
        v_lshlrev_b32 v88, 14, v86
        v_lshl_add_u32 v88, v87, 1, v88
        s_lshl_b32 s90, s89, 16
        s_lshl_b32 s91, s88, 6
        s_add_u32 s90, s90, s91
        s_add_u32 s90, s90, {BT}
        """)
        for i in range(4):
            if i: a("s_add_u32 s90, s90, 4096")
            for nt in range(2): a(f"buffer_load_short_d16_hi v{PB+4*nt+i}, v88, {R_WS}, s90 offen offset:{32*nt} {SC}")
        a(f"""
        v_lshlrev_b32 v88, 2, v87
        s_lshl_b32 s90, s88, 7
        s_add_u32 s90, s90, {GW}
        buffer_load_dword v{PG}, v88, {R_WS}, s90 offen {SC}
        buffer_load_dword v{PG+1}, v88, {R_WS}, s90 offen offset:64 {SC}
        """)
    hooks = {t: hdma(t) for t in sched}
    def h_kvadd(): a("s_waitcnt vmcnt(0)\ns_mov_b64 exec, 1\nds_add_u32 v92, v93\ns_mov_b64 exec, -1")
    def h_kvrd(): a("ds_read_b32 v93, v92")
    def h_kvchk():
        a(f"""
        s_mov_b32 s92, {SPIN}
        L_kv:
        v_readfirstlane_b32 s84, v93
        s_sub_u32 s92, s92, 1
        s_cmp_eq_u32 s92, 0
        s_cbranch_scc1 L_kv_ok
        s_cmp_eq_u32 s84, 8
        s_cbranch_scc1 L_kv_ok
        ds_read_b32 v93, v92
        s_waitcnt lgkmcnt(0)
        s_branch L_kv
        L_kv_ok:
        """)
    if OPT.get("late3"): hooks.update({15: h_kvadd, 32: h_kvrd, 33: h_kvchk})
    elif mode == "slow" and OPT.get("bar3"): hooks.update({14: early_stores, int(OPT["bar3"]): h_bar})
    elif mode == "slow": hooks.update({14: early_stores, 19: h_cnt, 20: h_s3sig})
    else: hooks.update({TB2: h_bar})
    if OPT.get("wbl2"):
        def h_wb(): a(f"s_or_b32 s84, {SJ}, {SW}\ns_cmp_lg_u32 s84, 0\ns_cbranch_scc1 L_wb_skip\nbuffer_wbl2 sc1\nL_wb_skip:")
        hooks[24] = h_wb
    hooks.update({34: h_s3ld, 38: h_s3chk, 58: h_side})
    for r in range(4):
        hooks[42 + 5 * r] = h_wrd(r)
        if r < 3: hooks[43 + 5 * r] = h_wld(r + 1)
    prios = {0: 1, 1: 0, 2: 3, 5: 2, 8: 1, 9: 0, 10: 3, 22: 2, 44: 1, 58: 0}
    if "prios" in OPT: prios = {int(x.split(":")[0]): int(x.split(":")[1]) for x in OPT["prios"].split(",")}
    att_main(a, hooks, prios)
    lstamp(a, 29)
    att_finish2(a, "at")
    lstamp(a, 5)
    a(f"""
    s_lshl_b32 s93, s88, 15
    s_lshl_b32 s86, {SW}, 12
    s_add_u32 s93, s93, s86
    s_add_u32 s93, s93, {OF}
    """)
    OM = OPT.get("omod", SC).replace("_", " ")
    odma = lambda: [a(f"buffer_load_dwordx4 v1, {R_WS}, s93 offen offset:{1024*i} {OM} lds") for i in range(4)]
    if OPT.get("oack"):
        a("s_waitcnt vmcnt(1)")
        out_side_math(a)
        gemm = out_gemm(a)
        a(f"s_mov_b32 s92, {SPIN}\ns_waitcnt vmcnt(0)")
        if OPT.get("obar"): a("s_barrier")
        if OPT.get("opre"): a(f"s_sleep {OPT['opre']}")
        a("s_branch L_o_go\nL_o_again:")
    else:
        odma()
        a("s_waitcnt vmcnt(5)")
        out_side_math(a)
        gemm = out_gemm(a)
        a(f"s_mov_b32 s92, {SPIN}\ns_branch L_o_chk\nL_o_again:")
    if OPT.get("osleep"): a(f"s_sleep {OPT['osleep']}")
    a("L_o_go:")
    odma()
    a("L_o_chk:\ns_waitcnt vmcnt(0)")
    for i in range(4): a(f"ds_read_b128 {vr(16+4*i,4)}, v92 offset:{1024*i}")
    a("s_sub_u32 s92, s92, 1\ns_waitcnt lgkmcnt(2)")
    a("v_max3_u32 v5, v16, v17, v18\nv_max3_u32 v6, v19, v20, v21\nv_max3_u32 v5, v22, v23, v5\ns_waitcnt lgkmcnt(0)")
    a("v_max3_u32 v6, v24, v25, v6\nv_max3_u32 v5, v26, v27, v5\nv_max3_u32 v6, v28, v29, v6\nv_max3_u32 v5, v30, v31, v5\nv_max_u32 v5, v5, v6")
    a("""
    v_cmp_eq_u32 vcc, -1, v5
    s_cmp_eq_u32 s92, 0
    s_cbranch_scc1 L_o_ok
    s_cbranch_vccnz L_o_again
    L_o_ok:
    """)
    lstamp(a, 30)
    a("s_barrier")
    gemm()
    lstamp(a, 7)
    if G.STAMPS:
        lflush(a, range(8))
        for s in la:
            if s: G.STAMP_WAVES[s] = list(range(4, 8))
        for s in lg:
            if s: G.STAMP_WAVES[s] = list(range(4))
    if "amp" in OPT:
        w = OPT["amp"].split(",")[2]
        a(f"""
        s_cmp_lg_u32 s2, {OPT.get("ampwg", 0)}
        s_cbranch_scc1 L_end
        s_cmp_lg_u32 {SW}, {w}
        s_cbranch_scc1 L_end
        s_sub_u32 s98, s98, s96
        s_lshl_b32 s98, s98, 2
        s_min_u32 s98, s98, 40000
        s_memrealtime s[96:97]
        s_waitcnt lgkmcnt(0)
        L_amp:
        s_memrealtime s[100:101]
        s_waitcnt lgkmcnt(0)
        s_sub_u32 s100, s100, s96
        s_cmp_lt_u32 s100, s98
        s_cbranch_scc1 L_amp
        """)
    a("L_end:\ns_endpgm")
    att_slow(a, "at")
    a("L_codeend:\ns_endpgm")
    if G.STAMPS: stamp_reduce_kernel(a)
    a.raw('.section .rodata,"a"')
    if G.STAMPS: a.raw(descriptor("stamp_kernel", 32))
    a.raw(descriptor(k, 256))
    return a.text()

if __name__ == "__main__":
    out = sys.argv[1]
    for o in sys.argv[2:]:
        kk, _, v = o.partition("="); OPT[kk] = v or True
    G.STAMPS = bool(OPT.get("stamp"))
    OPT.setdefault("ones", "few"); OPT.setdefault("nowpf", True); OPT.setdefault("qmod", "plain"); OPT.setdefault("touch", "a"); OPT.setdefault("sched", "slow"); OPT.setdefault("wbl2", True); OPT.setdefault("nocpf", "0"); OPT.setdefault("oack", True); OPT.setdefault("s3pre", True); OPT.setdefault("tmod", "sc1"); OPT.setdefault("omod", "sc1"); OPT.setdefault("ostm", "sc1"); OPT.setdefault("obar", True); OPT.setdefault("osleep", "2")
    txt = build_fused()
    open(out, "w").write(txt)
    print("wrote", out, len(txt), "bytes")
```

```python
import sys
import gen as G
from gen import (Asm, OPT, NAME, vr, VM, prologue, aux_ids, kernel_head, descriptor, header, lstamp, lflush, stamp_reduce_kernel,
                 QF, KV, XT, BT, OF, WOF, GW, LDS_BYTES, LOG2E, INV2PI, QSCALE,
                 S_X, S_WO, S_LOGA, S_AIM, S_CR, S_CI, S_LDT, S_DSK, S_GWT, S_OUT, R_X, R_W, R_WS, SX, SJ, SW,
                 AQ, AKS, AV1, AV2, AS_, AO, PW, PB, PG, att_slow, out_side_loads, out_side_math)
from gen2 import cmuls, RowWriter, cexp

SC = "sc1"
SPIN = 400000
FL = 0xC90000
F_N, F_S1, F_S2, F_S3, F_S4 = FL, FL + 0x1000, FL + 0x3000, FL + 0x4000, FL + 0x8000
SLOT = 32768
def slot_addr(t): return SLOT * (1 + ((t + 1) & 3))
TBS, HTS = 8704, 7344
EX0, KX0, KXD = 0, 16384, 4608
RE, RSZ = 4160, 16640
US = 4640
OS = 131072
VN, VX, VZ, VT, VS = 240, 241, 242, 244, 236
DB, DA = 224, 232
PRIOS = {0: 3, 38: 2, 54: 1, 61: 0}

def poll(a, tag, vaddr, soff, first_issued=False, n=1, ncmp=None, vt=VT, sleep=4):
    ld = f"buffer_load_dword{'' if n == 1 else 'x%d' % n} {vr(vt, n)}, v{vaddr}, {R_WS}, {soff} offen {SC}"
    ncmp = ncmp or n
    a(f"s_mov_b32 s92, {SPIN}")
    if first_issued: a(f"s_branch L_{tag}_chk")
    a(f"L_{tag}_poll:\n{ld}\ns_waitcnt vmcnt(0)")
    a(f"L_{tag}_chk:")
    a(f"v_cmp_ne_u32 vcc, v{vt}, v{VN}")
    for i in range(1, ncmp): a(f"v_cmp_ne_u32 s[90:91], v{vt+i}, v{VN}\ns_or_b64 vcc, vcc, s[90:91]")
    if ncmp == 1: a("s_nop 1")
    a(f"""
    s_cbranch_vccz L_{tag}_ok
    s_sleep {sleep}
    s_sub_u32 s92, s92, 1
    s_cmp_lg_u32 s92, 0
    s_cbranch_scc1 L_{tag}_poll
    L_{tag}_ok:
    """)

def signal(a, soff, mod=SC, n=1):
    a(f"""
    s_mov_b64 exec, 1
    buffer_store_dword{'' if n == 1 else 'x2'} {vr(VN, n)}, v{VZ}, {R_WS}, {soff} offen {mod}
    s_mov_b64 exec, -1
    """)

def epoch_load(a):
    a(f"v_mov_b32 v{VZ}, 0\ns_mov_b32 s56, {F_N}\nbuffer_load_dword v{VN}, v{VZ}, {R_WS}, s56 offen {SC}")

def epoch_next(a):
    a(f"s_mov_b32 s55, 1664525\nv_mul_lo_u32 v{VN}, v{VN}, s55\nv_add_u32 v{VN}, 1013904223, v{VN}")

DX, DW = 94, 95
def dma_setup(a):
    a(f"""
    v_lshrrev_b32 v1, 3, v0
    v_lshrrev_b32 v2, 4, v0
    s_and_b32 s58, {SW}, 1
    s_lshl_b32 s56, s58, 2
    v_add_u32 v3, s56, v2
    v_and_b32 v{DW}, 7, v0
    v_xor_b32 v3, v3, v{DW}
    v_lshlrev_b32 v3, 4, v3
    v_lshl_add_u32 v{DX}, v1, 10, v3
    v_and_b32 v2, 1, v2
    v_lshlrev_b32 v2, 2, v2
    v_xor_b32 v2, v2, v{DW}
    v_lshlrev_b32 v2, 4, v2
    v_mov_b32 v3, 0xc00
    v_mad_u32_u24 v{DW}, v1, v3, v2
    s_lshl_b32 s44, {SJ}, 16
    s_lshl_b32 s45, {SW}, 13
    s_add_u32 s44, s44, s45
    s_mul_i32 s45, {SW}, {16*3072}
    s_lshl_b32 s56, {SX}, 7
    s_add_u32 s45, s45, s56
    s_lshl_b32 s46, {SW}, 10
    s_lshl_b32 s47, {SW}, 11
    s_mul_i32 s54, {SJ}, 37
    s_lshr_b32 s54, s54, 8
    s_mul_i32 s54, s54, 7
    s_sub_u32 s54, {SJ}, s54
    """)

def dma_pieces(t, part="xw"):
    base = slot_addr(t); out = []
    head = f"s_add_u32 s56, {SX}, {t}\ns_and_b32 s56, s56, 7\n"
    if OPT.get("rot7") == "1" and t:
        head = f"s_add_u32 s56, s54, {t - 1}\ns_cmp_ge_u32 s56, 7\ns_cselect_b32 s57, 6, -1\ns_sub_u32 s56, s56, s57\ns_add_u32 s56, s56, {SX}\ns_and_b32 s56, s56, 7\n"
    if "x" in part:
        for i in range(2):
            p = (head + "s_lshl_b32 s57, s56, 7\ns_add_u32 s57, s57, s44\n") if i == 0 else "s_add_u32 s57, s57, 0x8000\n"
            out.append(p + f"s_add_u32 m0, s46, {base + i*4096}\nbuffer_load_dwordx4 v{DX}, {R_X}, s57 offen {OPT.get('xmod', '')} lds")
        head = ""
    if "w" in part:
        for i in range(2):
            for ty in range(3):
                p = ""
                if ty == 0: p = (head + f"s_mul_i32 s56, s56, {64*3072}\ns_add_u32 s56, s56, s45\n") if i == 0 else f"s_add_u32 s56, s56, {8*3072}\n"
                out.append(p + f"s_add_u32 m0, s47, {base + 8192 + ty*8192 + i*1024 - ty*1024}\nbuffer_load_dwordx4 v{DW}, {R_W}, s56 offen offset:{ty*1024} {OPT.get('wmod', '')} lds")
    return out

def dma(a, vm, t, part="xw", tag=None):
    for p in dma_pieces(t, part): a(p); vm.add(tag or f"s{t}")

T0 = 48
QS = 147456
def kv_dma(a, rounds, mod, both=False):
    for r in rounds:
        o = 8192 * ((r + T0 // 4) & 15)
        a(f"s_add_u32 m0, s79, {o}\ns_add_u32 s80, s78, {o}\nbuffer_load_dwordx4 v1, {R_WS}, s80 offen {mod} lds")
        if both: a(f"s_add_u32 m0, s79, {o + 4096}\ns_add_u32 s80, s78, {o + 4096}\nbuffer_load_dwordx4 v1, {R_WS}, s80 offen {mod} lds")

def att_bulk():
    l = f"""
    s_lshr_b32 s74, {SJ}, 3
    s_lshl_b32 s75, {SX}, 2
    s_add_u32 s74, s74, s75
    s_and_b32 s75, {SJ}, 7
    s_lshl_b32 s76, s75, 3
    s_add_u32 s76, s76, {SW}
    s_lshl_b32 s77, s74, 6
    s_add_u32 s77, s77, s76
    s_lshl_b32 s77, s77, 10
    s_add_u32 s77, s77, {QF}
    s_lshl_b32 s78, s74, 17
    s_lshl_b32 s79, {SW}, 10
    s_add_u32 s78, s78, s79
    s_add_u32 s78, s78, {KV}
    s_mov_b32 s82, 0xffff
    s_mov_b32 s83, 0xffff
    v_and_b32 v16, 27, v0
    v_cmp_eq_u32 vcc, 16, v16
    v_mov_b32 v17, 0x3f803f80
    v_mov_b32 v92, {LDS_BYTES - 4}
    v_cndmask_b32 v16, 0, v17, vcc
    v_mov_b32 v93, 1
    """.strip().split("\n")
    l += [f"v_mov_b32 v{r}, v16" for r in range(17, 32)] + [f"v_mov_b32 v{AO+r}, 0" for r in range(16)]
    return [x.strip() for x in l]

def att_addr():
    return [x.strip() for x in """
    v_lshlrev_b32 v1, 4, v0
    v_lshrrev_b32 v2, 5, v0
    v_lshlrev_b32 v2, 8, v2
    v_and_b32 v3, 15, v0
    v_lshl_add_u32 v2, v3, 4, v2
    v_add_u32 v2, 1024, v2
    v_add_u32 v80, 0x10000, v1
    v_add_u32 v81, 0x10000, v2
    v_mov_b32 v3, 0xdddddddd
    """.strip().split("\n")]

def g_phase1(a):
    vm = VM()
    ACC = (96, 112, 128); SETS = (144, 160, 176, 192)
    XA, WA = 4, 12
    GX, GG, GO = 32, 40, 44
    dma_setup(a)
    a("s_barrier")
    for t in range(2): dma(a, vm, t)
    lstamp(a, 18)
    a(f"""
    s_getreg_b32 s62, hwreg(HW_REG_XCC_ID)
    v_mov_b32 v{VX}, s62
    s_lshr_b32 s59, {SW}, 1
    v_and_b32 v1, 31, v0
    s_lshl_b32 s60, s58, 12
    s_add_u32 s60, s60, {SLOT}
    v_lshlrev_b32 v2, 7, v1
    v_add_u32 v2, s60, v2
    v_bfe_u32 v1, v0, 1, 3
    v_lshrrev_b32 v3, 5, v0
    v_xor_b32 v1, v1, v3
    """)
    for ks in range(4):
        a(f"v_xor_b32 v3, {2*ks}, v1\nv_lshl_add_u32 v{XA+ks}, v3, 4, v2\nv_add_u32 v{XA+4+ks}, 0x10000, v{XA+ks}")
    a(f"""
    v_lshrrev_b32 v1, 5, v0
    v_lshlrev_b32 v1, 10, v1
    v_bfe_u32 v2, v0, 2, 2
    v_lshl_add_u32 v1, v2, 7, v1
    v_bfe_u32 v2, v0, 3, 1
    v_xor_b32 v2, s59, v2
    v_lshl_add_u32 v1, v2, 6, v1
    v_bfe_u32 v2, v0, 4, 1
    v_lshl_add_u32 v1, v2, 5, v1
    v_and_b32 v2, 3, v0
    v_lshl_add_u32 v1, v2, 3, v1
    v_add_u32 v{WA}, {SLOT + 8192}, v1
    v_add_u32 v{WA+1}, {SLOT + 8192 + 65536}, v1
    """)
    epoch_load(a); vm.add("n")
    dma(a, vm, 2)
    if OPT.get("s3pre") != "0": dma(a, vm, 3, "w", "s3w")
    lstamp(a, 1)
    fill = [x.strip() for x in f"""
    ; side-load addresses: v14 gate rows, v15 gate weights, v52/v57 wo gathers; s67 gate output, s69 wo fragment output
    s_lshl_b32 s67, {SJ}, 6
    s_lshl_b32 s62, {SX}, 3
    s_add_u32 s67, s67, s62
    s_lshl_b32 s62, {SW}, 1
    s_add_u32 s67, s67, s62
    v_lshlrev_b32 v15, 4, v0
    s_lshl_b32 s62, s67, 10
    v_add_u32 v14, s62, v15
    s_lshl_b32 s62, {SX}, 5
    s_add_u32 s62, s62, {SJ}
    s_lshr_b32 s69, s62, 3
    s_and_b32 s63, s62, 7
    s_lshl_b32 s63, s63, 1
    s_add_u32 s63, s63, s58
    s_lshl_b32 s64, s63, 15
    s_lshl_b32 s62, s69, 5
    s_add_u32 s64, s64, s62
    v_lshrrev_b32 v3, 5, v0
    v_lshlrev_b32 v3, 14, v3
    v_bfe_u32 v2, v0, 4, 1
    v_lshl_add_u32 v3, v2, 12, v3
    v_and_b32 v2, 15, v0
    v_lshl_add_u32 v3, v2, 1, v3
    v_add_u32 v52, s64, v3
    v_add_u32 v57, 0x2000, v52
    s_lshl_b32 s69, s69, 4
    s_add_u32 s69, s69, s63
    s_lshl_b32 s69, s69, 10
    s_add_u32 s69, s69, {WOF}
    s_lshl_b32 s67, s67, 2
    s_add_u32 s67, s67, {GW}
    ; hand-off words: s72 = die-id line, s70 = projection-done word, s71 = line polled before attention
    s_lshl_b32 s72, {SX}, 2
    s_add_u32 s72, s72, {SW}
    s_lshl_b32 s72, s72, 8
    s_add_u32 s72, s72, {F_S1}
    v_and_b32 v53, 31, v0
    v_lshlrev_b32 v53, 3, v53
    s_lshl_b32 s70, {SX}, 1
    s_lshr_b32 s71, {SJ}, 4
    s_add_u32 s71, s71, s70
    s_lshl_b32 s71, s71, 8
    s_add_u32 s71, s71, {F_S2}
    s_add_u32 s70, s70, s59
    s_lshl_b32 s70, s70, 8
    s_lshl_b32 s62, {SJ}, 3
    s_add_u32 s70, s70, s62
    s_lshl_b32 s62, s58, 2
    s_add_u32 s70, s70, s62
    s_add_u32 s70, s70, {F_S2}
    v_lshlrev_b32 v54, 2, v0
    ; epilogue addresses
    s_lshl_b32 s60, {SX}, 2
    s_lshl_b32 s61, s59, 1
    s_add_u32 s60, s60, s61
    s_lshl_b32 s60, s60, 6
    s_lshl_b32 s61, {SJ}, 1
    s_add_u32 s61, s61, s58
    s_add_u32 s60, s60, s61
    s_lshl_b32 s61, s60, 10
    s_add_u32 s61, s61, {QF}
    s_add_u32 s62, s61, 0x10000
    s_lshl_b32 s63, s60, 11
    s_add_u32 s63, s63, {KV}
    s_add_u32 s64, s63, 0x20000
    s_mov_b32 s65, {QSCALE}
    v_and_b32 v55, 0x33, v0
    v_bfe_u32 v3, v0, 2, 1
    v_lshl_or_b32 v55, v3, 3, v55
    v_bfe_u32 v3, v0, 3, 1
    v_lshl_or_b32 v55, v3, 2, v55
    v_lshlrev_b32 v55, 4, v55
    v_and_b32 v56, 15, v0
    v_lshlrev_b32 v56, 4, v56
    v_lshrrev_b32 v3, 5, v0
    v_lshl_add_u32 v56, v3, 8, v56
    v_bfe_u32 v3, v0, 4, 1
    v_lshl_add_u32 v56, v3, 17, v56
    """.strip().split("\n") if not x.strip().startswith(";")]
    fill += [f"v_mov_b32 v{r}, 0" for r in range(DA, DA + 4)] + att_bulk() + att_addr()
    if OPT.get("fillpre"):
        while fill: a(fill.pop(0))
    def reads(t, ks):
        p = slot_addr(t) // SLOT - 1; s = SETS[ks]; hi = p >> 1; o0 = (p & 1) * SLOT
        l = [f"ds_read_b128 {vr(s,4)}, v{XA + 4*hi + ks} offset:{o0}"]
        for ty in (1, 2, 0):
            for ri in range(2):
                l.append(f"ds_read_b64_tr_b16 {vr(s+4+4*ty+2*ri,2)}, v{WA+hi} offset:{o0 + ty*8192 + ks*2048 + ri*512}")
        return l
    def mf(ks, i, first=False):
        s = SETS[ks]; c = "0" if first else vr(ACC[i], 16)
        ab = f"{vr(s,4)}, {vr(s+12,4)}" if i == 2 else f"{vr(s+4+4*i,4)}, {vr(s,4)}"
        a(f"v_mfma_f32_32x32x16_bf16 {vr(ACC[i],16)}, {ab}, {c}")
    pend = []
    def mm(ks, first, rd=(), nd=2):
        rd = list(rd)
        for i, r in zip((1, 2, 0), (rd[:4], rd[4:], [])):
            mf(ks, i, first)
            for x in r: a(x)
            for _ in range(3 if r else 5):
                if fill: a(fill.pop(0))
        for _ in range(nd):
            if pend:
                tag, p = pend.pop(0)
                if OPT.get("nodma") and tag[0] == "s" and tag != "side": p = "buffer_load_dword v59, v15, s[32:35], 0 offen"
                a(p); vm.add(tag)
    side = [f"global_load_dwordx4 {vr(GX,4)}, v14, {S_X}", f"global_load_dwordx4 {vr(GX+4,4)}, v14, {S_X} offset:1024", f"global_load_dwordx4 {vr(GG,4)}, v15, {S_GWT}"]
    side += [f"global_load_short_d16{'_hi' if j & 1 else ''} v{GO+j}, v{57 if j >> 2 else 52}, {S_WO} offset:{1024*(j&3)}" for j in range(8)]
    for t in range(8):
        if OPT.get("gpos") == "pre": lstamp(a, 8 + t)
        vm.wait(a, f"s{t}")
        if t == 3: epoch_next(a)
        if OPT.get("gpos") == "mid": lstamp(a, 8 + t)
        a("s_barrier")
        if not OPT.get("gpos"): lstamp(a, 8 + t)
        nd = 2
        if t == 0 and OPT.get("s3pre") == "0": pend += [("s3w", p) for p in dma_pieces(3, "w")]; nd = 3
        if t == 1: pend += [("s3", p) for p in dma_pieces(3, "x")]; nd = 3
        if 1 <= t <= 4: pend += [(f"s{t+3}", p) for p in dma_pieces(t + 3)]
        if t == int(OPT.get("tt", 5)) and OPT.get("touch") == "g":
            pend += [("touch", f"s_mov_b32 exec_hi, 0xffff\nbuffer_load_dword v59, v58, {R_WS}, 0 offen\ns_mov_b32 exec_hi, -1")]; nd = 3
        if t == 5: assert not fill, len(fill)
        if t == 5: pend += [("f", f"buffer_load_dwordx2 {vr(VT,2)}, v53, {R_WS}, s72 offen {SC}")]
        if t == 5: pend += [("side", p) for p in side]; nd = 3
        if t == 0:
            for x in reads(0, 0) + reads(0, 1): a(x)
        else:
            if OPT.get("burst"): nd = int(OPT["burst"])
            mm(2, False, reads(t, 0), nd)
            mm(3, False, reads(t, 1), nd)
        a("s_waitcnt lgkmcnt(7)")
        mm(0, t == 0, reads(t, 2), nd)
        a("s_waitcnt lgkmcnt(7)")
        mm(1, False, reads(t, 3), nd)
        assert not pend
        if t == 7 and OPT.get("gprio"): a(f"s_setprio {OPT['gprio']}")
        if t == 7:
            lstamp(a, 6)
            vm.wait(a, "f")
            poll(a, "s1g", 53, "s72", True, 2, 1)
            a(f"v_cmp_ne_u32 s[94:95], v{VT+1}, v{VX}")
        a("s_waitcnt lgkmcnt(0)")
    a("s_cmp_eq_u64 s[94:95], 0")
    if OPT.get("nofast"): a("s_branch L_st_far")
    a("s_cbranch_scc0 L_st_far")
    cv = lambda d, s: [f"v_cvt_pk_bf16_f32 v{d+r}, v{s+2*r}, v{s+2*r+1}" for r in range(8)]
    for fmod in ("", SC):
        mod = fmod or OPT.get("qmod", "").replace("plain", "")
        if fmod: a.reset(); a("L_st_far:")
        for ks, i in ((2, 1), (3, 1), (2, 2), (3, 2), (2, 0)): mf(ks, i)
        a("s_nop 6")
        if not fmod: lstamp(a, 20) if OPT.get("gst") else None
        for x in cv(144, ACC[1])[:4]: a(x)
        mf(3, 0)
        for x in cv(144, ACC[1])[4:]: a(x)
        a(f"buffer_store_dwordx4 v[144:147], v55, {R_WS}, s63 offen {mod}\nbuffer_store_dwordx4 v[148:151], v55, {R_WS}, s64 offen {mod}")
        if not fmod: lstamp(a, 19) if OPT.get("gst") else None
        for x in cv(152, ACC[2]): a(x)
        a(f"buffer_store_dwordx4 v[152:155], v56, {R_WS}, s63 offen offset:1024 {mod}\nbuffer_store_dwordx4 v[156:159], v56, {R_WS}, s63 offen offset:1536 {mod}")
        for h in range(2):
            for r in range(8): a(f"v_mul_f32 v{ACC[0]+8*h+r}, s65, v{ACC[0]+8*h+r}")
            for x in cv(160, ACC[0])[4*h:4*h+4]: a(x)
            a(f"buffer_store_dwordx4 {vr(160+4*h,4)}, v1, {R_WS}, s{61+h} offen {mod}")
        if not fmod: lstamp(a, 16)
        a("s_mov_b32 s68, 0xffff0000\ns_waitcnt vmcnt(6)")
        for k in range(4): a(f"v_lshlrev_b32 v{168+2*k}, 16, v{GG+k}\nv_and_b32 v{169+2*k}, s68, v{GG+k}")
        for k in range(4):
            for r in range(2):
                x = GX + 4 * r + k; t = 180 + 2 * r
                a(f"v_lshlrev_b32 v{t}, 16, v{x}\nv_and_b32 v{t+1}, s68, v{x}\nv_mul_f32 v{t}, v{t}, v{168+2*k}\nv_mul_f32 v{t+1}, v{t+1}, v{169+2*k}")
                a(f"v_cvt_pk_bf16_f32 v{x}, v{t}, v{t+1}")
        a("s_waitcnt vmcnt(0)")
        signal(a, "s70", fmod)
        if not fmod: a("s_branch L_st_done")
    a.reset(); a("L_st_done:")
    lstamp(a, 17)
    a(f"buffer_load_dword v{VT}, v54, {R_WS}, s71 offen {SC}")
    for k in range(4):
        for r in range(2):
            x = GX + 4 * r + k; t = 180 + 2 * r
            a(f"v_and_b32 v{t+1}, s68, v{x}\nv_lshlrev_b32 v{t}, 16, v{x}")
            if k == 0: a(f"v_add_f32 v{176+r}, v{t}, v{t+1}")
            else: a(f"v_add_f32 v{176+r}, v{176+r}, v{t}\nv_add_f32 v{176+r}, v{176+r}, v{t+1}")
    wo_pack = [f"v_or_b32 v{DB+j}, v{GO+2*j}, v{GO+2*j+1}" for j in range(4)]
    for d in ("row_shr:1 row_mask:0xf bank_mask:0xf bound_ctrl:0", "row_shr:2 row_mask:0xf bank_mask:0xf bound_ctrl:0",
              "row_shr:4 row_mask:0xf bank_mask:0xf bound_ctrl:0", "row_shr:8 row_mask:0xf bank_mask:0xf bound_ctrl:0",
              "row_bcast:15 row_mask:0xa bank_mask:0xf", "row_bcast:31 row_mask:0xc bank_mask:0xf"):
        if wo_pack: a(wo_pack.pop())
        for r in range(2): a(f"v_add_f32_dpp v{176+r}, v{176+r}, v{176+r} {d}")
    a(f"""
    v_cvt_pk_bf16_f32 v178, v176, v177
    s_mov_b32 s60, {LOG2E}
    v_lshlrev_b32 v176, 16, v178
    v_and_b32 v177, s68, v178
    v_mul_f32 v176, s60, v176
    v_mul_f32 v177, s60, v177
    v_exp_f32 v176, -v176
    v_exp_f32 v177, -v177
    v_add_f32 v176, 1.0, v176
    v_add_f32 v177, 1.0, v177
    v_rcp_f32 v176, v176
    v_rcp_f32 v177, v177
    s_nop 0
    v_cvt_pk_bf16_f32 v178, v176, v177
    v_lshlrev_b32 v{DB+4}, 16, v178
    v_and_b32 v{DB+5}, s68, v178
    """)
    a("s_waitcnt vmcnt(0)")
    poll(a, "s2", 54, "s71", True, sleep=1)
    lstamp(a, 2)
    a(f"""
    buffer_load_dwordx4 {vr(AQ,4)}, v1, {R_WS}, s77 offen {SC}
    s_add_u32 m0, s79, {QS}
    s_add_u32 s80, s77, 4096
    buffer_load_dwordx4 v1, {R_WS}, s80 offen {SC} lds
    """)
    kv_dma(a, range(3), SC, True)
    a("s_waitcnt vmcnt(4)")

def deferred_stores(a):
    a(f"s_cmp_lt_u32 {SW}, 4\ns_cbranch_scc1 L_df_g")
    for ci in range(4): a(f"buffer_store_dwordx2 {vr(DB+2*ci,2)}, v{DA+ci}, {R_WS}, s66 offen {SC}")
    a(f"""
    s_branch L_df_done
    L_df_g:
    buffer_store_dwordx4 {vr(DB,4)}, v1, {R_WS}, s69 offen {SC}
    s_mov_b32 exec_lo, 0
    s_mov_b32 exec_hi, 0x80000000
    buffer_store_dwordx2 {vr(DB+4,2)}, v{VZ}, {R_WS}, s67 offen {SC}
    s_mov_b64 exec, -1
    L_df_done:
    """)

CA, CB, CU, CD, CE = 86, 87, 88, 90, 91
CACC = 32
def conv(a):
    FA = (96, 160); FB = (128, 192)
    q = []
    def issue(key, txt):
        if len(q) >= 15:
            a("s_waitcnt lgkmcnt(14)"); del q[:len(q) - 14]
        a(txt); q.append(key)
    def need(keys):
        idx = [i for i, k in enumerate(q) if k in keys]
        if idx:
            a(f"s_waitcnt lgkmcnt({len(q) - 1 - max(idx)})"); del q[:max(idx) + 1]
    def rd_list(rho):
        s = rho & 1; l = []
        for i in range(8):
            l.append(((rho, "A", i), f"ds_read_b128 {vr(FA[s]+4*i,4)}, v{CA} offset:{512*(7-i) + 64*(3-rho)}"))
            l.append(((rho, "B", i), f"ds_read_b128 {vr(FB[s]+4*i,4)}, v{CB} offset:{512*i + 64*(3-rho)}"))
        return l
    for k, t in rd_list(0): issue(k, t)
    seen = set()
    mms = sorted([(sg, dl) for sg in range(8) for dl in range(8 - sg)], key=lambda m: max(2 * m[0], 2 * m[1] + 1))
    for rho in range(4):
        s = rho & 1
        nxt = rd_list(rho + 1) if rho < 3 else [(("u", i), f"ds_read_b64 {vr(DB+2*i,2)}, v{CU} offset:{512*i}") for i in range(4)]
        k0 = 14 if rho == 0 else 0
        for k, (sg, dl) in enumerate(mms):
            if rho == 0: need({(rho, "A", sg), (rho, "B", dl)})
            elif k == 0: need({(rho, "B", 7)})
            c = sg + dl; acc = vr(CACC + 4 * c, 4)
            a(f"v_mfma_f32_16x16x32_bf16 {acc}, {vr(FA[s]+4*sg,4)}, {vr(FB[s]+4*dl,4)}, {acc if c in seen else '0'}")
            seen.add(c)
            if k >= k0 and (k - k0) % 2 == 0:
                for x in nxt[k - k0:k - k0 + 2]: issue(*x)
    a("s_cmp_eq_u32 s53, 0\ns_cbranch_scc0 L_cv_hi\ns_nop 5")
    for i in range(4): a(f"ds_write_b128 v{CE}, {vr(CACC+16+4*i,4)} offset:{1024*i}")
    a("s_branch L_cv_sent\nL_cv_hi:\ns_nop 5")
    for i in range(4): a(f"ds_write_b128 v{CE}, {vr(CACC+4*i,4)} offset:{1024*i}")
    a("s_nop 1")
    for i in range(16): a(f"v_mov_b32 v{CACC+i}, v{CACC+16+i}")
    a(f"L_cv_sent:\nv_xor_b32 v{CE}, 0x1000, v{CE}\ns_waitcnt lgkmcnt(0)")

def conv_finish(a):
    a(f"s_cmp_lt_u32 {SW}, 4\ns_cbranch_scc1 L_cv_fin")
    for i in range(4): a(f"ds_read_b128 {vr(96+4*i,4)}, v{CE} offset:{1024*i}")
    a(f"s_add_u32 s68, s79, {QS - 4096}\nv_add_u32 v4, s68, v1\nds_read_b128 {vr(AQ,4)}, v4")
    a("s_mov_b32 s68, 0xffff0000")
    for i in range(8): a(f"v_lshlrev_b32 v{48+2*i}, 16, v{DB+i}\nv_and_b32 v{49+2*i}, s68, v{DB+i}")
    for i in range(16): a(f"v_fmac_f32 v{CACC+i}, v{48+i}, v{CD}")
    a("s_waitcnt lgkmcnt(0)")
    for i in range(16): a(f"v_add_f32 v{CACC+i}, v{CACC+i}, v{96+i}")
    for i in range(8): a(f"v_cvt_pk_bf16_f32 v{DB+i}, v{CACC+2*i}, v{CACC+2*i+1}")
    a("L_cv_fin:")

def a_params(a):
    aux_ids(a)
    a(f"""
    s_lshl_b32 s55, s54, 8
    s_lshl_b32 s56, s53, 7
    s_add_u32 s55, s55, s56
    v_lshlrev_b32 v1, 1, v0
    v_add_u32 v1, s55, v1
    s_lshl_b32 s56, s54, 1
    v_mov_b32 v2, s56
    global_load_short_d16_hi v10, v1, {S_LOGA} {OPT.get('pmod', '')}
    global_load_short_d16_hi v14, v2, {S_LDT}
    global_load_short_d16_hi v11, v1, {S_AIM} {OPT.get('pmod', '')}
    global_load_short_d16_hi v12, v1, {S_CR} {OPT.get('pmod', '')}
    global_load_short_d16_hi v13, v1, {S_CI} {OPT.get('pmod', '')}
    global_load_short_d16_hi v{CD}, v2, {S_DSK}
    """)
    epoch_load(a)
    if not OPT.get("nowpf"):
        a(f"""
        s_lshl_b32 s62, {SX}, 5
        s_add_u32 s62, s62, {SJ}
        s_lshr_b32 s63, s62, 3
        s_and_b32 s62, s62, 7
        s_lshl_b32 s62, s62, 16
        s_lshl_b32 s63, s63, 5
        s_add_u32 s62, s62, s63
        s_lshl_b32 s63, s51, 14
        s_add_u32 s62, s62, s63
        v_lshlrev_b32 v3, 10, v0
        v_add_u32 v3, s62, v3
        s_mov_b64 exec, 0xffff
        global_load_dword v92, v3, {S_WO}
        s_mov_b64 exec, -1
        """)
    if OPT.get("touch") == "start":
        a(f"""
        s_lshl_b32 s60, {SX}, 2
        s_lshl_b32 s61, s52, 1
        s_add_u32 s60, s60, s61
        s_lshl_b32 s60, s60, 6
        s_lshl_b32 s61, {SJ}, 1
        s_add_u32 s61, s61, s53
        s_add_u32 s60, s60, s61
        s_lshl_b32 s61, s60, 10
        s_add_u32 s61, s61, {QF}
        s_lshl_b32 s60, s60, 11
        s_add_u32 s60, s60, {KV}
        v_and_b32 v4, 15, v0
        v_lshlrev_b32 v4, 7, v4
        v_bfe_u32 v5, v0, 4, 1
        v_lshl_add_u32 v4, v5, 17, v4
        v_and_b32 v5, 7, v0
        v_lshlrev_b32 v5, 7, v5
        v_bfe_u32 v6, v0, 3, 1
        v_lshl_add_u32 v5, v6, 16, v5
        s_mov_b64 exec, 0xffffffff
        buffer_load_dword v9, v4, {R_WS}, s60 offen
        s_mov_b64 exec, 0xffff
        buffer_load_dword v8, v5, {R_WS}, s61 offen
        s_mov_b64 exec, -1
        """.replace("v9,", "v91,").replace("v8,", "v89,"))
    if OPT.get("nocpf") == "0":
        a(f"""
        s_getpc_b64 s[62:63]
        L_pc:
        s_and_b32 s64, {SJ}, 3
        s_lshl_b32 s64, s64, 2
        s_add_u32 s64, s64, s51
        s_lshl_b32 s64, s64, 11
        v_lshlrev_b32 v3, 7, v0
        v_add_u32 v3, s64, v3
        v_min_u32 v3, L_codeend - L_pc - 4, v3
        s_mov_b64 exec, 0xffff
        global_load_dword v93, v3, s[62:63]
        s_mov_b64 exec, -1
        """)

def rows(a, regs, row0, neg, tb):
    for k, r in enumerate(regs):
        if r is None: a(f"v_mov_b32 v{tb+k}, 0x3f80")
        else: a(f"v_cvt_pk_bf16_f32 v{tb+k}, v{r}, {'-' if neg else ''}v{r+1}")
    for k in range(len(regs)): a(f"ds_write_addtid_b32 v{tb+k} offset:{272*(row0+k)}")
    return row0 + len(regs)

def smul_list(ops):
    T = list(range(32, 40)) + [16, 17, 18, 19]; l = []
    for k, (d, x, w) in enumerate(ops): l += [f"v_mul_f32 v{T[2*k]}, v{x+1}, v{w+1}", f"v_mul_f32 v{T[2*k+1]}, v{x}, v{w+1}"]
    for k, (d, x, w) in enumerate(ops):
        if d == w:
            l += [f"v_fma_f32 v{d+1}, v{x+1}, v{w}, v{T[2*k+1]}", f"v_fma_f32 v{d}, v{x}, v{w}, -v{T[2*k]}"]
        else:
            l += [f"v_fma_f32 v{d}, v{x}, v{w}, -v{T[2*k]}", f"v_fma_f32 v{d+1}, v{x+1}, v{w}, v{T[2*k+1]}"]
    return l

def touch(a, where):
    tps = OPT.get("tps", "b5,b5,b6").split(","); mod = OPT.get("tmod", ""); n = 0
    if where == min(tps):
        a(f"""
        s_lshl_b32 s60, {SX}, 2
        s_lshl_b32 s61, s52, 1
        s_add_u32 s60, s60, s61
        s_lshl_b32 s60, s60, 6
        s_lshl_b32 s61, {SJ}, 1
        s_add_u32 s61, s61, s53
        s_add_u32 s60, s60, s61
        s_lshl_b32 s61, s60, 10
        s_add_u32 s61, s61, {QF}
        s_lshl_b32 s60, s60, 11
        s_add_u32 s60, s60, {KV}
        v_and_b32 v85, 7, v0
        v_lshlrev_b32 v85, 7, v85
        v_bfe_u32 v84, v0, 3, 1
        v_lshl_add_u32 v58, v84, 16, v85
        v_lshl_add_u32 v85, v84, 17, v85
        """)
    for k, p in enumerate(tps):
        if p != where: continue
        if n == 0: a("s_mov_b64 exec, 0xffff")
        a(f"buffer_load_dword v{82+k}, v{58 if k == 2 else 85}, {R_WS}, {'s61' if k == 2 else 's60'} offen offset:{1024 if k == 1 else 0} {mod}"); n += 1
    if n: a("s_mov_b64 exec, -1")
    return n

def a_phase1(a0):
    class Flt:
        on = False
        def __call__(self, txt):
            m = OPT.get("noA")
            if not (self.on and m): return a0(txt)
            for ln in txt.split("\n"):
                l = ln.strip()
                if "w" in m and l.startswith(("ds_write_addtid", "ds_write_b128")): continue
                if "r" in m and l.startswith(("ds_read_b128", "ds_read_b64 ")): continue
                if "m" in m and l.startswith("v_mfma"): continue
                if "v" in m and l.startswith(("v_pk_", "v_fma_f32", "v_mul_f32", "v_cvt_pk", "v_sin", "v_cos", "v_exp", "v_fract", "v_alignbit", "v_bfi", "v_add_f32")): continue
                a0(ln)
        def reset(self): a0.reset()
    a = Flt()
    vm = VM()
    vm.add("par", 7)
    if not OPT.get("nowpf"): vm.add("wpf")
    if OPT.get("touch") == "start": vm.add("touch", 2)
    if OPT.get("nocpf") == "0": vm.add("cpf")
    a("s_setprio 2")
    a(f"""
    s_mul_i32 s65, s51, {TBS}
    s_mov_b32 m0, s65
    s_mov_b32 s66, {LOG2E}
    s_mov_b32 s68, 0xffff0000
    s_mov_b32 s69, {INV2PI}
    s_mov_b32 s62, 0x41000000
    s_mov_b32 s63, 0x43800000
    
    """)
    late = [x.strip() for x in f"""
    v_and_b32 v1, 31, v0
    v_lshrrev_b32 v2, 5, v0
    v_lshlrev_b32 v2, 4, v2
    s_mul_i32 s73, s52, {2*TBS}
    v_add_u32 v54, s73, v2
    v_mov_b32 v3, 272
    v_mad_u32_u24 v7, v1, v3, v54
    s_mul_i32 s65, s51, {HTS}
    s_mul_i32 s73, s52, {2*HTS}
    v_add_u32 v2, s73, v2
    v_bfe_u32 v8, v0, 3, 1
    v_and_b32 v9, 3, v0
    v_lshl_add_u32 v8, v8, 2, v9
    v_cvt_f32_u32 v8, v8
    v_bfe_u32 v9, v0, 4, 1
    v_bfe_u32 v52, v0, 2, 1
    v_lshl_add_u32 v9, v9, 1, v52
    v_min_u32 v52, 2, v9
    v_sub_u32 v52, 0, v52
    v_ldexp_f32 v52, v8, v52
    v_rndne_f32 v52, v52
    v_cvt_u32_f32 v52, v52
    v_lshlrev_b32 v53, 3, v9
    s_mov_b32 s73, 0x100d0800
    v_lshrrev_b32 v53, v53, s73
    v_and_b32 v53, 0xff, v53
    v_add_u32 v52, v52, v53
    v_mul_f32 v8, 0.125, v8
    v_rndne_f32 v8, v8
    v_cvt_u32_f32 v8, v8
    v_lshl_add_u32 v8, v9, 1, v8
    v_add_u32 v8, 19, v8
    s_cmp_eq_u32 s53, 0
    s_cselect_b64 vcc, -1, 0
    s_cselect_b32 s70, 0, 0xaaaaaaaa
    s_mov_b32 s71, s70
    v_cndmask_b32 v9, v8, v52, vcc
    v_mad_u32_u24 v9, v9, v3, v2
    ; transpose addresses: v4/v5 LDS, v6 + s60 workspace; s61 = hand-off word, s72 = line this wave waits on
    v_lshrrev_b32 v1, 4, v0
    v_bfe_u32 v2, v0, 2, 2
    v_lshl_add_u32 v2, v1, 3, v2
    v_bfe_u32 v3, v0, 1, 1
    s_lshl_b32 s73, s51, 1
    v_add_u32 v3, s73, v3
    v_bfe_u32 v4, v2, 1, 3
    v_xor_b32 v4, v4, v3
    v_and_b32 v5, 1, v0
    v_lshlrev_b32 v5, 3, v5
    v_lshl_add_u32 v5, v2, 7, v5
    v_add_u32 v5, {slot_addr(0)}, v5
    v_xor_b32 v6, 2, v4
    v_lshl_add_u32 v4, v4, 4, v5
    v_lshl_add_u32 v5, v6, 4, v5
    v_bfe_u32 v6, v0, 1, 3
    v_lshlrev_b32 v6, 13, v6
    v_and_b32 v3, 1, v0
    v_lshl_add_u32 v6, v3, 6, v6
    v_lshl_add_u32 v6, v1, 4, v6
    s_lshl_b32 s60, {SX}, 18
    s_lshl_b32 s64, s51, 16
    s_add_u32 s60, s60, s64
    s_lshl_b32 s64, {SJ}, 8
    s_add_u32 s60, s60, s64
    s_add_u32 s60, s60, {XT}
    s_lshl_b32 s72, {SX}, 2
    s_add_u32 s61, s72, s51
    s_lshl_b32 s61, s61, 8
    s_lshl_b32 s64, {SJ}, 3
    s_add_u32 s61, s61, s64
    s_add_u32 s61, s61, {F_S1}
    s_lshr_b32 s64, {SJ}, 3
    s_add_u32 s72, s72, s64
    s_lshl_b32 s72, s72, 8
    s_add_u32 s72, s72, {F_S1}
    s_getreg_b32 s64, hwreg(HW_REG_XCC_ID)
    v_mov_b32 v{VX}, s64
    """.strip().split("\n") if not x.strip().startswith(";")]
    for _ in range(int(OPT.get("asetup", 25))):
        if late: a(late.pop(0))
    vm.wait(a, "par")
    a.on = True
    lstamp(a, 31)
    a(f"""
    v_mul_f32 v14, s66, v14
    v_mul_f32 v10, s66, v10
    v_exp_f32 v14, v14
    v_exp_f32 v10, v10
    s_mov_b32 s56, 1664525
    v_mul_lo_u32 v{VN}, v{VN}, s56
    v_add_u32 v{VN}, 1013904223, v{VN}
    v_cvt_pk_bf16_f32 v15, v14, v10
    v_lshlrev_b32 v14, 16, v15
    v_and_b32 v10, s68, v15
    v_mul_f32 v10, v10, v14
    v_mul_f32 v11, v11, v14
    v_mul_f32 v10, s66, v10
    v_mul_f32 v11, s69, v11
    """)
    L = lambda i: 76 + 2 * i
    H = lambda p: 40 + 2 * p if p < 8 else 28
    LF, HF, AK, HP = 96, 160, 224, 59
    cexp(a, [(L(1), "s62")])
    cmuls(a, [(L(2), L(1), L(1))])
    cmuls(a, [(L(3), L(2), L(1)), (84, L(2), L(2))])
    r = rows(a, [None, L(1), L(2), L(3)], 0, False, 72)
    cmuls(a, [(L(i), L(i), 84) for i in range(1, 4)])
    r = rows(a, [84, L(1), L(2), L(3)], r, False, 16)
    cmuls(a, [(L(0), 84, 84)] + [(L(i), L(i), 84) for i in range(1, 4)])
    for g in range(2, 8):
        r = rows(a, [L(i) for i in range(4)], r, False, 72 if g & 1 == 0 else 16)
        if g < 7: cmuls(a, [(L(i), L(i), 84) for i in range(4)])
        for _ in range(12):
            if late: a(late.pop(0))
    while late: a(late.pop(0))
    assert r == 32
    lstamp(a, 24)
    a("s_waitcnt lgkmcnt(0)\ns_barrier")
    a("""
    ds_read_b64_tr_b16 v[224:225], v4
    ds_read_b64_tr_b16 v[226:227], v5 offset:512
    ds_read_b64_tr_b16 v[228:229], v4 offset:4096
    ds_read_b64_tr_b16 v[230:231], v5 offset:4608
    """)
    lrd = [f"ds_read_b128 {vr(LF+4*ks,4)}, v7 offset:{TBS*(ks>>3) + 32*(ks&7)}" for ks in range(16)]
    for x in lrd[:8]: a(x)
    a("v_mul_f32 v40, v12, v14\nv_mul_f32 v41, v13, v14\nv_add_f32 v40, v40, v40\nv_add_f32 v41, v41, v41\ns_mov_b32 m0, s65")
    a(f"""
    s_waitcnt lgkmcnt(7)
    buffer_store_dwordx4 v[224:227], v6, {R_WS}, s60 offen {SC}
    buffer_store_dwordx4 v[228:231], v6, {R_WS}, s60 offen offset:128 {SC}
    """)
    vm.add("xt", 2)
    for x in lrd[8:]: a(x)
    cexp(a, [(20, None), (24, "s63")])
    hl = []; row = [0]
    def hm(ops): hl.extend(smul_list(ops))
    def hp(regs):
        for g in regs: hl.append(f"v_cvt_pk_bf16_f32 v{HP+row[0]}, v{g}, -v{g+1}"); row[0] += 1
    hm([(H(1), H(0), 20), (22, 20, 20)])
    hm([(H(2), H(0), 22), (H(3), H(1), 22), (26, 22, 22), (30, 24, 24)])
    hm([(H(4 + i), H(i), 26) for i in range(4)])
    hm([(H(8), H(4), 26)]); hp([H(p) for p in range(8)])
    for grp in ((0, 2, 4, 6, 8), (0, 4, 8), (0, 4, 8)):
        hm([(H(p), H(p), 24) for p in grp]); hp([H(p) for p in grp])
    hm([(42, H(0), 24), (46, H(8), 24)])
    hm([(50, 42, 24), (52, 46, 24), (H(0), 42, 30), (H(8), 46, 30)])
    hm([(44, 50, 30), (48, 52, 30)]); hp([42, 46, 50, 52, H(0), H(8), 44, 48])
    assert row[0] == 27
    cut = int(OPT.get("hcut", 64))
    for x in hl[:cut]: a(x)
    lstamp(a, 19)
    a("s_waitcnt lgkmcnt(0)\ns_barrier")
    done = 0
    for k, x in enumerate(hl[cut:]):
        a(x)
        n = sum("cvt" in y for y in hl[:cut + k + 1])
        if n - done >= 8 or (k == len(hl) - cut - 1):
            for j in range(done, n): a(f"ds_write_addtid_b32 v{HP+j} offset:{272*j}")
            done = n
    vm.wait(a, "xt"); signal(a, "s61", SC, 2); vm.add("f1")
    lstamp(a, 20)
    a("s_waitcnt lgkmcnt(0)\ns_setprio 0\ns_barrier")
    hrd = [f"ds_read_b128 {vr(HF+4*ks,4)}, v9 offset:{HTS*(ks>>3) + 32*(ks&7)}" for ks in range(16)]
    for x in hrd[:12]: a(x)
    a(f"""
    v_lshlrev_b32 v1, 4, v0
    v_mov_b32 v60, 0
    v_mov_b32 v61, 0
    v_mov_b32 v62, 0
    v_mov_b32 v63, 0
    s_mul_i32 s67, s52, {KXD}
    s_add_u32 s67, s67, {KX0}
    v_mov_b32 v3, s67
    s_lshl_b32 s66, s53, 11
    s_add_u32 s66, s66, s67
    v_lshrrev_b32 v2, 5, v0
    v_and_b32 v4, 31, v0
    v_lshlrev_b32 v4, 4, v4
    v_lshl_add_u32 v2, v2, 9, v4
    v_add_u32 v2, s66, v2
    s_waitcnt lgkmcnt(4)
    """)
    for x in hrd[12:]: a(x)
    km = lambda ks: a(f"v_mfma_f32_32x32x16_bf16 {vr(AK,16)}, {vr(HF+4*ks,4)}, {vr(LF+4*ks,4)}, {'0' if ks == 0 else vr(AK,16)}")
    for ks in range(8): km(ks)
    lstamp(a, 21)
    a("s_waitcnt lgkmcnt(0)\ns_barrier")
    bulk = att_bulk()
    for ks in range(8, 16):
        km(ks)
        for x in bulk[7 * (ks - 8):7 * (ks - 7)]: a(x)
    a("ds_write_b128 v3, v[60:63]")
    for rg in range(2): a(f"v_cndmask_b32 v{AK+8*rg+4}, v{AK+8*rg+4}, v{AK+8*rg+5}, s[70:71]")
    for i in range(8): a(f"v_cvt_pk_bf16_f32 v{40+i}, v{AK+2*i}, v{AK+2*i+1}")
    for rg in range(2): a(f"ds_write_b128 v2, {vr(40+4*rg,4)} offset:{16 + 1024*rg}")
    lstamp(a, 22)
    a("s_waitcnt lgkmcnt(0)\ns_barrier")
    a(f"v_and_b32 v55, 31, v0\nv_lshlrev_b32 v55, 3, v55\nbuffer_load_dword v{VT}, v55, {R_WS}, s72 offen {SC}")
    n4 = touch(a, "b4")
    a(f"""
    v_add_u32 v2, s66, v1
    ds_read_b64 v[40:41], v2 offset:8
    ds_read_b128 v[42:45], v2 offset:16
    ds_read_b64 v[46:47], v2 offset:{1024+8}
    ds_read_b128 v[48:51], v2 offset:{1024+16}
    s_cmp_eq_u32 s52, 0
    s_cselect_b32 s67, 0, {slot_addr(4)}
    v_bfe_u32 v2, v0, 2, 2
    v_mul_u32_u24 v2, {RE}, v2
    v_and_b32 v3, 3, v0
    v_min_u32 v3, 2, v3
    v_lshl_add_u32 v2, v3, 4, v2
    v_add_u32 v52, s67, v2
    s_lshl_b32 s69, s53, 11
    s_sub_u32 s66, s67, s69
    s_add_u32 s66, s66, {255*16 - 1024}
    v_sub_u32 v53, s66, v1
    v_min_u32 v2, 32, v0
    s_mul_i32 s66, s53, {US}
    s_add_u32 s66, s66, s67
    s_add_u32 s66, s66, {RSZ}
    v_lshl_add_u32 v54, v2, 4, s66
    s_mov_b32 s69, 0xffff
    s_waitcnt lgkmcnt(0)
    """)
    RG = 96
    for q in range(2):
        w = lambda i: 40 + 6 * q + 2 + i
        for e in range(4):
            o = RG + 16 * q + 4 * e
            for i in range(4):
                hi = 3 - i - (0 if e >= 2 else 1)
                if e & 1: a(f"v_alignbit_b32 v{o+i}, v{w(hi)}, v{w(hi)}, 16")
                else: a(f"v_bfi_b32 v{o+i}, s69, v{w(hi)}, v{w(hi-1)}")
    a.on = False
    a(f"""
    v_lshlrev_b32 v1, 4, v0
    v_mov_b32 v60, 0
    s_lshl_b32 s66, s51, 2
    s_add_u32 s66, s66, 32000
    v_mov_b32 v59, s66
    ds_write_b32 v59, v60
    s_lshl_b32 s71, {SX}, 18
    s_lshl_b32 s69, {SJ}, 13
    s_add_u32 s71, s71, s69
    s_lshl_b32 s69, s52, 6
    s_add_u32 s71, s71, s69
    s_lshl_b32 s69, s53, 12
    s_add_u32 s71, s71, s69
    s_add_u32 s71, s71, {XT}
    v_lshrrev_b32 v2, 2, v0
    v_and_b32 v3, 3, v0
    v_lshlrev_b32 v3, 4, v3
    v_lshl_add_u32 v56, v2, 7, v3
    s_lshl_b32 s70, s53, 11
    s_add_u32 s69, s67, s70
    s_add_u32 s69, s69, {RSZ + 512}
    v_add_u32 v57, s69, v1
    s_lshl_b32 s73, s53, 8
    s_sub_u32 s73, s67, s73
    s_add_u32 s66, s73, {4128 - 64*7 - 512*7 + 256}
    v_and_b32 v4, 3, v0
    v_mul_u32_u24 v4, {RE}, v4
    v_lshrrev_b32 v2, 4, v0
    v_bfe_u32 v3, v0, 2, 2
    v_add_u32 v3, v3, v2
    v_lshlrev_b32 v3, 4, v3
    v_sub_u32 v4, v4, v3
    v_add_u32 v{CA}, s66, v4
    s_add_u32 s66, s73, {RSZ + US + 512 + 48 - 64*7 + 256}
    v_bfe_u32 v4, v0, 1, 3
    v_lshlrev_b32 v4, 6, v4
    v_lshlrev_b32 v3, 4, v2
    v_sub_u32 v5, v4, v3
    v_add_u32 v4, v4, v3
    v_and_b32 v3, 1, v0
    v_lshl_add_u32 v4, v3, 3, v4
    v_mul_u32_u24 v3, {US}, v3
    v_sub_u32 v5, v5, v3
    v_add_u32 v{CB}, s66, v5
    v_add_u32 v{CU}, s69, v4
    v_add_u32 v{DA}, s70, v4
    v_add_u32 v{DA+1}, 512, v{DA}
    v_add_u32 v{DA+2}, 1024, v{DA}
    v_add_u32 v{DA+3}, 1536, v{DA}
    s_lshl_b32 s66, s51, 12
    s_add_u32 s66, s66, {OS}
    v_add_u32 v{CE}, s66, v1
    s_lshl_b32 s66, s54, 12
    s_add_u32 s66, s66, {BT}
    """)
    for x in att_addr(): a(x)
    lstamp(a, 23)
    a("s_waitcnt lgkmcnt(0)\ns_barrier")
    def uload():
        for q in range(2): a(f"buffer_load_dwordx4 {vr(32+4*q,4)}, v56, {R_WS}, s71 offen offset:{2048*q} {SC}")
    def ustore():
        for q in range(2): a(f"ds_write_b128 v57, {vr(32+4*q,4)} offset:{1024*q}")
        for q in range(2):
            a(f"ds_write_b64 v57, {vr(32+4*q,2)} offset:{1024*q + US + 8}")
            a(f"ds_write_b64 v57, {vr(34+4*q,2)} offset:{1024*q + US + 16}")
    a(f"""
    s_waitcnt vmcnt({n4})
    v_cmp_ne_u32 s[94:95], v{VT}, v{VN}
    s_cmp_lg_u64 s[94:95], 0
    s_cbranch_scc1 L_u_skip
    """)
    uload()
    a("L_u_skip:")
    nt = touch(a, "b5")
    a.on = True
    a("ds_write_b128 v52, v[60:63] offset:4096\nds_write_b128 v54, v[60:63]")
    rw = [f"ds_write_b128 v53, {vr(RG+16*q+4*e,4)} offset:{e*RE + 1024*(1-q)}" for q in range(2) for e in range(4)]
    rcut = int(OPT.get("rcut", 5))
    for x in rw[:rcut]: a(x)
    a("s_waitcnt lgkmcnt(0)\ns_barrier")
    for x in rw[rcut:]: a(x)
    a.on = False
    if OPT.get("uearly"):
        a(f"s_cmp_lg_u64 s[94:95], 0\ns_cbranch_scc1 L_u_late\ns_waitcnt vmcnt({nt})")
        ustore()
        a("ds_write_b32 v59, v59")
        touch(a, "b6")
        a("s_barrier\ns_branch L_u_have\nL_u_late:")
        touch(a, "b6")
        a("s_barrier")
        poll(a, "s1", 55, "s72")
        uload()
        a("s_waitcnt vmcnt(0)")
        ustore()
        a("ds_write_b32 v59, v59\nL_u_have:")
    else:
        nt += touch(a, "b6")
        a("s_barrier")
        a(f"s_cmp_lg_u64 s[94:95], 0\ns_cbranch_scc0 L_u_have")
        poll(a, "s1", 55, "s72")
        uload()
        a(f"s_waitcnt vmcnt(0)\nL_u_have:\ns_waitcnt vmcnt({nt})")
        ustore()
        a("ds_write_b32 v59, v59")
    a(f"""
    v_xor_b32 v59, 4, v59
    s_mov_b32 s92, {SPIN}
    L_pair:
    ds_read_b32 v57, v59
    s_waitcnt lgkmcnt(0)
    v_readfirstlane_b32 s93, v57
    s_sub_u32 s92, s92, 1
    s_cmp_eq_u32 s92, 0
    s_cbranch_scc1 L_pair_ok
    s_cmp_eq_u32 s93, 0
    s_cbranch_scc1 L_pair
    L_pair_ok:
    """)
    lstamp(a, 25)
    conv(a)
    lstamp(a, 3)

def att_main(a, hooks, prios):
    p2, pr, pq, p1 = [int(x) for x in OPT.get("ord", "2,2,5,10").split(",")]
    def rdk(t):
        p = (t + T0) & 63; b, o = (1, 2048 * p) if p < 32 else (80, 2048 * (p - 32))
        a(f"ds_read_b128 {vr(AKS[t&1],4)}, v{b} offset:{o}")
    def rdv(t):
        p = (t + T0) & 63; b, o = (2, 2048 * p) if p < 32 else (81, 2048 * (p - 32))
        a("s_mov_b64 exec, s[82:83]")
        a(f"ds_read_b128 {vr(AV1[t&1],4)}, v{b} offset:{o}")
        a(f"ds_read_b128 {vr(AV2[t&1],4)}, v{b} offset:{o+512}")
        a("s_mov_b64 exec, -1")
    rdk(0); rdk(1); rdv(0)
    a("s_waitcnt lgkmcnt(3)")
    a(f"v_mfma_f32_32x32x16_bf16 {vr(AS_[0],16)}, {vr(AKS[0],4)}, {vr(AQ,4)}, 0")
    for t in range(64):
        c, n = AS_[t & 1], AS_[(t + 1) & 1]
        if t in prios: a(f"s_setprio {prios[t]}")
        k = 0
        for e in range(17):
            if e == p2 and t: a(f"v_smfmac_f32_32x32x32_bf16 {vr(AO,16)}, {vr(AV2[(t-1)&1],4)}, {vr(n+8,8)}, v3")
            if e == pq and pq < pr: a("s_waitcnt lgkmcnt(0)")
            if e == pq and pq < pr and t + 1 < 64: a(f"v_mfma_f32_32x32x16_bf16 {vr(n,16)}, {vr(AKS[(t+1)&1],4)}, {vr(AQ,4)}, 0")
            if e == pr:
                if t in hooks: hooks[t]()
                if OPT.get("kfirst") and t + 2 < 64: rdk(t + 2); k += 1
                if t + 1 < 64: rdv(t + 1); k += 2
                if not OPT.get("kfirst") and t + 2 < 64: rdk(t + 2); k += 1
            if e == pq and pq >= pr:
                a(f"s_waitcnt lgkmcnt({k})")
                if t + 1 < 64: a(f"v_mfma_f32_32x32x16_bf16 {vr(n,16)}, {vr(AKS[(t+1)&1],4)}, {vr(AQ,4)}, 0")
            if e == p1: a(f"v_smfmac_f32_32x32x32_bf16 {vr(AO,16)}, {vr(AV1[t&1],4)}, {vr(c,8)}, v3")
            if e < 16: a(f"v_exp_f32 v{c+e}, v{c+e}")
    a(f"v_smfmac_f32_32x32x32_bf16 {vr(AO,16)}, {vr(AV2[1],4)}, {vr(AS_[1]+8,8)}, v3")

def att_finish2(a, tag):
    a(f"s_mov_b32 s84, 0x2b800000\ns_mov_b32 s85, 0x5d800000\nv_fma_f32 v8, v{AO}, 0, v{AO+8}")
    for r in range(1, 8): a(f"v_fma_f32 v8, v{AO+r}, 0, v8")
    a(f"""
    v_cmp_nge_f32 vcc, v8, s84
    v_cmp_nle_f32 s[90:91], v8, s85
    s_or_b64 vcc, vcc, s[90:91]
    s_cbranch_vccnz L_{tag}_slow
    L_{tag}_norm:
    v_rcp_f32 v8, v{AO+8}
    """)
    for r in range(8): a(f"v_mul_f32 v{AO+r}, v8, v{AO+r}")
    for r in range(4): a(f"v_cvt_pk_bf16_f32 v{12+r}, v{AO+2*r}, v{AO+2*r+1}")
    for r in range(4): a(f"v_min_u32 v{12+r}, -2, v{12+r}")
    a(f"buffer_store_dwordx4 v[12:15], v1, {R_WS}, s87 offen {OPT.get('ostm', SC).replace('_', ' ')}")

def out_gemm(a):
    a(f"""
    v_lshlrev_b32 v2, 9, v86
    v_lshl_add_u32 v2, v87, 4, v2
    v_add_u32 v2, {OS}, v2
    v_lshlrev_b32 v3, 10, v87
    v_lshl_add_u32 v3, v86, 3, v3
    s_lshl_b32 s84, s88, 15
    s_lshl_b32 s86, s89, 5
    s_add_u32 s84, s84, s86
    v_add_u32 v3, s84, v3
    v_add_u32 v4, 0x4000, v3
    """)
    def go():
        NB = 12; FB = 16
        rd = lambda i: a(f"ds_read_b128 {vr(FB+4*(i%NB),4)}, v2 offset:{2048*(i>>1) + 256*(i&1)}")
        for i in range(NB): rd(i)
        for g in range(8):
            a(f"s_waitcnt lgkmcnt({min(8, 28 - 4 * g)})")
            for i in range(4 * g, 4 * g + 4):
                acc = 8 + 4 * (i & 1)
                a(f"v_mfma_f32_16x16x32_bf16 {vr(acc,4)}, {vr(PW+4*(i>>1),4)}, {vr(FB+4*(i%NB),4)}, {'0' if i < 2 else vr(acc,4)}")
            for i in range(4 * g + NB, min(4 * g + NB + 4, 32)): rd(i)
        for nt in range(2):
            for i in range(4): a(f"v_fma_f32 v{8+4*nt+i}, v{8+4*nt+i}, v{PG+nt}, v{PB+4*nt+i}")
            a(f"v_cvt_pk_bf16_f32 v{16+2*nt}, v{8+4*nt}, v{9+4*nt}\nv_cvt_pk_bf16_f32 v{17+2*nt}, v{10+4*nt}, v{11+4*nt}")
            a(f"global_store_dwordx2 v{3+nt}, {vr(16+2*nt,2)}, {S_OUT} {OPT.get('outmod', '')}")
    return go

def build_fused():
    a = Asm()
    k = NAME + "_kernel"
    launches = f"; @launch grid=(256,1,1) block=(512,1,1) lds={LDS_BYTES}\n"
    if G.STAMPS:
        launches = f"; @launch kernel={k} grid=(256,1,1) block=(512,1,1) lds={LDS_BYTES}\n; @launch kernel=stamp_kernel grid=(1,1,1) block=(256,1,1) lds=1024\n"
    a.raw(header() + launches + '.amdgcn_target "amdgcn-amd-amdhsa--gfx950"\n.text')
    kernel_head(a, k)
    if "amp" in OPT: lstamp(a, "E")
    prologue(a, "L_end")
    lstamp(a, 0)
    if OPT.get("idle0"): a(f"s_sleep {OPT['idle0']}")
    a(f"s_cmp_lt_u32 {SW}, 4\ns_cbranch_scc1 L_gemm")
    a_params(a)
    a("s_barrier\ns_branch L_aux")
    a.reset(); a("L_gemm:")
    g_phase1(a)
    lg = list(G.LIGHT); G.LIGHT[:] = [s for s in lg if s == 0]
    a("s_branch L_att")
    a.reset(); a("L_aux:")
    a_phase1(a)
    la = list(G.LIGHT); G.LIGHT[:] = sorted(set(la) | set(lg))
    a.reset(); a("L_att:")
    for r in range(4): a(f"v_mov_b32 v{VS+r}, -1")
    a("s_barrier")
    a(f"ds_write_b32 v92, v{VZ}")
    lstamp(a, 4)
    KM = SC
    if OPT.get("idle"): a(f"s_sleep {OPT['idle']}")
    conv_finish(a)
    lstamp(a, 27)
    mode = "slow"
    sched = {t: [t + 3] for t in range(13)}
    def early_stores():
        deferred_stores(a)
        a(f"""
        s_lshl_b32 s87, s76, 5
        s_add_u32 s87, s87, s74
        s_lshl_b32 s87, s87, 10
        s_add_u32 s87, s87, {OF}
        buffer_store_dwordx4 {vr(VS,4)}, v1, {R_WS}, s87 offen {SC}
        """)
    def hdma(t):
        def f():
            if t == 2: a("s_waitcnt vmcnt(2)\ns_barrier")
            if t == 2 and OPT.get("late3"): early_stores()
            if t == 10:
                a("s_waitcnt vmcnt(1)\ns_barrier"); lstamp(a, 28)
                if OPT.get("late3"):
                    s3_addr(); a(f"s_cmp_lg_u32 {SW}, 0\ns_cbranch_scc1 L_s3_skip"); signal(a, "s85"); a("L_s3_skip:")
            kv_dma(a, sched[t], KM)
        return f
    def s3_addr(): a(f"s_lshl_b32 s85, {SX}, 7\ns_lshl_b32 s86, {SJ}, 2\ns_add_u32 s85, s85, s86\ns_add_u32 s85, s85, {F_S3}")
    def h_bar():
        a("s_waitcnt vmcnt(0)\ns_barrier"); s3_addr()
        a(f"s_cmp_lg_u32 {SW}, 0\ns_cbranch_scc1 L_s3_skip")
        signal(a, "s85")
        a("L_s3_skip:")
        if mode != "slow": lstamp(a, 28)
    def h_cnt():
        a(f"""
        s_waitcnt vmcnt(0)
        s_mov_b64 exec, 1
        ds_add_rtn_u32 v93, v92, v93
        s_mov_b64 exec, -1
        """)
    def h_s3sig():
        a("v_readfirstlane_b32 s84, v93"); s3_addr()
        a("s_cmp_lg_u32 s84, 7\ns_cbranch_scc1 L_s3_skip")
        signal(a, "s85")
        a("L_s3_skip:")
    def h_s3ld():
        a(f"s_mov_b32 s84, {F_S3}\nbuffer_load_dwordx4 {vr(VT,4)}, v1, {R_WS}, s84 offen {SC}")
    def wof_dma(r):
        for i in range(4): a(f"buffer_load_dwordx4 v1, {R_WS}, s90 offen offset:{1024*i} {SC} lds")
        if r < 3: a("s_add_u32 s90, s90, 4096")
    def h_s3chk():
        a("s_waitcnt vmcnt(0)")
        poll(a, "s3", 1, "s84", True, 4)
        a(f"""
        s_lshl_b32 s88, s75, 3
        s_lshr_b32 s89, s74, 2
        s_add_u32 s88, s88, s89
        s_and_b32 s89, s74, 3
        s_lshl_b32 s89, s89, 3
        s_add_u32 s89, s89, {SW}
        s_lshl_b32 s90, s89, 14
        s_add_u32 s90, s90, {WOF}
        s_lshl_b32 s86, {SW}, 12
        s_add_u32 s86, s86, {OS}
        s_mov_b32 m0, s86
        v_add_u32 v92, s86, v1
        """)
        if OPT.get("nos3"): return
        wof_dma(0)
        a(f"""
        s_or_b32 s84, s2, {SW}
        s_cmp_lg_u32 s84, 0
        s_cbranch_scc1 L_n_skip
        s_mov_b32 s84, {F_N}
        """)
        signal(a, "s84")
        a("L_n_skip:")
    def h_wrd(r):
        def f():
            if OPT.get("nos3"): return
            a("s_waitcnt vmcnt(0)")
            for i in range(4): a(f"ds_read_b128 {vr(PW+16*r+4*i,4)}, v92 offset:{1024*i}")
        return f
    def h_wld(r):
        def f():
            if OPT.get("nos3"): return
            wof_dma(r)
        return f
    def h_side():
        if OPT.get("nos3"):
            a("v_lshrrev_b32 v86, 4, v0\nv_and_b32 v87, 15, v0"); return
        a(f"""
        v_lshrrev_b32 v86, 4, v0
        v_and_b32 v87, 15, v0
        v_lshlrev_b32 v88, 14, v86
        v_lshl_add_u32 v88, v87, 1, v88
        s_lshl_b32 s90, s89, 16
        s_lshl_b32 s91, s88, 6
        s_add_u32 s90, s90, s91
        s_add_u32 s90, s90, {BT}
        """)
        for i in range(4):
            if i: a("s_add_u32 s90, s90, 4096")
            for nt in range(2): a(f"buffer_load_short_d16_hi v{PB+4*nt+i}, v88, {R_WS}, s90 offen offset:{32*nt} {SC}")
        a(f"""
        v_lshlrev_b32 v88, 2, v87
        s_lshl_b32 s90, s88, 7
        s_add_u32 s90, s90, {GW}
        buffer_load_dword v{PG}, v88, {R_WS}, s90 offen {SC}
        buffer_load_dword v{PG+1}, v88, {R_WS}, s90 offen offset:64 {SC}
        """)
    hooks = {t: hdma(t) for t in sched}
    def h_kvadd(): a("s_waitcnt vmcnt(0)\ns_mov_b64 exec, 1\nds_add_u32 v92, v93\ns_mov_b64 exec, -1")
    def h_kvrd(): a("ds_read_b32 v93, v92")
    def h_kvchk():
        a(f"""
        s_mov_b32 s92, {SPIN}
        L_kv:
        v_readfirstlane_b32 s84, v93
        s_sub_u32 s92, s92, 1
        s_cmp_eq_u32 s92, 0
        s_cbranch_scc1 L_kv_ok
        s_cmp_eq_u32 s84, 8
        s_cbranch_scc1 L_kv_ok
        ds_read_b32 v93, v92
        s_waitcnt lgkmcnt(0)
        s_branch L_kv
        L_kv_ok:
        """)
    if OPT.get("late3"): hooks.update({15: h_kvadd, 32: h_kvrd, 33: h_kvchk})
    elif mode == "slow" and OPT.get("bar3"): hooks.update({14: early_stores, int(OPT["bar3"]): h_bar})
    elif mode == "slow": hooks.update({14: early_stores, 19: h_cnt, 20: h_s3sig})
    else: hooks.update({TB2: h_bar})
    if OPT.get("wbl2"):
        def h_wb(): a(f"s_or_b32 s84, {SJ}, {SW}\ns_cmp_lg_u32 s84, 0\ns_cbranch_scc1 L_wb_skip\nbuffer_wbl2 sc1\nL_wb_skip:")
        hooks[24] = h_wb
    hooks.update({34: h_s3ld, 38: h_s3chk, 58: h_side})
    for r in range(4):
        hooks[42 + 5 * r] = h_wrd(r)
        if r < 3: hooks[43 + 5 * r] = h_wld(r + 1)
    prios = {0: 1, 1: 0, 2: 3, 5: 2, 8: 1, 9: 0, 10: 3, 22: 2, 44: 1, 58: 0}
    if "prios" in OPT: prios = {int(x.split(":")[0]): int(x.split(":")[1]) for x in OPT["prios"].split(",")}
    att_main(a, hooks, prios)
    lstamp(a, 29)
    att_finish2(a, "at")
    lstamp(a, 5)
    a(f"""
    s_lshl_b32 s93, s88, 15
    s_lshl_b32 s86, {SW}, 12
    s_add_u32 s93, s93, s86
    s_add_u32 s93, s93, {OF}
    """)
    OM = OPT.get("omod", SC).replace("_", " ")
    odma = lambda: [a(f"buffer_load_dwordx4 v1, {R_WS}, s93 offen offset:{1024*i} {OM} lds") for i in range(4)]
    if OPT.get("oack"):
        a("s_waitcnt vmcnt(1)")
        out_side_math(a)
        gemm = out_gemm(a)
        a(f"s_mov_b32 s92, {SPIN}\ns_waitcnt vmcnt(0)")
        if OPT.get("obar"): a("s_barrier")
        if OPT.get("opre"): a(f"s_sleep {OPT['opre']}")
        a("s_branch L_o_go\nL_o_again:")
    else:
        odma()
        a("s_waitcnt vmcnt(5)")
        out_side_math(a)
        gemm = out_gemm(a)
        a(f"s_mov_b32 s92, {SPIN}\ns_branch L_o_chk\nL_o_again:")
    if OPT.get("osleep"): a(f"s_sleep {OPT['osleep']}")
    a("L_o_go:")
    odma()
    a("L_o_chk:\ns_waitcnt vmcnt(0)")
    for i in range(4): a(f"ds_read_b128 {vr(16+4*i,4)}, v92 offset:{1024*i}")
    a("s_sub_u32 s92, s92, 1\ns_waitcnt lgkmcnt(2)")
    a("v_max3_u32 v5, v16, v17, v18\nv_max3_u32 v6, v19, v20, v21\nv_max3_u32 v5, v22, v23, v5\ns_waitcnt lgkmcnt(0)")
    a("v_max3_u32 v6, v24, v25, v6\nv_max3_u32 v5, v26, v27, v5\nv_max3_u32 v6, v28, v29, v6\nv_max3_u32 v5, v30, v31, v5\nv_max_u32 v5, v5, v6")
    a("""
    v_cmp_eq_u32 vcc, -1, v5
    s_cmp_eq_u32 s92, 0
    s_cbranch_scc1 L_o_ok
    s_cbranch_vccnz L_o_again
    L_o_ok:
    """)
    lstamp(a, 30)
    a("s_barrier")
    gemm()
    lstamp(a, 7)
    if G.STAMPS:
        lflush(a, range(8))
        for s in la:
            if s: G.STAMP_WAVES[s] = list(range(4, 8))
        for s in lg:
            if s: G.STAMP_WAVES[s] = list(range(4))
    if "amp" in OPT:
        w = OPT["amp"].split(",")[2]
        a(f"""
        s_cmp_lg_u32 s2, {OPT.get("ampwg", 0)}
        s_cbranch_scc1 L_end
        s_cmp_lg_u32 {SW}, {w}
        s_cbranch_scc1 L_end
        s_sub_u32 s98, s98, s96
        s_lshl_b32 s98, s98, 2
        s_min_u32 s98, s98, 40000
        s_memrealtime s[96:97]
        s_waitcnt lgkmcnt(0)
        L_amp:
        s_memrealtime s[100:101]
        s_waitcnt lgkmcnt(0)
        s_sub_u32 s100, s100, s96
        s_cmp_lt_u32 s100, s98
        s_cbranch_scc1 L_amp
        """)
    a("L_end:\ns_endpgm")
    att_slow(a, "at")
    a("L_codeend:\ns_endpgm")
    if G.STAMPS: stamp_reduce_kernel(a)
    a.raw('.section .rodata,"a"')
    if G.STAMPS: a.raw(descriptor("stamp_kernel", 32))
    a.raw(descriptor(k, 256))
    return a.text()

if __name__ == "__main__":
    out = sys.argv[1]
    for o in sys.argv[2:]:
        kk, _, v = o.partition("="); OPT[kk] = v or True
    G.STAMPS = bool(OPT.get("stamp"))
    OPT.setdefault("ones", "few"); OPT.setdefault("nowpf", True); OPT.setdefault("qmod", "plain"); OPT.setdefault("touch", "a"); OPT.setdefault("sched", "slow"); OPT.setdefault("wbl2", True); OPT.setdefault("rot7", "1"); OPT.setdefault("nocpf", "0"); OPT.setdefault("oack", True); OPT.setdefault("s3pre", True); OPT.setdefault("tmod", "sc1"); OPT.setdefault("omod", "sc1"); OPT.setdefault("ostm", "sc1"); OPT.setdefault("obar", True); OPT.setdefault("osleep", "2")
    txt = build_fused()
    open(out, "w").write(txt)
    print("wrote", out, len(txt), "bytes")
```

```python
import sys
from asmlib import Asm

OPT = {}
NAME = "gated_mix__softmax_full_mha__ssm_conv_s4d__prompt"
QF, KV, XT, BT, OF, WOF, GW, RD = 0x000000, 0x200000, 0x600000, 0x800000, 0xA00000, 0xC00000, 0xC80000, 0x1000000
WS_BYTES = 0x2000000
LDS_BYTES = 163840
XR, WR = 0, 24576
KX = 98304
KXS = 4160
UB, US, UD = 110464, 4640, 9280
TB, TBS = 129024, 8704
RB, RE, RDS = 129024, 4160, 16640
OS = 131072
LOG2E = 0x3FB8AA3B
INV2PI = 0x3E22F983
QSCALE = 0x3EB8AA3B

S_X, S_W, S_WO, S_LOGA, S_AIM, S_CR, S_CI = "s[4:5]", "s[6:7]", "s[8:9]", "s[12:13]", "s[14:15]", "s[16:17]", "s[18:19]"
S_LDT, S_DSK, S_GWT, S_OUT, S_DBG, S_WS = "s[20:21]", "s[22:23]", "s[24:25]", "s[26:27]", "s[28:29]", "s[30:31]"
R_X, R_W, R_WS = "s[32:35]", "s[36:39]", "s[40:43]"
SX, SJ, SW = "s48", "s49", "s50"

def vr(b, n=1):
    return f"v{b}" if n == 1 else f"v[{b}:{b+n-1}]"

class VM:
    def __init__(self): self.q = []
    def add(self, tag, n=1): self.q += [tag] * n
    def wait(self, a, tag):
        idx = max(i for i, t in enumerate(self.q) if t == tag)
        n = len(self.q) - 1 - idx
        a(f"s_waitcnt vmcnt({n})"); self.q = self.q[idx + 1:]

def prologue(a, end, checked=False):
    if not checked: a(f"s_cmp_ge_u32 s2, 256\ns_cbranch_scc1 {end}\ns_load_dwordx16 s[4:19], s[0:1], 0\ns_load_dwordx8 s[20:27], s[0:1], 64\ns_load_dwordx4 s[28:31], s[0:1], 96")
    a(f"""
    v_lshrrev_b32 v1, 6, v0
    v_and_b32 v0, 63, v0
    v_readfirstlane_b32 {SW}, v1
    s_and_b32 {SX}, s2, 7
    s_lshr_b32 {SJ}, s2, 3
    s_mov_b32 s34, 0x200000
    s_mov_b32 s35, 0x20000
    s_mov_b32 s38, 0x180000
    s_mov_b32 s39, 0x20000
    s_mov_b32 s42, {WS_BYTES if not OPT.get('wsoff') else 0x1000000}
    s_mov_b32 s43, 0x20000
    s_waitcnt lgkmcnt(0)
    s_mov_b32 s32, s4
    s_mov_b32 s33, s5
    s_mov_b32 s36, s6
    s_mov_b32 s37, s7
    s_add_u32 s40, s30, {int(OPT.get("wsoff", "0"), 0)}
    s_addc_u32 s41, s31, 0
    """)

def p1_gemm(a, st_mod=""):
    ACC = (16, 32, 48); SET = (64, 80)
    a(f"""
    s_lshl_b32 s52, {SJ}, 6
    s_lshl_b32 s53, {SX}, 3
    s_add_u32 s52, s52, s53
    s_lshl_b32 s53, {SW}, 1
    s_add_u32 s52, s52, s53
    v_lshlrev_b32 v1, 4, v0
    s_lshl_b32 s53, s52, 10
    v_add_u32 v2, s53, v1
    global_load_dwordx4 v[96:99], v2, {S_X}
    global_load_dwordx4 v[100:103], v2, {S_X} offset:1024
    global_load_dwordx4 v[104:107], v1, {S_GWT}
    s_lshl_b32 s54, {SX}, 5
    s_add_u32 s54, s54, {SJ}
    s_lshr_b32 s55, s54, 3
    s_and_b32 s56, s54, 7
    s_lshl_b32 s56, s56, 1
    s_and_b32 s57, {SW}, 1
    s_add_u32 s56, s56, s57
    s_lshl_b32 s57, s56, 15
    s_lshl_b32 s58, s55, 5
    s_add_u32 s57, s57, s58
    v_lshrrev_b32 v3, 5, v0
    v_lshlrev_b32 v3, 14, v3
    v_bfe_u32 v4, v0, 4, 1
    v_lshl_add_u32 v3, v4, 12, v3
    v_and_b32 v4, 15, v0
    v_lshl_add_u32 v3, v4, 1, v3
    v_add_u32 v3, s57, v3
    v_add_u32 v4, 0x2000, v3
    """)
    for j in range(8):
        a(f"global_load_short_d16{'_hi' if j & 1 else ''} v{108+j}, v{3 + (j >> 2)}, {S_WO} offset:{1024*(j&3)}")
    a(f"""
    s_lshl_b32 s55, s55, 4
    s_add_u32 s55, s55, s56
    s_lshl_b32 s55, s55, 10
    s_add_u32 s55, s55, {WOF}
    s_and_b32 s58, {SW}, 1
    s_lshr_b32 s59, {SW}, 1
    v_and_b32 v1, 31, v0
    s_lshl_b32 s60, s58, 12
    v_lshlrev_b32 v2, 7, v1
    v_add_u32 v2, s60, v2
    v_bfe_u32 v1, v0, 1, 3
    v_lshrrev_b32 v3, 5, v0
    v_xor_b32 v1, v1, v3
    """)
    for ks in range(4):
        a(f"v_xor_b32 v3, {2*ks}, v1\nv_lshl_add_u32 v{4+ks}, v3, 4, v2")
    a(f"""
    v_lshrrev_b32 v1, 5, v0
    v_lshlrev_b32 v1, 10, v1
    v_bfe_u32 v2, v0, 2, 2
    v_lshl_add_u32 v1, v2, 7, v1
    v_bfe_u32 v2, v0, 3, 1
    v_xor_b32 v2, s59, v2
    v_lshl_add_u32 v1, v2, 6, v1
    v_bfe_u32 v2, v0, 4, 1
    v_lshl_add_u32 v1, v2, 5, v1
    v_and_b32 v2, 3, v0
    v_lshl_add_u32 v1, v2, 3, v1
    v_add_u32 v8, {WR}, v1
    v_add_u32 v9, {WR + 49152}, v1
    """)
    def reads(t, ks, s):
        slot = t % 3
        a(f"ds_read_b128 {vr(s,4)}, v{4+ks} offset:{XR + slot*8192}")
        for ty in range(3):
            for ri in range(2):
                off = ty * 8192 + ks * 2048 + ri * 512
                base, o = (9, off) if slot == 2 else (8, off + slot * 24576)
                a(f"ds_read_b64_tr_b16 {vr(s+4+4*ty+2*ri,2)}, v{base} offset:{o}")
    def mm(s, first):
        c = lambda i: "0" if first else vr(ACC[i], 16)
        a(f"v_mfma_f32_32x32x16_bf16 {vr(ACC[0],16)}, {vr(s+4,4)}, {vr(s,4)}, {c(0)}")
        a(f"v_mfma_f32_32x32x16_bf16 {vr(ACC[1],16)}, {vr(s+8,4)}, {vr(s,4)}, {c(1)}")
        a(f"v_mfma_f32_32x32x16_bf16 {vr(ACC[2],16)}, {vr(s,4)}, {vr(s+12,4)}, {c(2)}")
    for t in range(8):
        a("s_barrier"); lstamp(a, 8 + t)
        reads(t, 0, SET[0])
        if t: mm(SET[1], False)
        for ks in range(3):
            reads(t, ks + 1, SET[(ks + 1) & 1])
            a("s_waitcnt lgkmcnt(7)")
            mm(SET[ks & 1], t == 0 and ks == 0)
        a("s_waitcnt lgkmcnt(0)")
    mm(SET[1], False)
    a(f"""
    s_lshl_b32 s60, {SX}, 2
    s_lshl_b32 s61, s59, 1
    s_add_u32 s60, s60, s61
    s_lshl_b32 s60, s60, 6
    s_lshl_b32 s61, {SJ}, 1
    s_add_u32 s61, s61, s58
    s_add_u32 s60, s60, s61
    s_lshl_b32 s61, s60, 10
    s_add_u32 s61, s61, {QF}
    s_add_u32 s62, s61, 0x10000
    s_lshl_b32 s63, s60, 11
    s_add_u32 s63, s63, {KV}
    s_add_u32 s64, s63, 0x20000
    s_mov_b32 s65, {QSCALE}
    v_lshlrev_b32 v1, 4, v0
    v_and_b32 v2, 0x33, v0
    v_bfe_u32 v3, v0, 2, 1
    v_lshl_or_b32 v2, v3, 3, v2
    v_bfe_u32 v3, v0, 3, 1
    v_lshl_or_b32 v2, v3, 2, v2
    v_lshlrev_b32 v2, 4, v2
    v_and_b32 v3, 15, v0
    v_lshlrev_b32 v3, 4, v3
    v_lshrrev_b32 v4, 5, v0
    v_lshl_add_u32 v3, v4, 8, v3
    v_bfe_u32 v4, v0, 4, 1
    v_lshl_add_u32 v3, v4, 17, v3
    """)
    for r in range(16): a(f"v_mul_f32 v{16+r}, s65, v{16+r}")
    for r in range(8): a(f"v_cvt_pk_bf16_f32 v{64+r}, v{16+2*r}, v{17+2*r}")
    a(f"buffer_store_dwordx4 v[64:67], v1, {R_WS}, s61 offen {st_mod}")
    a(f"buffer_store_dwordx4 v[68:71], v1, {R_WS}, s62 offen {st_mod}")
    for r in range(8): a(f"v_cvt_pk_bf16_f32 v{72+r}, v{32+2*r}, v{33+2*r}")
    a(f"buffer_store_dwordx4 v[72:75], v2, {R_WS}, s63 offen {st_mod}")
    a(f"buffer_store_dwordx4 v[76:79], v2, {R_WS}, s64 offen {st_mod}")
    for r in range(8): a(f"v_cvt_pk_bf16_f32 v{80+r}, v{48+2*r}, v{49+2*r}")
    a(f"buffer_store_dwordx4 v[80:83], v3, {R_WS}, s63 offen offset:1024 {st_mod}")
    a(f"buffer_store_dwordx4 v[84:87], v3, {R_WS}, s63 offen offset:1536 {st_mod}")

def p1_side(a, st_mod=""):
    a("s_waitcnt vmcnt(6)")
    for j in range(4): a(f"v_or_b32 v{116+j}, v{108+2*j}, v{109+2*j}")
    a(f"v_lshlrev_b32 v1, 4, v0\nbuffer_store_dwordx4 v[116:119], v1, {R_WS}, s55 offen {st_mod}")
    a("s_mov_b32 s66, 0xffff0000")
    for k in range(4):
        a(f"v_lshlrev_b32 v{16+2*k}, 16, v{104+k}\nv_and_b32 v{17+2*k}, s66, v{104+k}")
    for r in range(2):
        for k in range(4):
            x = 96 + 4 * r + k
            a(f"""
            v_lshlrev_b32 v26, 16, v{x}
            v_and_b32 v27, s66, v{x}
            v_mul_f32 v26, v26, v{16+2*k}
            v_mul_f32 v27, v27, v{17+2*k}
            v_cvt_pk_bf16_f32 v26, v26, v27
            v_and_b32 v27, s66, v26
            v_lshlrev_b32 v26, 16, v26
            """)
            if k == 0: a(f"v_add_f32 v{24+r}, v26, v27")
            else: a(f"v_add_f32 v{24+r}, v{24+r}, v26\nv_add_f32 v{24+r}, v{24+r}, v27")
    for d in ("row_shr:1 row_mask:0xf bank_mask:0xf bound_ctrl:0", "row_shr:2 row_mask:0xf bank_mask:0xf bound_ctrl:0",
              "row_shr:4 row_mask:0xf bank_mask:0xf bound_ctrl:0", "row_shr:8 row_mask:0xf bank_mask:0xf bound_ctrl:0",
              "row_bcast:15 row_mask:0xa bank_mask:0xf", "row_bcast:31 row_mask:0xc bank_mask:0xf"):
        for r in range(2): a(f"v_add_f32_dpp v{24+r}, v{24+r}, v{24+r} {d}")
    a(f"""
    v_cvt_pk_bf16_f32 v26, v24, v25
    s_mov_b32 s67, {LOG2E}
    v_lshlrev_b32 v24, 16, v26
    v_and_b32 v25, s66, v26
    v_mul_f32 v24, s67, v24
    v_mul_f32 v25, s67, v25
    v_exp_f32 v24, -v24
    v_exp_f32 v25, -v25
    v_add_f32 v24, 1.0, v24
    v_add_f32 v25, 1.0, v25
    v_rcp_f32 v24, v24
    v_rcp_f32 v25, v25
    s_lshl_b32 s52, s52, 2
    s_add_u32 s52, s52, {GW}
    v_cvt_pk_bf16_f32 v26, v24, v25
    v_mov_b32 v1, 0
    v_lshlrev_b32 v24, 16, v26
    v_and_b32 v25, s66, v26
    s_mov_b32 exec_lo, 0
    s_mov_b32 exec_hi, 0x80000000
    buffer_store_dwordx2 v[24:25], v1, {R_WS}, s52 offen {st_mod}
    s_mov_b64 exec, -1
    """)

def cmul(a, d, x, w, t):
    a(f"v_pk_mul_f32 {vr(t,2)}, {vr(x,2)}, {vr(w,2)} op_sel:[0,0] op_sel_hi:[1,0]")
    a(f"v_pk_fma_f32 {vr(d,2)}, {vr(x,2)}, {vr(w,2)}, {vr(t,2)} op_sel:[1,1,0] op_sel_hi:[0,1,1] neg_lo:[1,0,0]")

def p1_aux(a, st_mod=""):
    vm = VM()
    a(f"""
    s_and_b32 s51, {SW}, 3
    s_lshr_b32 s52, s51, 1
    s_and_b32 s53, s51, 1
    s_lshl_b32 s54, {SX}, 6
    s_lshl_b32 s55, {SJ}, 1
    s_add_u32 s54, s54, s55
    s_add_u32 s54, s54, s52
    s_lshl_b32 s55, s54, 8
    s_lshl_b32 s56, s53, 7
    s_add_u32 s55, s55, s56
    v_lshlrev_b32 v1, 1, v0
    v_add_u32 v1, s55, v1
    s_lshl_b32 s56, s54, 1
    v_mov_b32 v2, s56
    global_load_short_d16_hi v10, v1, {S_LOGA}
    global_load_short_d16_hi v11, v1, {S_AIM}
    global_load_short_d16_hi v12, v1, {S_CR}
    global_load_short_d16_hi v13, v1, {S_CI}
    global_load_short_d16_hi v14, v2, {S_LDT}
    global_load_short_d16_hi v15, v2, {S_DSK}
    v_lshrrev_b32 v1, 3, v0
    v_lshrrev_b32 v2, 4, v0
    s_lshl_b32 s56, s53, 2
    v_add_u32 v3, s56, v2
    v_and_b32 v5, 7, v0
    v_xor_b32 v3, v3, v5
    v_lshlrev_b32 v3, 4, v3
    v_lshl_add_u32 v4, v1, 10, v3
    v_and_b32 v2, 1, v2
    v_lshlrev_b32 v2, 2, v2
    v_xor_b32 v2, v2, v5
    v_lshlrev_b32 v2, 4, v2
    v_mov_b32 v3, 0xc00
    v_mad_u32_u24 v5, v1, v3, v2
    s_lshl_b32 s57, {SJ}, 16
    s_lshl_b32 s58, s51, 13
    s_add_u32 s57, s57, s58
    s_mul_i32 s58, s51, {16*3072}
    s_lshl_b32 s59, {SX}, 7
    s_add_u32 s58, s58, s59
    s_lshl_b32 s60, s51, 10
    s_lshl_b32 s61, s51, 11
    """)
    vm.add("par", 6)
    def dma(t):
        slot = t % 3
        a(f"""
        s_add_u32 s62, {SX}, {t}
        s_and_b32 s62, s62, 7
        s_lshl_b32 s63, s62, 7
        s_add_u32 s63, s63, s57
        s_mul_i32 s62, s62, {64*3072}
        s_add_u32 s62, s62, s58
        """)
        for i in range(2):
            a(f"s_add_u32 m0, s60, {XR + slot*8192 + i*4096}")
            if i: a("s_add_u32 s63, s63, 0x8000")
            a(f"buffer_load_dwordx4 v4, {R_X}, s63 offen lds")
        for ty in range(3):
            for i in range(2):
                a(f"s_add_u32 m0, s61, {WR + slot*24576 + ty*8192 + i*1024}")
                a(f"s_add_u32 s64, s62, {ty*1024 + i*8*3072}")
                a(f"buffer_load_dwordx4 v5, {R_W}, s64 offen lds")
        vm.add(f"s{t}", 8)
    for t in range(3): dma(t)
    a(f"""
    s_mul_i32 s65, s51, {TBS}
    s_add_u32 s65, s65, {TB}
    v_lshlrev_b32 v6, 2, v0
    v_add_u32 v6, s65, v6
    v_and_b32 v1, 31, v0
    v_lshrrev_b32 v2, 5, v0
    v_lshlrev_b32 v2, 4, v2
    v_add_u32 v2, s65, v2
    v_mov_b32 v3, 272
    v_mad_u32_u24 v7, v1, v3, v2
    v_bfe_u32 v8, v0, 3, 1
    v_and_b32 v9, 3, v0
    v_lshl_add_u32 v8, v8, 2, v9
    v_cvt_f32_u32 v8, v8
    v_bfe_u32 v9, v0, 4, 1
    v_bfe_u32 v16, v0, 2, 1
    v_lshl_add_u32 v9, v9, 1, v16
    v_min_u32 v16, 2, v9
    v_sub_u32 v16, 0, v16
    v_ldexp_f32 v16, v8, v16
    v_rndne_f32 v16, v16
    v_cvt_u32_f32 v16, v16
    v_lshlrev_b32 v17, 3, v9
    s_mov_b32 s66, 0x100d0800
    v_lshrrev_b32 v17, v17, s66
    v_and_b32 v17, 0xff, v17
    v_add_u32 v16, v16, v17
    v_mul_f32 v8, 0.125, v8
    v_rndne_f32 v8, v8
    v_cvt_u32_f32 v8, v8
    v_lshl_add_u32 v8, v9, 1, v8
    v_add_u32 v8, 19, v8
    s_cmp_eq_u32 s53, 0
    s_cselect_b64 vcc, -1, 0
    s_cselect_b32 s70, 0, 0xaaaaaaaa
    s_mov_b32 s71, s70
    v_cndmask_b32 v9, v8, v16, vcc
    v_cndmask_b32 v8, v16, v8, vcc
    v_mad_u32_u24 v9, v9, v3, v2
    v_mad_u32_u24 v8, v8, v3, v2
    v_mov_b32 v16, 0
    v_mov_b32 v17, 0
    v_mov_b32 v18, 0
    v_mov_b32 v19, 0
    v_min_u32 v1, 32, v0
    s_mul_i32 s66, s51, {US}
    s_add_u32 s66, s66, {UB}
    v_lshl_add_u32 v1, v1, 4, s66
    ds_write_b128 v1, v[16:19]
    s_mul_i32 s67, s52, {KXS}
    s_add_u32 s67, s67, {KX}
    v_mov_b32 v1, s67
    ds_write_b128 v1, v[16:19]
    """)
    vm.wait(a, "par")
    a(f"""
    s_mov_b32 s66, {LOG2E}
    s_mov_b32 s68, 0xffff0000
    s_mov_b32 s69, {INV2PI}
    v_mul_f32 v14, s66, v14
    v_mul_f32 v10, s66, v10
    v_exp_f32 v14, v14
    v_exp_f32 v10, v10
    s_mov_b32 s72, 0x41000000
    s_mov_b32 s73, 0x43800000
    v_cvt_pk_bf16_f32 v1, v14, v10
    v_lshlrev_b32 v14, 16, v1
    v_and_b32 v10, s68, v1
    v_mul_f32 v10, v10, v14
    v_mul_f32 v11, v11, v14
    v_mul_f32 v26, v12, v14
    v_mul_f32 v27, v13, v14
    v_mul_f32 v10, s66, v10
    v_mul_f32 v11, s69, v11
    v_add_f32 v26, v26, v26
    v_add_f32 v27, v27, v27
    """)
    for d, sc in ((20, None), (22, "s72"), (24, "s73")):
        if sc: a(f"v_mul_f32 v1, {sc}, v10\nv_mul_f32 v2, {sc}, v11\nv_exp_f32 v1, -v1\nv_fract_f32 v2, v2")
        else: a("v_exp_f32 v1, -v10\nv_fract_f32 v2, v11")
        a(f"v_cos_f32 v{d}, v2\nv_sin_f32 v{d+1}, v2\nv_mul_f32 v{d}, v1, v{d}\nv_mul_f32 v{d+1}, v1, v{d+1}")
    def lrow(b):
        cur = 28 + 2 * (b & 1)
        if b == 0:
            a("v_mov_b32 v3, 0x3f80\nds_write_b32 v6, v3")
            return
        if b == 1: a(f"v_mov_b32 v{cur}, v22\nv_mov_b32 v{cur+1}, v23")
        else: cmul(a, cur, 28 + 2 * ((b - 1) & 1), 22, 32)
        a(f"v_cvt_pk_bf16_f32 v{34 + (b & 1)}, v{cur}, v{cur+1}\nds_write_b32 v6, v{34 + (b & 1)} offset:{272*b}")
    for b in range(0, 6): lrow(b)
    lstamp(a, 18); vm.wait(a, "s0"); a("s_barrier")
    a(f"""
    v_lshrrev_b32 v1, 4, v0
    v_bfe_u32 v2, v0, 2, 2
    v_lshl_add_u32 v2, v1, 3, v2
    v_bfe_u32 v3, v0, 1, 1
    s_lshl_b32 s66, s51, 1
    v_add_u32 v3, s66, v3
    v_bfe_u32 v36, v2, 1, 3
    v_xor_b32 v36, v36, v3
    v_and_b32 v37, 1, v0
    v_lshlrev_b32 v37, 3, v37
    v_lshl_add_u32 v37, v2, 7, v37
    v_xor_b32 v38, 2, v36
    v_lshl_add_u32 v36, v36, 4, v37
    v_lshl_add_u32 v37, v38, 4, v37
    ds_read_b64_tr_b16 v[40:41], v36 offset:{XR}
    ds_read_b64_tr_b16 v[42:43], v37 offset:{XR + 512}
    ds_read_b64_tr_b16 v[44:45], v36 offset:{XR + 4096}
    ds_read_b64_tr_b16 v[46:47], v37 offset:{XR + 4096 + 512}
    v_bfe_u32 v2, v0, 1, 3
    v_lshlrev_b32 v2, 13, v2
    v_and_b32 v3, 1, v0
    v_lshl_add_u32 v2, v3, 6, v2
    v_lshl_add_u32 v2, v1, 4, v2
    s_lshl_b32 s66, {SX}, 18
    s_lshl_b32 s69, s51, 16
    s_add_u32 s66, s66, s69
    s_lshl_b32 s69, {SJ}, 8
    s_add_u32 s66, s66, s69
    s_add_u32 s66, s66, {XT}
    s_waitcnt lgkmcnt(0)
    buffer_store_dwordx4 v[40:43], v2, {R_WS}, s66 offen {st_mod}
    buffer_store_dwordx4 v[44:47], v2, {R_WS}, s66 offen offset:128 {st_mod}
    """)
    vm.add("xt", 2)
    for b in range(6, 20): lrow(b)
    lstamp(a, 19); vm.wait(a, "s1"); a("s_barrier")
    dma(3)
    for b in range(20, 32): lrow(b)
    LF, HK, HS, AK, AS = 64, 96, 128, 160, 176
    a("s_waitcnt lgkmcnt(0)")
    for ks in range(8): a(f"ds_read_b128 {vr(LF+4*ks,4)}, v7 offset:{32*ks}")
    lstamp(a, 20); vm.wait(a, "s2"); a("s_waitcnt lgkmcnt(0)\ns_barrier")
    dma(4)
    def hw(reg, row):
        t = 34 + (row & 1)
        a(f"v_cvt_pk_bf16_f32 v{t}, v{reg}, -v{reg+1}\nds_write_b32 v6, v{t} offset:{272*row}")
    H = lambda p: 40 + 2 * p
    a(f"v_mov_b32 v{H(0)}, v26\nv_mov_b32 v{H(0)+1}, v27")
    hw(H(0), 0)
    for p in range(1, 9):
        cmul(a, H(p), H(p - 1), 20, 32)
        if p < 8: hw(H(p), p)
    row = 8
    for grp in ((0, 2, 4, 6, 8), (0, 4, 8)):
        for p in grp:
            cmul(a, H(p), H(p), 24, 32); hw(H(p), row); row += 1
    lstamp(a, 21); vm.wait(a, "s3"); a("s_barrier")
    dma(5)
    for grp in ((0, 4, 8), (0, 8), (0, 8), (0, 8), (0, 8)):
        for p in grp:
            cmul(a, H(p), H(p), 24, 32); hw(H(p), row); row += 1
    assert row == 27
    a("s_waitcnt lgkmcnt(0)")
    for ks in range(8): a(f"ds_read_b128 {vr(HS+4*ks,4)}, v8 offset:{32*ks}")
    for ks in range(7): a(f"ds_read_b128 {vr(HK+4*ks,4)}, v9 offset:{32*ks}")
    a("s_waitcnt lgkmcnt(7)")
    a(f"ds_read_b128 {vr(HK+28,4)}, v9 offset:{32*7}")
    for ks in range(8):
        a(f"v_mfma_f32_32x32x16_bf16 {vr(AS,16)}, {vr(HS+4*ks,4)}, {vr(LF+4*ks,4)}, {'0' if ks == 0 else vr(AS,16)}")
    a("s_waitcnt lgkmcnt(0)")
    for ks in range(8):
        a(f"v_mfma_f32_32x32x16_bf16 {vr(AK,16)}, {vr(HK+4*ks,4)}, {vr(LF+4*ks,4)}, {'0' if ks == 0 else vr(AK,16)}")
    a(f"v_lshlrev_b32 v1, 4, v0\nv_add_u32 v2, s65, v1\ns_xor_b32 s66, s51, 1\ns_mul_i32 s66, s66, {TBS}\ns_add_u32 s66, s66, {TB}\nv_add_u32 v3, s66, v1")
    for i in range(4): a(f"ds_write_b128 v2, {vr(AS+4*i,4)} offset:{1024*i}")
    lstamp(a, 22); vm.wait(a, "s4"); a("s_waitcnt lgkmcnt(0)\ns_barrier")
    for i in range(4): a(f"ds_read_b128 {vr(AS+4*i,4)}, v3 offset:{1024*i}")
    dma(6)
    a(f"""
    s_lshl_b32 s66, s53, 11
    s_add_u32 s66, s66, s67
    v_lshrrev_b32 v2, 5, v0
    v_and_b32 v3, 31, v0
    v_lshlrev_b32 v3, 4, v3
    v_lshl_add_u32 v2, v2, 9, v3
    v_add_u32 v2, s66, v2
    s_waitcnt lgkmcnt(0)
    """)
    for i in range(16): a(f"v_add_f32 v{AK+i}, v{AK+i}, v{AS+i}")
    for rg in range(2): a(f"v_cndmask_b32 v{AK+8*rg+4}, v{AK+8*rg+4}, v{AK+8*rg+5}, s[70:71]")
    for i in range(8): a(f"v_cvt_pk_bf16_f32 v{40+i}, v{AK+2*i}, v{AK+2*i+1}")
    for rg in range(2): a(f"ds_write_b128 v2, {vr(40+4*rg,4)} offset:{16 + 1024*rg}")
    lstamp(a, 23); vm.wait(a, "s5"); a("s_waitcnt lgkmcnt(0)\ns_barrier")
    a(f"""
    v_add_u32 v2, s66, v1
    ds_read_b64 v[40:41], v2 offset:8
    ds_read_b128 v[42:45], v2 offset:16
    ds_read_b64 v[46:47], v2 offset:{1024+8}
    ds_read_b128 v[48:51], v2 offset:{1024+16}
    """)
    dma(7)
    a(f"""
    s_mul_i32 s66, s52, {RDS}
    s_add_u32 s66, s66, {RB}
    v_bfe_u32 v2, v0, 2, 2
    v_mov_b32 v3, {RE}
    v_mul_u32_u24 v2, v2, v3
    v_and_b32 v3, 3, v0
    v_min_u32 v3, 2, v3
    v_lshl_add_u32 v2, v3, 4, v2
    v_add_u32 v2, s66, v2
    ds_write_b128 v2, v[16:19] offset:4096
    s_lshl_b32 s69, s53, 11
    s_sub_u32 s66, s66, s69
    s_add_u32 s66, s66, {255*16 - 1024}
    v_sub_u32 v2, s66, v1
    s_mov_b32 s69, 0xffff
    s_waitcnt lgkmcnt(1)
    """)
    def expand(q):
        w = lambda i: 40 + 6 * q + 2 + i
        for e in range(4):
            o = 64 + 4 * e
            for i in range(4):
                hi = 3 - i - (0 if e >= 2 else 1)
                if e & 1: a(f"v_alignbit_b32 v{o+i}, v{w(hi)}, v{w(hi)}, 16")
                else: a(f"v_bfi_b32 v{o+i}, s69, v{w(hi)}, v{w(hi-1)}")
            a(f"ds_write_b128 v2, {vr(o,4)} offset:{e*RE + 1024*(1-q)}")
    expand(0)
    lstamp(a, 24); vm.wait(a, "s6"); a("s_barrier")
    expand(1)
    lstamp(a, 25); vm.wait(a, "s7"); a("s_barrier")
    return vm

def u_load(a, ld_mod=""):
    a(f"""
    s_lshl_b32 s66, {SX}, 18
    s_lshl_b32 s69, {SJ}, 13
    s_add_u32 s66, s66, s69
    s_lshl_b32 s69, s51, 11
    s_add_u32 s66, s66, s69
    s_add_u32 s66, s66, {XT}
    v_lshlrev_b32 v1, 4, v0
    buffer_load_dwordx4 v[40:43], v1, {R_WS}, s66 offen {ld_mod}
    buffer_load_dwordx4 v[44:47], v1, {R_WS}, s66 offen offset:1024 {ld_mod}
    v_lshrrev_b32 v2, 3, v0
    v_lshlrev_b32 v2, 6, v2
    v_and_b32 v3, 3, v0
    v_lshl_add_u32 v2, v3, 4, v2
    v_bfe_u32 v3, v0, 2, 1
    v_mul_u32_u24 v3, {UD}, v3
    s_lshl_b32 s69, s51, 10
    s_add_u32 s69, s69, {UB + 512}
    v_add3_u32 v2, v2, v3, s69
    """)

def u_store(a):
    for q in range(2):
        a(f"ds_write_b128 v2, {vr(40+4*q,4)} offset:{512*q}")
        a(f"ds_write_b64 v2, {vr(40+4*q,2)} offset:{512*q + US + 8}")
        a(f"ds_write_b64 v2, {vr(42+4*q,2)} offset:{512*q + US + 16}")

def conv(a, tag, st_mod=""):
    a(f"""
    s_mul_i32 s66, s52, {RDS}
    s_add_u32 s66, s66, {RB + 4128 - 64*7 - 512*7}
    v_and_b32 v1, 3, v0
    v_mul_u32_u24 v1, {RE}, v1
    v_lshrrev_b32 v2, 4, v0
    v_bfe_u32 v3, v0, 2, 2
    v_add_u32 v3, v3, v2
    v_lshlrev_b32 v3, 4, v3
    v_sub_u32 v1, v1, v3
    v_add_u32 v4, s66, v1
    s_mul_i32 s66, s52, {UD}
    s_add_u32 s69, s66, {UB + US + 512 + 48 - 64*7}
    v_bfe_u32 v1, v0, 1, 3
    v_lshlrev_b32 v1, 6, v1
    v_lshlrev_b32 v3, 4, v2
    v_sub_u32 v5, v1, v3
    v_add_u32 v1, v1, v3
    v_and_b32 v3, 1, v0
    v_lshl_add_u32 v7, v3, 3, v1
    v_mul_u32_u24 v3, {US}, v3
    v_sub_u32 v5, v5, v3
    v_add_u32 v5, s69, v5
    s_add_u32 s66, s66, {UB + 512}
    v_add_u32 v6, s66, v7
    s_lshl_b32 s66, s54, 12
    s_add_u32 s66, s66, {BT}
    s_cmp_eq_u32 s53, 0
    s_cbranch_scc0 L_{tag}_set1
    """)
    ACC = 16; FA = (64, 128); FB = (96, 160)
    for sidx, cs in enumerate(((0, 3, 4, 7), (1, 2, 5, 6))):
        if sidx: a.reset(); a(f"L_{tag}_set1:")
        n = max(cs) + 1
        def rd_list(rho):
            s = rho & 1; l = []
            for i in range(n):
                l.append(f"ds_read_b128 {vr(FA[s]+4*i,4)}, v4 offset:{512*(7-i) + 64*(7-rho)}")
                l.append(f"ds_read_b128 {vr(FB[s]+4*i,4)}, v5 offset:{512*i + 64*(7-rho)}")
            return l
        for r in rd_list(0)[:15]: a(r)
        pend = rd_list(0)[15:]
        for rho in range(8):
            s = rho & 1
            if pend:
                a("s_waitcnt lgkmcnt(8)")
                for r in pend: a(r)
            a("s_waitcnt lgkmcnt(0)")
            nxt = rd_list(rho + 1) if rho < 7 else []
            pend = nxt[15:]; nxt = nxt[:15]
            seen = set()
            mms = [(ci, sg, c - sg) for sg in range(n) for ci, c in enumerate(cs) if c >= sg]
            for k, (ci, sg, dl) in enumerate(mms):
                c0 = "0" if (rho == 0 and ci not in seen) else vr(ACC + 4 * ci, 4)
                seen.add(ci)
                a(f"v_mfma_f32_16x16x32_bf16 {vr(ACC+4*ci,4)}, {vr(FA[s]+4*sg,4)}, {vr(FB[s]+4*dl,4)}, {c0}")
                if k < len(nxt): a(nxt[k])
        for ci, c in enumerate(cs): a(f"ds_read_b64 {vr(40+2*ci,2)}, v6 offset:{512*c}")
        a("s_mov_b32 s68, 0xffff0000\ns_waitcnt lgkmcnt(0)")
        for ci, c in enumerate(cs):
            for k in range(2):
                a(f"""
                v_lshlrev_b32 v48, 16, v{40+2*ci+k}
                v_and_b32 v49, s68, v{40+2*ci+k}
                v_fmac_f32 v{ACC+4*ci+2*k}, v48, v15
                v_fmac_f32 v{ACC+4*ci+2*k+1}, v49, v15
                v_cvt_pk_bf16_f32 v{50+2*ci+k}, v{ACC+4*ci+2*k}, v{ACC+4*ci+2*k+1}
                """)
            a(f"buffer_store_dwordx2 {vr(50+2*ci,2)}, v7, {R_WS}, s66 offen offset:{512*c} {st_mod}")
        if sidx == 0: a(f"s_branch L_{tag}_done")
    a.reset(); a(f"L_{tag}_done:")

AQ, AKS, AV1, AV2, AS_, AO = 4, (8, 12), (16, 24), (20, 28), (32, 48), 64

def att_setup(a):
    a(f"""
    s_lshr_b32 s74, {SJ}, 3
    s_lshl_b32 s75, {SX}, 2
    s_add_u32 s74, s74, s75
    s_and_b32 s75, {SJ}, 7
    s_lshl_b32 s76, s75, 3
    s_add_u32 s76, s76, {SW}
    s_lshl_b32 s77, s74, 6
    s_add_u32 s77, s77, s76
    s_lshl_b32 s77, s77, 10
    s_add_u32 s77, s77, {QF}
    s_lshl_b32 s78, s74, 17
    s_lshl_b32 s79, {SW}, 10
    s_add_u32 s78, s78, s79
    s_add_u32 s78, s78, {KV}
    v_lshlrev_b32 v1, 4, v0
    """)

def att_dma(a, rounds, ld_mod=""):
    for r in rounds:
        a(f"s_add_u32 m0, s79, {8192*r}\ns_add_u32 s80, s78, {8192*r}\nbuffer_load_dwordx4 v1, {R_WS}, s80 offen {ld_mod} lds")

def att_regs(a):
    a(f"""
    v_lshrrev_b32 v2, 5, v0
    v_lshlrev_b32 v2, 8, v2
    v_and_b32 v3, 15, v0
    v_lshl_add_u32 v2, v3, 4, v2
    v_add_u32 v2, 1024, v2
    v_add_u32 v80, 0x10000, v1
    v_add_u32 v81, 0x10000, v2
    v_mov_b32 v3, 0xdddddddd
    s_mov_b32 s82, 0xffff
    s_mov_b32 s83, 0xffff
    """)
    if OPT.get("ones") == "few":
        a("v_and_b32 v8, 27, v0\nv_cmp_eq_u32 vcc, 16, v8\nv_mov_b32 v9, 0x3f803f80\nv_cndmask_b32 v16, 0, v9, vcc")
        for r in range(17, 32): a(f"v_mov_b32 v{r}, v16")
    else:
        for r in range(16, 32): a(f"v_mov_b32 v{r}, 0x3f803f80")
    for r in range(16): a(f"v_mov_b32 v{AO+r}, 0")

def att_main(a0, hooks, prios):
    def a(txt):
        if OPT.get("nopv") and txt.startswith("v_smfmac"): return
        if OPT.get("dense") and txt.startswith("v_smfmac"):
            import re
            m = re.match(r"v_smfmac\S+ (\S+), (\S+), v\[(\d+):\d+\], v3", txt); b = int(m.group(3)); p = 84 + (b & 8) // 2
            for k in range(4): a0(f"v_cvt_pk_bf16_f32 v{p+k}, v{b+2*k}, v{b+2*k+1}")
            a0(f"s_nop 1\nv_mfma_f32_32x32x16_bf16 {m.group(1)}, {m.group(2)}, v[{p}:{p+3}], {m.group(1)}"); return
        if OPT.get("agpr") and txt.startswith("v_smfmac"): txt = txt.replace("v[64:79]", "a[0:15]")
        if OPT.get("halfpv") and txt.startswith("v_smfmac") and ("v[20:23]" in txt or "v[28:31]" in txt): return
        if OPT.get("noqk") and txt.startswith("v_mfma"): return
        if OPT.get("nods") and txt.startswith(("ds_read", "s_mov_b64 exec")): return
        if OPT.get("noexp") and txt.startswith("v_exp"): txt = txt.replace("v_exp_f32", "v_mov_b32") + "\n" + txt.replace("v_exp_f32", "v_mov_b32")
        a0(txt)
    def rdk(t):
        b, o = (1, 2048 * t) if t < 32 else (80, 2048 * (t - 32))
        a(f"ds_read_b128 {vr(AKS[t&1],4)}, v{b} offset:{o}")
    def rdv(t):
        b, o = (2, 2048 * t) if t < 31 else (81, 2048 * (t - 32)) if t >= 32 else (2, None)
        if o is None:
            b, o = 2, 2048 * t
        a("s_mov_b64 exec, s[82:83]")
        a(f"ds_read_b128 {vr(AV1[t&1],4)}, v{b} offset:{o}")
        a(f"ds_read_b128 {vr(AV2[t&1],4)}, v{b} offset:{o+512}")
        a("s_mov_b64 exec, -1")
    rdk(0); rdk(1); rdv(0)
    a("s_waitcnt lgkmcnt(3)")
    a(f"v_mfma_f32_32x32x16_bf16 {vr(AS_[0],16)}, {vr(AKS[0],4)}, {vr(AQ,4)}, 0")
    for t in range(64):
        c, n = AS_[t & 1], AS_[(t + 1) & 1]
        ex = lambda i0, i1: [a(f"v_exp_f32 v{c+i}, v{c+i}") for i in range(i0, i1)]
        if t in prios: a(f"s_setprio {prios[t]}")
        ex(0, 2)
        if t: a(f"v_smfmac_f32_32x32x32_bf16 {vr(AO,16)}, {vr(AV2[(t-1)&1],4)}, {vr(n+8,8)}, v3")
        if t in hooks: hooks[t]()
        k = 0
        if t + 1 < 64: rdv(t + 1); k += 2
        if t + 2 < 64: rdk(t + 2); k += 1
        ex(2, 5)
        a(f"s_waitcnt lgkmcnt({k})")
        if t + 1 < 64: a(f"v_mfma_f32_32x32x16_bf16 {vr(n,16)}, {vr(AKS[(t+1)&1],4)}, {vr(AQ,4)}, 0")
        ex(5, 10)
        a(f"v_smfmac_f32_32x32x32_bf16 {vr(AO,16)}, {vr(AV1[t&1],4)}, {vr(c,8)}, v3")
        ex(10, 16)
    a(f"v_smfmac_f32_32x32x32_bf16 {vr(AO,16)}, {vr(AV2[1],4)}, {vr(AS_[1]+8,8)}, v3")

def att_main_nq(a, nq, nt, hooks, prios, QB=84, OB=100, dense=False):
    def rdk(t):
        b, o = (1, 2048 * t) if t < 32 else (80, 2048 * (t - 32))
        a(f"ds_read_b128 {vr(AKS[t&1],4)}, v{b} offset:{o}")
    def rdv(t):
        b, o = (2, 2048 * t) if t < 32 else (81, 2048 * (t - 32))
        a("s_mov_b64 exec, s[82:83]")
        a(f"ds_read_b128 {vr(AV1[t&1],4)}, v{b} offset:{o}")
        a(f"ds_read_b128 {vr(AV2[t&1],4)}, v{b} offset:{o+512}")
        a("s_mov_b64 exec, -1")
    Q = lambda i: vr(QB + 4 * i, 4); O = lambda i: vr(OB + 16 * i, 16)
    rdk(0); rdv(0)
    a("s_waitcnt lgkmcnt(2)")
    a(f"v_mfma_f32_32x32x16_bf16 {vr(AS_[0],16)}, {vr(AKS[0],4)}, {Q(0)}, 0")
    a("s_waitcnt lgkmcnt(0)")
    nv = nq * nt
    for v in range(nv):
        t, i = divmod(v, nq)
        c, n = AS_[v & 1], AS_[(v + 1) & 1]
        ex = lambda i0, i1: [a(f"v_exp_f32 v{c+k}, v{c+k}") for k in range(i0, i1)]
        if v in prios: a(f"s_setprio {prios[v]}")
        ex(0, 2)
        if v:
            tp, ip = divmod(v - 1, nq)
            a(f"v_smfmac_f32_32x32x32_bf16 {O(ip)}, {vr(AV2[tp&1],4)}, {vr(n+8,8)}, v3")
        if i == 0:
            if t in hooks: hooks[t]()
            if t + 1 < nt: rdk(t + 1); rdv(t + 1)
        ex(2, 5)
        if v + 1 < nv:
            tn, in_ = divmod(v + 1, nq)
            if in_ == 0: a("s_waitcnt lgkmcnt(0)")
            a(f"v_mfma_f32_32x32x16_bf16 {vr(n,16)}, {vr(AKS[tn&1],4)}, {Q(in_)}, 0")
        ex(5, 10)
        a(f"v_smfmac_f32_32x32x32_bf16 {O(i)}, {vr(AV1[t&1],4)}, {vr(c,8)}, v3")
        ex(10, 16)
    a(f"v_smfmac_f32_32x32x32_bf16 {O(nq-1)}, {vr(AV2[(nt-1)&1],4)}, {vr(AS_[(nv-1)&1]+8,8)}, v3")

def att_finish(a, tag, st_mod=""):
    S = AS_[0]; NM = AS_[1]
    a(f"""
    s_lshl_b32 s80, s76, 5
    s_add_u32 s80, s80, s74
    s_lshl_b32 s80, s80, 10
    s_add_u32 s80, s80, {OF}
    s_mov_b32 s84, 0x2b800000
    s_mov_b32 s85, 0x5d800000
    v_fma_f32 v8, v{AO}, 0, v{AO+8}
    """)
    for r in range(1, 8): a(f"v_fma_f32 v8, v{AO+r}, 0, v8")
    a(f"""
    v_cmp_nge_f32 vcc, v8, s84
    v_cmp_nle_f32 s[86:87], v8, s85
    s_or_b64 vcc, vcc, s[86:87]
    s_cbranch_vccnz L_{tag}_slow
    L_{tag}_norm:
    v_rcp_f32 v8, v{AO+8}
    """)
    for r in range(8): a(f"v_mul_f32 v{AO+r}, v8, v{AO+r}")
    for r in range(4): a(f"v_cvt_pk_bf16_f32 v{12+r}, v{AO+2*r}, v{AO+2*r+1}")
    a(f"buffer_store_dwordx4 v[12:15], v1, {R_WS}, s80 offen {st_mod}")

def att_slow(a, tag):
    S = AS_[0]; NM = AS_[1]
    a.reset()
    a(f"""
    L_{tag}_slow:
    v_mov_b32 v82, v1
    v_mov_b32 v84, 0xff800000
    s_mov_b32 s84, 64
    L_{tag}_slow1:
    ds_read_b128 {vr(AKS[0],4)}, v82
    v_add_u32 v82, 2048, v82
    s_waitcnt lgkmcnt(0)
    v_mfma_f32_32x32x16_bf16 {vr(S,16)}, {vr(AKS[0],4)}, {vr(AQ,4)}, 0
    """)
    for r in range(8): a(f"v_max3_f32 v84, v{S+2*r}, v{S+2*r+1}, v84")
    a(f"""
    s_sub_u32 s84, s84, 1
    s_cmp_lg_u32 s84, 0
    s_cbranch_scc1 L_{tag}_slow1
    v_mov_b32 v85, v84
    v_permlane32_swap_b32 v84, v85
    v_max_f32 v84, v84, v85
    """)
    for r in range(16): a(f"v_sub_f32 v{NM+r}, 0, v84\nv_mov_b32 v{AO+r}, 0")
    a(f"""
    v_mov_b32 v82, v1
    v_mov_b32 v83, v2
    s_mov_b32 s84, 64
    L_{tag}_slow2:
    ds_read_b128 {vr(AKS[0],4)}, v82
    s_mov_b64 exec, s[82:83]
    ds_read_b128 {vr(AV1[0],4)}, v83
    ds_read_b128 {vr(AV2[0],4)}, v83 offset:512
    s_mov_b64 exec, -1
    v_add_u32 v82, 2048, v82
    v_add_u32 v83, 2048, v83
    s_waitcnt lgkmcnt(0)
    v_mfma_f32_32x32x16_bf16 {vr(S,16)}, {vr(AKS[0],4)}, {vr(AQ,4)}, {vr(NM,16)}
    """)
    for r in range(16): a(f"v_exp_f32 v{S+r}, v{S+r}")
    a(f"""
    v_smfmac_f32_32x32x32_bf16 {vr(AO,16)}, {vr(AV1[0],4)}, {vr(S,8)}, v3
    v_smfmac_f32_32x32x32_bf16 {vr(AO,16)}, {vr(AV2[0],4)}, {vr(S+8,8)}, v3
    s_sub_u32 s84, s84, 1
    s_cmp_lg_u32 s84, 0
    s_cbranch_scc1 L_{tag}_slow2
    s_nop 15
    s_branch L_{tag}_norm
    """)

PW, PB, PG = 96, 160, 168

def out_side_loads(a, ld_mod=""):
    a(f"""
    s_lshl_b32 s88, s75, 3
    s_lshr_b32 s89, s74, 2
    s_add_u32 s88, s88, s89
    s_and_b32 s89, s74, 3
    s_lshl_b32 s89, s89, 3
    s_add_u32 s89, s89, {SW}
    s_lshl_b32 s90, s89, 14
    s_add_u32 s90, s90, {WOF}
    """)
    for ks in range(16):
        if ks and ks % 4 == 0: a("s_add_u32 s90, s90, 4096")
        a(f"buffer_load_dwordx4 {vr(PW+4*ks,4)}, v1, {R_WS}, s90 offen offset:{1024*(ks%4)} {ld_mod}")
    a(f"""
    v_lshrrev_b32 v86, 4, v0
    v_and_b32 v87, 15, v0
    v_lshlrev_b32 v88, 14, v86
    v_lshl_add_u32 v88, v87, 1, v88
    s_lshl_b32 s90, s89, 16
    s_lshl_b32 s91, s88, 6
    s_add_u32 s90, s90, s91
    s_add_u32 s90, s90, {BT}
    """)
    for i in range(4):
        if i: a("s_add_u32 s90, s90, 4096")
        for nt in range(2): a(f"buffer_load_short_d16_hi v{PB+4*nt+i}, v88, {R_WS}, s90 offen offset:{32*nt} {ld_mod}")
    a(f"""
    v_lshlrev_b32 v88, 2, v87
    s_lshl_b32 s90, s88, 7
    s_add_u32 s90, s90, {GW}
    buffer_load_dword v{PG}, v88, {R_WS}, s90 offen {ld_mod}
    buffer_load_dword v{PG+1}, v88, {R_WS}, s90 offen offset:64 {ld_mod}
    """)

def out_side_math(a):
    a(f"""
    s_mov_b32 s68, 0xffff0000
    v_sub_f32 v88, 1.0, v{PG}
    v_sub_f32 v89, 1.0, v{PG+1}
    v_cvt_pk_bf16_f32 v89, v88, v89
    v_lshlrev_b32 v88, 16, v89
    v_and_b32 v89, s68, v89
    """)
    for nt in range(2):
        for i in range(4): a(f"v_mul_f32 v{PB+4*nt+i}, v{88+nt}, v{PB+4*nt+i}")
        for i in range(0, 4, 2):
            r = PB + 4 * nt + i
            a(f"v_cvt_pk_bf16_f32 v{r+1}, v{r}, v{r+1}\nv_lshlrev_b32 v{r}, 16, v{r+1}\nv_and_b32 v{r+1}, s68, v{r+1}")

def out_o_load(a, ld_mod=""):
    a(f"""
    s_lshl_b32 s90, s88, 15
    s_lshl_b32 s91, {SW}, 12
    s_add_u32 s90, s90, s91
    s_add_u32 s90, s90, {OF}
    """)
    for i in range(4): a(f"buffer_load_dwordx4 {vr(32+4*i,4)}, v1, {R_WS}, s90 offen offset:{1024*i} {ld_mod}")

def out_o_stage(a):
    a(f"s_add_u32 s91, s91, {OS}\nv_add_u32 v2, s91, v1")
    for i in range(4): a(f"ds_write_b128 v2, {vr(32+4*i,4)} offset:{1024*i}")

def out_gemm(a):
    a(f"""
    v_lshlrev_b32 v2, 9, v86
    v_lshl_add_u32 v2, v87, 4, v2
    v_add_u32 v2, {OS}, v2
    v_lshlrev_b32 v3, 10, v87
    v_lshl_add_u32 v3, v86, 3, v3
    s_lshl_b32 s90, s88, 15
    s_lshl_b32 s91, s89, 5
    s_add_u32 s90, s90, s91
    v_add_u32 v3, s90, v3
    v_add_u32 v4, 0x4000, v3
    s_waitcnt lgkmcnt(0)
    s_barrier
    """)
    NB = 12; FB = 16
    rd = lambda i: a(f"ds_read_b128 {vr(FB+4*(i%NB),4)}, v2 offset:{2048*(i>>1) + 256*(i&1)}")
    for i in range(NB): rd(i)
    for i in range(32):
        left = min(NB - 1, 31 - i)
        a(f"s_waitcnt lgkmcnt({left})")
        acc = 8 + 4 * (i & 1)
        a(f"v_mfma_f32_16x16x32_bf16 {vr(acc,4)}, {vr(PW+4*(i>>1),4)}, {vr(FB+4*(i%NB),4)}, {'0' if i < 2 else vr(acc,4)}")
        if i + NB < 32: rd(i + NB)
    for nt in range(2):
        for i in range(4): a(f"v_fma_f32 v{8+4*nt+i}, v{8+4*nt+i}, v{PG+nt}, v{PB+4*nt+i}")
        a(f"v_cvt_pk_bf16_f32 v{16+2*nt}, v{8+4*nt}, v{9+4*nt}\nv_cvt_pk_bf16_f32 v{17+2*nt}, v{10+4*nt}, v{11+4*nt}")
        a(f"global_store_dwordx2 v{3+nt}, {vr(16+2*nt,2)}, {S_OUT}")

STAMPS = False
STB = 0x1F00000
STAMP_WAVES = {}
def stamp(a, slot, waves=range(8), drain=False):
    if not STAMPS: return
    STAMP_WAVES[slot] = list(waves)
    if drain: a("s_waitcnt vmcnt(0)")
    a(f"""
    s_memrealtime s[94:95]
    s_memtime s[98:99]
    s_lshl_b32 s96, s2, 3
    s_add_u32 s96, s96, {SW}
    s_lshl_b32 s96, s96, 2
    s_add_u32 s96, s96, {STB + 8192*slot}
    v_mov_b32 v253, 0
    s_waitcnt lgkmcnt(0)
    v_mov_b32 v254, s94
    v_mov_b32 v252, s98
    buffer_store_dword v254, v253, {R_WS}, s96 offen
    s_add_u32 s96, s96, 0x80000
    buffer_store_dword v252, v253, {R_WS}, s96 offen
    """)
    if drain: a("s_waitcnt vmcnt(0)")

LIGHT = []
def lstamp(a, slot):
    if "amp" in OPT:
        p = OPT["amp"].split(",")
        for k in range(2):
            if p[k] == str(slot): a(f"s_memrealtime s[{96+2*k}:{97+2*k}]\ns_waitcnt lgkmcnt(0)")
    if not STAMPS: return
    if OPT.get("stamp") is not True and str(slot) not in OPT["stamp"].split(","): return
    a(f"s_memrealtime s[94:95]\ns_memtime s[98:99]\ns_waitcnt lgkmcnt(0)\nv_writelane_b32 v250, s94, {slot}\nv_writelane_b32 v251, s98, {slot}")
    LIGHT.append(slot)
def lflush(a, waves):
    if not STAMPS: return
    mask = sum(1 << s for s in LIGHT)
    for sl in LIGHT: STAMP_WAVES[sl] = list(waves)
    LIGHT.clear()
    a(f"""
    s_lshl_b32 s96, s2, 3
    s_add_u32 s96, s96, {SW}
    s_lshl_b32 s96, s96, 2
    s_add_u32 s96, s96, {STB}
    v_lshlrev_b32 v253, 13, v0
    s_mov_b32 exec_lo, {mask}
    s_mov_b32 exec_hi, 0
    buffer_store_dword v250, v253, {R_WS}, s96 offen
    s_add_u32 s96, s96, 0x80000
    buffer_store_dword v251, v253, {R_WS}, s96 offen
    s_mov_b64 exec, -1
    """)

def stamp_reduce_kernel(a):
    kernel_head(a, "stamp_kernel")
    a("s_cmp_ge_u32 s2, 1\ns_cbranch_scc1 L_st_end\nv_mov_b32 v10, v0")
    prologue(a, "L_st_end")
    a("v_mov_b32 v2, 0\nv_lshlrev_b32 v3, 2, v10\nds_write_b32 v3, v2\ns_waitcnt lgkmcnt(0)\ns_barrier\nv_lshlrev_b32 v3, 5, v10\nv_mov_b32 v6, 0")
    for slot, waves in sorted(STAMP_WAVES.items()):
        for w in waves:
            a(f"s_mov_b32 s60, {STB + 8192*slot + 4*w}\nbuffer_load_dword v4, v3, {R_WS}, s60 offen\ns_waitcnt vmcnt(0)\nv_not_b32 v5, v4")
            a(f"ds_max_u32 v6, v5 offset:{8*slot}\nds_max_u32 v6, v4 offset:{8*slot+4}")
    a(f"s_waitcnt lgkmcnt(0)\ns_barrier\nv_lshlrev_b32 v3, 2, v10\nds_read_b32 v4, v3\nv_cmp_gt_u32 vcc, 64, v10\ns_and_saveexec_b64 s[60:61], vcc\ns_cbranch_execz L_st_end\ns_waitcnt lgkmcnt(0)\nglobal_store_dword v3, v4, {S_DBG}")
    a("L_st_end:\ns_endpgm")

def kernel_head(a, name):
    a.reset()
    a.raw(f".globl {name}\n.p2align 8\n.type {name},@function\n{name}:")

def descriptor(name, vgpr):
    if OPT.get("agpr") and name == "attn_kernel":
        return descriptor("x", 256).replace("kernel x", "kernel " + name).replace("next_free_vgpr 256", "next_free_vgpr 256").replace("accum_offset 256", "accum_offset 240")
    return f""".p2align 6
.amdhsa_kernel {name}
  .amdhsa_next_free_vgpr {vgpr}
  .amdhsa_next_free_sgpr 102
  .amdhsa_accum_offset {vgpr}
  .amdhsa_group_segment_fixed_size 0
  .amdhsa_kernarg_size 112
  .amdhsa_user_sgpr_count 2
  .amdhsa_user_sgpr_kernarg_segment_ptr 1
  .amdhsa_system_sgpr_workgroup_id_x 1
.end_amdhsa_kernel
"""

def header():
    ref = open(f"cdna_kernels/{NAME}.s.ref").read().split("\n")
    return "\n".join(l for l in ref[:15]) + "\n"

PRIOS = {0: 3, 38: 2, 54: 1, 61: 0}

def aux_ids(a):
    a(f"""
    s_and_b32 s51, {SW}, 3
    s_lshr_b32 s52, s51, 1
    s_and_b32 s53, s51, 1
    s_lshl_b32 s54, {SX}, 6
    s_lshl_b32 s55, {SJ}, 1
    s_add_u32 s54, s54, s55
    s_add_u32 s54, s54, s52
    """)

def build_multi(extra_empty=0):
    a = Asm()
    ks = ["proj_kernel", "conv_kernel", "attn_kernel", "outp_kernel"]
    launches = "".join(f"; @launch kernel={k} grid=(256,1,1) block=(512,1,1) lds={LDS_BYTES}\n" for k in ks)
    launches += "".join("; @launch kernel=empty_kernel grid=(256,1,1) block=(512,1,1) lds=0\n" for _ in range(extra_empty))
    if STAMPS: launches += "; @launch kernel=stamp_kernel grid=(1,1,1) block=(256,1,1) lds=1024\n"
    a.raw(header() + launches + '.amdgcn_target "amdgcn-amd-amdhsa--gfx950"\n.text')
    kernel_head(a, ks[0]); prologue(a, "L_k1_end"); stamp(a, 0, drain=True)
    a(f"s_cmp_ge_u32 {SW}, 4\ns_cbranch_scc1 L_k1_aux")
    p1_gemm(a); lstamp(a, 16); p1_side(a); lstamp(a, 17); lflush(a, range(4)); a("s_barrier"); stamp(a, 1, range(4), True); a("s_endpgm")
    a.reset(); a("L_k1_aux:")
    p1_aux(a); lflush(a, range(4, 8))
    a(f"""
    s_waitcnt lgkmcnt(0)
    s_barrier
    s_lshl_b32 s66, {SX}, 5
    s_add_u32 s66, s66, {SJ}
    s_mul_i32 s66, s66, 36864
    s_lshl_b32 s69, s51, 13
    s_add_u32 s66, s66, s69
    s_add_u32 s66, s66, {RD}
    s_add_u32 s69, s69, {RB}
    v_lshlrev_b32 v1, 4, v0
    v_add_u32 v2, s69, v1
    """)
    for i in range(9):
        a(f"ds_read_b128 {vr(64+4*i,4)}, v2 offset:{1024*i}")
    a("s_waitcnt lgkmcnt(0)")
    for i in range(9):
        a(f"buffer_store_dwordx4 {vr(64+4*i,4)}, v1, {R_WS}, s66 offen\ns_add_u32 s66, s66, 1024")
    a("L_k1_end:\ns_endpgm")
    kernel_head(a, ks[1]); prologue(a, "L_k2_end"); stamp(a, 2, drain=True)
    a(f"s_cmp_lt_u32 {SW}, 4\ns_cbranch_scc1 L_k2_end")
    aux_ids(a)
    a(f"""
    s_lshl_b32 s56, s54, 1
    v_mov_b32 v2, s56
    global_load_short_d16_hi v15, v2, {S_DSK}
    v_mov_b32 v16, 0
    v_mov_b32 v17, 0
    v_mov_b32 v18, 0
    v_mov_b32 v19, 0
    v_min_u32 v1, 32, v0
    s_mul_i32 s66, s51, {US}
    s_add_u32 s66, s66, {UB}
    v_lshl_add_u32 v1, v1, 4, s66
    ds_write_b128 v1, v[16:19]
    s_lshl_b32 s66, {SX}, 5
    s_add_u32 s66, s66, {SJ}
    s_mul_i32 s66, s66, 36864
    s_lshl_b32 s69, s51, 13
    s_add_u32 s66, s66, s69
    s_add_u32 s66, s66, {RD}
    s_add_u32 s69, s69, {RB}
    v_lshlrev_b32 v1, 4, v0
    """)
    for i in range(9):
        a(f"s_add_u32 m0, s69, {1024*i}\ns_add_u32 s70, s66, {1024*i}\nbuffer_load_dwordx4 v1, {R_WS}, s70 offen lds")
    a("s_waitcnt lgkmcnt(0)\ns_barrier")
    u_load(a); a("s_waitcnt vmcnt(0)"); u_store(a)
    a("s_waitcnt lgkmcnt(0)\ns_barrier")
    conv(a, "k2c"); stamp(a, 3, range(4, 8), True)
    a("L_k2_end:\ns_endpgm")
    kernel_head(a, ks[2]); prologue(a, "L_k3_end"); stamp(a, 4, drain=True)
    att_setup(a)
    a(f"buffer_load_dwordx4 {vr(AQ,4)}, v1, {R_WS}, s77 offen")
    att_dma(a, range(16)); att_regs(a)
    lstamp(a, 26); a("s_waitcnt vmcnt(15)\ns_barrier"); lstamp(a, 27)
    if "nq" in OPT:
        nq, nw = int(OPT["nq"]), int(OPT["nw"]); nt = 512 // nq // nw; qb = 84 if nq <= 4 else 216; ob = 100 if nq <= 4 else 84
        a("s_waitcnt vmcnt(0)\ns_barrier")
        for i in range(nq):
            for r in range(4): a(f"v_mov_b32 v{qb+4*i+r}, v{4+((r+i)&3)}")
            for r in range(16): a(f"v_mov_b32 v{ob+16*i+r}, 0")
        if nw == 4: a(f"s_cmp_ge_u32 {SW}, 4\ns_cbranch_scc1 L_k3_end")
        lstamp(a, 28)
        pr = {} if nw == 4 else PRIOS
        att_main_nq(a, nq, nt, {}, pr, qb, ob); lstamp(a, 29)
        for r in range(16): a(f"v_mov_b32 v{64+r}, v{100+r}")
    else:
      att_main(a, {2: lambda: a("s_waitcnt vmcnt(12)\ns_barrier"), 14: lambda: (a("s_waitcnt vmcnt(0)\ns_barrier"), lstamp(a, 28))}, PRIOS); lstamp(a, 29)
    att_finish(a, "k3"); lflush(a, range(8)); stamp(a, 5, drain=True)
    a("L_k3_end:\ns_endpgm")
    att_slow(a, "k3")
    kernel_head(a, ks[3]); prologue(a, "L_k4_end"); stamp(a, 6, drain=True)
    att_setup(a)
    a(f"s_lshl_b32 s88, s75, 3\ns_lshr_b32 s89, s74, 2\ns_add_u32 s88, s88, s89")
    out_o_load(a); out_side_loads(a)
    a(f"s_lshl_b32 s91, {SW}, 12\ns_waitcnt vmcnt(26)"); out_o_stage(a)
    a("s_waitcnt vmcnt(0)"); out_side_math(a)
    out_gemm(a); stamp(a, 7, drain=True)
    a("L_k4_end:\ns_endpgm")
    if extra_empty:
        kernel_head(a, "empty_kernel"); a("s_endpgm")
    if STAMPS: stamp_reduce_kernel(a)
    a.raw('.section .rodata,"a"')
    if STAMPS: a.raw(descriptor("stamp_kernel", 32))
    for k in ks: a.raw(descriptor(k, 256 if STAMPS else 192))
    if extra_empty: a.raw(descriptor("empty_kernel", 8))
    return a.text()

if __name__ == "__main__":
    mode = sys.argv[1] if len(sys.argv) > 1 else "multi"
    out = sys.argv[2] if len(sys.argv) > 2 else f"cdna_kernels/{NAME}.s"
    STAMPS = "stamp" in mode
    for o in sys.argv[4:]:
        k, _, v = o.partition("="); OPT[k] = v or True
    txt = build_multi(int(sys.argv[3]) if len(sys.argv) > 3 else 0)
    open(out, "w").write(txt)
    print("wrote", out, len(txt), "bytes")
```

```python
import sys
import gen as G
from gen import (Asm, OPT, NAME, vr, VM, prologue, aux_ids, kernel_head, descriptor, header, lstamp, lflush, stamp_reduce_kernel,
                 QF, KV, XT, BT, OF, WOF, GW, LDS_BYTES, LOG2E, INV2PI, QSCALE,
                 S_X, S_WO, S_LOGA, S_AIM, S_CR, S_CI, S_LDT, S_DSK, S_GWT, S_OUT, R_X, R_W, R_WS, SX, SJ, SW,
                 AQ, AKS, AV1, AV2, AS_, AO, PW, PB, PG, att_slow, out_side_loads, out_side_math)
from gen2 import cmuls, RowWriter, cexp

SC = "sc1"
SPIN = 400000
FL = 0xC90000
F_N, F_S1, F_S2, F_S3, F_S4 = FL, FL + 0x1000, FL + 0x3000, FL + 0x4000, FL + 0x8000
SLOT = 32768
def slot_addr(t): return SLOT * (1 + ((t + 1) & 3))
TBS, HTS = 8704, 7344
EX0, KX0, KXD = 0, 16384, 4608
RE, RSZ = 4160, 16640
US = 4640
OS = 131072
VN, VX, VZ, VT, VS = 240, 241, 242, 244, 236
DB, DA = 224, 232
PRIOS = {0: 3, 38: 2, 54: 1, 61: 0}

def poll(a, tag, vaddr, soff, first_issued=False, n=1, ncmp=None, vt=VT, sleep=4):
    ld = f"buffer_load_dword{'' if n == 1 else 'x%d' % n} {vr(vt, n)}, v{vaddr}, {R_WS}, {soff} offen {SC}"
    ncmp = ncmp or n
    a(f"s_mov_b32 s92, {SPIN}")
    if first_issued: a(f"s_branch L_{tag}_chk")
    a(f"L_{tag}_poll:\n{ld}\ns_waitcnt vmcnt(0)")
    a(f"L_{tag}_chk:")
    a(f"v_cmp_ne_u32 vcc, v{vt}, v{VN}")
    for i in range(1, ncmp): a(f"v_cmp_ne_u32 s[90:91], v{vt+i}, v{VN}\ns_or_b64 vcc, vcc, s[90:91]")
    if ncmp == 1: a("s_nop 1")
    a(f"""
    s_cbranch_vccz L_{tag}_ok
    s_sleep {sleep}
    s_sub_u32 s92, s92, 1
    s_cmp_lg_u32 s92, 0
    s_cbranch_scc1 L_{tag}_poll
    L_{tag}_ok:
    """)

def signal(a, soff, mod=SC, n=1):
    a(f"""
    s_mov_b64 exec, 1
    buffer_store_dword{'' if n == 1 else 'x2'} {vr(VN, n)}, v{VZ}, {R_WS}, {soff} offen {mod}
    s_mov_b64 exec, -1
    """)

def epoch_load(a):
    a(f"v_mov_b32 v{VZ}, 0\ns_mov_b32 s56, {F_N}\nbuffer_load_dword v{VN}, v{VZ}, {R_WS}, s56 offen {SC}")

def epoch_next(a):
    a(f"s_mov_b32 s55, 1664525\nv_mul_lo_u32 v{VN}, v{VN}, s55\nv_add_u32 v{VN}, 1013904223, v{VN}")

DX, DW = 94, 95
def dma_setup(a):
    a(f"""
    v_lshrrev_b32 v1, 3, v0
    v_lshrrev_b32 v2, 4, v0
    s_and_b32 s58, {SW}, 1
    s_lshl_b32 s56, s58, 2
    v_add_u32 v3, s56, v2
    v_and_b32 v{DW}, 7, v0
    v_xor_b32 v3, v3, v{DW}
    v_lshlrev_b32 v3, 4, v3
    v_lshl_add_u32 v{DX}, v1, 10, v3
    v_and_b32 v2, 1, v2
    v_lshlrev_b32 v2, 2, v2
    v_xor_b32 v2, v2, v{DW}
    v_lshlrev_b32 v2, 4, v2
    v_mov_b32 v3, 0xc00
    v_mad_u32_u24 v{DW}, v1, v3, v2
    s_lshl_b32 s44, {SJ}, 16
    s_lshl_b32 s45, {SW}, 13
    s_add_u32 s44, s44, s45
    s_mul_i32 s45, {SW}, {16*3072}
    s_lshl_b32 s56, {SX}, 7
    s_add_u32 s45, s45, s56
    s_lshl_b32 s46, {SW}, 10
    s_lshl_b32 s47, {SW}, 11
    s_mul_i32 s54, {SJ}, 37
    s_lshr_b32 s54, s54, 8
    s_mul_i32 s54, s54, 7
    s_sub_u32 s54, {SJ}, s54
    """)

def dma_pieces(t, part="xw"):
    base = slot_addr(t); out = []
    head = f"s_add_u32 s56, {SX}, {t}\ns_and_b32 s56, s56, 7\n"
    if OPT.get("rot7") == "1" and t:
        head = f"s_add_u32 s56, s54, {t - 1}\ns_cmp_ge_u32 s56, 7\ns_cselect_b32 s57, 6, -1\ns_sub_u32 s56, s56, s57\ns_add_u32 s56, s56, {SX}\ns_and_b32 s56, s56, 7\n"
    if "x" in part:
        for i in range(2):
            p = (head + "s_lshl_b32 s57, s56, 7\ns_add_u32 s57, s57, s44\n") if i == 0 else "s_add_u32 s57, s57, 0x8000\n"
            out.append(p + f"s_add_u32 m0, s46, {base + i*4096}\nbuffer_load_dwordx4 v{DX}, {R_X}, s57 offen {OPT.get('xmod', '')} lds")
        head = ""
    if "w" in part:
        for i in range(2):
            for ty in range(3):
                p = ""
                if ty == 0: p = (head + f"s_mul_i32 s56, s56, {64*3072}\ns_add_u32 s56, s56, s45\n") if i == 0 else f"s_add_u32 s56, s56, {8*3072}\n"
                out.append(p + f"s_add_u32 m0, s47, {base + 8192 + ty*8192 + i*1024 - ty*1024}\nbuffer_load_dwordx4 v{DW}, {R_W}, s56 offen offset:{ty*1024} {OPT.get('wmod', '')} lds")
    return out

def dma(a, vm, t, part="xw", tag=None):
    for p in dma_pieces(t, part): a(p); vm.add(tag or f"s{t}")

T0 = 48
QS = 147456
def kv_dma(a, rounds, mod, both=False):
    for r in rounds:
        o = 8192 * ((r + T0 // 4) & 15)
        a(f"s_add_u32 m0, s79, {o}\ns_add_u32 s80, s78, {o}\nbuffer_load_dwordx4 v1, {R_WS}, s80 offen {mod} lds")
        if both: a(f"s_add_u32 m0, s79, {o + 4096}\ns_add_u32 s80, s78, {o + 4096}\nbuffer_load_dwordx4 v1, {R_WS}, s80 offen {mod} lds")

def att_bulk():
    l = f"""
    s_lshr_b32 s74, {SJ}, 3
    s_lshl_b32 s75, {SX}, 2
    s_add_u32 s74, s74, s75
    s_and_b32 s75, {SJ}, 7
    s_lshl_b32 s76, s75, 3
    s_add_u32 s76, s76, {SW}
    s_lshl_b32 s77, s74, 6
    s_add_u32 s77, s77, s76
    s_lshl_b32 s77, s77, 10
    s_add_u32 s77, s77, {QF}
    s_lshl_b32 s78, s74, 17
    s_lshl_b32 s79, {SW}, 10
    s_add_u32 s78, s78, s79
    s_add_u32 s78, s78, {KV}
    s_mov_b32 s82, 0xffff
    s_mov_b32 s83, 0xffff
    v_and_b32 v16, 27, v0
    v_cmp_eq_u32 vcc, 16, v16
    v_mov_b32 v17, 0x3f803f80
    v_mov_b32 v92, {LDS_BYTES - 4}
    v_cndmask_b32 v16, 0, v17, vcc
    v_mov_b32 v93, 1
    """.strip().split("\n")
    l += [f"v_mov_b32 v{r}, v16" for r in range(17, 32)] + [f"v_mov_b32 v{AO+r}, 0" for r in range(16)]
    return [x.strip() for x in l]

def att_addr():
    return [x.strip() for x in """
    v_lshlrev_b32 v1, 4, v0
    v_lshrrev_b32 v2, 5, v0
    v_lshlrev_b32 v2, 8, v2
    v_and_b32 v3, 15, v0
    v_lshl_add_u32 v2, v3, 4, v2
    v_add_u32 v2, 1024, v2
    v_add_u32 v80, 0x10000, v1
    v_add_u32 v81, 0x10000, v2
    v_mov_b32 v3, 0xdddddddd
    """.strip().split("\n")]

def g_phase1(a):
    vm = VM()
    ACC = (96, 112, 128); SETS = (144, 160, 176, 192)
    XA, WA = 4, 12
    GX, GG, GO = 32, 40, 44
    dma_setup(a)
    a("s_barrier")
    for t in range(2): dma(a, vm, t)
    lstamp(a, 18)
    a(f"""
    s_getreg_b32 s62, hwreg(HW_REG_XCC_ID)
    v_mov_b32 v{VX}, s62
    s_lshr_b32 s59, {SW}, 1
    v_and_b32 v1, 31, v0
    s_lshl_b32 s60, s58, 12
    s_add_u32 s60, s60, {SLOT}
    v_lshlrev_b32 v2, 7, v1
    v_add_u32 v2, s60, v2
    v_bfe_u32 v1, v0, 1, 3
    v_lshrrev_b32 v3, 5, v0
    v_xor_b32 v1, v1, v3
    """)
    for ks in range(4):
        a(f"v_xor_b32 v3, {2*ks}, v1\nv_lshl_add_u32 v{XA+ks}, v3, 4, v2\nv_add_u32 v{XA+4+ks}, 0x10000, v{XA+ks}")
    a(f"""
    v_lshrrev_b32 v1, 5, v0
    v_lshlrev_b32 v1, 10, v1
    v_bfe_u32 v2, v0, 2, 2
    v_lshl_add_u32 v1, v2, 7, v1
    v_bfe_u32 v2, v0, 3, 1
    v_xor_b32 v2, s59, v2
    v_lshl_add_u32 v1, v2, 6, v1
    v_bfe_u32 v2, v0, 4, 1
    v_lshl_add_u32 v1, v2, 5, v1
    v_and_b32 v2, 3, v0
    v_lshl_add_u32 v1, v2, 3, v1
    v_add_u32 v{WA}, {SLOT + 8192}, v1
    v_add_u32 v{WA+1}, {SLOT + 8192 + 65536}, v1
    """)
    epoch_load(a); vm.add("n")
    dma(a, vm, 2)
    if OPT.get("s3pre") != "0": dma(a, vm, 3, "w", "s3w")
    lstamp(a, 1)
    fill = [x.strip() for x in f"""
    ; side-load addresses: v14 gate rows, v15 gate weights, v52/v57 wo gathers; s67 gate output, s69 wo fragment output
    s_lshl_b32 s67, {SJ}, 6
    s_lshl_b32 s62, {SX}, 3
    s_add_u32 s67, s67, s62
    s_lshl_b32 s62, {SW}, 1
    s_add_u32 s67, s67, s62
    v_lshlrev_b32 v15, 4, v0
    s_lshl_b32 s62, s67, 10
    v_add_u32 v14, s62, v15
    s_lshl_b32 s62, {SX}, 5
    s_add_u32 s62, s62, {SJ}
    s_lshr_b32 s69, s62, 3
    s_and_b32 s63, s62, 7
    s_lshl_b32 s63, s63, 1
    s_add_u32 s63, s63, s58
    s_lshl_b32 s64, s63, 15
    s_lshl_b32 s62, s69, 5
    s_add_u32 s64, s64, s62
    v_lshrrev_b32 v3, 5, v0
    v_lshlrev_b32 v3, 14, v3
    v_bfe_u32 v2, v0, 4, 1
    v_lshl_add_u32 v3, v2, 12, v3
    v_and_b32 v2, 15, v0
    v_lshl_add_u32 v3, v2, 1, v3
    v_add_u32 v52, s64, v3
    v_add_u32 v57, 0x2000, v52
    s_lshl_b32 s69, s69, 4
    s_add_u32 s69, s69, s63
    s_lshl_b32 s69, s69, 10
    s_add_u32 s69, s69, {WOF}
    s_lshl_b32 s67, s67, 2
    s_add_u32 s67, s67, {GW}
    ; hand-off words: s72 = die-id line, s70 = projection-done word, s71 = line polled before attention
    s_lshl_b32 s72, {SX}, 2
    s_add_u32 s72, s72, {SW}
    s_lshl_b32 s72, s72, 8
    s_add_u32 s72, s72, {F_S1}
    v_and_b32 v53, 31, v0
    v_lshlrev_b32 v53, 3, v53
    s_lshl_b32 s70, {SX}, 1
    s_lshr_b32 s71, {SJ}, 4
    s_add_u32 s71, s71, s70
    s_lshl_b32 s71, s71, 8
    s_add_u32 s71, s71, {F_S2}
    s_add_u32 s70, s70, s59
    s_lshl_b32 s70, s70, 8
    s_lshl_b32 s62, {SJ}, 3
    s_add_u32 s70, s70, s62
    s_lshl_b32 s62, s58, 2
    s_add_u32 s70, s70, s62
    s_add_u32 s70, s70, {F_S2}
    v_lshlrev_b32 v54, 2, v0
    ; epilogue addresses
    s_lshl_b32 s60, {SX}, 2
    s_lshl_b32 s61, s59, 1
    s_add_u32 s60, s60, s61
    s_lshl_b32 s60, s60, 6
    s_lshl_b32 s61, {SJ}, 1
    s_add_u32 s61, s61, s58
    s_add_u32 s60, s60, s61
    s_lshl_b32 s61, s60, 10
    s_add_u32 s61, s61, {QF}
    s_add_u32 s62, s61, 0x10000
    s_lshl_b32 s63, s60, 11
    s_add_u32 s63, s63, {KV}
    s_add_u32 s64, s63, 0x20000
    s_mov_b32 s65, {QSCALE}
    v_and_b32 v55, 0x33, v0
    v_bfe_u32 v3, v0, 2, 1
    v_lshl_or_b32 v55, v3, 3, v55
    v_bfe_u32 v3, v0, 3, 1
    v_lshl_or_b32 v55, v3, 2, v55
    v_lshlrev_b32 v55, 4, v55
    v_and_b32 v56, 15, v0
    v_lshlrev_b32 v56, 4, v56
    v_lshrrev_b32 v3, 5, v0
    v_lshl_add_u32 v56, v3, 8, v56
    v_bfe_u32 v3, v0, 4, 1
    v_lshl_add_u32 v56, v3, 17, v56
    """.strip().split("\n") if not x.strip().startswith(";")]
    fill += [f"v_mov_b32 v{r}, 0" for r in range(DA, DA + 4)] + att_bulk() + att_addr()
    if OPT.get("fillpre"):
        while fill: a(fill.pop(0))
    def reads(t, ks):
        p = slot_addr(t) // SLOT - 1; s = SETS[ks]; hi = p >> 1; o0 = (p & 1) * SLOT
        l = [f"ds_read_b128 {vr(s,4)}, v{XA + 4*hi + ks} offset:{o0}"]
        for ty in (1, 2, 0):
            for ri in range(2):
                l.append(f"ds_read_b64_tr_b16 {vr(s+4+4*ty+2*ri,2)}, v{WA+hi} offset:{o0 + ty*8192 + ks*2048 + ri*512}")
        return l
    def mf(ks, i, first=False):
        s = SETS[ks]; c = "0" if first else vr(ACC[i], 16)
        ab = f"{vr(s,4)}, {vr(s+12,4)}" if i == 2 else f"{vr(s+4+4*i,4)}, {vr(s,4)}"
        a(f"v_mfma_f32_32x32x16_bf16 {vr(ACC[i],16)}, {ab}, {c}")
    pend = []
    def mm(ks, first, rd=(), nd=2):
        rd = list(rd)
        for i, r in zip((1, 2, 0), (rd[:4], rd[4:], [])):
            mf(ks, i, first)
            for x in r: a(x)
            for _ in range(3 if r else 5):
                if fill: a(fill.pop(0))
        for _ in range(nd):
            if pend:
                tag, p = pend.pop(0)
                if OPT.get("nodma") and tag[0] == "s" and tag != "side": p = "buffer_load_dword v59, v15, s[32:35], 0 offen"
                a(p); vm.add(tag)
    side = [f"global_load_dwordx4 {vr(GX,4)}, v14, {S_X}", f"global_load_dwordx4 {vr(GX+4,4)}, v14, {S_X} offset:1024", f"global_load_dwordx4 {vr(GG,4)}, v15, {S_GWT}"]
    side += [f"global_load_short_d16{'_hi' if j & 1 else ''} v{GO+j}, v{57 if j >> 2 else 52}, {S_WO} offset:{1024*(j&3)}" for j in range(8)]
    for t in range(8):
        if OPT.get("gpos") == "pre": lstamp(a, 8 + t)
        vm.wait(a, f"s{t}")
        if t == 3: epoch_next(a)
        if OPT.get("gpos") == "mid": lstamp(a, 8 + t)
        a("s_barrier")
        if not OPT.get("gpos"): lstamp(a, 8 + t)
        nd = 2
        if t == 0 and OPT.get("s3pre") == "0": pend += [("s3w", p) for p in dma_pieces(3, "w")]; nd = 3
        if t == 1: pend += [("s3", p) for p in dma_pieces(3, "x")]; nd = 3
        if 1 <= t <= 4: pend += [(f"s{t+3}", p) for p in dma_pieces(t + 3)]
        if t == int(OPT.get("tt", 5)) and OPT.get("touch") == "g":
            pend += [("touch", f"s_mov_b32 exec_hi, 0xffff\nbuffer_load_dword v59, v58, {R_WS}, 0 offen\ns_mov_b32 exec_hi, -1")]; nd = 3
        if t == 5: assert not fill, len(fill)
        if t == 5: pend += [("f", f"buffer_load_dwordx2 {vr(VT,2)}, v53, {R_WS}, s72 offen {SC}")]
        if t == 5: pend += [("side", p) for p in side]; nd = 3
        if t == 0:
            for x in reads(0, 0) + reads(0, 1): a(x)
        else:
            if OPT.get("burst"): nd = int(OPT["burst"])
            mm(2, False, reads(t, 0), nd)
            mm(3, False, reads(t, 1), nd)
        a("s_waitcnt lgkmcnt(7)")
        mm(0, t == 0, reads(t, 2), nd)
        a("s_waitcnt lgkmcnt(7)")
        mm(1, False, reads(t, 3), nd)
        assert not pend
        if t == 7 and OPT.get("gprio"): a(f"s_setprio {OPT['gprio']}")
        a("s_waitcnt lgkmcnt(0)")
    cv = lambda d, s: [f"v_cvt_pk_bf16_f32 v{d+r}, v{s+2*r}, v{s+2*r+1}" for r in range(8)]
    mod = SC
    for ks, i in ((2, 1), (3, 1), (2, 2), (3, 2), (2, 0)): mf(ks, i)
    a("s_nop 6")
    lstamp(a, 20) if OPT.get("gst") else None
    for x in cv(144, ACC[1])[:4]: a(x)
    mf(3, 0)
    for x in cv(144, ACC[1])[4:]: a(x)
    a(f"buffer_store_dwordx4 v[144:147], v55, {R_WS}, s63 offen {mod}\nbuffer_store_dwordx4 v[148:151], v55, {R_WS}, s64 offen {mod}")
    lstamp(a, 19) if OPT.get("gst") else None
    for x in cv(152, ACC[2]): a(x)
    a(f"buffer_store_dwordx4 v[152:155], v56, {R_WS}, s63 offen offset:1024 {mod}\nbuffer_store_dwordx4 v[156:159], v56, {R_WS}, s63 offen offset:1536 {mod}")
    for h in range(2):
        for r in range(8): a(f"v_mul_f32 v{ACC[0]+8*h+r}, s65, v{ACC[0]+8*h+r}")
        for x in cv(160, ACC[0])[4*h:4*h+4]: a(x)
        a(f"buffer_store_dwordx4 {vr(160+4*h,4)}, v1, {R_WS}, s{61+h} offen {mod}")
    lstamp(a, 16)
    a("s_mov_b32 s68, 0xffff0000\ns_waitcnt vmcnt(6)")
    poll(a, "s1g", 53, "s72", True, 2, 1)
    a(f"v_cmp_ne_u32 s[72:73], v{VT+1}, v{VX}")
    for k in range(4): a(f"v_lshlrev_b32 v{168+2*k}, 16, v{GG+k}\nv_and_b32 v{169+2*k}, s68, v{GG+k}")
    for k in range(4):
        for r in range(2):
            x = GX + 4 * r + k; t = 180 + 2 * r
            a(f"v_lshlrev_b32 v{t}, 16, v{x}\nv_and_b32 v{t+1}, s68, v{x}\nv_mul_f32 v{t}, v{t}, v{168+2*k}\nv_mul_f32 v{t+1}, v{t+1}, v{169+2*k}")
            a(f"v_cvt_pk_bf16_f32 v{x}, v{t}, v{t+1}")
    a("s_waitcnt vmcnt(0)")
    a("s_cmp_eq_u64 s[72:73], 0\ns_cbranch_scc0 L_st_far")
    signal(a, "s70", "")
    a("s_branch L_st_done\nL_st_far:")
    signal(a, "s70", SC)
    a.reset(); a("L_st_done:")
    lstamp(a, 17)
    a(f"buffer_load_dword v{VT}, v54, {R_WS}, s71 offen {SC}")
    for k in range(4):
        for r in range(2):
            x = GX + 4 * r + k; t = 180 + 2 * r
            a(f"v_and_b32 v{t+1}, s68, v{x}\nv_lshlrev_b32 v{t}, 16, v{x}")
            if k == 0: a(f"v_add_f32 v{176+r}, v{t}, v{t+1}")
            else: a(f"v_add_f32 v{176+r}, v{176+r}, v{t}\nv_add_f32 v{176+r}, v{176+r}, v{t+1}")
    wo_pack = [f"v_or_b32 v{DB+j}, v{GO+2*j}, v{GO+2*j+1}" for j in range(4)]
    for d in ("row_shr:1 row_mask:0xf bank_mask:0xf bound_ctrl:0", "row_shr:2 row_mask:0xf bank_mask:0xf bound_ctrl:0",
              "row_shr:4 row_mask:0xf bank_mask:0xf bound_ctrl:0", "row_shr:8 row_mask:0xf bank_mask:0xf bound_ctrl:0",
              "row_bcast:15 row_mask:0xa bank_mask:0xf", "row_bcast:31 row_mask:0xc bank_mask:0xf"):
        if wo_pack: a(wo_pack.pop())
        for r in range(2): a(f"v_add_f32_dpp v{176+r}, v{176+r}, v{176+r} {d}")
    a(f"""
    v_cvt_pk_bf16_f32 v178, v176, v177
    s_mov_b32 s60, {LOG2E}
    v_lshlrev_b32 v176, 16, v178
    v_and_b32 v177, s68, v178
    v_mul_f32 v176, s60, v176
    v_mul_f32 v177, s60, v177
    v_exp_f32 v176, -v176
    v_exp_f32 v177, -v177
    v_add_f32 v176, 1.0, v176
    v_add_f32 v177, 1.0, v177
    v_rcp_f32 v176, v176
    v_rcp_f32 v177, v177
    s_nop 0
    v_cvt_pk_bf16_f32 v178, v176, v177
    v_lshlrev_b32 v{DB+4}, 16, v178
    v_and_b32 v{DB+5}, s68, v178
    """)
    a("s_waitcnt vmcnt(0)")
    poll(a, "s2", 54, "s71", True, sleep=1)
    lstamp(a, 2)
    a(f"""
    buffer_load_dwordx4 {vr(AQ,4)}, v1, {R_WS}, s77 offen {SC}
    s_add_u32 m0, s79, {QS}
    s_add_u32 s80, s77, 4096
    buffer_load_dwordx4 v1, {R_WS}, s80 offen {SC} lds
    """)
    kv_dma(a, range(3), SC, True)
    a("s_waitcnt vmcnt(4)")

def deferred_stores(a):
    a(f"s_cmp_lt_u32 {SW}, 4\ns_cbranch_scc1 L_df_g")
    for ci in range(4): a(f"buffer_store_dwordx2 {vr(DB+2*ci,2)}, v{DA+ci}, {R_WS}, s66 offen {SC}")
    a(f"""
    s_branch L_df_done
    L_df_g:
    buffer_store_dwordx4 {vr(DB,4)}, v1, {R_WS}, s69 offen {SC}
    s_mov_b32 exec_lo, 0
    s_mov_b32 exec_hi, 0x80000000
    buffer_store_dwordx2 {vr(DB+4,2)}, v{VZ}, {R_WS}, s67 offen {SC}
    s_mov_b64 exec, -1
    L_df_done:
    """)

CA, CB, CU, CD, CE = 86, 87, 88, 90, 91
CACC = 32
def conv(a):
    FA = (96, 160); FB = (128, 192)
    q = []
    def issue(key, txt):
        if len(q) >= 15:
            a("s_waitcnt lgkmcnt(14)"); del q[:len(q) - 14]
        a(txt); q.append(key)
    def need(keys):
        idx = [i for i, k in enumerate(q) if k in keys]
        if idx:
            a(f"s_waitcnt lgkmcnt({len(q) - 1 - max(idx)})"); del q[:max(idx) + 1]
    def rd_list(rho):
        s = rho & 1; l = []
        for i in range(8):
            l.append(((rho, "A", i), f"ds_read_b128 {vr(FA[s]+4*i,4)}, v{CA} offset:{512*(7-i) + 64*(3-rho)}"))
            l.append(((rho, "B", i), f"ds_read_b128 {vr(FB[s]+4*i,4)}, v{CB} offset:{512*i + 64*(3-rho)}"))
        return l
    for k, t in rd_list(0): issue(k, t)
    seen = set()
    mms = sorted([(sg, dl) for sg in range(8) for dl in range(8 - sg)], key=lambda m: max(2 * m[0], 2 * m[1] + 1))
    for rho in range(4):
        s = rho & 1
        nxt = rd_list(rho + 1) if rho < 3 else [(("u", i), f"ds_read_b64 {vr(DB+2*i,2)}, v{CU} offset:{512*i}") for i in range(4)]
        k0 = 14 if rho == 0 else 0
        for k, (sg, dl) in enumerate(mms):
            if rho == 0: need({(rho, "A", sg), (rho, "B", dl)})
            elif k == 0: need({(rho, "B", 7)})
            c = sg + dl; acc = vr(CACC + 4 * c, 4)
            a(f"v_mfma_f32_16x16x32_bf16 {acc}, {vr(FA[s]+4*sg,4)}, {vr(FB[s]+4*dl,4)}, {acc if c in seen else '0'}")
            seen.add(c)
            if k >= k0 and (k - k0) % 2 == 0:
                for x in nxt[k - k0:k - k0 + 2]: issue(*x)
    a("s_cmp_eq_u32 s53, 0\ns_cbranch_scc0 L_cv_hi\ns_nop 5")
    for i in range(4): a(f"ds_write_b128 v{CE}, {vr(CACC+16+4*i,4)} offset:{1024*i}")
    a("s_branch L_cv_sent\nL_cv_hi:\ns_nop 5")
    for i in range(4): a(f"ds_write_b128 v{CE}, {vr(CACC+4*i,4)} offset:{1024*i}")
    a("s_nop 1")
    for i in range(16): a(f"v_mov_b32 v{CACC+i}, v{CACC+16+i}")
    a(f"L_cv_sent:\nv_xor_b32 v{CE}, 0x1000, v{CE}\ns_waitcnt lgkmcnt(0)")

def conv_finish(a):
    a(f"s_cmp_lt_u32 {SW}, 4\ns_cbranch_scc1 L_cv_fin")
    for i in range(4): a(f"ds_read_b128 {vr(96+4*i,4)}, v{CE} offset:{1024*i}")
    a(f"s_add_u32 s68, s79, {QS - 4096}\nv_add_u32 v4, s68, v1\nds_read_b128 {vr(AQ,4)}, v4")
    a("s_mov_b32 s68, 0xffff0000")
    for i in range(8): a(f"v_lshlrev_b32 v{48+2*i}, 16, v{DB+i}\nv_and_b32 v{49+2*i}, s68, v{DB+i}")
    for i in range(16): a(f"v_fmac_f32 v{CACC+i}, v{48+i}, v{CD}")
    a("s_waitcnt lgkmcnt(0)")
    for i in range(16): a(f"v_add_f32 v{CACC+i}, v{CACC+i}, v{96+i}")
    for i in range(8): a(f"v_cvt_pk_bf16_f32 v{DB+i}, v{CACC+2*i}, v{CACC+2*i+1}")
    a("L_cv_fin:")

def a_params(a):
    aux_ids(a)
    a(f"""
    s_lshl_b32 s55, s54, 8
    s_lshl_b32 s56, s53, 7
    s_add_u32 s55, s55, s56
    v_lshlrev_b32 v1, 1, v0
    v_add_u32 v1, s55, v1
    s_lshl_b32 s56, s54, 1
    v_mov_b32 v2, s56
    global_load_short_d16_hi v10, v1, {S_LOGA} {OPT.get('pmod', '')}
    global_load_short_d16_hi v14, v2, {S_LDT}
    global_load_short_d16_hi v11, v1, {S_AIM} {OPT.get('pmod', '')}
    global_load_short_d16_hi v12, v1, {S_CR} {OPT.get('pmod', '')}
    global_load_short_d16_hi v13, v1, {S_CI} {OPT.get('pmod', '')}
    global_load_short_d16_hi v{CD}, v2, {S_DSK}
    """)
    epoch_load(a)
    if not OPT.get("nowpf"):
        a(f"""
        s_lshl_b32 s62, {SX}, 5
        s_add_u32 s62, s62, {SJ}
        s_lshr_b32 s63, s62, 3
        s_and_b32 s62, s62, 7
        s_lshl_b32 s62, s62, 16
        s_lshl_b32 s63, s63, 5
        s_add_u32 s62, s62, s63
        s_lshl_b32 s63, s51, 14
        s_add_u32 s62, s62, s63
        v_lshlrev_b32 v3, 10, v0
        v_add_u32 v3, s62, v3
        s_mov_b64 exec, 0xffff
        global_load_dword v92, v3, {S_WO}
        s_mov_b64 exec, -1
        """)
    if OPT.get("touch") == "start":
        a(f"""
        s_lshl_b32 s60, {SX}, 2
        s_lshl_b32 s61, s52, 1
        s_add_u32 s60, s60, s61
        s_lshl_b32 s60, s60, 6
        s_lshl_b32 s61, {SJ}, 1
        s_add_u32 s61, s61, s53
        s_add_u32 s60, s60, s61
        s_lshl_b32 s61, s60, 10
        s_add_u32 s61, s61, {QF}
        s_lshl_b32 s60, s60, 11
        s_add_u32 s60, s60, {KV}
        v_and_b32 v4, 15, v0
        v_lshlrev_b32 v4, 7, v4
        v_bfe_u32 v5, v0, 4, 1
        v_lshl_add_u32 v4, v5, 17, v4
        v_and_b32 v5, 7, v0
        v_lshlrev_b32 v5, 7, v5
        v_bfe_u32 v6, v0, 3, 1
        v_lshl_add_u32 v5, v6, 16, v5
        s_mov_b64 exec, 0xffffffff
        buffer_load_dword v9, v4, {R_WS}, s60 offen
        s_mov_b64 exec, 0xffff
        buffer_load_dword v8, v5, {R_WS}, s61 offen
        s_mov_b64 exec, -1
        """.replace("v9,", "v91,").replace("v8,", "v89,"))
    if OPT.get("nocpf") == "0":
        a(f"""
        s_getpc_b64 s[62:63]
        L_pc:
        s_and_b32 s64, {SJ}, 3
        s_lshl_b32 s64, s64, 2
        s_add_u32 s64, s64, s51
        s_lshl_b32 s64, s64, 11
        v_lshlrev_b32 v3, 7, v0
        v_add_u32 v3, s64, v3
        v_min_u32 v3, L_codeend - L_pc - 4, v3
        v_mov_b32 v5, s63
        v_add_co_u32 v4, vcc, s62, v3
        v_addc_co_u32 v5, vcc, 0, v5, vcc
        s_mov_b64 exec, 0xffff
        global_load_dword v93, v[4:5], off
        s_mov_b64 exec, -1
        """)

def rows(a, regs, row0, neg, tb):
    for k, r in enumerate(regs):
        if r is None: a(f"v_mov_b32 v{tb+k}, 0x3f80")
        else: a(f"v_cvt_pk_bf16_f32 v{tb+k}, v{r}, {'-' if neg else ''}v{r+1}")
    for k in range(len(regs)): a(f"ds_write_addtid_b32 v{tb+k} offset:{272*(row0+k)}")
    return row0 + len(regs)

def smul_list(ops):
    T = list(range(32, 40)) + [16, 17, 18, 19]; l = []
    for k, (d, x, w) in enumerate(ops): l += [f"v_mul_f32 v{T[2*k]}, v{x+1}, v{w+1}", f"v_mul_f32 v{T[2*k+1]}, v{x}, v{w+1}"]
    for k, (d, x, w) in enumerate(ops):
        if d == w:
            l += [f"v_fma_f32 v{d+1}, v{x+1}, v{w}, v{T[2*k+1]}", f"v_fma_f32 v{d}, v{x}, v{w}, -v{T[2*k]}"]
        else:
            l += [f"v_fma_f32 v{d}, v{x}, v{w}, -v{T[2*k]}", f"v_fma_f32 v{d+1}, v{x+1}, v{w}, v{T[2*k+1]}"]
    return l

def touch(a, where):
    tps = OPT.get("tps", "b9,b9,b9").split(","); mod = OPT.get("tmod", ""); n = 0
    if where == min(tps):
        a(f"""
        s_lshl_b32 s60, {SX}, 2
        s_lshl_b32 s61, s52, 1
        s_add_u32 s60, s60, s61
        s_lshl_b32 s60, s60, 6
        s_lshl_b32 s61, {SJ}, 1
        s_add_u32 s61, s61, s53
        s_add_u32 s60, s60, s61
        s_lshl_b32 s61, s60, 10
        s_add_u32 s61, s61, {QF}
        s_lshl_b32 s60, s60, 11
        s_add_u32 s60, s60, {KV}
        v_and_b32 v85, 7, v0
        v_lshlrev_b32 v85, 7, v85
        v_bfe_u32 v84, v0, 3, 1
        v_lshl_add_u32 v58, v84, 16, v85
        v_lshl_add_u32 v85, v84, 17, v85
        """)
    for k, p in enumerate(tps):
        if p != where: continue
        if n == 0: a("s_mov_b64 exec, 0xffff")
        a(f"buffer_load_dword v{82+k}, v{58 if k == 2 else 85}, {R_WS}, {'s61' if k == 2 else 's60'} offen offset:{1024 if k == 1 else 0} {mod}"); n += 1
    if n: a("s_mov_b64 exec, -1")
    return n

def a_phase1(a0):
    class Flt:
        on = False
        def __call__(self, txt):
            m = OPT.get("noA")
            if not (self.on and m): return a0(txt)
            for ln in txt.split("\n"):
                l = ln.strip()
                if "w" in m and l.startswith(("ds_write_addtid", "ds_write_b128")): continue
                if "r" in m and l.startswith(("ds_read_b128", "ds_read_b64 ")): continue
                if "m" in m and l.startswith("v_mfma"): continue
                if "v" in m and l.startswith(("v_pk_", "v_fma_f32", "v_mul_f32", "v_cvt_pk", "v_sin", "v_cos", "v_exp", "v_fract", "v_alignbit", "v_bfi", "v_add_f32")): continue
                a0(ln)
        def reset(self): a0.reset()
    a = Flt()
    vm = VM()
    vm.add("par", 7)
    if not OPT.get("nowpf"): vm.add("wpf")
    if OPT.get("touch") == "start": vm.add("touch", 2)
    if OPT.get("nocpf") == "0": vm.add("cpf")
    a("s_setprio 2")
    a(f"""
    s_mul_i32 s65, s51, {TBS}
    s_mov_b32 m0, s65
    s_mov_b32 s66, {LOG2E}
    s_mov_b32 s68, 0xffff0000
    s_mov_b32 s69, {INV2PI}
    s_mov_b32 s62, 0x41000000
    s_mov_b32 s63, 0x43800000
    
    """)
    late = [x.strip() for x in f"""
    v_and_b32 v1, 31, v0
    v_lshrrev_b32 v2, 5, v0
    v_lshlrev_b32 v2, 4, v2
    s_mul_i32 s73, s52, {2*TBS}
    v_add_u32 v54, s73, v2
    v_mov_b32 v3, 272
    v_mad_u32_u24 v7, v1, v3, v54
    s_mul_i32 s65, s51, {HTS}
    s_mul_i32 s73, s52, {2*HTS}
    v_add_u32 v2, s73, v2
    v_bfe_u32 v8, v0, 3, 1
    v_and_b32 v9, 3, v0
    v_lshl_add_u32 v8, v8, 2, v9
    v_cvt_f32_u32 v8, v8
    v_bfe_u32 v9, v0, 4, 1
    v_bfe_u32 v52, v0, 2, 1
    v_lshl_add_u32 v9, v9, 1, v52
    v_min_u32 v52, 2, v9
    v_sub_u32 v52, 0, v52
    v_ldexp_f32 v52, v8, v52
    v_rndne_f32 v52, v52
    v_cvt_u32_f32 v52, v52
    v_lshlrev_b32 v53, 3, v9
    s_mov_b32 s73, 0x100d0800
    v_lshrrev_b32 v53, v53, s73
    v_and_b32 v53, 0xff, v53
    v_add_u32 v52, v52, v53
    v_mul_f32 v8, 0.125, v8
    v_rndne_f32 v8, v8
    v_cvt_u32_f32 v8, v8
    v_lshl_add_u32 v8, v9, 1, v8
    v_add_u32 v8, 19, v8
    s_cmp_eq_u32 s53, 0
    s_cselect_b64 vcc, -1, 0
    s_cselect_b32 s70, 0, 0xaaaaaaaa
    s_mov_b32 s71, s70
    v_cndmask_b32 v9, v8, v52, vcc
    v_mad_u32_u24 v9, v9, v3, v2
    ; transpose addresses: v4/v5 LDS, v6 + s60 workspace; s61 = hand-off word, s72 = line this wave waits on
    v_lshrrev_b32 v1, 4, v0
    v_bfe_u32 v2, v0, 2, 2
    v_lshl_add_u32 v2, v1, 3, v2
    v_bfe_u32 v3, v0, 1, 1
    s_lshl_b32 s73, s51, 1
    v_add_u32 v3, s73, v3
    v_bfe_u32 v4, v2, 1, 3
    v_xor_b32 v4, v4, v3
    v_and_b32 v5, 1, v0
    v_lshlrev_b32 v5, 3, v5
    v_lshl_add_u32 v5, v2, 7, v5
    v_add_u32 v5, {slot_addr(0)}, v5
    v_xor_b32 v6, 2, v4
    v_lshl_add_u32 v4, v4, 4, v5
    v_lshl_add_u32 v5, v6, 4, v5
    v_bfe_u32 v6, v0, 1, 3
    v_lshlrev_b32 v6, 13, v6
    v_and_b32 v3, 1, v0
    v_lshl_add_u32 v6, v3, 6, v6
    v_lshl_add_u32 v6, v1, 4, v6
    s_lshl_b32 s60, {SX}, 18
    s_lshl_b32 s64, s51, 16
    s_add_u32 s60, s60, s64
    s_lshl_b32 s64, {SJ}, 8
    s_add_u32 s60, s60, s64
    s_add_u32 s60, s60, {XT}
    s_lshl_b32 s72, {SX}, 2
    s_add_u32 s61, s72, s51
    s_lshl_b32 s61, s61, 8
    s_lshl_b32 s64, {SJ}, 3
    s_add_u32 s61, s61, s64
    s_add_u32 s61, s61, {F_S1}
    s_lshr_b32 s64, {SJ}, 3
    s_add_u32 s72, s72, s64
    s_lshl_b32 s72, s72, 8
    s_add_u32 s72, s72, {F_S1}
    s_getreg_b32 s64, hwreg(HW_REG_XCC_ID)
    v_mov_b32 v{VX}, s64
    """.strip().split("\n") if not x.strip().startswith(";")]
    for _ in range(int(OPT.get("asetup", 25))):
        if late: a(late.pop(0))
    vm.wait(a, "par")
    a.on = True
    lstamp(a, 31)
    a(f"""
    v_mul_f32 v14, s66, v14
    v_mul_f32 v10, s66, v10
    v_exp_f32 v14, v14
    v_exp_f32 v10, v10
    s_mov_b32 s56, 1664525
    v_mul_lo_u32 v{VN}, v{VN}, s56
    v_add_u32 v{VN}, 1013904223, v{VN}
    v_cvt_pk_bf16_f32 v15, v14, v10
    v_lshlrev_b32 v14, 16, v15
    v_and_b32 v10, s68, v15
    v_mul_f32 v10, v10, v14
    v_mul_f32 v11, v11, v14
    v_mul_f32 v10, s66, v10
    v_mul_f32 v11, s69, v11
    """)
    L = lambda i: 76 + 2 * i
    H = lambda p: 40 + 2 * p if p < 8 else 28
    LF, HF, AK, HP = 96, 160, 224, 59
    cexp(a, [(L(1), "s62")])
    cmuls(a, [(L(2), L(1), L(1))])
    cmuls(a, [(L(3), L(2), L(1)), (84, L(2), L(2))])
    r = rows(a, [None, L(1), L(2), L(3)], 0, False, 72)
    cmuls(a, [(L(i), L(i), 84) for i in range(1, 4)])
    r = rows(a, [84, L(1), L(2), L(3)], r, False, 16)
    cmuls(a, [(L(0), 84, 84)] + [(L(i), L(i), 84) for i in range(1, 4)])
    for g in range(2, 8):
        r = rows(a, [L(i) for i in range(4)], r, False, 72 if g & 1 == 0 else 16)
        if g < 7: cmuls(a, [(L(i), L(i), 84) for i in range(4)])
        for _ in range(12):
            if late: a(late.pop(0))
    while late: a(late.pop(0))
    assert r == 32
    lstamp(a, 24)
    a("s_waitcnt lgkmcnt(0)\ns_barrier")
    a("""
    ds_read_b64_tr_b16 v[224:225], v4
    ds_read_b64_tr_b16 v[226:227], v5 offset:512
    ds_read_b64_tr_b16 v[228:229], v4 offset:4096
    ds_read_b64_tr_b16 v[230:231], v5 offset:4608
    """)
    lrd = [f"ds_read_b128 {vr(LF+4*ks,4)}, v7 offset:{TBS*(ks>>3) + 32*(ks&7)}" for ks in range(16)]
    for x in lrd[:8]: a(x)
    a("v_mul_f32 v40, v12, v14\nv_mul_f32 v41, v13, v14\nv_add_f32 v40, v40, v40\nv_add_f32 v41, v41, v41\ns_mov_b32 m0, s65")
    a(f"""
    s_waitcnt lgkmcnt(7)
    buffer_store_dwordx4 v[224:227], v6, {R_WS}, s60 offen {SC}
    buffer_store_dwordx4 v[228:231], v6, {R_WS}, s60 offen offset:128 {SC}
    """)
    vm.add("xt", 2)
    for x in lrd[8:]: a(x)
    cexp(a, [(20, None), (24, "s63")])
    hl = []; row = [0]
    def hm(ops): hl.extend(smul_list(ops))
    def hp(regs):
        for g in regs: hl.append(f"v_cvt_pk_bf16_f32 v{HP+row[0]}, v{g}, -v{g+1}"); row[0] += 1
    hm([(H(1), H(0), 20), (22, 20, 20)])
    hm([(H(2), H(0), 22), (H(3), H(1), 22), (26, 22, 22), (30, 24, 24)])
    hm([(H(4 + i), H(i), 26) for i in range(4)])
    hm([(H(8), H(4), 26)]); hp([H(p) for p in range(8)])
    for grp in ((0, 2, 4, 6, 8), (0, 4, 8), (0, 4, 8)):
        hm([(H(p), H(p), 24) for p in grp]); hp([H(p) for p in grp])
    hm([(42, H(0), 24), (46, H(8), 24)])
    hm([(50, 42, 24), (52, 46, 24), (H(0), 42, 30), (H(8), 46, 30)])
    hm([(44, 50, 30), (48, 52, 30)]); hp([42, 46, 50, 52, H(0), H(8), 44, 48])
    assert row[0] == 27
    cut = int(OPT.get("hcut", 64))
    for x in hl[:cut]: a(x)
    lstamp(a, 19)
    a("s_waitcnt lgkmcnt(0)\ns_barrier")
    done = 0
    for k, x in enumerate(hl[cut:]):
        a(x)
        n = sum("cvt" in y for y in hl[:cut + k + 1])
        if n - done >= 8 or (k == len(hl) - cut - 1):
            for j in range(done, n): a(f"ds_write_addtid_b32 v{HP+j} offset:{272*j}")
            done = n
    vm.wait(a, "xt"); signal(a, "s61", SC, 2); vm.add("f1")
    lstamp(a, 20)
    a("s_waitcnt lgkmcnt(0)\ns_setprio 0\ns_barrier")
    hrd = [f"ds_read_b128 {vr(HF+4*ks,4)}, v9 offset:{HTS*(ks>>3) + 32*(ks&7)}" for ks in range(16)]
    for x in hrd[:12]: a(x)
    a(f"""
    v_lshlrev_b32 v1, 4, v0
    v_mov_b32 v60, 0
    v_mov_b32 v61, 0
    v_mov_b32 v62, 0
    v_mov_b32 v63, 0
    s_mul_i32 s67, s52, {KXD}
    s_add_u32 s67, s67, {KX0}
    v_mov_b32 v3, s67
    s_lshl_b32 s66, s53, 11
    s_add_u32 s66, s66, s67
    v_lshrrev_b32 v2, 5, v0
    v_and_b32 v4, 31, v0
    v_lshlrev_b32 v4, 4, v4
    v_lshl_add_u32 v2, v2, 9, v4
    v_add_u32 v2, s66, v2
    s_waitcnt lgkmcnt(4)
    """)
    for x in hrd[12:]: a(x)
    km = lambda ks: a(f"v_mfma_f32_32x32x16_bf16 {vr(AK,16)}, {vr(HF+4*ks,4)}, {vr(LF+4*ks,4)}, {'0' if ks == 0 else vr(AK,16)}")
    for ks in range(8): km(ks)
    lstamp(a, 21)
    a("s_waitcnt lgkmcnt(0)\ns_barrier")
    bulk = att_bulk()
    for ks in range(8, 16):
        km(ks)
        for x in bulk[7 * (ks - 8):7 * (ks - 7)]: a(x)
    a("ds_write_b128 v3, v[60:63]")
    for rg in range(2): a(f"v_cndmask_b32 v{AK+8*rg+4}, v{AK+8*rg+4}, v{AK+8*rg+5}, s[70:71]")
    for i in range(8): a(f"v_cvt_pk_bf16_f32 v{40+i}, v{AK+2*i}, v{AK+2*i+1}")
    for rg in range(2): a(f"ds_write_b128 v2, {vr(40+4*rg,4)} offset:{16 + 1024*rg}")
    lstamp(a, 22)
    a("s_waitcnt lgkmcnt(0)\ns_barrier")
    a(f"v_and_b32 v55, 31, v0\nv_lshlrev_b32 v55, 3, v55\nbuffer_load_dword v{VT}, v55, {R_WS}, s72 offen {SC}")
    n4 = touch(a, "b4")
    a(f"""
    v_add_u32 v2, s66, v1
    ds_read_b64 v[40:41], v2 offset:8
    ds_read_b128 v[42:45], v2 offset:16
    ds_read_b64 v[46:47], v2 offset:{1024+8}
    ds_read_b128 v[48:51], v2 offset:{1024+16}
    s_cmp_eq_u32 s52, 0
    s_cselect_b32 s67, 0, {slot_addr(4)}
    v_bfe_u32 v2, v0, 2, 2
    v_mul_u32_u24 v2, {RE}, v2
    v_and_b32 v3, 3, v0
    v_min_u32 v3, 2, v3
    v_lshl_add_u32 v2, v3, 4, v2
    v_add_u32 v52, s67, v2
    s_lshl_b32 s69, s53, 11
    s_sub_u32 s66, s67, s69
    s_add_u32 s66, s66, {255*16 - 1024}
    v_sub_u32 v53, s66, v1
    v_min_u32 v2, 32, v0
    s_mul_i32 s66, s53, {US}
    s_add_u32 s66, s66, s67
    s_add_u32 s66, s66, {RSZ}
    v_lshl_add_u32 v54, v2, 4, s66
    s_mov_b32 s69, 0xffff
    s_waitcnt lgkmcnt(0)
    """)
    RG = 96
    for q in range(2):
        w = lambda i: 40 + 6 * q + 2 + i
        for e in range(4):
            o = RG + 16 * q + 4 * e
            for i in range(4):
                hi = 3 - i - (0 if e >= 2 else 1)
                if e & 1: a(f"v_alignbit_b32 v{o+i}, v{w(hi)}, v{w(hi)}, 16")
                else: a(f"v_bfi_b32 v{o+i}, s69, v{w(hi)}, v{w(hi-1)}")
    a.on = False
    a(f"""
    v_lshlrev_b32 v1, 4, v0
    v_mov_b32 v60, 0
    s_lshl_b32 s66, s51, 2
    s_add_u32 s66, s66, 32000
    v_mov_b32 v59, s66
    ds_write_b32 v59, v60
    s_lshl_b32 s71, {SX}, 18
    s_lshl_b32 s69, {SJ}, 13
    s_add_u32 s71, s71, s69
    s_lshl_b32 s69, s52, 6
    s_add_u32 s71, s71, s69
    s_lshl_b32 s69, s53, 12
    s_add_u32 s71, s71, s69
    s_add_u32 s71, s71, {XT}
    v_lshrrev_b32 v2, 2, v0
    v_and_b32 v3, 3, v0
    v_lshlrev_b32 v3, 4, v3
    v_lshl_add_u32 v56, v2, 7, v3
    s_lshl_b32 s70, s53, 11
    s_add_u32 s69, s67, s70
    s_add_u32 s69, s69, {RSZ + 512}
    v_add_u32 v57, s69, v1
    s_lshl_b32 s73, s53, 8
    s_sub_u32 s73, s67, s73
    s_add_u32 s66, s73, {4128 - 64*7 - 512*7 + 256}
    v_and_b32 v4, 3, v0
    v_mul_u32_u24 v4, {RE}, v4
    v_lshrrev_b32 v2, 4, v0
    v_bfe_u32 v3, v0, 2, 2
    v_add_u32 v3, v3, v2
    v_lshlrev_b32 v3, 4, v3
    v_sub_u32 v4, v4, v3
    v_add_u32 v{CA}, s66, v4
    s_add_u32 s66, s73, {RSZ + US + 512 + 48 - 64*7 + 256}
    v_bfe_u32 v4, v0, 1, 3
    v_lshlrev_b32 v4, 6, v4
    v_lshlrev_b32 v3, 4, v2
    v_sub_u32 v5, v4, v3
    v_add_u32 v4, v4, v3
    v_and_b32 v3, 1, v0
    v_lshl_add_u32 v4, v3, 3, v4
    v_mul_u32_u24 v3, {US}, v3
    v_sub_u32 v5, v5, v3
    v_add_u32 v{CB}, s66, v5
    v_add_u32 v{CU}, s69, v4
    v_add_u32 v{DA}, s70, v4
    v_add_u32 v{DA+1}, 512, v{DA}
    v_add_u32 v{DA+2}, 1024, v{DA}
    v_add_u32 v{DA+3}, 1536, v{DA}
    s_lshl_b32 s66, s51, 12
    s_add_u32 s66, s66, {OS}
    v_add_u32 v{CE}, s66, v1
    s_lshl_b32 s66, s54, 12
    s_add_u32 s66, s66, {BT}
    """)
    for x in att_addr(): a(x)
    lstamp(a, 23)
    a("s_waitcnt lgkmcnt(0)\ns_barrier")
    def uload():
        for q in range(2): a(f"buffer_load_dwordx4 {vr(32+4*q,4)}, v56, {R_WS}, s71 offen offset:{2048*q} {SC}")
    def ustore():
        for q in range(2): a(f"ds_write_b128 v57, {vr(32+4*q,4)} offset:{1024*q}")
        for q in range(2):
            a(f"ds_write_b64 v57, {vr(32+4*q,2)} offset:{1024*q + US + 8}")
            a(f"ds_write_b64 v57, {vr(34+4*q,2)} offset:{1024*q + US + 16}")
    a(f"""
    s_waitcnt vmcnt({n4})
    v_cmp_ne_u32 s[94:95], v{VT}, v{VN}
    s_cmp_lg_u64 s[94:95], 0
    s_cbranch_scc1 L_u_skip
    """)
    uload()
    a("L_u_skip:")
    nt = touch(a, "b5")
    a.on = True
    a("ds_write_b128 v52, v[60:63] offset:4096\nds_write_b128 v54, v[60:63]")
    rw = [f"ds_write_b128 v53, {vr(RG+16*q+4*e,4)} offset:{e*RE + 1024*(1-q)}" for q in range(2) for e in range(4)]
    rcut = int(OPT.get("rcut", 5))
    for x in rw[:rcut]: a(x)
    a("s_waitcnt lgkmcnt(0)\ns_barrier")
    for x in rw[rcut:]: a(x)
    a.on = False
    if OPT.get("uearly"):
        a(f"s_cmp_lg_u64 s[94:95], 0\ns_cbranch_scc1 L_u_late\ns_waitcnt vmcnt({nt})")
        ustore()
        a("ds_write_b32 v59, v59")
        touch(a, "b6")
        a("s_barrier\ns_branch L_u_have\nL_u_late:")
        touch(a, "b6")
        a("s_barrier")
        poll(a, "s1", 55, "s72")
        uload()
        a("s_waitcnt vmcnt(0)")
        ustore()
        a("ds_write_b32 v59, v59\nL_u_have:")
    else:
        nt += touch(a, "b6")
        a("s_barrier")
        a(f"s_cmp_lg_u64 s[94:95], 0\ns_cbranch_scc0 L_u_have")
        poll(a, "s1", 55, "s72")
        uload()
        a(f"s_waitcnt vmcnt(0)\nL_u_have:\ns_waitcnt vmcnt({nt})")
        ustore()
        a("ds_write_b32 v59, v59")
    a(f"""
    v_xor_b32 v59, 4, v59
    s_mov_b32 s92, {SPIN}
    L_pair:
    ds_read_b32 v57, v59
    s_waitcnt lgkmcnt(0)
    v_readfirstlane_b32 s93, v57
    s_sub_u32 s92, s92, 1
    s_cmp_eq_u32 s92, 0
    s_cbranch_scc1 L_pair_ok
    s_cmp_eq_u32 s93, 0
    s_cbranch_scc1 L_pair
    L_pair_ok:
    """)
    lstamp(a, 25)
    conv(a)
    lstamp(a, 3)

def att_main(a, hooks, prios):
    p2, pr, pq, p1 = [int(x) for x in OPT.get("ord", "2,2,5,10").split(",")]
    def rdk(t):
        p = (t + T0) & 63; b, o = (1, 2048 * p) if p < 32 else (80, 2048 * (p - 32))
        a(f"ds_read_b128 {vr(AKS[t&1],4)}, v{b} offset:{o}")
    def rdv(t):
        p = (t + T0) & 63; b, o = (2, 2048 * p) if p < 32 else (81, 2048 * (p - 32))
        a("s_mov_b64 exec, s[82:83]")
        a(f"ds_read_b128 {vr(AV1[t&1],4)}, v{b} offset:{o}")
        a(f"ds_read_b128 {vr(AV2[t&1],4)}, v{b} offset:{o+512}")
        a("s_mov_b64 exec, -1")
    rdk(0); rdk(1); rdv(0)
    a("s_waitcnt lgkmcnt(3)")
    a(f"v_mfma_f32_32x32x16_bf16 {vr(AS_[0],16)}, {vr(AKS[0],4)}, {vr(AQ,4)}, 0")
    for t in range(64):
        c, n = AS_[t & 1], AS_[(t + 1) & 1]
        if t in prios: a(f"s_setprio {prios[t]}")
        k = 0
        for e in range(17):
            if e == p2 and t: a(f"v_smfmac_f32_32x32x32_bf16 {vr(AO,16)}, {vr(AV2[(t-1)&1],4)}, {vr(n+8,8)}, v3")
            if e == pq and pq < pr: a("s_waitcnt lgkmcnt(0)")
            if e == pq and pq < pr and t + 1 < 64: a(f"v_mfma_f32_32x32x16_bf16 {vr(n,16)}, {vr(AKS[(t+1)&1],4)}, {vr(AQ,4)}, 0")
            if e == pr:
                if t in hooks: hooks[t]()
                if OPT.get("kfirst") and t + 2 < 64: rdk(t + 2); k += 1
                if t + 1 < 64: rdv(t + 1); k += 2
                if not OPT.get("kfirst") and t + 2 < 64: rdk(t + 2); k += 1
            if e == pq and pq >= pr:
                a(f"s_waitcnt lgkmcnt({k})")
                if t + 1 < 64: a(f"v_mfma_f32_32x32x16_bf16 {vr(n,16)}, {vr(AKS[(t+1)&1],4)}, {vr(AQ,4)}, 0")
            if e == p1: a(f"v_smfmac_f32_32x32x32_bf16 {vr(AO,16)}, {vr(AV1[t&1],4)}, {vr(c,8)}, v3")
            if e < 16: a(f"v_exp_f32 v{c+e}, v{c+e}")
    a(f"v_smfmac_f32_32x32x32_bf16 {vr(AO,16)}, {vr(AV2[1],4)}, {vr(AS_[1]+8,8)}, v3")

def att_finish2(a, tag):
    a(f"s_mov_b32 s84, 0x2b800000\ns_mov_b32 s85, 0x5d800000\nv_fma_f32 v8, v{AO}, 0, v{AO+8}")
    for r in range(1, 8): a(f"v_fma_f32 v8, v{AO+r}, 0, v8")
    a(f"""
    v_cmp_nge_f32 vcc, v8, s84
    v_cmp_nle_f32 s[90:91], v8, s85
    s_or_b64 vcc, vcc, s[90:91]
    s_cbranch_vccnz L_{tag}_slow
    L_{tag}_norm:
    v_rcp_f32 v8, v{AO+8}
    """)
    for r in range(8): a(f"v_mul_f32 v{AO+r}, v8, v{AO+r}")
    for r in range(4): a(f"v_cvt_pk_bf16_f32 v{12+r}, v{AO+2*r}, v{AO+2*r+1}")
    for r in range(4): a(f"v_min_u32 v{12+r}, -2, v{12+r}")
    a(f"buffer_store_dwordx4 v[12:15], v1, {R_WS}, s87 offen {OPT.get('ostm', SC).replace('_', ' ')}")

def out_gemm(a):
    a(f"""
    v_lshlrev_b32 v2, 9, v86
    v_lshl_add_u32 v2, v87, 4, v2
    v_add_u32 v2, {OS}, v2
    v_lshlrev_b32 v3, 10, v87
    v_lshl_add_u32 v3, v86, 3, v3
    s_lshl_b32 s84, s88, 15
    s_lshl_b32 s86, s89, 5
    s_add_u32 s84, s84, s86
    v_add_u32 v3, s84, v3
    v_add_u32 v4, 0x4000, v3
    """)
    def go():
        NB = 12; FB = 16
        rd = lambda i: a(f"ds_read_b128 {vr(FB+4*(i%NB),4)}, v2 offset:{2048*(i>>1) + 256*(i&1)}")
        for i in range(NB): rd(i)
        for g in range(8):
            a(f"s_waitcnt lgkmcnt({min(8, 28 - 4 * g)})")
            for i in range(4 * g, 4 * g + 4):
                acc = 8 + 4 * (i & 1)
                a(f"v_mfma_f32_16x16x32_bf16 {vr(acc,4)}, {vr(PW+4*(i>>1),4)}, {vr(FB+4*(i%NB),4)}, {'0' if i < 2 else vr(acc,4)}")
            for i in range(4 * g + NB, min(4 * g + NB + 4, 32)): rd(i)
        for nt in range(2):
            for i in range(4): a(f"v_fma_f32 v{8+4*nt+i}, v{8+4*nt+i}, v{PG+nt}, v{PB+4*nt+i}")
            a(f"v_cvt_pk_bf16_f32 v{16+2*nt}, v{8+4*nt}, v{9+4*nt}\nv_cvt_pk_bf16_f32 v{17+2*nt}, v{10+4*nt}, v{11+4*nt}")
            a(f"global_store_dwordx2 v{3+nt}, {vr(16+2*nt,2)}, {S_OUT} {OPT.get('outmod', '')}")
    return go

def build_fused():
    a = Asm()
    k = NAME + "_kernel"
    launches = f"; @launch grid=(256,1,1) block=(512,1,1) lds={LDS_BYTES}\n"
    if G.STAMPS:
        launches = f"; @launch kernel={k} grid=(256,1,1) block=(512,1,1) lds={LDS_BYTES}\n; @launch kernel=stamp_kernel grid=(1,1,1) block=(256,1,1) lds=1024\n"
    a.raw(header() + launches + '.amdgcn_target "amdgcn-amd-amdhsa--gfx950"\n.text')
    kernel_head(a, k)
    if "amp" in OPT: lstamp(a, "E")
    mode = OPT.get("cpf0", "8")
    if mode != "0":
        n = int(mode); sh = {4: 9, 8: 10, 16: 11, 32: 12}[n]; nch = 32768 // (8 * n * 128)
        a(f"""
        s_cmp_ge_u32 s2, 256
        s_cbranch_scc1 L_end
        s_load_dwordx16 s[4:19], s[0:1], 0
        s_load_dwordx8 s[20:27], s[0:1], 64
        s_load_dwordx4 s[28:31], s[0:1], 96
        s_getpc_b64 s[62:63]
        L_pc0:
        v_lshrrev_b32 v1, 6, v0
        v_and_b32 v2, {n - 1}, v0
        v_lshlrev_b32 v2, 7, v2
        v_lshl_add_u32 v2, v1, {sh}, v2
        s_lshr_b32 s64, s2, 3
        s_and_b32 s64, s64, {nch - 1}
        s_lshl_b32 s64, s64, {sh + 3}
        v_add_u32 v2, s64, v2
        v_min_u32 v2, L_codeend - L_pc0 - 4, v2
        v_mov_b32 v5, s63
        v_add_co_u32 v4, vcc, s62, v2
        v_addc_co_u32 v5, vcc, 0, v5, vcc
        s_mov_b64 exec, {hex(2**n - 1)}
        global_load_dword v93, v[4:5], off
        s_mov_b64 exec, -1
        """)
        OPT["nocpf"] = "1"
    prologue(a, "L_end", mode != "0")
    lstamp(a, 0)
    if OPT.get("idle0"): a(f"s_sleep {OPT['idle0']}")
    a(f"s_cmp_lt_u32 {SW}, 4\ns_cbranch_scc1 L_gemm")
    a_params(a)
    a("s_barrier\ns_branch L_aux")
    a.reset(); a("L_gemm:")
    g_phase1(a)
    lg = list(G.LIGHT); G.LIGHT[:] = [s for s in lg if s == 0]
    a("s_branch L_att")
    a.reset(); a("L_aux:")
    a_phase1(a)
    la = list(G.LIGHT); G.LIGHT[:] = sorted(set(la) | set(lg))
    a.reset(); a("L_att:")
    for r in range(4): a(f"v_mov_b32 v{VS+r}, -1")
    a("s_barrier")
    a(f"ds_write_b32 v92, v{VZ}")
    lstamp(a, 4)
    KM = SC
    if OPT.get("idle"): a(f"s_sleep {OPT['idle']}")
    conv_finish(a)
    lstamp(a, 27)
    mode = "slow"
    sched = {t: [t + 3] for t in range(13)}
    def early_stores():
        deferred_stores(a)
        a(f"""
        s_lshl_b32 s87, s76, 5
        s_add_u32 s87, s87, s74
        s_lshl_b32 s87, s87, 10
        s_add_u32 s87, s87, {OF}
        buffer_store_dwordx4 {vr(VS,4)}, v1, {R_WS}, s87 offen {SC}
        """)
    def hdma(t):
        def f():
            if t == 2: a("s_waitcnt vmcnt(2)\ns_barrier")
            if t == 2 and OPT.get("late3"): early_stores()
            if t == 10:
                a("s_waitcnt vmcnt(1)\ns_barrier"); lstamp(a, 28)
                if OPT.get("late3"):
                    s3_addr(); a(f"s_cmp_lg_u32 {SW}, 0\ns_cbranch_scc1 L_s3_skip"); signal(a, "s85"); a("L_s3_skip:")
            kv_dma(a, sched[t], KM)
        return f
    def s3_addr(): a(f"s_lshl_b32 s85, {SX}, 7\ns_lshl_b32 s86, {SJ}, 2\ns_add_u32 s85, s85, s86\ns_add_u32 s85, s85, {F_S3}")
    def h_bar():
        a("s_waitcnt vmcnt(0)\ns_barrier"); s3_addr()
        a(f"s_cmp_lg_u32 {SW}, 0\ns_cbranch_scc1 L_s3_skip")
        signal(a, "s85")
        a("L_s3_skip:")
        if mode != "slow": lstamp(a, 28)
    def h_cnt():
        a(f"""
        s_waitcnt vmcnt(0)
        s_mov_b64 exec, 1
        ds_add_rtn_u32 v93, v92, v93
        s_mov_b64 exec, -1
        """)
    def h_s3sig():
        a("v_readfirstlane_b32 s84, v93"); s3_addr()
        a("s_cmp_lg_u32 s84, 7\ns_cbranch_scc1 L_s3_skip")
        signal(a, "s85")
        a("L_s3_skip:")
    def h_s3ld():
        a(f"s_mov_b32 s84, {F_S3}\nbuffer_load_dwordx4 {vr(VT,4)}, v1, {R_WS}, s84 offen {SC}")
    def wof_dma(r):
        for i in range(4): a(f"buffer_load_dwordx4 v1, {R_WS}, s90 offen offset:{1024*i} {SC} lds")
        if r < 3: a("s_add_u32 s90, s90, 4096")
    def h_s3chk():
        a("s_waitcnt vmcnt(0)")
        poll(a, "s3", 1, "s84", True, 4)
        a(f"""
        s_lshl_b32 s88, s75, 3
        s_lshr_b32 s89, s74, 2
        s_add_u32 s88, s88, s89
        s_and_b32 s89, s74, 3
        s_lshl_b32 s89, s89, 3
        s_add_u32 s89, s89, {SW}
        s_lshl_b32 s90, s89, 14
        s_add_u32 s90, s90, {WOF}
        s_lshl_b32 s86, {SW}, 12
        s_add_u32 s86, s86, {OS}
        s_mov_b32 m0, s86
        v_add_u32 v92, s86, v1
        """)
        if OPT.get("nos3"): return
        wof_dma(0)
        a(f"""
        s_or_b32 s84, s2, {SW}
        s_cmp_lg_u32 s84, 0
        s_cbranch_scc1 L_n_skip
        s_mov_b32 s84, {F_N}
        """)
        signal(a, "s84")
        a("L_n_skip:")
    def h_wrd(r):
        def f():
            if OPT.get("nos3"): return
            a("s_waitcnt vmcnt(0)")
            for i in range(4): a(f"ds_read_b128 {vr(PW+16*r+4*i,4)}, v92 offset:{1024*i}")
        return f
    def h_wld(r):
        def f():
            if OPT.get("nos3"): return
            wof_dma(r)
        return f
    def h_side():
        if OPT.get("nos3"):
            a("v_lshrrev_b32 v86, 4, v0\nv_and_b32 v87, 15, v0"); return
        a(f"""
        v_lshrrev_b32 v86, 4, v0
        v_and_b32 v87, 15, v0
        v_lshlrev_b32 v88, 14, v86
        v_lshl_add_u32 v88, v87, 1, v88
        s_lshl_b32 s90, s89, 16
        s_lshl_b32 s91, s88, 6
        s_add_u32 s90, s90, s91
        s_add_u32 s90, s90, {BT}
        """)
        for i in range(4):
            if i: a("s_add_u32 s90, s90, 4096")
            for nt in range(2): a(f"buffer_load_short_d16_hi v{PB+4*nt+i}, v88, {R_WS}, s90 offen offset:{32*nt} {SC}")
        a(f"""
        v_lshlrev_b32 v88, 2, v87
        s_lshl_b32 s90, s88, 7
        s_add_u32 s90, s90, {GW}
        buffer_load_dword v{PG}, v88, {R_WS}, s90 offen {SC}
        buffer_load_dword v{PG+1}, v88, {R_WS}, s90 offen offset:64 {SC}
        """)
    hooks = {t: hdma(t) for t in sched}
    def h_kvadd(): a("s_waitcnt vmcnt(0)\ns_mov_b64 exec, 1\nds_add_u32 v92, v93\ns_mov_b64 exec, -1")
    def h_kvrd(): a("ds_read_b32 v93, v92")
    def h_kvchk():
        a(f"""
        s_mov_b32 s92, {SPIN}
        L_kv:
        v_readfirstlane_b32 s84, v93
        s_sub_u32 s92, s92, 1
        s_cmp_eq_u32 s92, 0
        s_cbranch_scc1 L_kv_ok
        s_cmp_eq_u32 s84, 8
        s_cbranch_scc1 L_kv_ok
        ds_read_b32 v93, v92
        s_waitcnt lgkmcnt(0)
        s_branch L_kv
        L_kv_ok:
        """)
    if OPT.get("late3"): hooks.update({15: h_kvadd, 32: h_kvrd, 33: h_kvchk})
    elif mode == "slow" and OPT.get("bar3"): hooks.update({14: early_stores, int(OPT["bar3"]): h_bar})
    elif mode == "slow": hooks.update({14: early_stores, 19: h_cnt, 20: h_s3sig})
    else: hooks.update({TB2: h_bar})
    if OPT.get("wbl2") != "0":
        def h_wb(): a(f"s_or_b32 s84, {SJ}, {SW}\ns_cmp_lg_u32 s84, 0\ns_cbranch_scc1 L_wb_skip\nbuffer_wbl2 sc1\nL_wb_skip:")
        hooks[24] = h_wb
    hooks.update({34: h_s3ld, 38: h_s3chk, 58: h_side})
    for r in range(4):
        hooks[42 + 5 * r] = h_wrd(r)
        if r < 3: hooks[43 + 5 * r] = h_wld(r + 1)
    prios = {0: 1, 1: 0, 2: 3, 5: 2, 8: 1, 9: 0, 10: 3, 22: 2, 44: 1, 58: 0}
    if "prios" in OPT: prios = {int(x.split(":")[0]): int(x.split(":")[1]) for x in OPT["prios"].split(",")}
    att_main(a, hooks, prios)
    lstamp(a, 29)
    att_finish2(a, "at")
    lstamp(a, 5)
    a(f"""
    s_lshl_b32 s93, s88, 15
    s_lshl_b32 s86, {SW}, 12
    s_add_u32 s93, s93, s86
    s_add_u32 s93, s93, {OF}
    """)
    OM = OPT.get("omod", SC).replace("_", " ")
    odma = lambda: [a(f"buffer_load_dwordx4 v1, {R_WS}, s93 offen offset:{1024*i} {OM} lds") for i in range(4)]
    if OPT.get("oack"):
        a("s_waitcnt vmcnt(1)")
        out_side_math(a)
        gemm = out_gemm(a)
        a(f"s_mov_b32 s92, {SPIN}\ns_waitcnt vmcnt(0)")
        if OPT.get("obar"): a("s_barrier")
        if OPT.get("opre"): a(f"s_sleep {OPT['opre']}")
        a("s_branch L_o_go\nL_o_again:")
    else:
        odma()
        a("s_waitcnt vmcnt(5)")
        out_side_math(a)
        gemm = out_gemm(a)
        a(f"s_mov_b32 s92, {SPIN}\ns_branch L_o_chk\nL_o_again:")
    if OPT.get("osleep"): a(f"s_sleep {OPT['osleep']}")
    a("L_o_go:")
    odma()
    a("L_o_chk:\ns_waitcnt vmcnt(0)")
    for i in range(4): a(f"ds_read_b128 {vr(16+4*i,4)}, v92 offset:{1024*i}")
    a("s_sub_u32 s92, s92, 1\ns_waitcnt lgkmcnt(2)")
    a("v_max3_u32 v5, v16, v17, v18\nv_max3_u32 v6, v19, v20, v21\nv_max3_u32 v5, v22, v23, v5\ns_waitcnt lgkmcnt(0)")
    a("v_max3_u32 v6, v24, v25, v6\nv_max3_u32 v5, v26, v27, v5\nv_max3_u32 v6, v28, v29, v6\nv_max3_u32 v5, v30, v31, v5\nv_max_u32 v5, v5, v6")
    a("""
    v_cmp_eq_u32 vcc, -1, v5
    s_cmp_eq_u32 s92, 0
    s_cbranch_scc1 L_o_ok
    s_cbranch_vccnz L_o_again
    L_o_ok:
    """)
    lstamp(a, 30)
    a("s_barrier")
    gemm()
    lstamp(a, 7)
    if G.STAMPS:
        lflush(a, range(8))
        for s in la:
            if s: G.STAMP_WAVES[s] = list(range(4, 8))
        for s in lg:
            if s: G.STAMP_WAVES[s] = list(range(4))
    if "amp" in OPT:
        w = OPT["amp"].split(",")[2]
        a(f"""
        s_cmp_lg_u32 s2, {OPT.get("ampwg", 0)}
        s_cbranch_scc1 L_end
        s_cmp_lg_u32 {SW}, {w}
        s_cbranch_scc1 L_end
        s_sub_u32 s98, s98, s96
        s_lshl_b32 s98, s98, 2
        s_min_u32 s98, s98, 40000
        s_memrealtime s[96:97]
        s_waitcnt lgkmcnt(0)
        L_amp:
        s_memrealtime s[100:101]
        s_waitcnt lgkmcnt(0)
        s_sub_u32 s100, s100, s96
        s_cmp_lt_u32 s100, s98
        s_cbranch_scc1 L_amp
        """)
    a("L_end:\ns_endpgm")
    att_slow(a, "at")
    a("L_codeend:\ns_endpgm")
    if G.STAMPS: stamp_reduce_kernel(a)
    a.raw('.section .rodata,"a"')
    if G.STAMPS: a.raw(descriptor("stamp_kernel", 32))
    a.raw(descriptor(k, 256))
    return a.text()

if __name__ == "__main__":
    out = sys.argv[1]
    for o in sys.argv[2:]:
        kk, _, v = o.partition("="); OPT[kk] = v or True
    G.STAMPS = bool(OPT.get("stamp"))
    OPT.setdefault("ones", "few"); OPT.setdefault("nowpf", True); OPT.setdefault("qmod", "plain"); OPT.setdefault("touch", "a"); OPT.setdefault("sched", "slow"); OPT.setdefault("wbl2", "0"); OPT.setdefault("rot7", "1"); OPT.setdefault("nocpf", "0"); OPT.setdefault("oack", True); OPT.setdefault("s3pre", True); OPT.setdefault("tmod", "sc1"); OPT.setdefault("omod", "sc1"); OPT.setdefault("ostm", "sc1"); OPT.setdefault("obar", True); OPT.setdefault("osleep", "2")
    txt = build_fused()
    open(out, "w").write(txt)
    print("wrote", out, len(txt), "bytes")
```

```python
import sys
import gen as G
from gen import (Asm, OPT, NAME, vr, VM, prologue, aux_ids, kernel_head, descriptor, header, lstamp, lflush, stamp_reduce_kernel,
                 QF, KV, XT, BT, OF, WOF, GW, LDS_BYTES, LOG2E, INV2PI, QSCALE,
                 S_X, S_WO, S_LOGA, S_AIM, S_CR, S_CI, S_LDT, S_DSK, S_GWT, S_OUT, R_X, R_W, R_WS, SX, SJ, SW,
                 AQ, AKS, AV1, AV2, AS_, AO, PW, PB, PG, att_slow, out_side_loads, out_side_math)
from gen2 import cmuls, RowWriter, cexp

SC = "sc1"
SPIN = 400000
FL = 0xC90000
F_N, F_S1, F_S2, F_S3, F_S4 = FL, FL + 0x1000, FL + 0x3000, FL + 0x4000, FL + 0x8000
SLOT = 32768
def slot_addr(t): return SLOT * (1 + ((t + 1) & 3))
TBS, HTS = 8704, 7344
EX0, KX0, KXD = 0, 16384, 4608
RE, RSZ = 4160, 16640
US = 4640
OS = 131072
VN, VX, VZ, VT, VS = 240, 241, 242, 244, 236
DB, DA = 224, 232
PRIOS = {0: 3, 38: 2, 54: 1, 61: 0}

def poll(a, tag, vaddr, soff, first_issued=False, n=1, ncmp=None, vt=VT, sleep=4):
    ld = f"buffer_load_dword{'' if n == 1 else 'x%d' % n} {vr(vt, n)}, v{vaddr}, {R_WS}, {soff} offen {SC}"
    ncmp = ncmp or n
    a(f"s_mov_b32 s92, {SPIN}")
    if first_issued: a(f"s_branch L_{tag}_chk")
    a(f"L_{tag}_poll:\n{ld}\ns_waitcnt vmcnt(0)")
    a(f"L_{tag}_chk:")
    a(f"v_cmp_ne_u32 vcc, v{vt}, v{VN}")
    for i in range(1, ncmp): a(f"v_cmp_ne_u32 s[90:91], v{vt+i}, v{VN}\ns_or_b64 vcc, vcc, s[90:91]")
    if ncmp == 1: a("s_nop 1")
    a(f"""
    s_cbranch_vccz L_{tag}_ok
    s_sleep {sleep}
    s_sub_u32 s92, s92, 1
    s_cmp_lg_u32 s92, 0
    s_cbranch_scc1 L_{tag}_poll
    L_{tag}_ok:
    """)

def signal(a, soff, mod=SC, n=1):
    a(f"""
    s_mov_b64 exec, 1
    buffer_store_dword{'' if n == 1 else 'x2'} {vr(VN, n)}, v{VZ}, {R_WS}, {soff} offen {mod}
    s_mov_b64 exec, -1
    """)

def epoch_load(a):
    a(f"v_mov_b32 v{VZ}, 0\ns_mov_b32 s56, {F_N}\nbuffer_load_dword v{VN}, v{VZ}, {R_WS}, s56 offen {SC}")

def epoch_next(a):
    a(f"s_mov_b32 s55, 1664525\nv_mul_lo_u32 v{VN}, v{VN}, s55\nv_add_u32 v{VN}, 1013904223, v{VN}")

DX, DW = 94, 95
def dma_setup(a):
    a(f"""
    v_lshrrev_b32 v1, 3, v0
    v_lshrrev_b32 v2, 4, v0
    s_and_b32 s58, {SW}, 1
    s_lshl_b32 s56, s58, 2
    v_add_u32 v3, s56, v2
    v_and_b32 v{DW}, 7, v0
    v_xor_b32 v3, v3, v{DW}
    v_lshlrev_b32 v3, 4, v3
    v_lshl_add_u32 v{DX}, v1, 10, v3
    v_and_b32 v2, 1, v2
    v_lshlrev_b32 v2, 2, v2
    v_xor_b32 v2, v2, v{DW}
    v_lshlrev_b32 v2, 4, v2
    v_mov_b32 v3, 0xc00
    v_mad_u32_u24 v{DW}, v1, v3, v2
    s_lshl_b32 s44, {SJ}, 16
    s_lshl_b32 s45, {SW}, 13
    s_add_u32 s44, s44, s45
    s_mul_i32 s45, {SW}, {16*3072}
    s_lshl_b32 s56, {SX}, 7
    s_add_u32 s45, s45, s56
    s_lshl_b32 s46, {SW}, 10
    s_lshl_b32 s47, {SW}, 11
    s_mul_i32 s54, {SJ}, 37
    s_lshr_b32 s54, s54, 8
    s_mul_i32 s54, s54, 7
    s_sub_u32 s54, {SJ}, s54
    """)

def dma_pieces(t, part="xw"):
    base = slot_addr(t); out = []
    head = f"s_add_u32 s56, {SX}, {t}\ns_and_b32 s56, s56, 7\n"
    if OPT.get("rot7") == "1" and t:
        head = f"s_add_u32 s56, s54, {t - 1}\ns_cmp_ge_u32 s56, 7\ns_cselect_b32 s57, 6, -1\ns_sub_u32 s56, s56, s57\ns_add_u32 s56, s56, {SX}\ns_and_b32 s56, s56, 7\n"
    if "x" in part:
        for i in range(2):
            p = (head + "s_lshl_b32 s57, s56, 7\ns_add_u32 s57, s57, s44\n") if i == 0 else "s_add_u32 s57, s57, 0x8000\n"
            out.append(p + f"s_add_u32 m0, s46, {base + i*4096}\nbuffer_load_dwordx4 v{DX}, {R_X}, s57 offen {OPT.get('xmod', '')} lds")
        head = ""
    if "w" in part:
        for i in range(2):
            for ty in range(3):
                p = ""
                if ty == 0: p = (head + f"s_mul_i32 s56, s56, {64*3072}\ns_add_u32 s56, s56, s45\n") if i == 0 else f"s_add_u32 s56, s56, {8*3072}\n"
                out.append(p + f"s_add_u32 m0, s47, {base + 8192 + ty*8192 + i*1024 - ty*1024}\nbuffer_load_dwordx4 v{DW}, {R_W}, s56 offen offset:{ty*1024} {OPT.get('wmod', '')} lds")
    return out

def dma(a, vm, t, part="xw", tag=None):
    for p in dma_pieces(t, part): a(p); vm.add(tag or f"s{t}")

T0 = 48
QS = 147456
def kv_dma(a, rounds, mod, both=False):
    for r in rounds:
        o = 8192 * ((r + T0 // 4) & 15)
        a(f"s_add_u32 m0, s79, {o}\ns_add_u32 s80, s78, {o}\nbuffer_load_dwordx4 v1, {R_WS}, s80 offen {mod} lds")
        if both: a(f"s_add_u32 m0, s79, {o + 4096}\ns_add_u32 s80, s78, {o + 4096}\nbuffer_load_dwordx4 v1, {R_WS}, s80 offen {mod} lds")

def att_bulk():
    l = f"""
    s_lshr_b32 s74, {SJ}, 3
    s_lshl_b32 s75, {SX}, 2
    s_add_u32 s74, s74, s75
    s_and_b32 s75, {SJ}, 7
    s_lshl_b32 s76, s75, 3
    s_add_u32 s76, s76, {SW}
    s_lshl_b32 s77, s74, 6
    s_add_u32 s77, s77, s76
    s_lshl_b32 s77, s77, 10
    s_add_u32 s77, s77, {QF}
    s_lshl_b32 s78, s74, 17
    s_lshl_b32 s79, {SW}, 10
    s_add_u32 s78, s78, s79
    s_add_u32 s78, s78, {KV}
    s_mov_b32 s82, 0xffff
    s_mov_b32 s83, 0xffff
    v_and_b32 v16, 27, v0
    v_cmp_eq_u32 vcc, 16, v16
    v_mov_b32 v17, 0x3f803f80
    v_mov_b32 v92, {LDS_BYTES - 4}
    v_cndmask_b32 v16, 0, v17, vcc
    v_mov_b32 v93, 1
    """.strip().split("\n")
    l += [f"v_mov_b32 v{r}, v16" for r in range(17, 32)] + [f"v_mov_b32 v{AO+r}, 0" for r in range(16)]
    return [x.strip() for x in l]

def att_addr():
    return [x.strip() for x in """
    v_lshlrev_b32 v1, 4, v0
    v_lshrrev_b32 v2, 5, v0
    v_lshlrev_b32 v2, 8, v2
    v_and_b32 v3, 15, v0
    v_lshl_add_u32 v2, v3, 4, v2
    v_add_u32 v2, 1024, v2
    v_add_u32 v80, 0x10000, v1
    v_add_u32 v81, 0x10000, v2
    v_mov_b32 v3, 0xdddddddd
    """.strip().split("\n")]

def g_phase1(a):
    vm = VM()
    ACC = (96, 112, 128); SETS = (144, 160, 176, 192)
    XA, WA = 4, 12
    GX, GG, GO = 32, 40, 44
    dma_setup(a)
    a("s_barrier")
    for t in range(2): dma(a, vm, t)
    lstamp(a, 18)
    a(f"""
    s_getreg_b32 s62, hwreg(HW_REG_XCC_ID)
    v_mov_b32 v{VX}, s62
    s_lshr_b32 s59, {SW}, 1
    v_and_b32 v1, 31, v0
    s_lshl_b32 s60, s58, 12
    s_add_u32 s60, s60, {SLOT}
    v_lshlrev_b32 v2, 7, v1
    v_add_u32 v2, s60, v2
    v_bfe_u32 v1, v0, 1, 3
    v_lshrrev_b32 v3, 5, v0
    v_xor_b32 v1, v1, v3
    """)
    for ks in range(4):
        a(f"v_xor_b32 v3, {2*ks}, v1\nv_lshl_add_u32 v{XA+ks}, v3, 4, v2\nv_add_u32 v{XA+4+ks}, 0x10000, v{XA+ks}")
    a(f"""
    v_lshrrev_b32 v1, 5, v0
    v_lshlrev_b32 v1, 10, v1
    v_bfe_u32 v2, v0, 2, 2
    v_lshl_add_u32 v1, v2, 7, v1
    v_bfe_u32 v2, v0, 3, 1
    v_xor_b32 v2, s59, v2
    v_lshl_add_u32 v1, v2, 6, v1
    v_bfe_u32 v2, v0, 4, 1
    v_lshl_add_u32 v1, v2, 5, v1
    v_and_b32 v2, 3, v0
    v_lshl_add_u32 v1, v2, 3, v1
    v_add_u32 v{WA}, {SLOT + 8192}, v1
    v_add_u32 v{WA+1}, {SLOT + 8192 + 65536}, v1
    """)
    epoch_load(a); vm.add("n")
    dma(a, vm, 2)
    if OPT.get("s3pre") != "0": dma(a, vm, 3, "w", "s3w")
    lstamp(a, 1)
    fill = [x.strip() for x in f"""
    ; side-load addresses: v14 gate rows, v15 gate weights, v52/v57 wo gathers; s67 gate output, s69 wo fragment output
    s_lshl_b32 s67, {SJ}, 6
    s_lshl_b32 s62, {SX}, 3
    s_add_u32 s67, s67, s62
    s_lshl_b32 s62, {SW}, 1
    s_add_u32 s67, s67, s62
    v_lshlrev_b32 v15, 4, v0
    s_lshl_b32 s62, s67, 10
    v_add_u32 v14, s62, v15
    s_lshl_b32 s62, {SX}, 5
    s_add_u32 s62, s62, {SJ}
    s_lshr_b32 s69, s62, 3
    s_and_b32 s63, s62, 7
    s_lshl_b32 s63, s63, 1
    s_add_u32 s63, s63, s58
    s_lshl_b32 s64, s63, 15
    s_lshl_b32 s62, s69, 5
    s_add_u32 s64, s64, s62
    v_lshrrev_b32 v3, 5, v0
    v_lshlrev_b32 v3, 14, v3
    v_bfe_u32 v2, v0, 4, 1
    v_lshl_add_u32 v3, v2, 12, v3
    v_and_b32 v2, 15, v0
    v_lshl_add_u32 v3, v2, 1, v3
    v_add_u32 v52, s64, v3
    v_add_u32 v57, 0x2000, v52
    s_lshl_b32 s69, s69, 4
    s_add_u32 s69, s69, s63
    s_lshl_b32 s69, s69, 10
    s_add_u32 s69, s69, {WOF}
    s_lshl_b32 s67, s67, 2
    s_add_u32 s67, s67, {GW}
    ; hand-off words: s72 = die-id line, s70 = projection-done word, s71 = line polled before attention
    s_lshl_b32 s72, {SX}, 2
    s_add_u32 s72, s72, {SW}
    s_lshl_b32 s72, s72, 8
    s_add_u32 s72, s72, {F_S1}
    v_and_b32 v53, 31, v0
    v_lshlrev_b32 v53, 3, v53
    s_lshl_b32 s70, {SX}, 1
    s_lshr_b32 s71, {SJ}, 4
    s_add_u32 s71, s71, s70
    s_lshl_b32 s71, s71, 8
    s_add_u32 s71, s71, {F_S2}
    s_add_u32 s70, s70, s59
    s_lshl_b32 s70, s70, 8
    s_lshl_b32 s62, {SJ}, 3
    s_add_u32 s70, s70, s62
    s_lshl_b32 s62, s58, 2
    s_add_u32 s70, s70, s62
    s_add_u32 s70, s70, {F_S2}
    v_lshlrev_b32 v54, 2, v0
    ; epilogue addresses
    s_lshl_b32 s60, {SX}, 2
    s_lshl_b32 s61, s59, 1
    s_add_u32 s60, s60, s61
    s_lshl_b32 s60, s60, 6
    s_lshl_b32 s61, {SJ}, 1
    s_add_u32 s61, s61, s58
    s_add_u32 s60, s60, s61
    s_lshl_b32 s61, s60, 10
    s_add_u32 s61, s61, {QF}
    s_add_u32 s62, s61, 0x10000
    s_lshl_b32 s63, s60, 11
    s_add_u32 s63, s63, {KV}
    s_add_u32 s64, s63, 0x20000
    s_mov_b32 s65, {QSCALE}
    v_and_b32 v55, 0x33, v0
    v_bfe_u32 v3, v0, 2, 1
    v_lshl_or_b32 v55, v3, 3, v55
    v_bfe_u32 v3, v0, 3, 1
    v_lshl_or_b32 v55, v3, 2, v55
    v_lshlrev_b32 v55, 4, v55
    v_and_b32 v56, 15, v0
    v_lshlrev_b32 v56, 4, v56
    v_lshrrev_b32 v3, 5, v0
    v_lshl_add_u32 v56, v3, 8, v56
    v_bfe_u32 v3, v0, 4, 1
    v_lshl_add_u32 v56, v3, 17, v56
    """.strip().split("\n") if not x.strip().startswith(";")]
    fill += [f"v_mov_b32 v{r}, 0" for r in range(DA, DA + 4)] + att_bulk() + att_addr()
    if OPT.get("fillpre"):
        while fill: a(fill.pop(0))
    def reads(t, ks):
        p = slot_addr(t) // SLOT - 1; s = SETS[ks]; hi = p >> 1; o0 = (p & 1) * SLOT
        l = [f"ds_read_b128 {vr(s,4)}, v{XA + 4*hi + ks} offset:{o0}"]
        for ty in (1, 2, 0):
            for ri in range(2):
                l.append(f"ds_read_b64_tr_b16 {vr(s+4+4*ty+2*ri,2)}, v{WA+hi} offset:{o0 + ty*8192 + ks*2048 + ri*512}")
        return l
    def mf(ks, i, first=False):
        s = SETS[ks]; c = "0" if first else vr(ACC[i], 16)
        ab = f"{vr(s,4)}, {vr(s+12,4)}" if i == 2 else f"{vr(s+4+4*i,4)}, {vr(s,4)}"
        a(f"v_mfma_f32_32x32x16_bf16 {vr(ACC[i],16)}, {ab}, {c}")
    pend = []
    def mm(ks, first, rd=(), nd=2):
        rd = list(rd)
        for i, r in zip((1, 2, 0), (rd[:4], rd[4:], [])):
            mf(ks, i, first)
            for x in r: a(x)
            for _ in range(3 if r else 5):
                if fill: a(fill.pop(0))
        for _ in range(nd):
            if pend:
                tag, p = pend.pop(0)
                if OPT.get("nodma") and tag[0] == "s" and tag != "side": p = "buffer_load_dword v59, v15, s[32:35], 0 offen"
                a(p); vm.add(tag)
    side = [f"global_load_dwordx4 {vr(GX,4)}, v14, {S_X}", f"global_load_dwordx4 {vr(GX+4,4)}, v14, {S_X} offset:1024", f"global_load_dwordx4 {vr(GG,4)}, v15, {S_GWT}"]
    side += [f"global_load_short_d16{'_hi' if j & 1 else ''} v{GO+j}, v{57 if j >> 2 else 52}, {S_WO} offset:{1024*(j&3)}" for j in range(8)]
    for t in range(8):
        if OPT.get("gpos") == "pre": lstamp(a, 8 + t)
        vm.wait(a, f"s{t}")
        if t == 3: epoch_next(a)
        if OPT.get("gpos") == "mid": lstamp(a, 8 + t)
        a("s_barrier")
        if not OPT.get("gpos"): lstamp(a, 8 + t)
        nd = 2
        if t == 0 and OPT.get("s3pre") == "0": pend += [("s3w", p) for p in dma_pieces(3, "w")]; nd = 3
        if t == 1: pend += [("s3", p) for p in dma_pieces(3, "x")]; nd = 3
        if 1 <= t <= 4: pend += [(f"s{t+3}", p) for p in dma_pieces(t + 3)]
        if t == int(OPT.get("tt", 5)) and OPT.get("touch") == "g":
            pend += [("touch", f"s_mov_b32 exec_hi, 0xffff\nbuffer_load_dword v59, v58, {R_WS}, 0 offen\ns_mov_b32 exec_hi, -1")]; nd = 3
        if t == 5: assert not fill, len(fill)
        if t == 5: pend += [("f", f"buffer_load_dwordx2 {vr(VT,2)}, v53, {R_WS}, s72 offen {SC}")]
        if t == 5: pend += [("side", p) for p in side]; nd = 3
        if t == 0:
            for x in reads(0, 0) + reads(0, 1): a(x)
        else:
            if OPT.get("burst"): nd = int(OPT["burst"])
            mm(2, False, reads(t, 0), nd)
            mm(3, False, reads(t, 1), nd)
        a("s_waitcnt lgkmcnt(7)")
        mm(0, t == 0, reads(t, 2), nd)
        a("s_waitcnt lgkmcnt(7)")
        mm(1, False, reads(t, 3), nd)
        assert not pend
        if t == 7 and OPT.get("gprio"): a(f"s_setprio {OPT['gprio']}")
        a("s_waitcnt lgkmcnt(0)")
    cv = lambda d, s: [f"v_cvt_pk_bf16_f32 v{d+r}, v{s+2*r}, v{s+2*r+1}" for r in range(8)]
    mod = SC
    for ks, i in ((2, 1), (3, 1), (2, 2), (3, 2), (2, 0)): mf(ks, i)
    a("s_nop 6")
    lstamp(a, 20) if OPT.get("gst") else None
    for x in cv(144, ACC[1])[:4]: a(x)
    mf(3, 0)
    for x in cv(144, ACC[1])[4:]: a(x)
    a(f"buffer_store_dwordx4 v[144:147], v55, {R_WS}, s63 offen {mod}\nbuffer_store_dwordx4 v[148:151], v55, {R_WS}, s64 offen {mod}")
    lstamp(a, 19) if OPT.get("gst") else None
    for x in cv(152, ACC[2]): a(x)
    a(f"buffer_store_dwordx4 v[152:155], v56, {R_WS}, s63 offen offset:1024 {mod}\nbuffer_store_dwordx4 v[156:159], v56, {R_WS}, s63 offen offset:1536 {mod}")
    hyb = OPT.get("qhyb")
    if hyb:
        a("s_waitcnt vmcnt(15)")
        poll(a, "s1g", 53, "s72", True, 2, 1)
        a(f"v_cmp_ne_u32 s[72:73], v{VT+1}, v{VX}")
    for h in range(2):
        for r in range(8): a(f"v_mul_f32 v{ACC[0]+8*h+r}, s65, v{ACC[0]+8*h+r}")
        for x in cv(160, ACC[0])[4*h:4*h+4]: a(x)
        if not hyb: a(f"buffer_store_dwordx4 {vr(160+4*h,4)}, v1, {R_WS}, s{61+h} offen {mod}")
    if hyb:
        a("s_cmp_eq_u64 s[72:73], 0\ns_cbranch_scc0 L_q_far")
        for m in ("", SC):
            if m: a("s_branch L_q_done\nL_q_far:")
            for h in range(2): a(f"buffer_store_dwordx4 {vr(160+4*h,4)}, v1, {R_WS}, s{61+h} offen {m}")
        a("L_q_done:")
    lstamp(a, 16)
    a("s_mov_b32 s68, 0xffff0000\ns_waitcnt vmcnt(6)")
    if not hyb:
        poll(a, "s1g", 53, "s72", True, 2, 1)
        a(f"v_cmp_ne_u32 s[72:73], v{VT+1}, v{VX}")
    for k in range(4): a(f"v_lshlrev_b32 v{168+2*k}, 16, v{GG+k}\nv_and_b32 v{169+2*k}, s68, v{GG+k}")
    for k in range(4):
        for r in range(2):
            x = GX + 4 * r + k; t = 180 + 2 * r
            a(f"v_lshlrev_b32 v{t}, 16, v{x}\nv_and_b32 v{t+1}, s68, v{x}\nv_mul_f32 v{t}, v{t}, v{168+2*k}\nv_mul_f32 v{t+1}, v{t+1}, v{169+2*k}")
            a(f"v_cvt_pk_bf16_f32 v{x}, v{t}, v{t+1}")
    a("s_waitcnt vmcnt(0)")
    a("s_cmp_eq_u64 s[72:73], 0\ns_cbranch_scc0 L_st_far")
    signal(a, "s70", "")
    a("s_branch L_st_done\nL_st_far:")
    signal(a, "s70", SC)
    a.reset(); a("L_st_done:")
    lstamp(a, 17)
    a(f"buffer_load_dword v{VT}, v54, {R_WS}, s71 offen {SC}")
    for k in range(4):
        for r in range(2):
            x = GX + 4 * r + k; t = 180 + 2 * r
            a(f"v_and_b32 v{t+1}, s68, v{x}\nv_lshlrev_b32 v{t}, 16, v{x}")
            if k == 0: a(f"v_add_f32 v{176+r}, v{t}, v{t+1}")
            else: a(f"v_add_f32 v{176+r}, v{176+r}, v{t}\nv_add_f32 v{176+r}, v{176+r}, v{t+1}")
    wo_pack = [f"v_or_b32 v{DB+j}, v{GO+2*j}, v{GO+2*j+1}" for j in range(4)]
    for d in ("row_shr:1 row_mask:0xf bank_mask:0xf bound_ctrl:0", "row_shr:2 row_mask:0xf bank_mask:0xf bound_ctrl:0",
              "row_shr:4 row_mask:0xf bank_mask:0xf bound_ctrl:0", "row_shr:8 row_mask:0xf bank_mask:0xf bound_ctrl:0",
              "row_bcast:15 row_mask:0xa bank_mask:0xf", "row_bcast:31 row_mask:0xc bank_mask:0xf"):
        if wo_pack: a(wo_pack.pop())
        for r in range(2): a(f"v_add_f32_dpp v{176+r}, v{176+r}, v{176+r} {d}")
    a(f"""
    v_cvt_pk_bf16_f32 v178, v176, v177
    s_mov_b32 s60, {LOG2E}
    v_lshlrev_b32 v176, 16, v178
    v_and_b32 v177, s68, v178
    v_mul_f32 v176, s60, v176
    v_mul_f32 v177, s60, v177
    v_exp_f32 v176, -v176
    v_exp_f32 v177, -v177
    v_add_f32 v176, 1.0, v176
    v_add_f32 v177, 1.0, v177
    v_rcp_f32 v176, v176
    v_rcp_f32 v177, v177
    s_nop 0
    v_cvt_pk_bf16_f32 v178, v176, v177
    v_lshlrev_b32 v{DB+4}, 16, v178
    v_and_b32 v{DB+5}, s68, v178
    """)
    qld = f"""
    buffer_load_dwordx4 {vr(AQ,4)}, v1, {R_WS}, s77 offen {SC}
    s_add_u32 m0, s79, {QS}
    s_add_u32 s80, s77, 4096
    buffer_load_dwordx4 v1, {R_WS}, s80 offen {SC} lds
    """
    if OPT.get("qearly"):
        a(f"""
        s_lshl_b32 s60, s75, 3
        s_lshl_b64 s[60:61], 0xff, s60
        s_mov_b32 s92, {SPIN}
        s_branch L_q_chk
        L_q_poll:
        s_sleep 1
        buffer_load_dword v{VT}, v54, {R_WS}, s71 offen {SC}
        L_q_chk:
        s_waitcnt vmcnt(0)
        v_cmp_ne_u32 vcc, v{VT}, v{VN}
        s_sub_u32 s92, s92, 1
        s_cmp_eq_u32 s92, 0
        s_cbranch_scc1 L_q_ok
        s_and_b64 s[62:63], vcc, s[60:61]
        s_cbranch_scc1 L_q_poll
        L_q_ok:
        """)
        a(qld)
        poll(a, "s2", 54, "s71", True, sleep=1)
        lstamp(a, 2)
    else:
        a("s_waitcnt vmcnt(0)")
        poll(a, "s2", 54, "s71", True, sleep=1)
        lstamp(a, 2)
        a(qld)
    npre = int(OPT.get("kvpre", 3))
    kv_dma(a, range(npre), SC, True)
    a(f"s_waitcnt vmcnt({2 * npre - 2})")

def deferred_stores(a):
    a(f"s_cmp_lt_u32 {SW}, 4\ns_cbranch_scc1 L_df_g")
    for ci in range(4): a(f"buffer_store_dwordx2 {vr(DB+2*ci,2)}, v{DA+ci}, {R_WS}, s66 offen {SC}")
    a(f"""
    s_branch L_df_done
    L_df_g:
    buffer_store_dwordx4 {vr(DB,4)}, v1, {R_WS}, s69 offen {SC}
    s_mov_b32 exec_lo, 0
    s_mov_b32 exec_hi, 0x80000000
    buffer_store_dwordx2 {vr(DB+4,2)}, v{VZ}, {R_WS}, s67 offen {SC}
    s_mov_b64 exec, -1
    L_df_done:
    """)

CA, CB, CU, CD, CE = 86, 87, 88, 90, 91
CACC = 32
def conv(a):
    FA = (96, 160); FB = (128, 192)
    q = []
    def issue(key, txt):
        if len(q) >= 15:
            a("s_waitcnt lgkmcnt(14)"); del q[:len(q) - 14]
        a(txt); q.append(key)
    def need(keys):
        idx = [i for i, k in enumerate(q) if k in keys]
        if idx:
            a(f"s_waitcnt lgkmcnt({len(q) - 1 - max(idx)})"); del q[:max(idx) + 1]
    def rd_list(rho):
        s = rho & 1; l = []
        for i in range(8):
            l.append(((rho, "A", i), f"ds_read_b128 {vr(FA[s]+4*i,4)}, v{CA} offset:{512*(7-i) + 64*(3-rho)}"))
            l.append(((rho, "B", i), f"ds_read_b128 {vr(FB[s]+4*i,4)}, v{CB} offset:{512*i + 64*(3-rho)}"))
        return l
    for k, t in rd_list(0): issue(k, t)
    seen = set()
    mms = sorted([(sg, dl) for sg in range(8) for dl in range(8 - sg)], key=lambda m: max(2 * m[0], 2 * m[1] + 1))
    for rho in range(4):
        s = rho & 1
        nxt = rd_list(rho + 1) if rho < 3 else [(("u", i), f"ds_read_b64 {vr(DB+2*i,2)}, v{CU} offset:{512*i}") for i in range(4)]
        k0 = 14 if rho == 0 else 0
        for k, (sg, dl) in enumerate(mms):
            if rho == 0: need({(rho, "A", sg), (rho, "B", dl)})
            elif k == 0: need({(rho, "B", 7)})
            c = sg + dl; acc = vr(CACC + 4 * c, 4)
            a(f"v_mfma_f32_16x16x32_bf16 {acc}, {vr(FA[s]+4*sg,4)}, {vr(FB[s]+4*dl,4)}, {acc if c in seen else '0'}")
            seen.add(c)
            if k >= k0 and (k - k0) % 2 == 0:
                for x in nxt[k - k0:k - k0 + 2]: issue(*x)
    a("s_cmp_eq_u32 s53, 0\ns_cbranch_scc0 L_cv_hi\ns_nop 5")
    for i in range(4): a(f"ds_write_b128 v{CE}, {vr(CACC+16+4*i,4)} offset:{1024*i}")
    a("s_branch L_cv_sent\nL_cv_hi:\ns_nop 5")
    for i in range(4): a(f"ds_write_b128 v{CE}, {vr(CACC+4*i,4)} offset:{1024*i}")
    a("s_nop 1")
    for i in range(16): a(f"v_mov_b32 v{CACC+i}, v{CACC+16+i}")
    a(f"L_cv_sent:\nv_xor_b32 v{CE}, 0x1000, v{CE}\ns_waitcnt lgkmcnt(0)")

def conv_finish(a):
    a(f"s_cmp_lt_u32 {SW}, 4\ns_cbranch_scc1 L_cv_fin")
    for i in range(4): a(f"ds_read_b128 {vr(96+4*i,4)}, v{CE} offset:{1024*i}")
    a(f"s_add_u32 s68, s79, {QS - 4096}\nv_add_u32 v4, s68, v1\nds_read_b128 {vr(AQ,4)}, v4")
    a("s_mov_b32 s68, 0xffff0000")
    for i in range(8): a(f"v_lshlrev_b32 v{48+2*i}, 16, v{DB+i}\nv_and_b32 v{49+2*i}, s68, v{DB+i}")
    for i in range(16): a(f"v_fmac_f32 v{CACC+i}, v{48+i}, v{CD}")
    a("s_waitcnt lgkmcnt(0)")
    for i in range(16): a(f"v_add_f32 v{CACC+i}, v{CACC+i}, v{96+i}")
    for i in range(8): a(f"v_cvt_pk_bf16_f32 v{DB+i}, v{CACC+2*i}, v{CACC+2*i+1}")
    a("L_cv_fin:")

def a_params(a):
    aux_ids(a)
    a(f"""
    s_lshl_b32 s55, s54, 8
    s_lshl_b32 s56, s53, 7
    s_add_u32 s55, s55, s56
    v_lshlrev_b32 v1, 1, v0
    v_add_u32 v1, s55, v1
    s_lshl_b32 s56, s54, 1
    v_mov_b32 v2, s56
    global_load_short_d16_hi v10, v1, {S_LOGA} {OPT.get('pmod', '')}
    global_load_short_d16_hi v14, v2, {S_LDT}
    global_load_short_d16_hi v11, v1, {S_AIM} {OPT.get('pmod', '')}
    global_load_short_d16_hi v12, v1, {S_CR} {OPT.get('pmod', '')}
    global_load_short_d16_hi v13, v1, {S_CI} {OPT.get('pmod', '')}
    global_load_short_d16_hi v{CD}, v2, {S_DSK}
    """)
    epoch_load(a)
    if not OPT.get("nowpf"):
        a(f"""
        s_lshl_b32 s62, {SX}, 5
        s_add_u32 s62, s62, {SJ}
        s_lshr_b32 s63, s62, 3
        s_and_b32 s62, s62, 7
        s_lshl_b32 s62, s62, 16
        s_lshl_b32 s63, s63, 5
        s_add_u32 s62, s62, s63
        s_lshl_b32 s63, s51, 14
        s_add_u32 s62, s62, s63
        v_lshlrev_b32 v3, 10, v0
        v_add_u32 v3, s62, v3
        s_mov_b64 exec, 0xffff
        global_load_dword v92, v3, {S_WO}
        s_mov_b64 exec, -1
        """)
    if OPT.get("touch") == "start":
        a(f"""
        s_lshl_b32 s60, {SX}, 2
        s_lshl_b32 s61, s52, 1
        s_add_u32 s60, s60, s61
        s_lshl_b32 s60, s60, 6
        s_lshl_b32 s61, {SJ}, 1
        s_add_u32 s61, s61, s53
        s_add_u32 s60, s60, s61
        s_lshl_b32 s61, s60, 10
        s_add_u32 s61, s61, {QF}
        s_lshl_b32 s60, s60, 11
        s_add_u32 s60, s60, {KV}
        v_and_b32 v4, 15, v0
        v_lshlrev_b32 v4, 7, v4
        v_bfe_u32 v5, v0, 4, 1
        v_lshl_add_u32 v4, v5, 17, v4
        v_and_b32 v5, 7, v0
        v_lshlrev_b32 v5, 7, v5
        v_bfe_u32 v6, v0, 3, 1
        v_lshl_add_u32 v5, v6, 16, v5
        s_mov_b64 exec, 0xffffffff
        buffer_load_dword v9, v4, {R_WS}, s60 offen
        s_mov_b64 exec, 0xffff
        buffer_load_dword v8, v5, {R_WS}, s61 offen
        s_mov_b64 exec, -1
        """.replace("v9,", "v91,").replace("v8,", "v89,"))
    if OPT.get("nocpf") == "0":
        a(f"""
        s_getpc_b64 s[62:63]
        L_pc:
        s_and_b32 s64, {SJ}, 3
        s_lshl_b32 s64, s64, 2
        s_add_u32 s64, s64, s51
        s_lshl_b32 s64, s64, 11
        v_lshlrev_b32 v3, 7, v0
        v_add_u32 v3, s64, v3
        v_min_u32 v3, L_codeend - L_pc - 4, v3
        v_mov_b32 v5, s63
        v_add_co_u32 v4, vcc, s62, v3
        v_addc_co_u32 v5, vcc, 0, v5, vcc
        s_mov_b64 exec, 0xffff
        global_load_dword v93, v[4:5], off
        s_mov_b64 exec, -1
        """)

def rows(a, regs, row0, neg, tb):
    for k, r in enumerate(regs):
        if r is None: a(f"v_mov_b32 v{tb+k}, 0x3f80")
        else: a(f"v_cvt_pk_bf16_f32 v{tb+k}, v{r}, {'-' if neg else ''}v{r+1}")
    for k in range(len(regs)): a(f"ds_write_addtid_b32 v{tb+k} offset:{272*(row0+k)}")
    return row0 + len(regs)

def smul_list(ops):
    T = list(range(32, 40)) + [16, 17, 18, 19]; l = []
    for k, (d, x, w) in enumerate(ops): l += [f"v_mul_f32 v{T[2*k]}, v{x+1}, v{w+1}", f"v_mul_f32 v{T[2*k+1]}, v{x}, v{w+1}"]
    for k, (d, x, w) in enumerate(ops):
        if d == w:
            l += [f"v_fma_f32 v{d+1}, v{x+1}, v{w}, v{T[2*k+1]}", f"v_fma_f32 v{d}, v{x}, v{w}, -v{T[2*k]}"]
        else:
            l += [f"v_fma_f32 v{d}, v{x}, v{w}, -v{T[2*k]}", f"v_fma_f32 v{d+1}, v{x+1}, v{w}, v{T[2*k+1]}"]
    return l

def touch(a, where):
    tps = OPT.get("tps", "b9,b9,b9").split(","); mod = OPT.get("tmod", ""); n = 0
    if where == min(tps):
        a(f"""
        s_lshl_b32 s60, {SX}, 2
        s_lshl_b32 s61, s52, 1
        s_add_u32 s60, s60, s61
        s_lshl_b32 s60, s60, 6
        s_lshl_b32 s61, {SJ}, 1
        s_add_u32 s61, s61, s53
        s_add_u32 s60, s60, s61
        s_lshl_b32 s61, s60, 10
        s_add_u32 s61, s61, {QF}
        s_lshl_b32 s60, s60, 11
        s_add_u32 s60, s60, {KV}
        v_and_b32 v85, 7, v0
        v_lshlrev_b32 v85, 7, v85
        v_bfe_u32 v84, v0, 3, 1
        v_lshl_add_u32 v58, v84, 16, v85
        v_lshl_add_u32 v85, v84, 17, v85
        """)
    for k, p in enumerate(tps):
        if p != where: continue
        if n == 0: a("s_mov_b64 exec, 0xffff")
        a(f"buffer_load_dword v{82+k}, v{58 if k == 2 else 85}, {R_WS}, {'s61' if k == 2 else 's60'} offen offset:{1024 if k == 1 else 0} {mod}"); n += 1
    if n: a("s_mov_b64 exec, -1")
    return n

def a_phase1(a0):
    class Flt:
        on = False
        def __call__(self, txt):
            m = OPT.get("noA")
            if not (self.on and m): return a0(txt)
            for ln in txt.split("\n"):
                l = ln.strip()
                if "w" in m and l.startswith(("ds_write_addtid", "ds_write_b128")): continue
                if "r" in m and l.startswith(("ds_read_b128", "ds_read_b64 ")): continue
                if "m" in m and l.startswith("v_mfma"): continue
                if "v" in m and l.startswith(("v_pk_", "v_fma_f32", "v_mul_f32", "v_cvt_pk", "v_sin", "v_cos", "v_exp", "v_fract", "v_alignbit", "v_bfi", "v_add_f32")): continue
                a0(ln)
        def reset(self): a0.reset()
    a = Flt()
    vm = VM()
    vm.add("par", 7)
    if not OPT.get("nowpf"): vm.add("wpf")
    if OPT.get("touch") == "start": vm.add("touch", 2)
    if OPT.get("nocpf") == "0": vm.add("cpf")
    a("s_setprio 2")
    a(f"""
    s_mul_i32 s65, s51, {TBS}
    s_mov_b32 m0, s65
    s_mov_b32 s66, {LOG2E}
    s_mov_b32 s68, 0xffff0000
    s_mov_b32 s69, {INV2PI}
    s_mov_b32 s62, 0x41000000
    s_mov_b32 s63, 0x43800000
    
    """)
    late = [x.strip() for x in f"""
    v_and_b32 v1, 31, v0
    v_lshrrev_b32 v2, 5, v0
    v_lshlrev_b32 v2, 4, v2
    s_mul_i32 s73, s52, {2*TBS}
    v_add_u32 v54, s73, v2
    v_mov_b32 v3, 272
    v_mad_u32_u24 v7, v1, v3, v54
    s_mul_i32 s65, s51, {HTS}
    s_mul_i32 s73, s52, {2*HTS}
    v_add_u32 v2, s73, v2
    v_bfe_u32 v8, v0, 3, 1
    v_and_b32 v9, 3, v0
    v_lshl_add_u32 v8, v8, 2, v9
    v_cvt_f32_u32 v8, v8
    v_bfe_u32 v9, v0, 4, 1
    v_bfe_u32 v52, v0, 2, 1
    v_lshl_add_u32 v9, v9, 1, v52
    v_min_u32 v52, 2, v9
    v_sub_u32 v52, 0, v52
    v_ldexp_f32 v52, v8, v52
    v_rndne_f32 v52, v52
    v_cvt_u32_f32 v52, v52
    v_lshlrev_b32 v53, 3, v9
    s_mov_b32 s73, 0x100d0800
    v_lshrrev_b32 v53, v53, s73
    v_and_b32 v53, 0xff, v53
    v_add_u32 v52, v52, v53
    v_mul_f32 v8, 0.125, v8
    v_rndne_f32 v8, v8
    v_cvt_u32_f32 v8, v8
    v_lshl_add_u32 v8, v9, 1, v8
    v_add_u32 v8, 19, v8
    s_cmp_eq_u32 s53, 0
    s_cselect_b64 vcc, -1, 0
    s_cselect_b32 s70, 0, 0xaaaaaaaa
    s_mov_b32 s71, s70
    v_cndmask_b32 v9, v8, v52, vcc
    v_mad_u32_u24 v9, v9, v3, v2
    ; transpose addresses: v4/v5 LDS, v6 + s60 workspace; s61 = hand-off word, s72 = line this wave waits on
    v_lshrrev_b32 v1, 4, v0
    v_bfe_u32 v2, v0, 2, 2
    v_lshl_add_u32 v2, v1, 3, v2
    v_bfe_u32 v3, v0, 1, 1
    s_lshl_b32 s73, s51, 1
    v_add_u32 v3, s73, v3
    v_bfe_u32 v4, v2, 1, 3
    v_xor_b32 v4, v4, v3
    v_and_b32 v5, 1, v0
    v_lshlrev_b32 v5, 3, v5
    v_lshl_add_u32 v5, v2, 7, v5
    v_add_u32 v5, {slot_addr(0)}, v5
    v_xor_b32 v6, 2, v4
    v_lshl_add_u32 v4, v4, 4, v5
    v_lshl_add_u32 v5, v6, 4, v5
    v_bfe_u32 v6, v0, 1, 3
    v_lshlrev_b32 v6, 13, v6
    v_and_b32 v3, 1, v0
    v_lshl_add_u32 v6, v3, 6, v6
    v_lshl_add_u32 v6, v1, 4, v6
    s_lshl_b32 s60, {SX}, 18
    s_lshl_b32 s64, s51, 16
    s_add_u32 s60, s60, s64
    s_lshl_b32 s64, {SJ}, 8
    s_add_u32 s60, s60, s64
    s_add_u32 s60, s60, {XT}
    s_lshl_b32 s72, {SX}, 2
    s_add_u32 s61, s72, s51
    s_lshl_b32 s61, s61, 8
    s_lshl_b32 s64, {SJ}, 3
    s_add_u32 s61, s61, s64
    s_add_u32 s61, s61, {F_S1}
    s_lshr_b32 s64, {SJ}, 3
    s_add_u32 s72, s72, s64
    s_lshl_b32 s72, s72, 8
    s_add_u32 s72, s72, {F_S1}
    s_getreg_b32 s64, hwreg(HW_REG_XCC_ID)
    v_mov_b32 v{VX}, s64
    """.strip().split("\n") if not x.strip().startswith(";")]
    for _ in range(int(OPT.get("asetup", 25))):
        if late: a(late.pop(0))
    vm.wait(a, "par")
    a.on = True
    lstamp(a, 31)
    a(f"""
    v_mul_f32 v14, s66, v14
    v_mul_f32 v10, s66, v10
    v_exp_f32 v14, v14
    v_exp_f32 v10, v10
    s_mov_b32 s56, 1664525
    v_mul_lo_u32 v{VN}, v{VN}, s56
    v_add_u32 v{VN}, 1013904223, v{VN}
    v_cvt_pk_bf16_f32 v15, v14, v10
    v_lshlrev_b32 v14, 16, v15
    v_and_b32 v10, s68, v15
    v_mul_f32 v10, v10, v14
    v_mul_f32 v11, v11, v14
    v_mul_f32 v10, s66, v10
    v_mul_f32 v11, s69, v11
    """)
    L = lambda i: 76 + 2 * i
    H = lambda p: 40 + 2 * p if p < 8 else 28
    LF, HF, AK, HP = 96, 160, 224, 59
    cexp(a, [(L(1), "s62")])
    cmuls(a, [(L(2), L(1), L(1))])
    cmuls(a, [(L(3), L(2), L(1)), (84, L(2), L(2))])
    r = rows(a, [None, L(1), L(2), L(3)], 0, False, 72)
    cmuls(a, [(L(i), L(i), 84) for i in range(1, 4)])
    r = rows(a, [84, L(1), L(2), L(3)], r, False, 16)
    cmuls(a, [(L(0), 84, 84)] + [(L(i), L(i), 84) for i in range(1, 4)])
    for g in range(2, 8):
        r = rows(a, [L(i) for i in range(4)], r, False, 72 if g & 1 == 0 else 16)
        if g < 7: cmuls(a, [(L(i), L(i), 84) for i in range(4)])
        for _ in range(12):
            if late: a(late.pop(0))
    while late: a(late.pop(0))
    assert r == 32
    lstamp(a, 24)
    a("s_waitcnt lgkmcnt(0)\ns_barrier")
    a("""
    ds_read_b64_tr_b16 v[224:225], v4
    ds_read_b64_tr_b16 v[226:227], v5 offset:512
    ds_read_b64_tr_b16 v[228:229], v4 offset:4096
    ds_read_b64_tr_b16 v[230:231], v5 offset:4608
    """)
    lrd = [f"ds_read_b128 {vr(LF+4*ks,4)}, v7 offset:{TBS*(ks>>3) + 32*(ks&7)}" for ks in range(16)]
    for x in lrd[:8]: a(x)
    a("v_mul_f32 v40, v12, v14\nv_mul_f32 v41, v13, v14\nv_add_f32 v40, v40, v40\nv_add_f32 v41, v41, v41\ns_mov_b32 m0, s65")
    a(f"""
    s_waitcnt lgkmcnt(7)
    buffer_store_dwordx4 v[224:227], v6, {R_WS}, s60 offen {SC}
    buffer_store_dwordx4 v[228:231], v6, {R_WS}, s60 offen offset:128 {SC}
    """)
    vm.add("xt", 2)
    for x in lrd[8:]: a(x)
    cexp(a, [(20, None), (24, "s63")])
    hl = []; row = [0]
    def hm(ops): hl.extend(smul_list(ops))
    def hp(regs):
        for g in regs: hl.append(f"v_cvt_pk_bf16_f32 v{HP+row[0]}, v{g}, -v{g+1}"); row[0] += 1
    hm([(H(1), H(0), 20), (22, 20, 20)])
    hm([(H(2), H(0), 22), (H(3), H(1), 22), (26, 22, 22), (30, 24, 24)])
    hm([(H(4 + i), H(i), 26) for i in range(4)])
    hm([(H(8), H(4), 26)]); hp([H(p) for p in range(8)])
    for grp in ((0, 2, 4, 6, 8), (0, 4, 8), (0, 4, 8)):
        hm([(H(p), H(p), 24) for p in grp]); hp([H(p) for p in grp])
    hm([(42, H(0), 24), (46, H(8), 24)])
    hm([(50, 42, 24), (52, 46, 24), (H(0), 42, 30), (H(8), 46, 30)])
    hm([(44, 50, 30), (48, 52, 30)]); hp([42, 46, 50, 52, H(0), H(8), 44, 48])
    assert row[0] == 27
    cut = int(OPT.get("hcut", 64))
    for x in hl[:cut]: a(x)
    lstamp(a, 19)
    a("s_waitcnt lgkmcnt(0)\ns_barrier")
    done = 0
    for k, x in enumerate(hl[cut:]):
        a(x)
        n = sum("cvt" in y for y in hl[:cut + k + 1])
        if n - done >= 8 or (k == len(hl) - cut - 1):
            for j in range(done, n): a(f"ds_write_addtid_b32 v{HP+j} offset:{272*j}")
            done = n
    vm.wait(a, "xt"); signal(a, "s61", SC, 2); vm.add("f1")
    lstamp(a, 20)
    a("s_waitcnt lgkmcnt(0)\ns_setprio 0\ns_barrier")
    hrd = [f"ds_read_b128 {vr(HF+4*ks,4)}, v9 offset:{HTS*(ks>>3) + 32*(ks&7)}" for ks in range(16)]
    for x in hrd[:12]: a(x)
    a(f"""
    v_lshlrev_b32 v1, 4, v0
    v_mov_b32 v60, 0
    v_mov_b32 v61, 0
    v_mov_b32 v62, 0
    v_mov_b32 v63, 0
    s_mul_i32 s67, s52, {KXD}
    s_add_u32 s67, s67, {KX0}
    v_mov_b32 v3, s67
    s_lshl_b32 s66, s53, 11
    s_add_u32 s66, s66, s67
    v_lshrrev_b32 v2, 5, v0
    v_and_b32 v4, 31, v0
    v_lshlrev_b32 v4, 4, v4
    v_lshl_add_u32 v2, v2, 9, v4
    v_add_u32 v2, s66, v2
    s_waitcnt lgkmcnt(4)
    """)
    for x in hrd[12:]: a(x)
    km = lambda ks: a(f"v_mfma_f32_32x32x16_bf16 {vr(AK,16)}, {vr(HF+4*ks,4)}, {vr(LF+4*ks,4)}, {'0' if ks == 0 else vr(AK,16)}")
    for ks in range(8): km(ks)
    lstamp(a, 21)
    a("s_waitcnt lgkmcnt(0)\ns_barrier")
    bulk = att_bulk()
    for ks in range(8, 16):
        km(ks)
        for x in bulk[7 * (ks - 8):7 * (ks - 7)]: a(x)
    a("ds_write_b128 v3, v[60:63]")
    for rg in range(2): a(f"v_cndmask_b32 v{AK+8*rg+4}, v{AK+8*rg+4}, v{AK+8*rg+5}, s[70:71]")
    for i in range(8): a(f"v_cvt_pk_bf16_f32 v{40+i}, v{AK+2*i}, v{AK+2*i+1}")
    for rg in range(2): a(f"ds_write_b128 v2, {vr(40+4*rg,4)} offset:{16 + 1024*rg}")
    lstamp(a, 22)
    a("s_waitcnt lgkmcnt(0)\ns_barrier")
    a(f"v_and_b32 v55, 31, v0\nv_lshlrev_b32 v55, 3, v55\nbuffer_load_dword v{VT}, v55, {R_WS}, s72 offen {SC}")
    n4 = touch(a, "b4")
    a(f"""
    v_add_u32 v2, s66, v1
    ds_read_b64 v[40:41], v2 offset:8
    ds_read_b128 v[42:45], v2 offset:16
    ds_read_b64 v[46:47], v2 offset:{1024+8}
    ds_read_b128 v[48:51], v2 offset:{1024+16}
    s_cmp_eq_u32 s52, 0
    s_cselect_b32 s67, 0, {slot_addr(4)}
    v_bfe_u32 v2, v0, 2, 2
    v_mul_u32_u24 v2, {RE}, v2
    v_and_b32 v3, 3, v0
    v_min_u32 v3, 2, v3
    v_lshl_add_u32 v2, v3, 4, v2
    v_add_u32 v52, s67, v2
    s_lshl_b32 s69, s53, 11
    s_sub_u32 s66, s67, s69
    s_add_u32 s66, s66, {255*16 - 1024}
    v_sub_u32 v53, s66, v1
    v_min_u32 v2, 32, v0
    s_mul_i32 s66, s53, {US}
    s_add_u32 s66, s66, s67
    s_add_u32 s66, s66, {RSZ}
    v_lshl_add_u32 v54, v2, 4, s66
    s_mov_b32 s69, 0xffff
    s_waitcnt lgkmcnt(0)
    """)
    RG = 96
    for q in range(2):
        w = lambda i: 40 + 6 * q + 2 + i
        for e in range(4):
            o = RG + 16 * q + 4 * e
            for i in range(4):
                hi = 3 - i - (0 if e >= 2 else 1)
                if e & 1: a(f"v_alignbit_b32 v{o+i}, v{w(hi)}, v{w(hi)}, 16")
                else: a(f"v_bfi_b32 v{o+i}, s69, v{w(hi)}, v{w(hi-1)}")
    a.on = False
    a(f"""
    v_lshlrev_b32 v1, 4, v0
    v_mov_b32 v60, 0
    s_lshl_b32 s66, s51, 2
    s_add_u32 s66, s66, 32000
    v_mov_b32 v59, s66
    ds_write_b32 v59, v60
    s_lshl_b32 s71, {SX}, 18
    s_lshl_b32 s69, {SJ}, 13
    s_add_u32 s71, s71, s69
    s_lshl_b32 s69, s52, 6
    s_add_u32 s71, s71, s69
    s_lshl_b32 s69, s53, 12
    s_add_u32 s71, s71, s69
    s_add_u32 s71, s71, {XT}
    v_lshrrev_b32 v2, 2, v0
    v_and_b32 v3, 3, v0
    v_lshlrev_b32 v3, 4, v3
    v_lshl_add_u32 v56, v2, 7, v3
    s_lshl_b32 s70, s53, 11
    s_add_u32 s69, s67, s70
    s_add_u32 s69, s69, {RSZ + 512}
    v_add_u32 v57, s69, v1
    s_lshl_b32 s73, s53, 8
    s_sub_u32 s73, s67, s73
    s_add_u32 s66, s73, {4128 - 64*7 - 512*7 + 256}
    v_and_b32 v4, 3, v0
    v_mul_u32_u24 v4, {RE}, v4
    v_lshrrev_b32 v2, 4, v0
    v_bfe_u32 v3, v0, 2, 2
    v_add_u32 v3, v3, v2
    v_lshlrev_b32 v3, 4, v3
    v_sub_u32 v4, v4, v3
    v_add_u32 v{CA}, s66, v4
    s_add_u32 s66, s73, {RSZ + US + 512 + 48 - 64*7 + 256}
    v_bfe_u32 v4, v0, 1, 3
    v_lshlrev_b32 v4, 6, v4
    v_lshlrev_b32 v3, 4, v2
    v_sub_u32 v5, v4, v3
    v_add_u32 v4, v4, v3
    v_and_b32 v3, 1, v0
    v_lshl_add_u32 v4, v3, 3, v4
    v_mul_u32_u24 v3, {US}, v3
    v_sub_u32 v5, v5, v3
    v_add_u32 v{CB}, s66, v5
    v_add_u32 v{CU}, s69, v4
    v_add_u32 v{DA}, s70, v4
    v_add_u32 v{DA+1}, 512, v{DA}
    v_add_u32 v{DA+2}, 1024, v{DA}
    v_add_u32 v{DA+3}, 1536, v{DA}
    s_lshl_b32 s66, s51, 12
    s_add_u32 s66, s66, {OS}
    v_add_u32 v{CE}, s66, v1
    s_lshl_b32 s66, s54, 12
    s_add_u32 s66, s66, {BT}
    """)
    for x in att_addr(): a(x)
    lstamp(a, 23)
    a("s_waitcnt lgkmcnt(0)\ns_barrier")
    def uload():
        for q in range(2): a(f"buffer_load_dwordx4 {vr(32+4*q,4)}, v56, {R_WS}, s71 offen offset:{2048*q} {SC}")
    def ustore():
        for q in range(2): a(f"ds_write_b128 v57, {vr(32+4*q,4)} offset:{1024*q}")
        for q in range(2):
            a(f"ds_write_b64 v57, {vr(32+4*q,2)} offset:{1024*q + US + 8}")
            a(f"ds_write_b64 v57, {vr(34+4*q,2)} offset:{1024*q + US + 16}")
    a(f"""
    s_waitcnt vmcnt({n4})
    v_cmp_ne_u32 s[94:95], v{VT}, v{VN}
    s_cmp_lg_u64 s[94:95], 0
    s_cbranch_scc1 L_u_skip
    """)
    uload()
    a("L_u_skip:")
    nt = touch(a, "b5")
    a.on = True
    a("ds_write_b128 v52, v[60:63] offset:4096\nds_write_b128 v54, v[60:63]")
    rw = [f"ds_write_b128 v53, {vr(RG+16*q+4*e,4)} offset:{e*RE + 1024*(1-q)}" for q in range(2) for e in range(4)]
    rcut = int(OPT.get("rcut", 5))
    for x in rw[:rcut]: a(x)
    a("s_waitcnt lgkmcnt(0)\ns_barrier")
    for x in rw[rcut:]: a(x)
    a.on = False
    if OPT.get("uearly"):
        a(f"s_cmp_lg_u64 s[94:95], 0\ns_cbranch_scc1 L_u_late\ns_waitcnt vmcnt({nt})")
        ustore()
        a("ds_write_b32 v59, v59")
        touch(a, "b6")
        a("s_barrier\ns_branch L_u_have\nL_u_late:")
        touch(a, "b6")
        a("s_barrier")
        poll(a, "s1", 55, "s72")
        uload()
        a("s_waitcnt vmcnt(0)")
        ustore()
        a("ds_write_b32 v59, v59\nL_u_have:")
    else:
        nt += touch(a, "b6")
        a("s_barrier")
        a(f"s_cmp_lg_u64 s[94:95], 0\ns_cbranch_scc0 L_u_have")
        poll(a, "s1", 55, "s72")
        uload()
        a(f"s_waitcnt vmcnt(0)\nL_u_have:\ns_waitcnt vmcnt({nt})")
        ustore()
        a("ds_write_b32 v59, v59")
    a(f"""
    v_xor_b32 v59, 4, v59
    s_mov_b32 s92, {SPIN}
    L_pair:
    ds_read_b32 v57, v59
    s_waitcnt lgkmcnt(0)
    v_readfirstlane_b32 s93, v57
    s_sub_u32 s92, s92, 1
    s_cmp_eq_u32 s92, 0
    s_cbranch_scc1 L_pair_ok
    s_cmp_eq_u32 s93, 0
    s_cbranch_scc1 L_pair
    L_pair_ok:
    """)
    lstamp(a, 25)
    conv(a)
    lstamp(a, 3)

def att_main(a, hooks, prios):
    p2, pr, pq, p1 = [int(x) for x in OPT.get("ord", "2,2,5,10").split(",")]
    def rdk(t):
        p = (t + T0) & 63; b, o = (1, 2048 * p) if p < 32 else (80, 2048 * (p - 32))
        a(f"ds_read_b128 {vr(AKS[t&1],4)}, v{b} offset:{o}")
    def rdv(t):
        p = (t + T0) & 63; b, o = (2, 2048 * p) if p < 32 else (81, 2048 * (p - 32))
        a("s_mov_b64 exec, s[82:83]")
        a(f"ds_read_b128 {vr(AV1[t&1],4)}, v{b} offset:{o}")
        a(f"ds_read_b128 {vr(AV2[t&1],4)}, v{b} offset:{o+512}")
        a("s_mov_b64 exec, -1")
    rdk(0); rdk(1); rdv(0)
    a("s_waitcnt lgkmcnt(3)")
    a(f"v_mfma_f32_32x32x16_bf16 {vr(AS_[0],16)}, {vr(AKS[0],4)}, {vr(AQ,4)}, 0")
    for t in range(64):
        c, n = AS_[t & 1], AS_[(t + 1) & 1]
        if t in prios: a(f"s_setprio {prios[t]}")
        k = 0
        for e in range(17):
            if e == p2 and t: a(f"v_smfmac_f32_32x32x32_bf16 {vr(AO,16)}, {vr(AV2[(t-1)&1],4)}, {vr(n+8,8)}, v3")
            if e == pq and pq < pr: a("s_waitcnt lgkmcnt(0)")
            if e == pq and pq < pr and t + 1 < 64: a(f"v_mfma_f32_32x32x16_bf16 {vr(n,16)}, {vr(AKS[(t+1)&1],4)}, {vr(AQ,4)}, 0")
            if e == pr:
                if t in hooks: hooks[t]()
                if OPT.get("kfirst") and t + 2 < 64: rdk(t + 2); k += 1
                if t + 1 < 64: rdv(t + 1); k += 2
                if not OPT.get("kfirst") and t + 2 < 64: rdk(t + 2); k += 1
            if e == pq and pq >= pr:
                a(f"s_waitcnt lgkmcnt({k})")
                if t + 1 < 64: a(f"v_mfma_f32_32x32x16_bf16 {vr(n,16)}, {vr(AKS[(t+1)&1],4)}, {vr(AQ,4)}, 0")
            if e == p1: a(f"v_smfmac_f32_32x32x32_bf16 {vr(AO,16)}, {vr(AV1[t&1],4)}, {vr(c,8)}, v3")
            if e < 16: a(f"v_exp_f32 v{c+e}, v{c+e}")
    a(f"v_smfmac_f32_32x32x32_bf16 {vr(AO,16)}, {vr(AV2[1],4)}, {vr(AS_[1]+8,8)}, v3")

def att_finish2(a, tag):
    a(f"s_mov_b32 s84, 0x2b800000\ns_mov_b32 s85, 0x5d800000\nv_fma_f32 v8, v{AO}, 0, v{AO+8}")
    for r in range(1, 8): a(f"v_fma_f32 v8, v{AO+r}, 0, v8")
    a(f"""
    v_cmp_nge_f32 vcc, v8, s84
    v_cmp_nle_f32 s[90:91], v8, s85
    s_or_b64 vcc, vcc, s[90:91]
    s_cbranch_vccnz L_{tag}_slow
    L_{tag}_norm:
    v_rcp_f32 v8, v{AO+8}
    """)
    for r in range(8): a(f"v_mul_f32 v{AO+r}, v8, v{AO+r}")
    for r in range(4): a(f"v_cvt_pk_bf16_f32 v{12+r}, v{AO+2*r}, v{AO+2*r+1}")
    for r in range(4): a(f"v_min_u32 v{12+r}, -2, v{12+r}")
    a(f"buffer_store_dwordx4 v[12:15], v1, {R_WS}, s87 offen {OPT.get('ostm', SC).replace('_', ' ')}")

def out_gemm(a):
    a(f"""
    v_lshlrev_b32 v2, 9, v86
    v_lshl_add_u32 v2, v87, 4, v2
    v_add_u32 v2, {OS}, v2
    v_lshlrev_b32 v3, 10, v87
    v_lshl_add_u32 v3, v86, 3, v3
    s_lshl_b32 s84, s88, 15
    s_lshl_b32 s86, s89, 5
    s_add_u32 s84, s84, s86
    v_add_u32 v3, s84, v3
    v_add_u32 v4, 0x4000, v3
    """)
    def go():
        NB = 12; FB = 16
        rd = lambda i: a(f"ds_read_b128 {vr(FB+4*(i%NB),4)}, v2 offset:{2048*(i>>1) + 256*(i&1)}")
        for i in range(NB): rd(i)
        for g in range(8):
            a(f"s_waitcnt lgkmcnt({min(8, 28 - 4 * g)})")
            for i in range(4 * g, 4 * g + 4):
                acc = 8 + 4 * (i & 1)
                a(f"v_mfma_f32_16x16x32_bf16 {vr(acc,4)}, {vr(PW+4*(i>>1),4)}, {vr(FB+4*(i%NB),4)}, {'0' if i < 2 else vr(acc,4)}")
            for i in range(4 * g + NB, min(4 * g + NB + 4, 32)): rd(i)
        for nt in range(2):
            for i in range(4): a(f"v_fma_f32 v{8+4*nt+i}, v{8+4*nt+i}, v{PG+nt}, v{PB+4*nt+i}")
            a(f"v_cvt_pk_bf16_f32 v{16+2*nt}, v{8+4*nt}, v{9+4*nt}\nv_cvt_pk_bf16_f32 v{17+2*nt}, v{10+4*nt}, v{11+4*nt}")
            a(f"global_store_dwordx2 v{3+nt}, {vr(16+2*nt,2)}, {S_OUT} {OPT.get('outmod', '')}")
    return go

def build_fused():
    a = Asm()
    k = NAME + "_kernel"
    launches = f"; @launch grid=(256,1,1) block=(512,1,1) lds={LDS_BYTES}\n"
    if G.STAMPS:
        launches = f"; @launch kernel={k} grid=(256,1,1) block=(512,1,1) lds={LDS_BYTES}\n; @launch kernel=stamp_kernel grid=(1,1,1) block=(256,1,1) lds=1024\n"
    a.raw(header() + launches + '.amdgcn_target "amdgcn-amd-amdhsa--gfx950"\n.text')
    kernel_head(a, k)
    if "amp" in OPT: lstamp(a, "E")
    mode = OPT.get("cpf0", "8")
    if mode != "0":
        n = int(mode); sh = {4: 9, 8: 10, 16: 11, 32: 12}[n]; nch = 32768 // (8 * n * 128)
        a(f"""
        s_cmp_ge_u32 s2, 256
        s_cbranch_scc1 L_end
        s_load_dwordx16 s[4:19], s[0:1], 0
        s_load_dwordx8 s[20:27], s[0:1], 64
        s_load_dwordx4 s[28:31], s[0:1], 96
        s_getpc_b64 s[62:63]
        L_pc0:
        v_lshrrev_b32 v1, 6, v0
        v_and_b32 v2, {n - 1}, v0
        v_lshlrev_b32 v2, 7, v2
        v_lshl_add_u32 v2, v1, {sh}, v2
        s_lshr_b32 s64, s2, 3
        s_and_b32 s64, s64, {nch - 1}
        s_lshl_b32 s64, s64, {sh + 3}
        v_add_u32 v2, s64, v2
        v_min_u32 v2, L_codeend - L_pc0 - 4, v2
        v_mov_b32 v5, s63
        v_add_co_u32 v4, vcc, s62, v2
        v_addc_co_u32 v5, vcc, 0, v5, vcc
        s_mov_b64 exec, {hex(2**n - 1)}
        global_load_dword v93, v[4:5], off
        s_mov_b64 exec, -1
        """)
        OPT["nocpf"] = "1"
    prologue(a, "L_end", mode != "0")
    lstamp(a, 0)
    if OPT.get("idle0"): a(f"s_sleep {OPT['idle0']}")
    if OPT.get("latex"): a(f"s_cmp_lg_u32 {SX}, 3\ns_cbranch_scc1 L_latex\ns_sleep {OPT['latex']}\nL_latex:")
    a(f"s_cmp_lt_u32 {SW}, 4\ns_cbranch_scc1 L_gemm")
    a_params(a)
    a("s_barrier\ns_branch L_aux")
    a.reset(); a("L_gemm:")
    g_phase1(a)
    lg = list(G.LIGHT); G.LIGHT[:] = [s for s in lg if s == 0]
    a("s_branch L_att")
    a.reset(); a("L_aux:")
    a_phase1(a)
    la = list(G.LIGHT); G.LIGHT[:] = sorted(set(la) | set(lg))
    a.reset(); a("L_att:")
    for r in range(4): a(f"v_mov_b32 v{VS+r}, -1")
    a("s_barrier")
    a(f"ds_write_b32 v92, v{VZ}")
    lstamp(a, 4)
    KM = SC
    if OPT.get("idle"): a(f"s_sleep {OPT['idle']}")
    conv_finish(a)
    lstamp(a, 27)
    mode = "slow"
    sched = {t: [t + 3] for t in range(13)}
    def early_stores():
        deferred_stores(a)
        a(f"""
        s_lshl_b32 s87, s76, 5
        s_add_u32 s87, s87, s74
        s_lshl_b32 s87, s87, 10
        s_add_u32 s87, s87, {OF}
        buffer_store_dwordx4 {vr(VS,4)}, v1, {R_WS}, s87 offen {SC}
        """)
    def hdma(t):
        def f():
            if t == 2: a("s_waitcnt vmcnt(2)\ns_barrier")
            if t == 2 and OPT.get("late3"): early_stores()
            if t == 10:
                a("s_waitcnt vmcnt(1)\ns_barrier"); lstamp(a, 28)
                if OPT.get("late3"):
                    s3_addr(); a(f"s_cmp_lg_u32 {SW}, 0\ns_cbranch_scc1 L_s3_skip"); signal(a, "s85"); a("L_s3_skip:")
            kv_dma(a, sched[t], KM)
        return f
    def s3_addr(): a(f"s_lshl_b32 s85, {SJ}, 7\ns_lshl_b32 s86, {SX}, 2\ns_add_u32 s85, s85, s86\ns_add_u32 s85, s85, {F_S3}")
    def h_bar():
        a("s_waitcnt vmcnt(0)\ns_barrier"); s3_addr()
        a(f"s_cmp_lg_u32 {SW}, 0\ns_cbranch_scc1 L_s3_skip")
        signal(a, "s85")
        a("L_s3_skip:")
        if mode != "slow": lstamp(a, 28)
    def h_cnt():
        a(f"""
        s_waitcnt vmcnt(0)
        s_mov_b64 exec, 1
        ds_add_rtn_u32 v93, v92, v93
        s_mov_b64 exec, -1
        """)
    def h_s3sig():
        a("v_readfirstlane_b32 s84, v93"); s3_addr()
        a("s_cmp_lg_u32 s84, 7\ns_cbranch_scc1 L_s3_skip")
        signal(a, "s85")
        a("L_s3_skip:")
    def h_s3ld():
        a(f"v_lshrrev_b32 v91, 1, v0\nv_lshlrev_b32 v91, 7, v91\nv_and_b32 v90, 1, v0\nv_lshl_add_u32 v91, v90, 4, v91")
        a(f"s_mov_b32 s84, {F_S3}\nbuffer_load_dwordx4 {vr(VT,4)}, v91, {R_WS}, s84 offen {SC}")
    def wof_dma(r):
        for i in range(4): a(f"buffer_load_dwordx4 v1, {R_WS}, s90 offen offset:{1024*i} {SC} lds")
        if r < 3: a("s_add_u32 s90, s90, 4096")
    def h_s3chk():
        a("s_waitcnt vmcnt(0)")
        poll(a, "s3", 91, "s84", True, 4, sleep=16)
        a(f"""
        s_lshl_b32 s88, s75, 3
        s_lshr_b32 s89, s74, 2
        s_add_u32 s88, s88, s89
        s_and_b32 s89, s74, 3
        s_lshl_b32 s89, s89, 3
        s_add_u32 s89, s89, {SW}
        s_lshl_b32 s90, s89, 14
        s_add_u32 s90, s90, {WOF}
        s_lshl_b32 s86, {SW}, 12
        s_add_u32 s86, s86, {OS}
        s_mov_b32 m0, s86
        v_add_u32 v92, s86, v1
        """)
        if OPT.get("nos3"): return
        wof_dma(0)
        a(f"""
        s_or_b32 s84, s2, {SW}
        s_cmp_lg_u32 s84, 0
        s_cbranch_scc1 L_n_skip
        s_mov_b32 s84, {F_N}
        """)
        signal(a, "s84")
        a("L_n_skip:")
    def h_wrd(r):
        def f():
            if OPT.get("nos3"): return
            a("s_waitcnt vmcnt(0)")
            for i in range(4): a(f"ds_read_b128 {vr(PW+16*r+4*i,4)}, v92 offset:{1024*i}")
        return f
    def h_wld(r):
        def f():
            if OPT.get("nos3"): return
            wof_dma(r)
        return f
    def h_side():
        if OPT.get("nos3"):
            a("v_lshrrev_b32 v86, 4, v0\nv_and_b32 v87, 15, v0"); return
        a(f"""
        v_lshrrev_b32 v86, 4, v0
        v_and_b32 v87, 15, v0
        v_lshlrev_b32 v88, 14, v86
        v_lshl_add_u32 v88, v87, 1, v88
        s_lshl_b32 s90, s89, 16
        s_lshl_b32 s91, s88, 6
        s_add_u32 s90, s90, s91
        s_add_u32 s90, s90, {BT}
        """)
        for i in range(4):
            if i: a("s_add_u32 s90, s90, 4096")
            for nt in range(2): a(f"buffer_load_short_d16_hi v{PB+4*nt+i}, v88, {R_WS}, s90 offen offset:{32*nt} {SC}")
        a(f"""
        v_lshlrev_b32 v88, 2, v87
        s_lshl_b32 s90, s88, 7
        s_add_u32 s90, s90, {GW}
        buffer_load_dword v{PG}, v88, {R_WS}, s90 offen {SC}
        buffer_load_dword v{PG+1}, v88, {R_WS}, s90 offen offset:64 {SC}
        """)
    hooks = {t: hdma(t) for t in sched}
    def h_kvadd(): a("s_waitcnt vmcnt(0)\ns_mov_b64 exec, 1\nds_add_u32 v92, v93\ns_mov_b64 exec, -1")
    def h_kvrd(): a("ds_read_b32 v93, v92")
    def h_kvchk():
        a(f"""
        s_mov_b32 s92, {SPIN}
        L_kv:
        v_readfirstlane_b32 s84, v93
        s_sub_u32 s92, s92, 1
        s_cmp_eq_u32 s92, 0
        s_cbranch_scc1 L_kv_ok
        s_cmp_eq_u32 s84, 8
        s_cbranch_scc1 L_kv_ok
        ds_read_b32 v93, v92
        s_waitcnt lgkmcnt(0)
        s_branch L_kv
        L_kv_ok:
        """)
    if OPT.get("late3"): hooks.update({15: h_kvadd, 32: h_kvrd, 33: h_kvchk})
    elif mode == "slow" and OPT.get("bar3"): hooks.update({14: early_stores, int(OPT["bar3"]): h_bar})
    elif mode == "slow": hooks.update({14: early_stores, 19: h_cnt, 20: h_s3sig})
    else: hooks.update({TB2: h_bar})
    if OPT.get("wbl2") != "0":
        def h_wb(): a(f"s_or_b32 s84, {SJ}, {SW}\ns_cmp_lg_u32 s84, 0\ns_cbranch_scc1 L_wb_skip\nbuffer_wbl2 sc1\nL_wb_skip:")
        hooks[24] = h_wb
    hooks.update({34: h_s3ld, 38: h_s3chk, 58: h_side})
    for r in range(4):
        hooks[42 + 5 * r] = h_wrd(r)
        if r < 3: hooks[43 + 5 * r] = h_wld(r + 1)
    prios = {0: 1, 1: 0, 2: 3, 5: 2, 8: 1, 9: 0, 10: 3, 22: 2, 44: 1, 58: 0}
    if "prios" in OPT: prios = {int(x.split(":")[0]): int(x.split(":")[1]) for x in OPT["prios"].split(",")}
    att_main(a, hooks, prios)
    lstamp(a, 29)
    att_finish2(a, "at")
    lstamp(a, 5)
    a(f"""
    s_lshl_b32 s93, s88, 15
    s_lshl_b32 s86, {SW}, 12
    s_add_u32 s93, s93, s86
    s_add_u32 s93, s93, {OF}
    """)
    OM = OPT.get("omod", SC).replace("_", " ")
    odma = lambda: [a(f"buffer_load_dwordx4 v1, {R_WS}, s93 offen offset:{1024*i} {OM} lds") for i in range(4)]
    if OPT.get("oack"):
        a("s_waitcnt vmcnt(1)")
        out_side_math(a)
        gemm = out_gemm(a)
        a(f"s_mov_b32 s92, {SPIN}\ns_waitcnt vmcnt(0)")
        if OPT.get("obar"): a("s_barrier")
        if OPT.get("opre"): a(f"s_sleep {OPT['opre']}")
        a("s_branch L_o_go\nL_o_again:")
    else:
        odma()
        a("s_waitcnt vmcnt(5)")
        out_side_math(a)
        gemm = out_gemm(a)
        a(f"s_mov_b32 s92, {SPIN}\ns_branch L_o_chk\nL_o_again:")
    if OPT.get("osleep"): a(f"s_sleep {OPT['osleep']}")
    a("L_o_go:")
    odma()
    a("L_o_chk:\ns_waitcnt vmcnt(0)")
    for i in range(4): a(f"ds_read_b128 {vr(16+4*i,4)}, v92 offset:{1024*i}")
    a("s_sub_u32 s92, s92, 1\ns_waitcnt lgkmcnt(2)")
    a("v_max3_u32 v5, v16, v17, v18\nv_max3_u32 v6, v19, v20, v21\nv_max3_u32 v5, v22, v23, v5\ns_waitcnt lgkmcnt(0)")
    a("v_max3_u32 v6, v24, v25, v6\nv_max3_u32 v5, v26, v27, v5\nv_max3_u32 v6, v28, v29, v6\nv_max3_u32 v5, v30, v31, v5\nv_max_u32 v5, v5, v6")
    a("""
    v_cmp_eq_u32 vcc, -1, v5
    s_cmp_eq_u32 s92, 0
    s_cbranch_scc1 L_o_ok
    s_cbranch_vccnz L_o_again
    L_o_ok:
    """)
    lstamp(a, 30)
    a("s_barrier")
    gemm()
    lstamp(a, 7)
    if G.STAMPS:
        lflush(a, range(8))
        for s in la:
            if s: G.STAMP_WAVES[s] = list(range(4, 8))
        for s in lg:
            if s: G.STAMP_WAVES[s] = list(range(4))
    if "amp" in OPT:
        w = OPT["amp"].split(",")[2]
        a(f"""
        s_cmp_lg_u32 s2, {OPT.get("ampwg", 0)}
        s_cbranch_scc1 L_end
        s_cmp_lg_u32 {SW}, {w}
        s_cbranch_scc1 L_end
        s_sub_u32 s98, s98, s96
        s_lshl_b32 s98, s98, 2
        s_min_u32 s98, s98, 40000
        s_memrealtime s[96:97]
        s_waitcnt lgkmcnt(0)
        L_amp:
        s_memrealtime s[100:101]
        s_waitcnt lgkmcnt(0)
        s_sub_u32 s100, s100, s96
        s_cmp_lt_u32 s100, s98
        s_cbranch_scc1 L_amp
        """)
    a("L_end:\ns_endpgm")
    att_slow(a, "at")
    a("L_codeend:\ns_endpgm")
    if G.STAMPS: stamp_reduce_kernel(a)
    a.raw('.section .rodata,"a"')
    if G.STAMPS: a.raw(descriptor("stamp_kernel", 32))
    a.raw(descriptor(k, 256))
    return a.text()

if __name__ == "__main__":
    out = sys.argv[1]
    for o in sys.argv[2:]:
        kk, _, v = o.partition("="); OPT[kk] = v or True
    G.STAMPS = bool(OPT.get("stamp"))
    OPT.setdefault("ones", "few"); OPT.setdefault("nowpf", True); OPT.setdefault("qmod", "plain"); OPT.setdefault("touch", "a"); OPT.setdefault("sched", "slow"); OPT.setdefault("wbl2", "0"); OPT.setdefault("rot7", "1"); OPT.setdefault("nocpf", "0"); OPT.setdefault("oack", True); OPT.setdefault("s3pre", True); OPT.setdefault("tmod", "sc1"); OPT.setdefault("omod", "sc1"); OPT.setdefault("ostm", "sc1"); OPT.setdefault("obar", True); OPT.setdefault("osleep", "2")
    txt = build_fused()
    open(out, "w").write(txt)
    print("wrote", out, len(txt), "bytes")
```

```python
import sys
import gen as G
from gen import (Asm, OPT, NAME, vr, VM, prologue, aux_ids, kernel_head, descriptor, header, lstamp, lflush, stamp_reduce_kernel,
                 QF, KV, XT, BT, OF, WOF, GW, LDS_BYTES, LOG2E, INV2PI, QSCALE,
                 S_X, S_WO, S_LOGA, S_AIM, S_CR, S_CI, S_LDT, S_DSK, S_GWT, S_OUT, R_X, R_W, R_WS, SX, SJ, SW,
                 AQ, AKS, AV1, AV2, AS_, AO, PW, PB, PG, att_slow, out_side_loads, out_side_math)
from gen2 import cmuls, RowWriter, cexp

SC = "sc1"
SPIN = 400000
FL = 0xC90000
F_N, F_S1, F_S2, F_S3, F_S2R = FL, FL + 0x1000, FL + 0x3000, FL + 0x4000, FL + 0x5000
SLOT = 32768
def slot_addr(t): return SLOT * (1 + ((t + 1) & 3))
TBS, HTS = 8704, 7344
EX0, KX0, KXD = 0, 16384, 4608
RE, RSZ = 4160, 16640
US = 4640
OS = 131072
VN, VX, VZ, VT, VS = 240, 241, 242, 244, 236
DB, DA = 224, 232
PRIOS = {0: 3, 38: 2, 54: 1, 61: 0}

def poll(a, tag, vaddr, soff, first_issued=False, n=1, ncmp=None, vt=VT, sleep=4):
    ld = f"buffer_load_dword{'' if n == 1 else 'x%d' % n} {vr(vt, n)}, v{vaddr}, {R_WS}, {soff} offen {SC}"
    ncmp = ncmp or n
    a(f"s_mov_b32 s92, {SPIN}")
    if first_issued: a(f"s_branch L_{tag}_chk")
    a(f"L_{tag}_poll:\n{ld}\ns_waitcnt vmcnt(0)")
    a(f"L_{tag}_chk:")
    a(f"v_cmp_ne_u32 vcc, v{vt}, v{VN}")
    for i in range(1, ncmp): a(f"v_cmp_ne_u32 s[90:91], v{vt+i}, v{VN}\ns_or_b64 vcc, vcc, s[90:91]")
    if ncmp == 1: a("s_nop 1")
    a(f"""
    s_cbranch_vccz L_{tag}_ok
    s_sleep {sleep}
    s_sub_u32 s92, s92, 1
    s_cmp_lg_u32 s92, 0
    s_cbranch_scc1 L_{tag}_poll
    L_{tag}_ok:
    """)

def signal(a, soff, mod=SC, n=1):
    a(f"""
    s_mov_b64 exec, 1
    buffer_store_dword{'' if n == 1 else 'x2'} {vr(VN, n)}, v{VZ}, {R_WS}, {soff} offen {mod}
    s_mov_b64 exec, -1
    """)

def epoch_load(a):
    a(f"v_mov_b32 v{VZ}, 0\ns_mov_b32 s56, {F_N}\nbuffer_load_dword v{VN}, v{VZ}, {R_WS}, s56 offen {SC}")

def epoch_next(a):
    a(f"s_mov_b32 s55, 1664525\nv_mul_lo_u32 v{VN}, v{VN}, s55\nv_add_u32 v{VN}, 1013904223, v{VN}")

DX, DW = 94, 95
def dma_setup(a):
    a(f"""
    v_lshrrev_b32 v1, 3, v0
    v_lshrrev_b32 v2, 4, v0
    s_and_b32 s58, {SW}, 1
    s_lshl_b32 s56, s58, 2
    v_add_u32 v3, s56, v2
    v_and_b32 v{DW}, 7, v0
    v_xor_b32 v3, v3, v{DW}
    v_lshlrev_b32 v3, 4, v3
    v_lshl_add_u32 v{DX}, v1, 10, v3
    v_and_b32 v2, 1, v2
    v_lshlrev_b32 v2, 2, v2
    v_xor_b32 v2, v2, v{DW}
    v_lshlrev_b32 v2, 4, v2
    v_mov_b32 v3, 0xc00
    v_mad_u32_u24 v{DW}, v1, v3, v2
    s_lshl_b32 s44, {SJ}, 16
    s_lshl_b32 s45, {SW}, 13
    s_add_u32 s44, s44, s45
    s_mul_i32 s45, {SW}, {16*3072}
    s_lshl_b32 s56, {SX}, 7
    s_add_u32 s45, s45, s56
    s_lshl_b32 s46, {SW}, 10
    s_lshl_b32 s47, {SW}, 11
    s_mul_i32 s54, {SJ}, 37
    s_lshr_b32 s54, s54, 8
    s_mul_i32 s54, s54, 7
    s_sub_u32 s54, {SJ}, s54
    """)

def dma_pieces(t, part="xw"):
    base = slot_addr(t); out = []
    head = f"s_add_u32 s56, {SX}, {t}\ns_and_b32 s56, s56, 7\n"
    if OPT.get("rot7") == "1" and t:
        head = f"s_add_u32 s56, s54, {t - 1}\ns_cmp_ge_u32 s56, 7\ns_cselect_b32 s57, 6, -1\ns_sub_u32 s56, s56, s57\ns_add_u32 s56, s56, {SX}\ns_and_b32 s56, s56, 7\n"
    if "x" in part:
        for i in range(2):
            p = (head + "s_lshl_b32 s57, s56, 7\ns_add_u32 s57, s57, s44\n") if i == 0 else "s_add_u32 s57, s57, 0x8000\n"
            out.append(p + f"s_add_u32 m0, s46, {base + i*4096}\nbuffer_load_dwordx4 v{DX}, {R_X}, s57 offen {OPT.get('xmod', '')} lds")
        head = ""
    if "w" in part:
        for i in range(2):
            for ty in range(3):
                p = ""
                if ty == 0: p = (head + f"s_mul_i32 s56, s56, {64*3072}\ns_add_u32 s56, s56, s45\n") if i == 0 else f"s_add_u32 s56, s56, {8*3072}\n"
                out.append(p + f"s_add_u32 m0, s47, {base + 8192 + ty*8192 + i*1024 - ty*1024}\nbuffer_load_dwordx4 v{DW}, {R_W}, s56 offen offset:{ty*1024} {OPT.get('wmod', '')} lds")
    return out

def dma(a, vm, t, part="xw", tag=None):
    for p in dma_pieces(t, part): a(p); vm.add(tag or f"s{t}")

T0 = 48
QS = 147456
def kv_dma(a, rounds, mod, both=False):
    for r in rounds:
        o = 8192 * ((r + T0 // 4) & 15)
        a(f"s_xor_b32 s80, s81, {8192 * r}\ns_add_u32 m0, s79, {o}\ns_add_u32 s80, s80, s78\nbuffer_load_dwordx4 v1, {R_WS}, s80 offen {mod} lds")
        if both: a(f"s_add_u32 m0, s79, {o + 4096}\ns_add_u32 s80, s80, 4096\nbuffer_load_dwordx4 v1, {R_WS}, s80 offen {mod} lds")

def att_bulk():
    l = f"""
    s_bfe_u32 s74, {SJ}, 0x30001
    s_and_b32 s75, {SX}, 6
    s_lshl_b32 s75, s75, 2
    s_add_u32 s74, s74, s75
    s_lshr_b32 s81, {SJ}, 4
    s_lshl_b32 s75, s81, 1
    s_and_b32 s76, {SJ}, 1
    s_add_u32 s75, s75, s76
    s_lshl_b32 s75, s75, 1
    s_and_b32 s76, {SX}, 1
    s_add_u32 s75, s75, s76
    s_lshl_b32 s81, s81, 16
    s_lshl_b32 s76, s75, 3
    s_add_u32 s76, s76, {SW}
    s_lshl_b32 s77, s74, 6
    s_add_u32 s77, s77, s76
    s_lshl_b32 s77, s77, 10
    s_add_u32 s77, s77, {QF}
    s_lshl_b32 s78, s74, 17
    s_lshl_b32 s79, {SW}, 10
    s_add_u32 s78, s78, s79
    s_add_u32 s78, s78, {KV}
    s_mov_b32 s82, 0xffff
    s_mov_b32 s83, 0xffff
    v_and_b32 v16, 27, v0
    v_cmp_eq_u32 vcc, 16, v16
    v_mov_b32 v17, 0x3f803f80
    v_mov_b32 v92, {LDS_BYTES - 4}
    v_cndmask_b32 v16, 0, v17, vcc
    v_mov_b32 v93, 1
    """.strip().split("\n")
    l += [f"v_mov_b32 v{r}, v16" for r in range(17, 32)] + [f"v_mov_b32 v{AO+r}, 0" for r in range(16)]
    return [x.strip() for x in l]

def att_addr():
    return [x.strip() for x in """
    v_lshlrev_b32 v1, 4, v0
    v_lshrrev_b32 v2, 5, v0
    v_lshlrev_b32 v2, 8, v2
    v_and_b32 v3, 15, v0
    v_lshl_add_u32 v2, v3, 4, v2
    v_add_u32 v2, 1024, v2
    v_add_u32 v80, 0x10000, v1
    v_add_u32 v81, 0x10000, v2
    v_mov_b32 v3, 0xdddddddd
    """.strip().split("\n")]

def g_phase1(a):
    vm = VM()
    ACC = (96, 112, 128); SETS = (144, 160, 176, 192)
    XA, WA = 4, 12
    GX, GG, GO = 32, 40, 44
    dma_setup(a)
    a("s_barrier")
    for t in range(2): dma(a, vm, t)
    lstamp(a, 18)
    a(f"""
    s_getreg_b32 s62, hwreg(HW_REG_XCC_ID)
    v_mov_b32 v{VX}, s62
    s_lshr_b32 s59, {SW}, 1
    v_and_b32 v1, 31, v0
    s_lshl_b32 s60, s58, 12
    s_add_u32 s60, s60, {SLOT}
    v_lshlrev_b32 v2, 7, v1
    v_add_u32 v2, s60, v2
    v_bfe_u32 v1, v0, 1, 3
    v_lshrrev_b32 v3, 5, v0
    v_xor_b32 v1, v1, v3
    """)
    for ks in range(4):
        a(f"v_xor_b32 v3, {2*ks}, v1\nv_lshl_add_u32 v{XA+ks}, v3, 4, v2\nv_add_u32 v{XA+4+ks}, 0x10000, v{XA+ks}")
    a(f"""
    v_lshrrev_b32 v1, 5, v0
    v_lshlrev_b32 v1, 10, v1
    v_bfe_u32 v2, v0, 2, 2
    v_lshl_add_u32 v1, v2, 7, v1
    v_bfe_u32 v2, v0, 3, 1
    v_xor_b32 v2, s59, v2
    v_lshl_add_u32 v1, v2, 6, v1
    v_bfe_u32 v2, v0, 4, 1
    v_lshl_add_u32 v1, v2, 5, v1
    v_and_b32 v2, 3, v0
    v_lshl_add_u32 v1, v2, 3, v1
    v_add_u32 v{WA}, {SLOT + 8192}, v1
    v_add_u32 v{WA+1}, {SLOT + 8192 + 65536}, v1
    """)
    epoch_load(a); vm.add("n")
    dma(a, vm, 2)
    if OPT.get("s3pre") != "0": dma(a, vm, 3, "w", "s3w")
    lstamp(a, 1)
    fill = [x.strip() for x in f"""
    ; side-load addresses: v14 gate rows, v15 gate weights, v52/v57 wo gathers; s67 gate output, s69 wo fragment output
    s_lshl_b32 s67, {SJ}, 6
    s_lshl_b32 s62, {SX}, 3
    s_add_u32 s67, s67, s62
    s_lshl_b32 s62, {SW}, 1
    s_add_u32 s67, s67, s62
    v_lshlrev_b32 v15, 4, v0
    s_lshl_b32 s62, s67, 10
    v_add_u32 v14, s62, v15
    s_lshl_b32 s62, {SX}, 5
    s_add_u32 s62, s62, {SJ}
    s_lshr_b32 s69, s62, 3
    s_and_b32 s63, s62, 7
    s_lshl_b32 s63, s63, 1
    s_add_u32 s63, s63, s58
    s_lshl_b32 s64, s63, 15
    s_lshl_b32 s62, s69, 5
    s_add_u32 s64, s64, s62
    v_lshrrev_b32 v3, 5, v0
    v_lshlrev_b32 v3, 14, v3
    v_bfe_u32 v2, v0, 4, 1
    v_lshl_add_u32 v3, v2, 12, v3
    v_and_b32 v2, 15, v0
    v_lshl_add_u32 v3, v2, 1, v3
    v_add_u32 v52, s64, v3
    v_add_u32 v57, 0x2000, v52
    s_lshl_b32 s69, s69, 4
    s_add_u32 s69, s69, s63
    s_lshl_b32 s69, s69, 10
    s_add_u32 s69, s69, {WOF}
    s_lshl_b32 s67, s67, 2
    s_add_u32 s67, s67, {GW}
    ; hand-off words: s72 = die-id line, s70 = projection-done word, s71 = line polled before attention
    s_and_b32 s72, {SX}, 6
    s_lshl_b32 s72, s72, 2
    s_add_u32 s72, s72, {SW}
    s_lshl_b32 s72, s72, 8
    s_and_b32 s62, {SJ}, 16
    s_lshl_b32 s62, s62, 3
    s_add_u32 s72, s72, s62
    s_add_u32 s72, s72, {F_S1}
    v_and_b32 v53, 15, v0
    v_lshlrev_b32 v53, 3, v53
    v_bfe_u32 v3, v0, 4, 1
    v_lshl_add_u32 v53, v3, 10, v53
    s_lshl_b32 s70, {SX}, 1
    s_add_u32 s70, s70, s59
    s_lshl_b32 s70, s70, 8
    s_lshl_b32 s62, {SJ}, 3
    s_add_u32 s70, s70, s62
    s_lshl_b32 s62, s58, 2
    s_add_u32 s70, s70, s62
    s_add_u32 s70, s70, {F_S2}
    v_and_b32 v54, 31, v0
    v_lshlrev_b32 v54, 2, v54
    ; epilogue addresses
    s_lshl_b32 s60, {SX}, 2
    s_lshl_b32 s61, s59, 1
    s_add_u32 s60, s60, s61
    s_lshl_b32 s60, s60, 6
    s_lshl_b32 s61, {SJ}, 1
    s_add_u32 s61, s61, s58
    s_add_u32 s60, s60, s61
    s_lshl_b32 s61, s60, 10
    s_add_u32 s61, s61, {QF}
    s_add_u32 s62, s61, 0x10000
    s_lshl_b32 s63, s60, 11
    s_add_u32 s63, s63, {KV}
    s_add_u32 s64, s63, 0x20000
    s_mov_b32 s65, {QSCALE}
    v_and_b32 v55, 0x33, v0
    v_bfe_u32 v3, v0, 2, 1
    v_lshl_or_b32 v55, v3, 3, v55
    v_bfe_u32 v3, v0, 3, 1
    v_lshl_or_b32 v55, v3, 2, v55
    v_lshlrev_b32 v55, 4, v55
    v_and_b32 v56, 15, v0
    v_lshlrev_b32 v56, 4, v56
    v_lshrrev_b32 v3, 5, v0
    v_lshl_add_u32 v56, v3, 8, v56
    v_bfe_u32 v3, v0, 4, 1
    v_lshl_add_u32 v56, v3, 17, v56
    """.strip().split("\n") if not x.strip().startswith(";")]
    fill += [f"v_mov_b32 v{r}, 0" for r in range(DA, DA + 4)] + att_bulk() + att_addr()
    fill += ["s_lshr_b32 s71, s74, 1", "s_lshl_b32 s71, s71, 8", "s_lshr_b32 s60, s81, 9", "s_add_u32 s71, s71, s60", f"s_add_u32 s71, s71, {F_S2}"]
    if OPT.get("fillpre"):
        while fill: a(fill.pop(0))
    def reads(t, ks):
        p = slot_addr(t) // SLOT - 1; s = SETS[ks]; hi = p >> 1; o0 = (p & 1) * SLOT
        l = [f"ds_read_b128 {vr(s,4)}, v{XA + 4*hi + ks} offset:{o0}"]
        for ty in (1, 2, 0):
            for ri in range(2):
                l.append(f"ds_read_b64_tr_b16 {vr(s+4+4*ty+2*ri,2)}, v{WA+hi} offset:{o0 + ty*8192 + ks*2048 + ri*512}")
        return l
    def mf(ks, i, first=False):
        s = SETS[ks]; c = "0" if first else vr(ACC[i], 16)
        ab = f"{vr(s,4)}, {vr(s+12,4)}" if i == 2 else f"{vr(s+4+4*i,4)}, {vr(s,4)}"
        a(f"v_mfma_f32_32x32x16_bf16 {vr(ACC[i],16)}, {ab}, {c}")
    pend = []
    def mm(ks, first, rd=(), nd=2):
        rd = list(rd)
        for i, r in zip((1, 2, 0), (rd[:4], rd[4:], [])):
            mf(ks, i, first)
            for x in r: a(x)
            for _ in range(3 if r else 5):
                if fill: a(fill.pop(0))
        for _ in range(nd):
            if pend:
                tag, p = pend.pop(0)
                if OPT.get("nodma") and tag[0] == "s" and tag != "side": p = "buffer_load_dword v59, v15, s[32:35], 0 offen"
                a(p); vm.add(tag)
    side = [f"global_load_dwordx4 {vr(GX,4)}, v14, {S_X}", f"global_load_dwordx4 {vr(GX+4,4)}, v14, {S_X} offset:1024", f"global_load_dwordx4 {vr(GG,4)}, v15, {S_GWT}"]
    side += [f"global_load_short_d16{'_hi' if j & 1 else ''} v{GO+j}, v{57 if j >> 2 else 52}, {S_WO} offset:{1024*(j&3)}" for j in range(8)]
    for t in range(8):
        if OPT.get("gpos") == "pre": lstamp(a, 8 + t)
        vm.wait(a, f"s{t}")
        if t == 3: epoch_next(a)
        if OPT.get("gpos") == "mid": lstamp(a, 8 + t)
        a("s_barrier")
        if not OPT.get("gpos"): lstamp(a, 8 + t)
        nd = 2
        if t == 0 and OPT.get("s3pre") == "0": pend += [("s3w", p) for p in dma_pieces(3, "w")]; nd = 3
        if t == 1: pend += [("s3", p) for p in dma_pieces(3, "x")]; nd = 3
        if 1 <= t <= 4: pend += [(f"s{t+3}", p) for p in dma_pieces(t + 3)]
        if t == int(OPT.get("tt", 5)) and OPT.get("touch") == "g":
            pend += [("touch", f"s_mov_b32 exec_hi, 0xffff\nbuffer_load_dword v59, v58, {R_WS}, 0 offen\ns_mov_b32 exec_hi, -1")]; nd = 3
        if t == 5: assert not fill, len(fill)
        if t == 5: pend += [("f", f"buffer_load_dwordx2 {vr(VT,2)}, v53, {R_WS}, s72 offen {SC}")]
        if t == 5: pend += [("side", p) for p in side]; nd = 3
        if t == 0:
            for x in reads(0, 0) + reads(0, 1): a(x)
        else:
            if OPT.get("burst"): nd = int(OPT["burst"])
            mm(2, False, reads(t, 0), nd)
            mm(3, False, reads(t, 1), nd)
        a("s_waitcnt lgkmcnt(7)")
        mm(0, t == 0, reads(t, 2), nd)
        a("s_waitcnt lgkmcnt(7)")
        mm(1, False, reads(t, 3), nd)
        assert not pend
        if t == 7 and OPT.get("gprio"): a(f"s_setprio {OPT['gprio']}")
        a("s_waitcnt lgkmcnt(0)")
    cv = lambda d, s: [f"v_cvt_pk_bf16_f32 v{d+r}, v{s+2*r}, v{s+2*r+1}" for r in range(8)]
    mod = SC
    for ks, i in ((2, 1), (3, 1), (2, 2), (3, 2), (2, 0)): mf(ks, i)
    a("s_nop 6")
    lstamp(a, 20) if OPT.get("gst") else None
    for x in cv(144, ACC[1])[:4]: a(x)
    mf(3, 0)
    for x in cv(144, ACC[1])[4:]: a(x)
    a(f"buffer_store_dwordx4 v[144:147], v55, {R_WS}, s63 offen {mod}\nbuffer_store_dwordx4 v[148:151], v55, {R_WS}, s64 offen {mod}")
    lstamp(a, 19) if OPT.get("gst") else None
    for x in cv(152, ACC[2]): a(x)
    a(f"buffer_store_dwordx4 v[152:155], v56, {R_WS}, s63 offen offset:1024 {mod}\nbuffer_store_dwordx4 v[156:159], v56, {R_WS}, s63 offen offset:1536 {mod}")
    hyb = OPT.get("qhyb")
    if hyb:
        a("s_waitcnt vmcnt(15)")
        poll(a, "s1g", 53, "s72", True, 2, 1)
        a(f"v_cmp_ne_u32 s[72:73], v{VT+1}, v{VX}")
    for h in range(2):
        for r in range(8): a(f"v_mul_f32 v{ACC[0]+8*h+r}, s65, v{ACC[0]+8*h+r}")
        for x in cv(160, ACC[0])[4*h:4*h+4]: a(x)
        if not hyb: a(f"buffer_store_dwordx4 {vr(160+4*h,4)}, v1, {R_WS}, s{61+h} offen {mod}")
    if hyb:
        a("s_cmp_eq_u64 s[72:73], 0\ns_cbranch_scc0 L_q_far")
        for m in ("", SC):
            if m: a("s_branch L_q_done\nL_q_far:")
            for h in range(2): a(f"buffer_store_dwordx4 {vr(160+4*h,4)}, v1, {R_WS}, s{61+h} offen {m}")
        a("L_q_done:")
    lstamp(a, 16)
    a("s_mov_b32 s68, 0xffff0000\ns_waitcnt vmcnt(6)")
    if not hyb:
        poll(a, "s1g", 53, "s72", True, 2, 1)
        a(f"v_cmp_ne_u32 s[72:73], v{VT+1}, v{VX}")
    for k in range(4): a(f"v_lshlrev_b32 v{168+2*k}, 16, v{GG+k}\nv_and_b32 v{169+2*k}, s68, v{GG+k}")
    for k in range(4):
        for r in range(2):
            x = GX + 4 * r + k; t = 180 + 2 * r
            a(f"v_lshlrev_b32 v{t}, 16, v{x}\nv_and_b32 v{t+1}, s68, v{x}\nv_mul_f32 v{t}, v{t}, v{168+2*k}\nv_mul_f32 v{t+1}, v{t+1}, v{169+2*k}")
            a(f"v_cvt_pk_bf16_f32 v{x}, v{t}, v{t+1}")
    a("s_waitcnt vmcnt(0)")
    a("s_cmp_eq_u64 s[72:73], 0\ns_cbranch_scc0 L_st_far")
    signal(a, "s70", "")
    a("s_branch L_st_done\nL_st_far:")
    signal(a, "s70", SC)
    a.reset(); a(f"L_st_done:\ns_add_u32 s70, s70, {F_S2R - F_S2}")
    lstamp(a, 17)
    a(f"buffer_load_dword v{VT}, v54, {R_WS}, s71 offen {SC}")
    for k in range(4):
        for r in range(2):
            x = GX + 4 * r + k; t = 180 + 2 * r
            a(f"v_and_b32 v{t+1}, s68, v{x}\nv_lshlrev_b32 v{t}, 16, v{x}")
            if k == 0: a(f"v_add_f32 v{176+r}, v{t}, v{t+1}")
            else: a(f"v_add_f32 v{176+r}, v{176+r}, v{t}\nv_add_f32 v{176+r}, v{176+r}, v{t+1}")
    wo_pack = [f"v_or_b32 v{DB+j}, v{GO+2*j}, v{GO+2*j+1}" for j in range(4)]
    for d in ("row_shr:1 row_mask:0xf bank_mask:0xf bound_ctrl:0", "row_shr:2 row_mask:0xf bank_mask:0xf bound_ctrl:0",
              "row_shr:4 row_mask:0xf bank_mask:0xf bound_ctrl:0", "row_shr:8 row_mask:0xf bank_mask:0xf bound_ctrl:0",
              "row_bcast:15 row_mask:0xa bank_mask:0xf", "row_bcast:31 row_mask:0xc bank_mask:0xf"):
        if wo_pack: a(wo_pack.pop())
        for r in range(2): a(f"v_add_f32_dpp v{176+r}, v{176+r}, v{176+r} {d}")
    a(f"""
    v_cvt_pk_bf16_f32 v178, v176, v177
    s_mov_b32 s60, {LOG2E}
    v_lshlrev_b32 v176, 16, v178
    v_and_b32 v177, s68, v178
    v_mul_f32 v176, s60, v176
    v_mul_f32 v177, s60, v177
    v_exp_f32 v176, -v176
    v_exp_f32 v177, -v177
    v_add_f32 v176, 1.0, v176
    v_add_f32 v177, 1.0, v177
    v_rcp_f32 v176, v176
    v_rcp_f32 v177, v177
    s_nop 0
    v_cvt_pk_bf16_f32 v178, v176, v177
    v_lshlrev_b32 v{DB+4}, 16, v178
    v_and_b32 v{DB+5}, s68, v178
    """)
    qld = f"""
    buffer_load_dwordx4 {vr(AQ,4)}, v1, {R_WS}, s77 offen {SC}
    s_add_u32 m0, s79, {QS}
    s_add_u32 s80, s77, 4096
    buffer_load_dwordx4 v1, {R_WS}, s80 offen {SC} lds
    """
    if OPT.get("qearly"):
        a(f"""
        s_lshl_b32 s60, s75, 3
        s_lshl_b64 s[60:61], 0xff, s60
        s_mov_b32 s92, {SPIN}
        s_branch L_q_chk
        L_q_poll:
        s_sleep 1
        buffer_load_dword v{VT}, v54, {R_WS}, s71 offen {SC}
        L_q_chk:
        s_waitcnt vmcnt(0)
        v_cmp_ne_u32 vcc, v{VT}, v{VN}
        s_sub_u32 s92, s92, 1
        s_cmp_eq_u32 s92, 0
        s_cbranch_scc1 L_q_ok
        s_and_b64 s[62:63], vcc, s[60:61]
        s_cbranch_scc1 L_q_poll
        L_q_ok:
        """)
        a(qld)
        poll(a, "s2", 54, "s71", True, sleep=1)
        lstamp(a, 2)
    else:
        a("s_waitcnt vmcnt(0)")
        poll(a, "s2", 54, "s71", True, sleep=1)
        lstamp(a, 2)
        a(qld)
    npre = int(OPT.get("kvpre", 3))
    kv_dma(a, range(npre), SC, True)
    signal(a, "s70", SC)
    a(f"s_waitcnt vmcnt({2 * npre - 1})")

def deferred_stores(a):
    a(f"s_cmp_lt_u32 {SW}, 4\ns_cbranch_scc1 L_df_g")
    for ci in range(4): a(f"buffer_store_dwordx2 {vr(DB+2*ci,2)}, v{DA+ci}, {R_WS}, s66 offen {SC}")
    a(f"""
    s_branch L_df_done
    L_df_g:
    buffer_store_dwordx4 {vr(DB,4)}, v1, {R_WS}, s69 offen {SC}
    s_mov_b32 exec_lo, 0
    s_mov_b32 exec_hi, 0x80000000
    buffer_store_dwordx2 {vr(DB+4,2)}, v{VZ}, {R_WS}, s67 offen {SC}
    s_mov_b64 exec, -1
    L_df_done:
    """)

CA, CB, CU, CD, CE = 86, 87, 88, 90, 91
CACC = 32
def conv(a):
    FA = (96, 160); FB = (128, 192)
    q = []
    def issue(key, txt):
        if len(q) >= 15:
            a("s_waitcnt lgkmcnt(14)"); del q[:len(q) - 14]
        a(txt); q.append(key)
    def need(keys):
        idx = [i for i, k in enumerate(q) if k in keys]
        if idx:
            a(f"s_waitcnt lgkmcnt({len(q) - 1 - max(idx)})"); del q[:max(idx) + 1]
    def rd_list(rho):
        s = rho & 1; l = []
        for i in range(8):
            l.append(((rho, "A", i), f"ds_read_b128 {vr(FA[s]+4*i,4)}, v{CA} offset:{512*(7-i) + 64*(3-rho)}"))
            l.append(((rho, "B", i), f"ds_read_b128 {vr(FB[s]+4*i,4)}, v{CB} offset:{512*i + 64*(3-rho)}"))
        return l
    for k, t in rd_list(0): issue(k, t)
    seen = set()
    mms = sorted([(sg, dl) for sg in range(8) for dl in range(8 - sg)], key=lambda m: max(2 * m[0], 2 * m[1] + 1))
    for rho in range(4):
        s = rho & 1
        nxt = rd_list(rho + 1) if rho < 3 else [(("u", i), f"ds_read_b64 {vr(DB+2*i,2)}, v{CU} offset:{512*i}") for i in range(4)]
        k0 = 14 if rho == 0 else 0
        for k, (sg, dl) in enumerate(mms):
            if rho == 0: need({(rho, "A", sg), (rho, "B", dl)})
            elif k == 0: need({(rho, "B", 7)})
            c = sg + dl; acc = vr(CACC + 4 * c, 4)
            a(f"v_mfma_f32_16x16x32_bf16 {acc}, {vr(FA[s]+4*sg,4)}, {vr(FB[s]+4*dl,4)}, {acc if c in seen else '0'}")
            seen.add(c)
            if k >= k0 and (k - k0) % 2 == 0:
                for x in nxt[k - k0:k - k0 + 2]: issue(*x)
    a("s_cmp_eq_u32 s53, 0\ns_cbranch_scc0 L_cv_hi\ns_nop 5")
    for i in range(4): a(f"ds_write_b128 v{CE}, {vr(CACC+16+4*i,4)} offset:{1024*i}")
    a("s_branch L_cv_sent\nL_cv_hi:\ns_nop 5")
    for i in range(4): a(f"ds_write_b128 v{CE}, {vr(CACC+4*i,4)} offset:{1024*i}")
    a("s_nop 1")
    for i in range(16): a(f"v_mov_b32 v{CACC+i}, v{CACC+16+i}")
    a(f"L_cv_sent:\nv_xor_b32 v{CE}, 0x1000, v{CE}\ns_waitcnt lgkmcnt(0)")

def conv_finish(a):
    a(f"s_cmp_lt_u32 {SW}, 4\ns_cbranch_scc1 L_cv_fin")
    for i in range(4): a(f"ds_read_b128 {vr(96+4*i,4)}, v{CE} offset:{1024*i}")
    a(f"s_add_u32 s68, s79, {QS - 4096}\nv_add_u32 v4, s68, v1\nds_read_b128 {vr(AQ,4)}, v4")
    a("s_mov_b32 s68, 0xffff0000")
    for i in range(8): a(f"v_lshlrev_b32 v{48+2*i}, 16, v{DB+i}\nv_and_b32 v{49+2*i}, s68, v{DB+i}")
    for i in range(16): a(f"v_fmac_f32 v{CACC+i}, v{48+i}, v{CD}")
    a("s_waitcnt lgkmcnt(0)")
    for i in range(16): a(f"v_add_f32 v{CACC+i}, v{CACC+i}, v{96+i}")
    for i in range(8): a(f"v_cvt_pk_bf16_f32 v{DB+i}, v{CACC+2*i}, v{CACC+2*i+1}")
    a("L_cv_fin:")

def a_params(a):
    aux_ids(a)
    a(f"""
    s_lshl_b32 s55, s54, 8
    s_lshl_b32 s56, s53, 7
    s_add_u32 s55, s55, s56
    v_lshlrev_b32 v1, 1, v0
    v_add_u32 v1, s55, v1
    s_lshl_b32 s56, s54, 1
    v_mov_b32 v2, s56
    global_load_short_d16_hi v10, v1, {S_LOGA} {OPT.get('pmod', '')}
    global_load_short_d16_hi v14, v2, {S_LDT}
    global_load_short_d16_hi v11, v1, {S_AIM} {OPT.get('pmod', '')}
    global_load_short_d16_hi v12, v1, {S_CR} {OPT.get('pmod', '')}
    global_load_short_d16_hi v13, v1, {S_CI} {OPT.get('pmod', '')}
    global_load_short_d16_hi v{CD}, v2, {S_DSK}
    """)
    epoch_load(a)
    if not OPT.get("nowpf"):
        a(f"""
        s_lshl_b32 s62, {SX}, 5
        s_add_u32 s62, s62, {SJ}
        s_lshr_b32 s63, s62, 3
        s_and_b32 s62, s62, 7
        s_lshl_b32 s62, s62, 16
        s_lshl_b32 s63, s63, 5
        s_add_u32 s62, s62, s63
        s_lshl_b32 s63, s51, 14
        s_add_u32 s62, s62, s63
        v_lshlrev_b32 v3, 10, v0
        v_add_u32 v3, s62, v3
        s_mov_b64 exec, 0xffff
        global_load_dword v92, v3, {S_WO}
        s_mov_b64 exec, -1
        """)
    if OPT.get("touch") == "start":
        a(f"""
        s_lshl_b32 s60, {SX}, 2
        s_lshl_b32 s61, s52, 1
        s_add_u32 s60, s60, s61
        s_lshl_b32 s60, s60, 6
        s_lshl_b32 s61, {SJ}, 1
        s_add_u32 s61, s61, s53
        s_add_u32 s60, s60, s61
        s_lshl_b32 s61, s60, 10
        s_add_u32 s61, s61, {QF}
        s_lshl_b32 s60, s60, 11
        s_add_u32 s60, s60, {KV}
        v_and_b32 v4, 15, v0
        v_lshlrev_b32 v4, 7, v4
        v_bfe_u32 v5, v0, 4, 1
        v_lshl_add_u32 v4, v5, 17, v4
        v_and_b32 v5, 7, v0
        v_lshlrev_b32 v5, 7, v5
        v_bfe_u32 v6, v0, 3, 1
        v_lshl_add_u32 v5, v6, 16, v5
        s_mov_b64 exec, 0xffffffff
        buffer_load_dword v9, v4, {R_WS}, s60 offen
        s_mov_b64 exec, 0xffff
        buffer_load_dword v8, v5, {R_WS}, s61 offen
        s_mov_b64 exec, -1
        """.replace("v9,", "v91,").replace("v8,", "v89,"))
    if OPT.get("nocpf") == "0":
        a(f"""
        s_getpc_b64 s[62:63]
        L_pc:
        s_and_b32 s64, {SJ}, 3
        s_lshl_b32 s64, s64, 2
        s_add_u32 s64, s64, s51
        s_lshl_b32 s64, s64, 11
        v_lshlrev_b32 v3, 7, v0
        v_add_u32 v3, s64, v3
        v_min_u32 v3, L_codeend - L_pc - 4, v3
        v_mov_b32 v5, s63
        v_add_co_u32 v4, vcc, s62, v3
        v_addc_co_u32 v5, vcc, 0, v5, vcc
        s_mov_b64 exec, 0xffff
        global_load_dword v93, v[4:5], off
        s_mov_b64 exec, -1
        """)

def rows(a, regs, row0, neg, tb):
    for k, r in enumerate(regs):
        if r is None: a(f"v_mov_b32 v{tb+k}, 0x3f80")
        else: a(f"v_cvt_pk_bf16_f32 v{tb+k}, v{r}, {'-' if neg else ''}v{r+1}")
    for k in range(len(regs)): a(f"ds_write_addtid_b32 v{tb+k} offset:{272*(row0+k)}")
    return row0 + len(regs)

def smul_list(ops):
    T = list(range(32, 40)) + [16, 17, 18, 19]; l = []
    for k, (d, x, w) in enumerate(ops): l += [f"v_mul_f32 v{T[2*k]}, v{x+1}, v{w+1}", f"v_mul_f32 v{T[2*k+1]}, v{x}, v{w+1}"]
    for k, (d, x, w) in enumerate(ops):
        if d == w:
            l += [f"v_fma_f32 v{d+1}, v{x+1}, v{w}, v{T[2*k+1]}", f"v_fma_f32 v{d}, v{x}, v{w}, -v{T[2*k]}"]
        else:
            l += [f"v_fma_f32 v{d}, v{x}, v{w}, -v{T[2*k]}", f"v_fma_f32 v{d+1}, v{x+1}, v{w}, v{T[2*k+1]}"]
    return l

def touch(a, where):
    tps = OPT.get("tps", "b9,b9,b5").split(","); mod = OPT.get("tmod", ""); n = 0
    if where == min(tps):
        a(f"""
        s_lshl_b32 s60, {SX}, 2
        s_lshl_b32 s61, s52, 1
        s_add_u32 s60, s60, s61
        s_lshl_b32 s60, s60, 6
        s_lshl_b32 s61, {SJ}, 1
        s_add_u32 s61, s61, s53
        s_add_u32 s60, s60, s61
        s_lshl_b32 s61, s60, 10
        s_add_u32 s61, s61, {QF}
        s_lshl_b32 s60, s60, 11
        s_add_u32 s60, s60, {KV}
        v_and_b32 v85, 7, v0
        v_lshlrev_b32 v85, 7, v85
        v_bfe_u32 v84, v0, 3, 1
        v_lshl_add_u32 v58, v84, 16, v85
        v_lshl_add_u32 v85, v84, 17, v85
        """)
    for k, p in enumerate(tps):
        if p != where: continue
        if n == 0: a("s_mov_b64 exec, 0xffff")
        a(f"buffer_load_dword v{82+k}, v{58 if k == 2 else 85}, {R_WS}, {'s61' if k == 2 else 's60'} offen offset:{1024 if k == 1 else 0} {mod}"); n += 1
    if n: a("s_mov_b64 exec, -1")
    return n

def a_phase1(a0):
    class Flt:
        on = False
        def __call__(self, txt):
            m = OPT.get("noA")
            if not (self.on and m): return a0(txt)
            for ln in txt.split("\n"):
                l = ln.strip()
                if "w" in m and l.startswith(("ds_write_addtid", "ds_write_b128")): continue
                if "r" in m and l.startswith(("ds_read_b128", "ds_read_b64 ")): continue
                if "m" in m and l.startswith("v_mfma"): continue
                if "v" in m and l.startswith(("v_pk_", "v_fma_f32", "v_mul_f32", "v_cvt_pk", "v_sin", "v_cos", "v_exp", "v_fract", "v_alignbit", "v_bfi", "v_add_f32")): continue
                a0(ln)
        def reset(self): a0.reset()
    a = Flt()
    vm = VM()
    vm.add("par", 7)
    if not OPT.get("nowpf"): vm.add("wpf")
    if OPT.get("touch") == "start": vm.add("touch", 2)
    if OPT.get("nocpf") == "0": vm.add("cpf")
    a("s_setprio 2")
    a(f"""
    s_mul_i32 s65, s51, {TBS}
    s_mov_b32 m0, s65
    s_mov_b32 s66, {LOG2E}
    s_mov_b32 s68, 0xffff0000
    s_mov_b32 s69, {INV2PI}
    s_mov_b32 s62, 0x41000000
    s_mov_b32 s63, 0x43800000
    
    """)
    late = [x.strip() for x in f"""
    v_and_b32 v1, 31, v0
    v_lshrrev_b32 v2, 5, v0
    v_lshlrev_b32 v2, 4, v2
    s_mul_i32 s73, s52, {2*TBS}
    v_add_u32 v54, s73, v2
    v_mov_b32 v3, 272
    v_mad_u32_u24 v7, v1, v3, v54
    s_mul_i32 s65, s51, {HTS}
    s_mul_i32 s73, s52, {2*HTS}
    v_add_u32 v2, s73, v2
    v_bfe_u32 v8, v0, 3, 1
    v_and_b32 v9, 3, v0
    v_lshl_add_u32 v8, v8, 2, v9
    v_cvt_f32_u32 v8, v8
    v_bfe_u32 v9, v0, 4, 1
    v_bfe_u32 v52, v0, 2, 1
    v_lshl_add_u32 v9, v9, 1, v52
    v_min_u32 v52, 2, v9
    v_sub_u32 v52, 0, v52
    v_ldexp_f32 v52, v8, v52
    v_rndne_f32 v52, v52
    v_cvt_u32_f32 v52, v52
    v_lshlrev_b32 v53, 3, v9
    s_mov_b32 s73, 0x100d0800
    v_lshrrev_b32 v53, v53, s73
    v_and_b32 v53, 0xff, v53
    v_add_u32 v52, v52, v53
    v_mul_f32 v8, 0.125, v8
    v_rndne_f32 v8, v8
    v_cvt_u32_f32 v8, v8
    v_lshl_add_u32 v8, v9, 1, v8
    v_add_u32 v8, 19, v8
    s_cmp_eq_u32 s53, 0
    s_cselect_b64 vcc, -1, 0
    s_cselect_b32 s70, 0, 0xaaaaaaaa
    s_mov_b32 s71, s70
    v_cndmask_b32 v9, v8, v52, vcc
    v_mad_u32_u24 v9, v9, v3, v2
    ; transpose addresses: v4/v5 LDS, v6 + s60 workspace; s61 = hand-off word, s72 = line this wave waits on
    v_lshrrev_b32 v1, 4, v0
    v_bfe_u32 v2, v0, 2, 2
    v_lshl_add_u32 v2, v1, 3, v2
    v_bfe_u32 v3, v0, 1, 1
    s_lshl_b32 s73, s51, 1
    v_add_u32 v3, s73, v3
    v_bfe_u32 v4, v2, 1, 3
    v_xor_b32 v4, v4, v3
    v_and_b32 v5, 1, v0
    v_lshlrev_b32 v5, 3, v5
    v_lshl_add_u32 v5, v2, 7, v5
    v_add_u32 v5, {slot_addr(0)}, v5
    v_xor_b32 v6, 2, v4
    v_lshl_add_u32 v4, v4, 4, v5
    v_lshl_add_u32 v5, v6, 4, v5
    v_bfe_u32 v6, v0, 1, 3
    v_lshlrev_b32 v6, 13, v6
    v_and_b32 v3, 1, v0
    v_lshl_add_u32 v6, v3, 6, v6
    v_lshl_add_u32 v6, v1, 4, v6
    s_lshl_b32 s60, {SX}, 18
    s_lshl_b32 s64, s51, 16
    s_add_u32 s60, s60, s64
    s_lshl_b32 s64, {SJ}, 8
    s_add_u32 s60, s60, s64
    s_add_u32 s60, s60, {XT}
    s_lshl_b32 s72, {SX}, 2
    s_add_u32 s61, s72, s51
    s_lshl_b32 s61, s61, 8
    s_lshl_b32 s64, {SJ}, 3
    s_add_u32 s61, s61, s64
    s_add_u32 s61, s61, {F_S1}
    s_lshr_b32 s64, {SJ}, 3
    s_add_u32 s72, s72, s64
    s_lshl_b32 s72, s72, 8
    s_add_u32 s72, s72, {F_S1}
    s_getreg_b32 s64, hwreg(HW_REG_XCC_ID)
    v_mov_b32 v{VX}, s64
    """.strip().split("\n") if not x.strip().startswith(";")]
    for _ in range(int(OPT.get("asetup", 25))):
        if late: a(late.pop(0))
    vm.wait(a, "par")
    a.on = True
    lstamp(a, 31)
    a(f"""
    v_mul_f32 v14, s66, v14
    v_mul_f32 v10, s66, v10
    v_exp_f32 v14, v14
    v_exp_f32 v10, v10
    s_mov_b32 s56, 1664525
    v_mul_lo_u32 v{VN}, v{VN}, s56
    v_add_u32 v{VN}, 1013904223, v{VN}
    v_cvt_pk_bf16_f32 v15, v14, v10
    v_lshlrev_b32 v14, 16, v15
    v_and_b32 v10, s68, v15
    v_mul_f32 v10, v10, v14
    v_mul_f32 v11, v11, v14
    v_mul_f32 v10, s66, v10
    v_mul_f32 v11, s69, v11
    """)
    L = lambda i: 76 + 2 * i
    H = lambda p: 40 + 2 * p if p < 8 else 28
    LF, HF, AK, HP = 96, 160, 224, 59
    cexp(a, [(L(1), "s62")])
    cmuls(a, [(L(2), L(1), L(1))])
    cmuls(a, [(L(3), L(2), L(1)), (84, L(2), L(2))])
    r = rows(a, [None, L(1), L(2), L(3)], 0, False, 72)
    cmuls(a, [(L(i), L(i), 84) for i in range(1, 4)])
    r = rows(a, [84, L(1), L(2), L(3)], r, False, 16)
    cmuls(a, [(L(0), 84, 84)] + [(L(i), L(i), 84) for i in range(1, 4)])
    for g in range(2, 8):
        r = rows(a, [L(i) for i in range(4)], r, False, 72 if g & 1 == 0 else 16)
        if g < 7: cmuls(a, [(L(i), L(i), 84) for i in range(4)])
        for _ in range(12):
            if late: a(late.pop(0))
    while late: a(late.pop(0))
    assert r == 32
    lstamp(a, 24)
    a("s_waitcnt lgkmcnt(0)\ns_barrier")
    a("""
    ds_read_b64_tr_b16 v[224:225], v4
    ds_read_b64_tr_b16 v[226:227], v5 offset:512
    ds_read_b64_tr_b16 v[228:229], v4 offset:4096
    ds_read_b64_tr_b16 v[230:231], v5 offset:4608
    """)
    lrd = [f"ds_read_b128 {vr(LF+4*ks,4)}, v7 offset:{TBS*(ks>>3) + 32*(ks&7)}" for ks in range(16)]
    for x in lrd[:8]: a(x)
    a("v_mul_f32 v40, v12, v14\nv_mul_f32 v41, v13, v14\nv_add_f32 v40, v40, v40\nv_add_f32 v41, v41, v41\ns_mov_b32 m0, s65")
    a(f"""
    s_waitcnt lgkmcnt(7)
    buffer_store_dwordx4 v[224:227], v6, {R_WS}, s60 offen {SC}
    buffer_store_dwordx4 v[228:231], v6, {R_WS}, s60 offen offset:128 {SC}
    """)
    vm.add("xt", 2)
    for x in lrd[8:]: a(x)
    cexp(a, [(20, None), (24, "s63")])
    hl = []; row = [0]
    def hm(ops): hl.extend(smul_list(ops))
    def hp(regs):
        for g in regs: hl.append(f"v_cvt_pk_bf16_f32 v{HP+row[0]}, v{g}, -v{g+1}"); row[0] += 1
    hm([(H(1), H(0), 20), (22, 20, 20)])
    hm([(H(2), H(0), 22), (H(3), H(1), 22), (26, 22, 22), (30, 24, 24)])
    hm([(H(4 + i), H(i), 26) for i in range(4)])
    hm([(H(8), H(4), 26)]); hp([H(p) for p in range(8)])
    for grp in ((0, 2, 4, 6, 8), (0, 4, 8), (0, 4, 8)):
        hm([(H(p), H(p), 24) for p in grp]); hp([H(p) for p in grp])
    hm([(42, H(0), 24), (46, H(8), 24)])
    hm([(50, 42, 24), (52, 46, 24), (H(0), 42, 30), (H(8), 46, 30)])
    hm([(44, 50, 30), (48, 52, 30)]); hp([42, 46, 50, 52, H(0), H(8), 44, 48])
    assert row[0] == 27
    cut = int(OPT.get("hcut", 64))
    for x in hl[:cut]: a(x)
    lstamp(a, 19)
    a("s_waitcnt lgkmcnt(0)\ns_barrier")
    done = 0
    for k, x in enumerate(hl[cut:]):
        a(x)
        n = sum("cvt" in y for y in hl[:cut + k + 1])
        if n - done >= 8 or (k == len(hl) - cut - 1):
            for j in range(done, n): a(f"ds_write_addtid_b32 v{HP+j} offset:{272*j}")
            done = n
    vm.wait(a, "xt"); signal(a, "s61", SC, 2); vm.add("f1")
    lstamp(a, 20)
    a("s_waitcnt lgkmcnt(0)\ns_setprio 0\ns_barrier")
    hrd = [f"ds_read_b128 {vr(HF+4*ks,4)}, v9 offset:{HTS*(ks>>3) + 32*(ks&7)}" for ks in range(16)]
    for x in hrd[:12]: a(x)
    a(f"""
    v_lshlrev_b32 v1, 4, v0
    v_mov_b32 v60, 0
    v_mov_b32 v61, 0
    v_mov_b32 v62, 0
    v_mov_b32 v63, 0
    s_mul_i32 s67, s52, {KXD}
    s_add_u32 s67, s67, {KX0}
    v_mov_b32 v3, s67
    s_lshl_b32 s66, s53, 11
    s_add_u32 s66, s66, s67
    v_lshrrev_b32 v2, 5, v0
    v_and_b32 v4, 31, v0
    v_lshlrev_b32 v4, 4, v4
    v_lshl_add_u32 v2, v2, 9, v4
    v_add_u32 v2, s66, v2
    s_waitcnt lgkmcnt(4)
    """)
    for x in hrd[12:]: a(x)
    km = lambda ks: a(f"v_mfma_f32_32x32x16_bf16 {vr(AK,16)}, {vr(HF+4*ks,4)}, {vr(LF+4*ks,4)}, {'0' if ks == 0 else vr(AK,16)}")
    for ks in range(8): km(ks)
    lstamp(a, 21)
    a("s_waitcnt lgkmcnt(0)\ns_barrier")
    bulk = att_bulk()
    for ks in range(8, 16):
        km(ks)
        for x in bulk[8 * (ks - 8):8 * (ks - 7)]: a(x)
    a("ds_write_b128 v3, v[60:63]")
    for rg in range(2): a(f"v_cndmask_b32 v{AK+8*rg+4}, v{AK+8*rg+4}, v{AK+8*rg+5}, s[70:71]")
    for i in range(8): a(f"v_cvt_pk_bf16_f32 v{40+i}, v{AK+2*i}, v{AK+2*i+1}")
    for rg in range(2): a(f"ds_write_b128 v2, {vr(40+4*rg,4)} offset:{16 + 1024*rg}")
    lstamp(a, 22)
    a("s_waitcnt lgkmcnt(0)\ns_barrier")
    a(f"v_and_b32 v55, 31, v0\nv_lshlrev_b32 v55, 3, v55\nbuffer_load_dword v{VT}, v55, {R_WS}, s72 offen {SC}")
    n4 = touch(a, "b4")
    a(f"""
    v_add_u32 v2, s66, v1
    ds_read_b64 v[40:41], v2 offset:8
    ds_read_b128 v[42:45], v2 offset:16
    ds_read_b64 v[46:47], v2 offset:{1024+8}
    ds_read_b128 v[48:51], v2 offset:{1024+16}
    s_cmp_eq_u32 s52, 0
    s_cselect_b32 s67, 0, {slot_addr(4)}
    v_bfe_u32 v2, v0, 2, 2
    v_mul_u32_u24 v2, {RE}, v2
    v_and_b32 v3, 3, v0
    v_min_u32 v3, 2, v3
    v_lshl_add_u32 v2, v3, 4, v2
    v_add_u32 v52, s67, v2
    s_lshl_b32 s69, s53, 11
    s_sub_u32 s66, s67, s69
    s_add_u32 s66, s66, {255*16 - 1024}
    v_sub_u32 v53, s66, v1
    v_min_u32 v2, 32, v0
    s_mul_i32 s66, s53, {US}
    s_add_u32 s66, s66, s67
    s_add_u32 s66, s66, {RSZ}
    v_lshl_add_u32 v54, v2, 4, s66
    s_mov_b32 s69, 0xffff
    s_waitcnt lgkmcnt(0)
    """)
    RG = 96
    for q in range(2):
        w = lambda i: 40 + 6 * q + 2 + i
        for e in range(4):
            o = RG + 16 * q + 4 * e
            for i in range(4):
                hi = 3 - i - (0 if e >= 2 else 1)
                if e & 1: a(f"v_alignbit_b32 v{o+i}, v{w(hi)}, v{w(hi)}, 16")
                else: a(f"v_bfi_b32 v{o+i}, s69, v{w(hi)}, v{w(hi-1)}")
    a.on = False
    a(f"""
    v_lshlrev_b32 v1, 4, v0
    v_mov_b32 v60, 0
    s_lshl_b32 s66, s51, 2
    s_add_u32 s66, s66, 32000
    v_mov_b32 v59, s66
    ds_write_b32 v59, v60
    s_lshl_b32 s71, {SX}, 18
    s_lshl_b32 s69, {SJ}, 13
    s_add_u32 s71, s71, s69
    s_lshl_b32 s69, s52, 6
    s_add_u32 s71, s71, s69
    s_lshl_b32 s69, s53, 12
    s_add_u32 s71, s71, s69
    s_add_u32 s71, s71, {XT}
    v_lshrrev_b32 v2, 2, v0
    v_and_b32 v3, 3, v0
    v_lshlrev_b32 v3, 4, v3
    v_lshl_add_u32 v56, v2, 7, v3
    s_lshl_b32 s70, s53, 11
    s_add_u32 s69, s67, s70
    s_add_u32 s69, s69, {RSZ + 512}
    v_add_u32 v57, s69, v1
    s_lshl_b32 s73, s53, 8
    s_sub_u32 s73, s67, s73
    s_add_u32 s66, s73, {4128 - 64*7 - 512*7 + 256}
    v_and_b32 v4, 3, v0
    v_mul_u32_u24 v4, {RE}, v4
    v_lshrrev_b32 v2, 4, v0
    v_bfe_u32 v3, v0, 2, 2
    v_add_u32 v3, v3, v2
    v_lshlrev_b32 v3, 4, v3
    v_sub_u32 v4, v4, v3
    v_add_u32 v{CA}, s66, v4
    s_add_u32 s66, s73, {RSZ + US + 512 + 48 - 64*7 + 256}
    v_bfe_u32 v4, v0, 1, 3
    v_lshlrev_b32 v4, 6, v4
    v_lshlrev_b32 v3, 4, v2
    v_sub_u32 v5, v4, v3
    v_add_u32 v4, v4, v3
    v_and_b32 v3, 1, v0
    v_lshl_add_u32 v4, v3, 3, v4
    v_mul_u32_u24 v3, {US}, v3
    v_sub_u32 v5, v5, v3
    v_add_u32 v{CB}, s66, v5
    v_add_u32 v{CU}, s69, v4
    v_add_u32 v{DA}, s70, v4
    v_add_u32 v{DA+1}, 512, v{DA}
    v_add_u32 v{DA+2}, 1024, v{DA}
    v_add_u32 v{DA+3}, 1536, v{DA}
    s_lshl_b32 s66, s51, 12
    s_add_u32 s66, s66, {OS}
    v_add_u32 v{CE}, s66, v1
    s_lshl_b32 s66, s54, 12
    s_add_u32 s66, s66, {BT}
    """)
    for x in att_addr(): a(x)
    lstamp(a, 23)
    a("s_waitcnt lgkmcnt(0)\ns_barrier")
    def uload():
        for q in range(2): a(f"buffer_load_dwordx4 {vr(32+4*q,4)}, v56, {R_WS}, s71 offen offset:{2048*q} {SC}")
    def ustore():
        for q in range(2): a(f"ds_write_b128 v57, {vr(32+4*q,4)} offset:{1024*q}")
        for q in range(2):
            a(f"ds_write_b64 v57, {vr(32+4*q,2)} offset:{1024*q + US + 8}")
            a(f"ds_write_b64 v57, {vr(34+4*q,2)} offset:{1024*q + US + 16}")
    a(f"""
    s_waitcnt vmcnt({n4})
    v_cmp_ne_u32 s[94:95], v{VT}, v{VN}
    s_cmp_lg_u64 s[94:95], 0
    s_cbranch_scc1 L_u_skip
    """)
    uload()
    a("L_u_skip:")
    nt = touch(a, "b5")
    a.on = True
    a("ds_write_b128 v52, v[60:63] offset:4096\nds_write_b128 v54, v[60:63]")
    rw = [f"ds_write_b128 v53, {vr(RG+16*q+4*e,4)} offset:{e*RE + 1024*(1-q)}" for q in range(2) for e in range(4)]
    rcut = int(OPT.get("rcut", 5))
    for x in rw[:rcut]: a(x)
    a("s_waitcnt lgkmcnt(0)\ns_barrier")
    for x in rw[rcut:]: a(x)
    a.on = False
    if OPT.get("uearly"):
        a(f"s_cmp_lg_u64 s[94:95], 0\ns_cbranch_scc1 L_u_late\ns_waitcnt vmcnt({nt})")
        ustore()
        a("ds_write_b32 v59, v59")
        touch(a, "b6")
        a("s_barrier\ns_branch L_u_have\nL_u_late:")
        touch(a, "b6")
        a("s_barrier")
        poll(a, "s1", 55, "s72")
        uload()
        a("s_waitcnt vmcnt(0)")
        ustore()
        a("ds_write_b32 v59, v59\nL_u_have:")
    else:
        nt += touch(a, "b6")
        a("s_barrier")
        a(f"s_cmp_lg_u64 s[94:95], 0\ns_cbranch_scc0 L_u_have")
        poll(a, "s1", 55, "s72")
        uload()
        a(f"s_waitcnt vmcnt(0)\nL_u_have:\ns_waitcnt vmcnt({nt})")
        ustore()
        a("ds_write_b32 v59, v59")
    a(f"""
    v_xor_b32 v59, 4, v59
    s_mov_b32 s92, {SPIN}
    L_pair:
    ds_read_b32 v57, v59
    s_waitcnt lgkmcnt(0)
    v_readfirstlane_b32 s93, v57
    s_sub_u32 s92, s92, 1
    s_cmp_eq_u32 s92, 0
    s_cbranch_scc1 L_pair_ok
    s_cmp_eq_u32 s93, 0
    s_cbranch_scc1 L_pair
    L_pair_ok:
    """)
    lstamp(a, 25)
    conv(a)
    lstamp(a, 3)

def att_main(a, hooks, prios):
    p2, pr, pq, p1 = [int(x) for x in OPT.get("ord", "2,2,5,10").split(",")]
    def rdk(t):
        p = (t + T0) & 63; b, o = (1, 2048 * p) if p < 32 else (80, 2048 * (p - 32))
        a(f"ds_read_b128 {vr(AKS[t&1],4)}, v{b} offset:{o}")
    def rdv(t):
        p = (t + T0) & 63; b, o = (2, 2048 * p) if p < 32 else (81, 2048 * (p - 32))
        a("s_mov_b64 exec, s[82:83]")
        a(f"ds_read_b128 {vr(AV1[t&1],4)}, v{b} offset:{o}")
        a(f"ds_read_b128 {vr(AV2[t&1],4)}, v{b} offset:{o+512}")
        a("s_mov_b64 exec, -1")
    rdk(0); rdk(1); rdv(0)
    a("s_waitcnt lgkmcnt(3)")
    a(f"v_mfma_f32_32x32x16_bf16 {vr(AS_[0],16)}, {vr(AKS[0],4)}, {vr(AQ,4)}, 0")
    for t in range(64):
        c, n = AS_[t & 1], AS_[(t + 1) & 1]
        if t in prios: a(f"s_setprio {prios[t]}")
        k = 0
        for e in range(17):
            if e == p2 and t: a(f"v_smfmac_f32_32x32x32_bf16 {vr(AO,16)}, {vr(AV2[(t-1)&1],4)}, {vr(n+8,8)}, v3")
            if e == pq and pq < pr: a("s_waitcnt lgkmcnt(0)")
            if e == pq and pq < pr and t + 1 < 64: a(f"v_mfma_f32_32x32x16_bf16 {vr(n,16)}, {vr(AKS[(t+1)&1],4)}, {vr(AQ,4)}, 0")
            if e == pr:
                if t in hooks: hooks[t]()
                if OPT.get("kfirst") and t + 2 < 64: rdk(t + 2); k += 1
                if t + 1 < 64: rdv(t + 1); k += 2
                if not OPT.get("kfirst") and t + 2 < 64: rdk(t + 2); k += 1
            if e == pq and pq >= pr:
                a(f"s_waitcnt lgkmcnt({k})")
                if t + 1 < 64: a(f"v_mfma_f32_32x32x16_bf16 {vr(n,16)}, {vr(AKS[(t+1)&1],4)}, {vr(AQ,4)}, 0")
            if e == p1: a(f"v_smfmac_f32_32x32x32_bf16 {vr(AO,16)}, {vr(AV1[t&1],4)}, {vr(c,8)}, v3")
            if e < 16: a(f"v_exp_f32 v{c+e}, v{c+e}")
    a(f"v_smfmac_f32_32x32x32_bf16 {vr(AO,16)}, {vr(AV2[1],4)}, {vr(AS_[1]+8,8)}, v3")

def att_finish2(a, tag):
    a(f"s_mov_b32 s84, 0x2b800000\ns_mov_b32 s85, 0x5d800000\nv_fma_f32 v8, v{AO}, 0, v{AO+8}")
    for r in range(1, 8): a(f"v_fma_f32 v8, v{AO+r}, 0, v8")
    a(f"""
    v_cmp_nge_f32 vcc, v8, s84
    v_cmp_nle_f32 s[90:91], v8, s85
    s_or_b64 vcc, vcc, s[90:91]
    s_cbranch_vccnz L_{tag}_slow
    L_{tag}_norm:
    v_rcp_f32 v8, v{AO+8}
    """)
    for r in range(8): a(f"v_mul_f32 v{AO+r}, v8, v{AO+r}")
    for r in range(4): a(f"v_cvt_pk_bf16_f32 v{12+r}, v{AO+2*r}, v{AO+2*r+1}")
    for r in range(4): a(f"v_min_u32 v{12+r}, -2, v{12+r}")
    a(f"buffer_store_dwordx4 v[12:15], v1, {R_WS}, s87 offen {OPT.get('ostm', SC).replace('_', ' ')}")

def out_gemm(a):
    a(f"""
    v_lshlrev_b32 v2, 9, v86
    v_lshl_add_u32 v2, v87, 4, v2
    v_add_u32 v2, {OS}, v2
    v_lshlrev_b32 v3, 10, v87
    v_lshl_add_u32 v3, v86, 3, v3
    s_lshl_b32 s84, s88, 15
    s_lshl_b32 s86, s89, 5
    s_add_u32 s84, s84, s86
    v_add_u32 v3, s84, v3
    v_add_u32 v4, 0x4000, v3
    """)
    def go():
        NB = 12; FB = 16
        rd = lambda i: a(f"ds_read_b128 {vr(FB+4*(i%NB),4)}, v2 offset:{2048*(i>>1) + 256*(i&1)}")
        for i in range(NB): rd(i)
        for g in range(8):
            a(f"s_waitcnt lgkmcnt({min(8, 28 - 4 * g)})")
            for i in range(4 * g, 4 * g + 4):
                acc = 8 + 4 * (i & 1)
                a(f"v_mfma_f32_16x16x32_bf16 {vr(acc,4)}, {vr(PW+4*(i>>1),4)}, {vr(FB+4*(i%NB),4)}, {'0' if i < 2 else vr(acc,4)}")
            for i in range(4 * g + NB, min(4 * g + NB + 4, 32)): rd(i)
        for nt in range(2):
            for i in range(4): a(f"v_fma_f32 v{8+4*nt+i}, v{8+4*nt+i}, v{PG+nt}, v{PB+4*nt+i}")
            a(f"v_cvt_pk_bf16_f32 v{16+2*nt}, v{8+4*nt}, v{9+4*nt}\nv_cvt_pk_bf16_f32 v{17+2*nt}, v{10+4*nt}, v{11+4*nt}")
            a(f"global_store_dwordx2 v{3+nt}, {vr(16+2*nt,2)}, {S_OUT} {OPT.get('outmod', '')}")
    return go

def build_fused():
    a = Asm()
    k = NAME + "_kernel"
    launches = f"; @launch grid=(256,1,1) block=(512,1,1) lds={LDS_BYTES}\n"
    if G.STAMPS:
        launches = f"; @launch kernel={k} grid=(256,1,1) block=(512,1,1) lds={LDS_BYTES}\n; @launch kernel=stamp_kernel grid=(1,1,1) block=(256,1,1) lds=1024\n"
    a.raw(header() + launches + '.amdgcn_target "amdgcn-amd-amdhsa--gfx950"\n.text')
    kernel_head(a, k)
    if "amp" in OPT: lstamp(a, "E")
    mode = OPT.get("cpf0", "8")
    if mode != "0":
        n = int(mode); sh = {4: 9, 8: 10, 16: 11, 32: 12}[n]; nch = 32768 // (8 * n * 128)
        a(f"""
        s_cmp_ge_u32 s2, 256
        s_cbranch_scc1 L_end
        s_load_dwordx16 s[4:19], s[0:1], 0
        s_load_dwordx8 s[20:27], s[0:1], 64
        s_load_dwordx4 s[28:31], s[0:1], 96
        s_getpc_b64 s[62:63]
        L_pc0:
        v_lshrrev_b32 v1, 6, v0
        v_and_b32 v2, {n - 1}, v0
        v_lshlrev_b32 v2, 7, v2
        v_lshl_add_u32 v2, v1, {sh}, v2
        s_lshr_b32 s64, s2, 3
        s_and_b32 s64, s64, {nch - 1}
        s_lshl_b32 s64, s64, {sh + 3}
        v_add_u32 v2, s64, v2
        v_min_u32 v2, L_codeend - L_pc0 - 4, v2
        v_mov_b32 v5, s63
        v_add_co_u32 v4, vcc, s62, v2
        v_addc_co_u32 v5, vcc, 0, v5, vcc
        s_mov_b64 exec, {hex(2**n - 1)}
        global_load_dword v93, v[4:5], off
        s_mov_b64 exec, -1
        """)
        OPT["nocpf"] = "1"
    prologue(a, "L_end", mode != "0")
    a(f"""
    s_and_b32 s51, {SX}, 1
    s_lshl_b32 s51, s51, 4
    s_and_b32 {SX}, {SX}, 6
    s_and_b32 s52, {SJ}, 1
    s_or_b32 {SX}, {SX}, s52
    s_lshr_b32 {SJ}, {SJ}, 1
    s_or_b32 {SJ}, {SJ}, s51
    """)
    lstamp(a, 0)
    if OPT.get("idle0"): a(f"s_sleep {OPT['idle0']}")
    if OPT.get("latex"): a(f"s_cmp_lg_u32 {SX}, 3\ns_cbranch_scc1 L_latex\ns_sleep {OPT['latex']}\nL_latex:")
    a(f"s_cmp_lt_u32 {SW}, 4\ns_cbranch_scc1 L_gemm")
    a_params(a)
    a("s_barrier\ns_branch L_aux")
    a.reset(); a("L_gemm:")
    g_phase1(a)
    lg = list(G.LIGHT); G.LIGHT[:] = [s for s in lg if s == 0]
    a("s_branch L_att")
    a.reset(); a("L_aux:")
    a_phase1(a)
    la = list(G.LIGHT); G.LIGHT[:] = sorted(set(la) | set(lg))
    a.reset(); a("L_att:")
    for r in range(4): a(f"v_mov_b32 v{VS+r}, -1")
    a("s_barrier")
    lstamp(a, 4)
    KM = SC
    if OPT.get("idle"): a(f"s_sleep {OPT['idle']}")
    conv_finish(a)
    lstamp(a, 27)
    mode = "slow"
    two = OPT.get("rsch", "1") == "2"
    sched = {t: [t + 3] for t in range(5)}
    sched.update({10 + k: [8 + 2 * k, 9 + 2 * k] for k in range(4)} if two else {10 + k: [8 + k] for k in range(8)})
    def early_stores():
        deferred_stores(a)
        a(f"""
        s_lshl_b32 s87, s76, 5
        s_add_u32 s87, s87, s74
        s_lshl_b32 s87, s87, 10
        s_add_u32 s87, s87, {OF}
        buffer_store_dwordx4 {vr(VS,4)}, v1, {R_WS}, s87 offen {SC}
        """)
    def hdma(t):
        def f():
            if t == 2: a("s_waitcnt vmcnt(2)\ns_barrier")
            if t == 10:
                a("s_waitcnt vmcnt(0)\ns_barrier"); lstamp(a, 28)
                poll(a, "s2r", 91, "s84", True, sleep=8)
            kv_dma(a, sched[t], KM)
        return f
    def s3_addr(): a(f"s_lshl_b32 s85, {SJ}, 7\ns_lshl_b32 s86, {SX}, 2\ns_add_u32 s85, s85, s86\ns_add_u32 s85, s85, {F_S3}")
    def h_bar():
        a("s_waitcnt vmcnt(0)\ns_barrier"); s3_addr()
        a(f"s_cmp_lg_u32 {SW}, 0\ns_cbranch_scc1 L_s3_skip")
        signal(a, "s85")
        a("L_s3_skip:")
        if mode != "slow": lstamp(a, 28)
    def h_cnt():
        a(f"""
        s_waitcnt vmcnt(0)
        s_mov_b64 exec, 1
        ds_add_rtn_u32 v93, v92, v93
        s_mov_b64 exec, -1
        """)
    def h_s3sig():
        a("v_readfirstlane_b32 s84, v93"); s3_addr()
        a("s_cmp_lg_u32 s84, 7\ns_cbranch_scc1 L_s3_skip")
        signal(a, "s85")
        a("L_s3_skip:")
    def h_s3ld():
        a(f"v_lshrrev_b32 v91, 1, v0\nv_lshlrev_b32 v91, 7, v91\nv_and_b32 v90, 1, v0\nv_lshl_add_u32 v91, v90, 4, v91")
        a(f"s_mov_b32 s84, {F_S3}\nbuffer_load_dwordx4 {vr(VT,4)}, v91, {R_WS}, s84 offen {SC}")
    def wof_dma(r):
        for i in range(4): a(f"buffer_load_dwordx4 v1, {R_WS}, s90 offen offset:{1024*i} {SC} lds")
        if r < 3: a("s_add_u32 s90, s90, 4096")
    def h_s3chk():
        a("s_waitcnt vmcnt(0)")
        poll(a, "s3", 91, "s84", True, 4, sleep=16)
        a(f"""
        s_lshl_b32 s88, s75, 3
        s_lshr_b32 s89, s74, 2
        s_add_u32 s88, s88, s89
        s_and_b32 s89, s74, 3
        s_lshl_b32 s89, s89, 3
        s_add_u32 s89, s89, {SW}
        s_lshl_b32 s90, s89, 14
        s_add_u32 s90, s90, {WOF}
        s_lshl_b32 s86, {SW}, 12
        s_add_u32 s86, s86, {OS}
        s_mov_b32 m0, s86
        v_add_u32 v92, s86, v1
        """)
        if OPT.get("nos3"): return
        wof_dma(0)
        a(f"""
        s_or_b32 s84, s2, {SW}
        s_cmp_lg_u32 s84, 0
        s_cbranch_scc1 L_n_skip
        s_mov_b32 s84, {F_N}
        """)
        signal(a, "s84")
        a("L_n_skip:")
    def h_wrd(r):
        def f():
            if OPT.get("nos3"): return
            a("s_waitcnt vmcnt(0)")
            for i in range(4): a(f"ds_read_b128 {vr(PW+16*r+4*i,4)}, v92 offset:{1024*i}")
        return f
    def h_wld(r):
        def f():
            if OPT.get("nos3"): return
            wof_dma(r)
        return f
    def h_side():
        if OPT.get("nos3"):
            a("v_lshrrev_b32 v86, 4, v0\nv_and_b32 v87, 15, v0"); return
        a(f"""
        v_lshrrev_b32 v86, 4, v0
        v_and_b32 v87, 15, v0
        v_lshlrev_b32 v88, 14, v86
        v_lshl_add_u32 v88, v87, 1, v88
        s_lshl_b32 s90, s89, 16
        s_lshl_b32 s91, s88, 6
        s_add_u32 s90, s90, s91
        s_add_u32 s90, s90, {BT}
        """)
        for i in range(4):
            if i: a("s_add_u32 s90, s90, 4096")
            for nt in range(2): a(f"buffer_load_short_d16_hi v{PB+4*nt+i}, v88, {R_WS}, s90 offen offset:{32*nt} {SC}")
        a(f"""
        v_lshlrev_b32 v88, 2, v87
        s_lshl_b32 s90, s88, 7
        s_add_u32 s90, s90, {GW}
        buffer_load_dword v{PG}, v88, {R_WS}, s90 offen {SC}
        buffer_load_dword v{PG+1}, v88, {R_WS}, s90 offen offset:64 {SC}
        """)
    hooks = {t: hdma(t) for t in sched}
    def h_kvadd(): a("s_waitcnt vmcnt(0)\ns_mov_b64 exec, 1\nds_add_u32 v92, v93\ns_mov_b64 exec, -1")
    def h_kvrd(): a("ds_read_b32 v93, v92")
    def h_kvchk():
        a(f"""
        s_mov_b32 s92, {SPIN}
        L_kv:
        v_readfirstlane_b32 s84, v93
        s_sub_u32 s92, s92, 1
        s_cmp_eq_u32 s92, 0
        s_cbranch_scc1 L_kv_ok
        s_cmp_eq_u32 s84, 8
        s_cbranch_scc1 L_kv_ok
        ds_read_b32 v93, v92
        s_waitcnt lgkmcnt(0)
        s_branch L_kv
        L_kv_ok:
        """)
    def h_s2r():
        a(f"""
        v_and_b32 v91, 31, v0
        v_lshlrev_b32 v91, 2, v91
        s_lshr_b32 s84, s74, 1
        s_lshl_b32 s84, s84, 8
        s_lshr_b32 s85, s81, 9
        s_xor_b32 s85, s85, 128
        s_add_u32 s84, s84, s85
        s_add_u32 s84, s84, {F_S2R}
        buffer_load_dword v{VT}, v91, {R_WS}, s84 offen {SC}
        """)
    tb3 = int(OPT.get("tb3", 20 if two else 24))
    hooks.update({7: h_s2r, (14 if two else 18): early_stores, tb3: h_bar})
    if OPT.get("wbl2") != "0":
        def h_wb(): a(f"s_and_b32 s84, {SJ}, 15\ns_and_b32 s85, {SX}, 1\ns_or_b32 s84, s84, s85\ns_or_b32 s84, s84, {SW}\ns_cmp_lg_u32 s84, 0\ns_cbranch_scc1 L_wb_skip\nbuffer_wbl2 sc1\nL_wb_skip:")
        hooks[26] = h_wb
    if OPT.get("otouch"):
        def h_ot():
            a(f"""
            v_and_b32 v89, 1, v0
            v_lshlrev_b32 v89, 7, v89
            v_bfe_u32 v88, v0, 1, 2
            v_lshl_add_u32 v89, v88, 10, v89
            s_lshl_b32 s84, s88, 15
            s_lshl_b32 s85, {SW}, 12
            s_add_u32 s84, s84, s85
            s_and_b32 s85, s74, 3
            s_lshl_b32 s85, s85, 8
            s_add_u32 s84, s84, s85
            v_add_u32 v89, s84, v89
            s_mov_b64 exec, 0xff
            global_load_dword v88, v89, {S_OUT} {OPT['otouch']}
            s_mov_b64 exec, -1
            """)
        hooks[40] = h_ot
    hooks.update({34: h_s3ld, 38: h_s3chk, 58: h_side})
    for r in range(4):
        hooks[42 + 5 * r] = h_wrd(r)
        if r < 3: hooks[43 + 5 * r] = h_wld(r + 1)
    prios = {0: 1, 1: 0, 2: 3, 5: 2, 8: 1, 9: 0, 10: 3, tb3 - 4: 2, tb3 - 1: 1, tb3: 3, 48: 2, 59: 1, 62: 0}
    if "prios" in OPT: prios = {int(x.split(":")[0]): int(x.split(":")[1]) for x in OPT["prios"].split(",")}
    att_main(a, hooks, prios)
    lstamp(a, 29)
    att_finish2(a, "at")
    lstamp(a, 5)
    a(f"""
    s_lshl_b32 s93, s88, 15
    s_lshl_b32 s86, {SW}, 12
    s_add_u32 s93, s93, s86
    s_add_u32 s93, s93, {OF}
    """)
    OM = OPT.get("omod", SC).replace("_", " ")
    odma = lambda: [a(f"buffer_load_dwordx4 v1, {R_WS}, s93 offen offset:{1024*i} {OM} lds") for i in range(4)]
    if OPT.get("oack"):
        a("s_waitcnt vmcnt(1)")
        out_side_math(a)
        gemm = out_gemm(a)
        a(f"s_mov_b32 s92, {SPIN}\ns_waitcnt vmcnt(0)")
        if OPT.get("obar"): a("s_barrier")
        if OPT.get("opre"): a(f"s_sleep {OPT['opre']}")
        a("s_branch L_o_go\nL_o_again:")
    else:
        odma()
        a("s_waitcnt vmcnt(5)")
        out_side_math(a)
        gemm = out_gemm(a)
        a(f"s_mov_b32 s92, {SPIN}\ns_branch L_o_chk\nL_o_again:")
    if OPT.get("osleep"): a(f"s_sleep {OPT['osleep']}")
    a("L_o_go:")
    odma()
    a("L_o_chk:\ns_waitcnt vmcnt(0)")
    for i in range(4): a(f"ds_read_b128 {vr(16+4*i,4)}, v92 offset:{1024*i}")
    a("s_sub_u32 s92, s92, 1\ns_waitcnt lgkmcnt(2)")
    a("v_max3_u32 v5, v16, v17, v18\nv_max3_u32 v6, v19, v20, v21\nv_max3_u32 v5, v22, v23, v5\ns_waitcnt lgkmcnt(0)")
    a("v_max3_u32 v6, v24, v25, v6\nv_max3_u32 v5, v26, v27, v5\nv_max3_u32 v6, v28, v29, v6\nv_max3_u32 v5, v30, v31, v5\nv_max_u32 v5, v5, v6")
    a("""
    v_cmp_eq_u32 vcc, -1, v5
    s_cmp_eq_u32 s92, 0
    s_cbranch_scc1 L_o_ok
    s_cbranch_vccnz L_o_again
    L_o_ok:
    """)
    lstamp(a, 30)
    a("s_barrier")
    gemm()
    lstamp(a, 7)
    if G.STAMPS:
        lflush(a, range(8))
        for s in la:
            if s: G.STAMP_WAVES[s] = list(range(4, 8))
        for s in lg:
            if s: G.STAMP_WAVES[s] = list(range(4))
    if "amp" in OPT:
        w = OPT["amp"].split(",")[2]
        a(f"""
        s_cmp_lg_u32 s2, {OPT.get("ampwg", 0)}
        s_cbranch_scc1 L_end
        s_cmp_lg_u32 {SW}, {w}
        s_cbranch_scc1 L_end
        s_sub_u32 s98, s98, s96
        s_lshl_b32 s98, s98, 2
        s_min_u32 s98, s98, 40000
        s_memrealtime s[96:97]
        s_waitcnt lgkmcnt(0)
        L_amp:
        s_memrealtime s[100:101]
        s_waitcnt lgkmcnt(0)
        s_sub_u32 s100, s100, s96
        s_cmp_lt_u32 s100, s98
        s_cbranch_scc1 L_amp
        """)
    a("L_end:\ns_endpgm")
    att_slow(a, "at")
    a("L_codeend:\ns_endpgm")
    if G.STAMPS: stamp_reduce_kernel(a)
    a.raw('.section .rodata,"a"')
    if G.STAMPS: a.raw(descriptor("stamp_kernel", 32))
    a.raw(descriptor(k, 256))
    return a.text()

if __name__ == "__main__":
    out = sys.argv[1]
    for o in sys.argv[2:]:
        kk, _, v = o.partition("="); OPT[kk] = v or True
    G.STAMPS = bool(OPT.get("stamp"))
    OPT.setdefault("ones", "few"); OPT.setdefault("nowpf", True); OPT.setdefault("qmod", "plain"); OPT.setdefault("touch", "a"); OPT.setdefault("sched", "slow"); OPT.setdefault("wbl2", "1"); OPT.setdefault("qhyb", True); OPT.setdefault("rot7", "1"); OPT.setdefault("nocpf", "0"); OPT.setdefault("oack", True); OPT.setdefault("s3pre", True); OPT.setdefault("tmod", "sc1"); OPT.setdefault("omod", "sc1"); OPT.setdefault("ostm", "sc1"); OPT.setdefault("obar", True); OPT.setdefault("osleep", "2")
    txt = build_fused()
    open(out, "w").write(txt)
    print("wrote", out, len(txt), "bytes")
```
